```python
import torch

def _softmax(x, axis=-1):
    return torch.softmax(x, dim=axis)
def _gelu(x):
    return torch.nn.functional.gelu(x, approximate="tanh")
def _silu(x):
    return torch.nn.functional.silu(x)
def _sigmoid(x):
    return torch.sigmoid(x)
def _layernorm(x, axis=-1, eps=1e-5):
    m = x.mean(dim=axis, keepdim=True)
    v = x.var(dim=axis, keepdim=True, unbiased=False)
    return (x - m) / torch.sqrt(v + eps)
def _scatter_add(tgt, idx, src, axis=0):
    return tgt.clone().index_add_(axis, idx, src)
def _segment_sum(src, seg, n):
    out = torch.zeros((n,) + src.shape[1:], dtype=src.dtype)
    return out.index_add_(0, seg, src)
def _pad(x, pw):
    flat = tuple(v for pair in reversed(pw) for v in pair)
    return torch.nn.functional.pad(x, flat)

kernel_name = 'concat_heads__sliding_block__sliding_local_dilated__prompt'

def setup_inputs():

    _w = (lambda a: (lambda t: t.to(torch.bfloat16) if t.is_floating_point() else t)(torch.as_tensor(a)))
    def _A_setup():
        B, S, D = 1, 2048, 448
        return {
            "x": _w((lambda *s: torch.randn(*s, dtype=torch.bfloat16) * 0.2)(B, S, D)),
            "wqkv": _w((lambda *s: torch.randn(*s, dtype=torch.bfloat16) * 0.4)(D, 3 * D)),
            "wo": _w((lambda *s: torch.randn(*s, dtype=torch.bfloat16) * 0.4)(D, D)),
        }
    _A_in = _A_setup()

    def _B_setup():
        B, S, D = 1, 2048, 448
        return {
            "x": _w((lambda *s: torch.randn(*s, dtype=torch.bfloat16) * 0.2)(B, S, D)),
            "wqkv": _w((lambda *s: torch.randn(*s, dtype=torch.bfloat16) * 0.4)(D, 3 * D)),
            "wo": _w((lambda *s: torch.randn(*s, dtype=torch.bfloat16) * 0.4)(D, D)),
        }
    _B_in = _B_setup()

    return {
        "A_x": _A_in["x"],
        "A_wqkv": _A_in["wqkv"],
        "A_wo": _A_in["wo"],
        "B_x": _B_in["x"],
        "B_wqkv": _B_in["wqkv"],
        "B_wo": _B_in["wo"],
    }

def reference(A_x, A_wqkv, A_wo, B_x, B_wqkv, B_wo):
    def _A_ref(x, wqkv, wo):
        B, S, D = x.shape
        H = 16; Dh = D // H; W = 256
        qkv = (lambda x, *d: x.permute(*d))((x @ wqkv).reshape(B, S, 3, H, Dh), 2, 0, 3, 1, 4)
        q, k, v = qkv[0], qkv[1], qkv[2]
        scores = torch.einsum("bhqd,bhkd->bhqk", q, k) * (Dh ** -0.5)
        idx = torch.arange(S)
        mask = (idx[:, None] - idx[None, :] >= 0) & (idx[:, None] - idx[None, :] < W)
        scores = torch.where(mask[None, None], scores, -1e9)
        p = _softmax(scores, axis=-1)
        o = torch.einsum("bhqk,bhkd->bhqd", p, v)
        return (lambda x, *d: x.permute(*d))(o, 0, 2, 1, 3).reshape(B, S, D) @ wo

    def _B_ref(x, wqkv, wo):
        B, S, D = x.shape
        H = 16; Dh = D // H
        W, dil = 8, 2
        qkv = (lambda x, *d: x.permute(*d))((x @ wqkv).reshape(B, S, 3, H, Dh), 2, 0, 3, 1, 4)
        q, k, v = qkv[0], qkv[1], qkv[2]
        scale = Dh ** -0.5
        pos = torch.arange(S)
        off = torch.arange(W) * dil
        idx = pos[:, None] - off[None, :]
        mask = idx >= 0
        idx_c = torch.where(mask, idx, 0).reshape(-1)
        kg = k[:, :, idx_c, :].reshape(B, H, S, W, Dh)
        vg = v[:, :, idx_c, :].reshape(B, H, S, W, Dh)
        logits = torch.einsum("bhsd,bhswd->bhsw", q, kg) * scale
        logits = torch.where(mask[None, None, :, :], logits, -1e9)
        attn = _softmax(logits, axis=-1)
        o = torch.einsum("bhsw,bhswd->bhsd", attn, vg)
        return (lambda x, *d: x.permute(*d))(o, 0, 2, 1, 3).reshape(B, S, D) @ wo

    a = _A_ref(A_x, A_wqkv, A_wo)
    b = _B_ref(B_x, B_wqkv, B_wo)
    return torch.concatenate([a, b], axis=-1)
```

```python
import re

TRANS = ("v_exp_f32", "v_log_f32", "v_rcp_f32", "v_rsq_f32", "v_sqrt_f32", "v_sin_f32", "v_cos_f32")

def _regs(tok):
    tok = tok.strip()
    tok = tok.lstrip("-")
    if tok.startswith("abs(") or tok.startswith("|"):
        tok = tok.strip("|")
        tok = tok[4:-1] if tok.startswith("abs(") else tok
    m = re.fullmatch(r"([vsa])(\d+)", tok)
    if m:
        return {(m.group(1), int(m.group(2)))}
    m = re.fullmatch(r"([vsa])\[(\d+):(\d+)\]", tok)
    if m:
        return {(m.group(1), i) for i in range(int(m.group(2)), int(m.group(3)) + 1)}
    if tok in ("vcc", "exec", "m0", "scc"):
        return {("x", tok)}
    if tok in ("vcc_lo", "vcc_hi"):
        return {("x", "vcc")}
    if tok in ("exec_lo", "exec_hi"):
        return {("x", "exec")}
    return set()

class Ins:
    def __init__(self, text):
        self.text = text
        t = text.split(";")[0].strip()
        self.label = None
        self.op = None
        self.w = set(); self.r = set()
        self.srcc = set(); self.ab = set()
        self.states = 1
        self.kind = None
        self.target = None
        if t.endswith(":"):
            self.label = t[:-1]; self.states = 0; return
        if not t or t.startswith("."):
            self.states = 0; return
        parts = t.split(None, 1)
        op = parts[0]; self.op = op
        rest = parts[1] if len(parts) > 1 else ""
        ops = []; depth = 0; cur = ""
        for ch in rest:
            if ch in "[(": depth += 1
            if ch in "])": depth -= 1
            if ch == "," and depth == 0:
                ops.append(cur.strip()); cur = ""
            else:
                cur += ch
        if cur.strip(): ops.append(cur.strip())
        if ops:
            last = ops[-1].split()
            ops[-1] = last[0] if last else ""
            self.mods = last[1:]
        else:
            self.mods = []
        self.ops = ops
        base = op.replace("_e32", "").replace("_e64", "")
        self.base = base
        R = lambda i: _regs(ops[i]) if i < len(ops) else set()
        allr = lambda a: set().union(*[R(i) for i in range(a, len(ops))]) if len(ops) > a else set()
        if op == "s_nop":
            self.states = int(ops[0], 0) + 1; self.kind = "nop"; return
        if op.startswith("s_cbranch") or op == "s_branch":
            self.kind = "branch"; self.target = ops[0]
            if "vcc" in op: self.r = {("x", "vcc")}
            if "exec" in op: self.r = {("x", "exec")}
            return
        if op.startswith("v_mfma"):
            self.kind = "mfma"; self.w = R(0); self.ab = R(1) | R(2); self.srcc = R(3); self.r = self.ab | self.srcc
            self.passes = 4 if "16x16x32" in op else 8
            return
        if op.startswith("v_"):
            self.kind = "valu"
            if base.startswith("v_cmp"):
                self.w = R(0); self.r = allr(1)
                if base.startswith("v_cmpx"): self.w |= {("x", "exec")}
            elif base in ("v_readfirstlane_b32", "v_readlane_b32"):
                self.w = R(0); self.r = allr(1)
            elif base.startswith("v_permlane"):
                self.w = R(0) | R(1); self.r = R(0) | R(1)
            elif base in ("v_add_co_u32", "v_sub_co_u32", "v_subrev_co_u32"):
                self.w = R(0) | R(1); self.r = allr(2)
            elif base in ("v_addc_co_u32", "v_subb_co_u32"):
                self.w = R(0) | R(1); self.r = allr(2)
            else:
                self.w = R(0); self.r = allr(1)
                if base in ("v_fmac_f32",): self.r |= R(0)
                if base == "v_cndmask_b32" and len(ops) == 3: self.r |= {("x", "vcc")}
            return
        if op.startswith("buffer_") or op.startswith("global_"):
            self.kind = "vmem"
            islds = "lds" in self.mods
            if "atomic" in op:
                self.r = allr(0)
            elif "store" in op:
                self.r = allr(0)
                self.store_data = R(0) if op.startswith("buffer_") else R(1)
                self.wide = ("x3" in op or "x4" in op)
            elif islds:
                self.r = allr(0) | {("x", "m0")}; self.dma = True
            elif op in ("buffer_inv", "buffer_wbl2"):
                pass
            else:
                self.w = R(0); self.r = allr(1)
            return
        if op.startswith("ds_"):
            self.kind = "ds"
            if "write" in op: self.r = allr(0)
            else: self.w = R(0); self.r = allr(1)
            return
        if op.startswith("s_"):
            self.kind = "salu"
            if op.startswith("s_cmp") or op in ("s_waitcnt", "s_barrier", "s_sleep", "s_setprio", "s_endpgm"):
                self.r = allr(0)
            elif op.startswith("s_load") or op in ("s_memtime", "s_memrealtime"):
                self.kind = "smem"; self.w = R(0); self.r = allr(1)
            else:
                self.w = R(0); self.r = allr(1)
                if "saveexec" in op: self.w |= {("x", "exec")}; self.r |= {("x", "exec")}
            return
        raise ValueError("unknown instr: " + text)

def isv(s): return {x for x in s if x[0] in "va"}
def iss(s): return {x for x in s if x[0] == "s" or x == ("x", "vcc")}

def need(p, c):
    n = 0
    if p.kind == "valu":
        pv = isv(p.w); ps = iss(p.w)
        if c.kind == "mfma" and pv & c.r: n = max(n, 2)
        if c.kind == "valu":
            if c.base in ("v_readfirstlane_b32", "v_readlane_b32") and pv & c.r: n = max(n, 1)
            if c.base.startswith("v_permlane") and pv & c.r: n = max(n, 2)
            if "dpp" in c.text or "row_" in c.text or "quad_perm" in c.text:
                if pv & c.r: n = max(n, 2)
            if ps & c.r: n = max(n, 2)
            if c.base in ("v_readlane_b32", "v_writelane_b32") and ps & c.r: n = max(n, 4)
            if p.base in TRANS and c.base not in TRANS and pv & c.r: n = max(n, 1)
        if p.base in TRANS and c.kind in ("vmem", "ds", "mfma") and pv & c.r: n = max(n, 2)
        if c.kind == "vmem" and ps & c.r: n = max(n, 5)
        if c.kind in ("salu", "smem", "branch") and ps & c.r: n = max(n, 4)
        if ("x", "exec") in p.w:
            if c.kind == "mfma": n = max(n, 4)
            if c.kind == "valu": n = max(n, 5)
    if p.kind == "salu" and ("x", "m0") in p.w and getattr(c, "dma", False): n = max(n, 1)
    if p.kind == "mfma":
        big = {4: 8, 8: 12}[p.passes]
        ov = {4: 6, 8: 10}[p.passes]
        war = {4: 3, 8: 7}[p.passes]
        if c.kind == "mfma":
            if p.w & c.ab: n = max(n, big)
            if p.w & c.srcc and not (p.w == c.srcc and p.passes == c.passes): n = max(n, ov)
            if p.w & c.w and not (p.w == c.srcc): n = max(n, big)
        elif c.kind in ("valu", "vmem", "ds"):
            if p.w & (c.r | c.w): n = max(n, big)
            if c.kind == "valu" and p.srcc & c.w: n = max(n, war)
    if p.kind == "vmem" and getattr(p, "wide", False):
        if c.kind == "valu" and p.store_data & c.w: n = max(n, 2)
        elif c.kind in ("vmem", "ds", "mfma") and p.store_data & c.w: n = max(n, 1)
    return n

class Asm:
    def __init__(self):
        self.ins = []
        self.auto = True
    def raw(self, text):
        self.ins.append(Ins(text))
    def __call__(self, text):
        for line in text.strip("\n").split("\n"):
            line = line.strip()
            if not line: continue
            if line.startswith(";"):
                continue
            c = Ins(line)
            if self.auto and c.op:
                k = self._required(self.ins, c)
                while k > 0:
                    n = min(k, 8)
                    self.ins.append(Ins(f"s_nop {n-1}"))
                    k -= n
            self.ins.append(c)
    @staticmethod
    def _required(seq, c):
        dist = 0; k = 0
        for p in reversed(seq):
            if dist >= 20: break
            if p.op:
                nd = need(p, c)
                if nd > dist: k = max(k, nd - dist)
                if p.op in ("s_branch", "s_endpgm"): break
            dist += p.states
        return k
    def check_branches(self):
        labels = {p.label: i for i, p in enumerate(self.ins) if p.label}
        bad = []
        for i, p in enumerate(self.ins):
            if p.kind == "branch":
                j = labels[p.target]
                pre = self.ins[max(0, i - 24): i + 1]
                pre = [q for q in pre]
                seq = list(pre[:-1]) + [Ins("s_nop 0")]
                for c in self.ins[j: j + 24]:
                    if c.op:
                        k = self._required(seq, c)
                        if k > 0: bad.append((p.text, c.text, k))
                        if c.op in ("s_branch", "s_endpgm"): break
                    seq.append(c)
        return bad
    def text(self):
        out = []
        for p in self.ins:
            out.append(p.text if (p.label or p.text.startswith(".")) else "    " + p.text)
        return "\n".join(out) + "\n"
```

```python
import sys, struct, math
from asmlib import Asm

NAME = "concat_heads__sliding_block__sliding_local_dilated__prompt"
HEADER = open("cdna_kernels/%s.s.ref" % NAME).read().split("; Override launch")[0]

def f2u(x): return struct.unpack("<I", struct.pack("<f", x))[0]

XB, WB, WOB_BYTES, OUTB = 1835008, 1204224, 401408, 3670016
QA, KA, VA, OA, OB = 0x000000, 0x200000, 0x400000, 0x600000, 0x800000
FL1, FLB, FLA = 0xA00000, 0xA10000, 0xA14000
STAMP = 0xB00000
WSB = 0xC00000
BIG = 0x40000000
NEG = f2u(-1e30)
CSC = f2u((28 ** -0.5) * math.log2(math.e))
SLOT = 43008
L_WOB, L_WOA, L_KV = 0, 57344, 114688
POLL_MAX = 40000

sWAVE, sBR, sHP, sRB, sAH, sARB, sRB64, sCB, sTAG = 4, 5, 6, 7, 8, 9, 10, 11, 12
sX, sW, sWoA, sWoB, sWS, sOut = 36, 40, 44, 48, 52, 56
def srd(b): return f"s[{b}:{b+3}]"
vL, vL16 = 255, 254
vTAG = 253

def gen(stage=9, stamps=False):
    a = Asm()
    nst = [0]
    def stamp(i):
        if stamps:
            a(f"s_memrealtime s[{64+2*i}:{65+2*i}]")
            a("s_waitcnt lgkmcnt(0)")
    a.raw(f"{NAME}_kernel:")
    a(f"""
    s_cmp_ge_u32 s2, 256
    s_cbranch_scc1 L_end
    s_load_dwordx16 s[16:31], s[0:1], 0
    s_load_dwordx2 s[32:33], s[0:1], 64
    v_lshrrev_b32 v1, 6, v0
    v_and_b32 v{vL}, 63, v0
    v_readfirstlane_b32 s{sWAVE}, v1
    s_and_b32 s13, s2, 7
    s_lshr_b32 s14, s2, 3
    s_lshr_b32 s{sBR}, s13, 2
    s_and_b32 s15, s13, 1
    s_lshl_b32 s15, s15, 2
    s_and_b32 s3, s14, 3
    s_add_u32 s{sHP}, s15, s3
    s_lshr_b32 s15, s13, 1
    s_and_b32 s15, s15, 1
    s_lshl_b32 s15, s15, 3
    s_lshr_b32 s3, s14, 2
    s_add_u32 s{sRB}, s15, s3
    v_lshlrev_b32 v{vL16}, 4, v{vL}
    s_mov_b32 s{sX+2}, {XB}
    s_mov_b32 s{sX+3}, 0x20000
    s_mov_b32 s{sW+2}, {WB}
    s_mov_b32 s{sW+3}, 0x20000
    s_cmp_eq_u32 s{sBR}, 0
    s_waitcnt lgkmcnt(0)
    s_cselect_b32 s{sX}, s16, s22
    s_cselect_b32 s{sX+1}, s17, s23
    s_cselect_b32 s{sW}, s18, s24
    s_cselect_b32 s{sW+1}, s19, s25
    """)
    stamp(0)
    rest_setup = f"""
    s_lshl_b32 s{sAH}, s13, 1
    s_and_b32 s3, s14, 1
    s_add_u32 s{sAH}, s{sAH}, s3
    s_lshr_b32 s{sARB}, s14, 1
    s_lshl_b32 s{sRB64}, s13, 2
    s_lshr_b32 s3, s14, 3
    s_add_u32 s{sRB64}, s{sRB64}, s3
    s_and_b32 s{sCB}, s14, 7
    s_mov_b32 s{sWoA}, s20
    s_mov_b32 s{sWoA+1}, s21
    s_mov_b32 s{sWoA+2}, {WOB_BYTES}
    s_mov_b32 s{sWoA+3}, 0x20000
    s_mov_b32 s{sWoB}, s26
    s_mov_b32 s{sWoB+1}, s27
    s_mov_b32 s{sWoB+2}, {WOB_BYTES}
    s_mov_b32 s{sWoB+3}, 0x20000
    s_mov_b32 s{sWS}, s32
    s_mov_b32 s{sWS+1}, s33
    s_mov_b32 s{sWS+2}, {WSB}
    s_mov_b32 s{sWS+3}, 0x20000
    s_mov_b32 s{sOut}, s28
    s_mov_b32 s{sOut+1}, s29
    s_mov_b32 s{sOut+2}, {OUTB}
    s_mov_b32 s{sOut+3}, 0x20000
    """
    a(f"""
    s_cmp_lt_u32 s{sWAVE}, 4
    s_cbranch_scc1 L_compute
    """)
    vXe, vXo, vXh, vW0, vW1, vWo = 10, 11, 12, 13, 14, 15
    sLW, sLx, sLh, sLw, sT0, sT1, sT2, sBIGs = 60, 61, 62, 63, 34, 35, 3, 15
    a(f"""
    s_sub_u32 s{sLW}, s{sWAVE}, 4
    v_lshrrev_b32 v1, 3, v{vL}
    v_and_b32 v2, 7, v{vL}
    v_lshrrev_b32 v3, 4, v{vL}
    s_lshl_b32 s{sT0}, s{sRB}, 7
    s_lshl_b32 s{sT1}, s{sLW}, 5
    s_add_u32 s{sT0}, s{sT0}, s{sT1}
    v_add_u32 v4, s{sT0}, v1
    v_mul_u32_u24 v4, 896, v4
    v_xor_b32 v5, v2, v3
    v_lshl_add_u32 v{vXe}, v5, 4, v4
    v_xor_b32 v5, 4, v5
    v_lshl_add_u32 v{vXo}, v5, 4, v4
    v_add_u32 v{vXo}, 6144, v{vXo}
    s_lshl_b32 s{sLx}, s{sLW}, 12
    s_lshl_b32 s{sLw}, s{sLW}, 11
    s_lshl_b32 s{sLh}, s{sLW}, 9
    s_lshl_b32 s{sT1}, s{sLW}, 4
    v_add_u32 v4, s{sT1}, v1
    v_mul_u32_u24 v4, 2688, v4
    s_mul_i32 s{sT1}, s{sHP}, 112
    v_add_u32 v4, s{sT1}, v4
    v_and_b32 v5, 1, v3
    v_lshlrev_b32 v5, 1, v5
    v_xor_b32 v5, v2, v5
    s_mov_b32 s{sBIGs}, {BIG}
    v_mov_b32 v7, s{sBIGs}
    v_lshl_add_u32 v{vW0}, v5, 4, v4
    v_cmp_eq_u32 vcc, 7, v5
    v_xor_b32 v6, 4, v5
    v_cndmask_b32 v{vW0}, v{vW0}, v7, vcc
    v_lshl_add_u32 v{vW1}, v6, 4, v4
    v_cmp_eq_u32 vcc, 7, v6
    v_add_u32 v{vW1}, {8*2688-1024}, v{vW1}
    v_cndmask_b32 v{vW1}, v{vW1}, v7, vcc
    ; halo
    s_lshl_b32 s{sT0}, s{sRB}, 7
    s_lshl_b32 s{sT1}, s{sLW}, 2
    s_add_u32 s{sT0}, s{sT0}, s{sT1}
    s_sub_u32 s{sT0}, s{sT0}, 16
    v_add_u32 v4, s{sT0}, v1
    v_mul_i32_i24 v4, 896, v4
    s_lshl_b32 s{sT1}, s{sLW}, 1
    v_add_u32 v5, s{sT1}, v3
    v_and_b32 v5, 7, v5
    v_xor_b32 v5, v2, v5
    v_lshl_add_u32 v{vXh}, v5, 4, v4
    s_cmp_eq_u32 s{sRB}, 0
    s_cselect_b64 vcc, -1, 0
    v_cndmask_b32 v{vXh}, v{vXh}, v7, vcc
    """)
    def issue_chunk(c):
        slot = ((c + 2) % 3) * SLOT
        a(f"""
        s_add_u32 m0, s{sLx}, {slot + 2048}
        s_mov_b32 s{sT0}, {c*128}
        s_mov_b32 s{sT1}, {c*128 + 12288}
        buffer_load_dwordx4 v{vXe}, {srd(sX)}, s{sT0} offen lds
        buffer_load_dwordx4 v{vXo}, {srd(sX)}, s{sT0} offen offset:1024 lds
        buffer_load_dwordx4 v{vXe}, {srd(sX)}, s{sT1} offen offset:2048 lds
        buffer_load_dwordx4 v{vXo}, {srd(sX)}, s{sT1} offen offset:3072 lds
        """)
        for p in range(3):
            a(f"""
            s_add_u32 m0, s{sLw}, {slot + 18432 + p*8192}
            s_mov_b32 s{sT1}, {c*64*2688 + p*896}
            buffer_load_dwordx4 v{vW0}, {srd(sW)}, s{sT1} offen lds
            buffer_load_dwordx4 v{vW1}, {srd(sW)}, s{sT1} offen offset:1024 lds
            """)
        a(f"""
        s_add_u32 m0, s{sLh}, {slot}
        s_mov_b64 exec, 0xffffffff
        buffer_load_dwordx4 v{vXh}, {srd(sX)}, s{sT0} offen lds
        s_mov_b64 exec, -1
        """)
    for c in range(3): issue_chunk(c)
    a(rest_setup)
    sLwo, sL1k = 61, 62
    sLwo, sL1k = 98, 99
    a(f"""
    v_and_b32 v5, 6, v1
    v_xor_b32 v5, v2, v5
    v_mul_u32_u24 v4, 896, v1
    s_lshl_b32 s{sT1}, s{sCB}, 7
    v_add_u32 v4, s{sT1}, v4
    v_lshl_add_u32 v{vWo}, v5, 4, v4
    s_cmp_eq_u32 s{sCB}, 7
    s_cselect_b64 vcc, -1, 0
    s_mul_i32 s{sLwo}, s{sLW}, 7168
    s_lshl_b32 s{sL1k}, s{sLW}, 10
    v_cndmask_b32 v{vWo}, v{vWo}, v7, vcc
    """)
    def issue_wo(i0, i1):
        for i in range(i0, i1):
            br = i >= 14
            a(f"""
            s_add_u32 m0, s{sL1k}, {4096*i}
            s_add_u32 s{sT1}, s{sLwo}, {(4*i - 56*br)*7168}
            buffer_load_dwordx4 v{vWo}, {srd(sWoA if br else sWoB)}, s{sT1} offen lds
            """)
    a("s_waitcnt vmcnt(22)")
    stamp(1)
    a("s_barrier")
    for c in range(1, 7):
        n = 11 if c <= 5 else 10
        a(f"s_waitcnt vmcnt({n})")
        a("s_barrier")
        stamp(4 + c)
        if c + 2 <= 6: issue_chunk(c + 2)
        if c == 5: issue_wo(0, 10)
        if c == 6: issue_wo(10, 21)
    a("s_barrier")
    stamp(2)
    a(f"""
    v_mov_b32 v1, 0
    global_load_dword v{vTAG}, v1, s[30:31] sc1
    """)
    issue_wo(21, 28)
    a("s_waitcnt vmcnt(7)")
    a("s_branch L_phase2")

    a.raw("L_compute:")
    a(rest_setup)
    sHH, sRH = 60, 61
    def Qa(rt, ft): return ((rt-1)*2+ft)*4
    def Ka(rt, ft): return 32 + (rt*2+ft)*4
    def Va(rt, ft): return 72 + (rt*2+ft)*4
    def Fx(s, rt): return 112 + 44*s + 4*rt
    def Fw(s, p, ft): return 112 + 44*s + 20 + (p*2+ft)*4
    vxa = [200, 201]; vwa = [202, 203]
    vBS, vBP, vBP1 = 204, 208, 212
    slot0 = 2 * SLOT
    a(f"""
    v_mov_b32 v1, 0
    s_or_b32 s3, s2, s{sWAVE}
    s_cmp_lg_u32 s3, 0
    s_cbranch_scc1 L_notag
    s_memrealtime s[34:35]
    s_waitcnt lgkmcnt(0)
    s_or_b32 s34, s34, 1
    v_mov_b32 v2, s34
    global_store_dword v1, v2, s[30:31] sc1
    ;
    L_notag:
    s_and_b32 s{sHH}, s{sWAVE}, 1
    s_lshr_b32 s{sRH}, s{sWAVE}, 1
    v_and_b32 v2, 15, v{vL}
    v_lshrrev_b32 v3, 4, v{vL}
    ; x address
    s_lshl_b32 s3, s{sRH}, 6
    v_add_u32 v4, s3, v2
    v_lshlrev_b32 v4, 7, v4
    v_lshrrev_b32 v5, 1, v2
    v_xor_b32 v5, v5, v3
    v_lshl_add_u32 v{vxa[0]}, v5, 4, v4
    v_add_u32 v{vxa[0]}, {slot0}, v{vxa[0]}
    v_xor_b32 v{vxa[1]}, 64, v{vxa[0]}
    ; w address
    v_lshrrev_b32 v4, 2, v2
    v_and_b32 v5, 3, v{vL}
    v_lshl_add_u32 v6, v3, 3, v4
    v_lshlrev_b32 v6, 7, v6
    v_add_u32 v6, {slot0 + 18432}, v6
    v_and_b32 v7, 2, v4
    v_and_b32 v8, 1, v3
    v_lshl_or_b32 v7, v8, 2, v7
    v_lshlrev_b32 v7, 4, v7
    s_mul_i32 s3, s{sHH}, 56
    v_lshl_add_u32 v8, v5, 3, s3
    v_xor_b32 v9, v8, v7
    v_add_u32 v{vwa[0]}, v6, v9
    v_add_u32 v8, 32, v8
    v_cmp_eq_u32 vcc, 56, v8
    v_mov_b32 v9, 120
    v_cndmask_b32 v8, v8, v9, vcc
    v_xor_b32 v9, v8, v7
    v_add_u32 v{vwa[1]}, v6, v9
    """)
    a(f"""
    v_mov_b32 v9, {NEG}
    v_lshlrev_b32 v4, 2, v3
    v_sub_u32 v4, v2, v4
    """)
    for i in range(4):
        a(f"""
        v_subrev_u32 v5, {i}, v4
        v_and_b32 v6, 0x80000001, v5
        v_cmp_eq_u32 vcc, 0, v6
        v_cndmask_b32 v{vBS+i}, v9, 0, vcc
        v_cmp_eq_u32 vcc, 0x80000000, v6
        v_cndmask_b32 v{vBP+i}, v9, 0, vcc
        """)
    a(f"""
    s_or_b32 s3, s{sRB}, s{sRH}
    s_cmp_eq_u32 s3, 0
    s_cselect_b64 vcc, -1, 0
    """)
    for i in range(4):
        a(f"v_cndmask_b32 v{vBP1+i}, v{vBP+i}, v9, vcc")
    a(f"""
    v_cmp_eq_u32 vcc, 12, v2
    v_cndmask_b32 v216, 0, 1.0, vcc
    global_load_dword v{vTAG}, v1, s[30:31] sc1
    """)
    for r in range(0, 72): a(f"v_mov_b32 v{r}, 0")
    for rt in range(5):
        for i in range(4):
            a(f"v_mov_b32 v{Va(rt,0)+i}, 0")
            a(f"v_mov_b32 v{Va(rt,1)+i}, v216")
    def reads(s, ks):
        L = []
        for rt in [1, 2, 3, 4, 0]:
            L.append(f"ds_read_b128 v[{Fx(s,rt)}:{Fx(s,rt)+3}], v{vxa[ks]} offset:{rt*2048}")
        for p in range(3):
            for ft in range(2):
                for u in range(2):
                    d = Fw(s, p, ft) + 2*u
                    L.append(f"ds_read_b64_tr_b16 v[{d}:{d+1}], v{vwa[ft]} offset:{p*8192 + ks*4096 + u*512}")
        return L
    def q4(r): return f"v[{r}:{r+3}]"
    def mfmas(s):
        M, Hh = [], []
        for rt in [1, 2, 3, 4, 0]:
            for ft in range(2):
                if rt: M.append(f"v_mfma_f32_16x16x32_bf16 {q4(Qa(rt,ft))}, {q4(Fw(s,0,ft))}, {q4(Fx(s,rt))}, {q4(Qa(rt,ft))}")
                (M if rt else Hh).append(f"v_mfma_f32_16x16x32_bf16 {q4(Ka(rt,ft))}, {q4(Fw(s,1,ft))}, {q4(Fx(s,rt))}, {q4(Ka(rt,ft))}")
                (M if rt else Hh).append(f"v_mfma_f32_16x16x32_bf16 {q4(Va(rt,ft))}, {q4(Fx(s,rt))}, {q4(Fw(s,2,ft))}, {q4(Va(rt,ft))}")
        return M, Hh
    def kstep(s, rd, tag):
        M, Hh = mfmas(s)
        for i, m in enumerate(M):
            a(m)
            if i < len(rd): a(rd[i])
        a(f"s_cbranch_scc1 L_skip{tag}")
        for m in Hh: a(m)
        a.raw(f"L_skip{tag}:")
    sC, sD = 62, 63
    a("s_barrier")
    stamp(1)
    for r in reads(0, 0): a(r)
    a(f"s_mov_b32 s{sC}, 0")
    a.raw("L_gemm:")
    a(f"s_cmp_eq_u32 s{sBR}, 0")
    a("s_waitcnt lgkmcnt(0)")
    kstep(0, reads(1, 1), "a")
    a(f"""
    s_mul_i32 s3, s{sC}, 86
    s_lshr_b32 s3, s3, 8
    s_mul_i32 s3, s3, 3
    s_cmp_eq_u32 s3, s{sC}
    s_mov_b32 s{sD}, {SLOT}
    s_cselect_b32 s{sD}, {(-2*SLOT) & 0xffffffff}, s{sD}
    v_add_u32 v{vxa[0]}, s{sD}, v{vxa[0]}
    v_add_u32 v{vxa[1]}, s{sD}, v{vxa[1]}
    v_add_u32 v{vwa[0]}, s{sD}, v{vwa[0]}
    v_add_u32 v{vwa[1]}, s{sD}, v{vwa[1]}
    s_cmp_eq_u32 s{sBR}, 0
    s_waitcnt lgkmcnt(0)
    s_barrier
    """)
    kstep(1, reads(0, 0), "b")
    a(f"""
    s_add_u32 s{sC}, s{sC}, 1
    s_cmp_lt_u32 s{sC}, 7
    s_cbranch_scc1 L_gemm
    """)
    stamp(2)
    def Qf(j): return 112 + 4*(j-1)
    def Kf(rt): return 128 + 4*rt
    def Vf(dt, rt): return 148 + 10*dt + 2*rt
    a("s_waitcnt lgkmcnt(0)")
    def cvt(d, s0): a(f"v_cvt_pk_bf16_f32 v{d}, v{s0}, v{s0+1}")
    for rt in [1, 2, 3, 4, 0]:
        for ft in range(2):
            if rt:
                cvt(Qf(rt)+2*ft, Qa(rt,ft)); cvt(Qf(rt)+2*ft+1, Qa(rt,ft)+2)
            cvt(Kf(rt)+2*ft, Ka(rt,ft)); cvt(Kf(rt)+2*ft+1, Ka(rt,ft)+2)
            cvt(Vf(ft,rt), Va(rt,ft)); cvt(Vf(ft,rt)+1, Va(rt,ft)+2)
    sH = 62
    a(f"""
    s_lshl_b32 s{sH}, s{sHP}, 1
    s_add_u32 s{sH}, s{sH}, s{sHH}
    s_lshl_b32 s34, s{sRB}, 1
    s_add_u32 s34, s34, s{sRH}
    s_cmp_eq_u32 s{sBR}, 0
    s_cbranch_scc0 L_attnB
    """)
    a(f"""
    s_lshl_b32 s3, s{sH}, 7
    s_lshl_b32 s35, s34, 2
    s_add_u32 s3, s3, s35
    s_lshl_b32 s3, s3, 10
    s_add_u32 s35, s3, {KA}
    s_add_u32 s63, s3, {VA}
    """)
    for rt in range(1, 5):
        a(f"buffer_store_dwordx4 {q4(Kf(rt))}, v{vL16}, {srd(sWS)}, s35 offen offset:{(rt-1)*1024} sc1")
    for pr in range(2):
        for dt in range(2):
            a(f"buffer_store_dwordx4 {q4(Vf(dt,1+2*pr))}, v{vL16}, {srd(sWS)}, s63 offen offset:{pr*2048+dt*1024} sc1")
    for rt in range(1, 5):
        a(f"buffer_store_dwordx4 {q4(Qf(rt))}, v{vL16}, {srd(sWS)}, s3 offen offset:{(rt-1)*1024} sc1")
    a(f"""
    s_lshl_b32 s3, s{sH}, 5
    s_add_u32 s3, s3, s34
    s_lshl_b32 s3, s3, 7
    s_add_u32 s63, s3, {FL1}
    s_branch L_pub1
    """)
    a.raw("L_attnB:")
    def S(j, t): return 8*(j-1) + 4*t
    for j in range(1, 5):
        bp = vBP1 if j == 1 else vBP
        a(f"v_mfma_f32_16x16x32_bf16 {q4(S(j,0))}, {q4(Kf(j-1))}, {q4(Qf(j))}, {q4(bp)}")
        a(f"v_mfma_f32_16x16x32_bf16 {q4(S(j,1))}, {q4(Kf(j))}, {q4(Qf(j))}, {q4(vBS)}")
    a(f"s_mov_b32 s35, {CSC}")
    M = lambda j: 32 + (j-1)
    T = lambda j: 36 + (j-1)
    for j in range(1, 5):
        s = S(j, 0)
        a(f"v_max3_f32 v{M(j)}, v{s}, v{s+1}, v{s+2}")
        a(f"v_max3_f32 v{T(j)}, v{s+3}, v{s+4}, v{s+5}")
        a(f"v_max3_f32 v{M(j)}, v{M(j)}, v{s+6}, v{s+7}")
        a(f"v_max_f32 v{M(j)}, v{M(j)}, v{T(j)}")
    for sw in ("v_permlane32_swap_b32", "v_permlane16_swap_b32"):
        for j in range(1, 5): a(f"v_mov_b32 v{T(j)}, v{M(j)}")
        for j in range(1, 5): a(f"{sw} v{M(j)}, v{T(j)}")
        for j in range(1, 5): a(f"v_max_f32 v{M(j)}, v{M(j)}, v{T(j)}")
    for j in range(1, 5): a(f"v_mul_f32 v{M(j)}, s35, v{M(j)}")
    for j in range(1, 5):
        for i in range(8): a(f"v_fma_f32 v{S(j,0)+i}, v{S(j,0)+i}, s35, -v{M(j)}")
    for j in range(1, 5):
        for i in range(8): a(f"v_exp_f32 v{S(j,0)+i}, v{S(j,0)+i}")
    P = lambda j: 40 + 4*(j-1)
    for j in range(1, 5):
        for i in range(4): cvt(P(j)+i, S(j,0)+2*i)
    O = lambda j, dt: 72 + 8*(j-1) + 4*dt
    for j in range(1, 5):
        for dt in (1, 0):
            a(f"v_mfma_f32_16x16x32_bf16 {q4(O(j,dt))}, {q4(Vf(dt,j-1))}, {q4(P(j))}, 0")
    def normalize(O0, O1, ta, tb, dst, vG3):
        return [
            [f"v_mov_b32 v{ta}, v{O1}", f"v_mov_b32 v{tb}, v{O1}"],
            [f"v_permlane32_swap_b32 v{ta}, v{tb}"],
            [f"v_mov_b32 v{ta}, v{tb}"],
            [f"v_permlane16_swap_b32 v{ta}, v{tb}"],
            [f"v_rcp_f32 v{tb}, v{tb}"],
            [f"v_mul_f32 v{ta}, v{tb}, v{vG3}"],
            [f"v_mul_f32 v{O0+i}, v{O0+i}, v{tb}" for i in range(4)] + [f"v_mul_f32 v{O1+i}, v{O1+i}, v{ta}" for i in range(4)],
            [f"v_cvt_pk_bf16_f32 v{dst}, v{O0}, v{O0+1}", f"v_cvt_pk_bf16_f32 v{dst+1}, v{O0+2}, v{O0+3}",
             f"v_cvt_pk_bf16_f32 v{dst+2}, v{O1}, v{O1+1}", f"v_cvt_pk_bf16_f32 v{dst+3}, v{O1+2}, v{O1+3}"],
        ]
    vG3 = 217
    a(f"""
    v_cmp_gt_u32 vcc, 48, v{vL}
    v_cndmask_b32 v{vG3}, 0, 1.0, vcc
    """)
    st = [normalize(O(j,0), O(j,1), 56+2*(j-1), 57+2*(j-1), 180+4*(j-1), vG3) for j in range(1, 5)]
    for k in range(len(st[0])):
        for j in range(4):
            for x in st[j][k]: a(x)
    a(f"""
    s_lshl_b32 s3, s34, 6
    s_add_u32 s3, s3, s{sH}
    s_lshl_b32 s3, s3, 10
    s_add_u32 s3, s3, {OB}
    """)
    for j in range(1, 5):
        a(f"buffer_store_dwordx4 {q4(180+4*(j-1))}, v{vL16}, {srd(sWS)}, s3 offen sc1")
        if j < 4: a(f"s_add_u32 s3, s3, 16384")
    a(f"""
    s_lshl_b32 s3, s34, 2
    s_lshr_b32 s35, s{sH}, 2
    s_add_u32 s3, s3, s35
    s_lshl_b32 s3, s3, 7
    s_and_b32 s35, s{sH}, 3
    s_lshl_b32 s35, s35, 2
    s_add_u32 s3, s3, s35
    s_add_u32 s63, s3, {FLB}
    """)
    a.raw("L_pub1:")
    stamp(3)
    a("s_waitcnt vmcnt(0)")
    def get_tag(lbl):
        a(f"""
        s_mov_b32 s35, {POLL_MAX}
        L_tag{lbl}:
        v_readfirstlane_b32 s{sTAG}, v{vTAG}
        s_cmp_lg_u32 s{sTAG}, 0
        s_cbranch_scc1 L_tagok{lbl}
        v_mov_b32 v1, 0
        global_load_dword v{vTAG}, v1, s[30:31] sc1
        s_sub_u32 s35, s35, 1
        s_waitcnt vmcnt(0)
        s_cmp_lg_u32 s35, 0
        s_cbranch_scc1 L_tag{lbl}
        L_tagok{lbl}:
        """)
    get_tag("c")
    def put_flag(soff):
        a(f"""
        v_mov_b32 v1, 0
        s_mov_b64 exec, 1
        buffer_store_dword v{vTAG}, v1, {srd(sWS)}, s{soff} offen sc1
        s_mov_b64 exec, -1
        """)
    put_flag(63)
    stamp(4)
    a.raw("L_phase2:")
    get_tag("p")
    a("s_barrier")
    if stage >= 2:
        phase2(a, stage, stamp, normalize, put_flag, q4)
    a.raw("L_fin:")
    if stamps:
        stamp(15)
        a(f"""
        s_lshl_b32 s3, s2, 3
        s_add_u32 s3, s3, s{sWAVE}
        s_lshl_b32 s3, s3, 6
        s_add_u32 s3, s3, {STAMP}
        v_mov_b32 v1, 0
        s_mov_b64 exec, 1
        """)
        for i in range(16):
            a(f"v_mov_b32 v2, s{64+2*i}")
            a(f"buffer_store_dword v2, v1, {srd(sWS)}, s3 offen offset:{4*i}")
    a.raw("L_end:")
    a("s_endpgm")
    bad = a.check_branches()
    for b in bad: print("BRANCH HAZARD", b, file=sys.stderr)
    assert not bad
    body = a.text()
    out = HEADER + f"""; @launch grid=(256,1,1) block=(512,1,1) lds=163840
.amdgcn_target "amdgcn-amd-amdhsa--gfx950"
.text
.globl {NAME}_kernel
.p2align 8
.type {NAME}_kernel,@function
""" + body + f""".section .rodata,"a"
.p2align 6
.amdhsa_kernel {NAME}_kernel
  .amdhsa_next_free_vgpr 256
  .amdhsa_next_free_sgpr 102
  .amdhsa_accum_offset 256
  .amdhsa_group_segment_fixed_size 0
  .amdhsa_kernarg_size 72
  .amdhsa_user_sgpr_count 2
  .amdhsa_user_sgpr_kernarg_segment_ptr 1
  .amdhsa_system_sgpr_workgroup_id_x 1
.end_amdhsa_kernel
"""
    return out

def phase2(a, stage, stamp, normalize, put_flag, q4):
    sW_ = sWAVE
    sRP, sKQ, sT, sU, sPF = 60, 61, 62, 63, 34
    def poll(lbl, vaddr, soff):
        a(f"""
        s_mov_b32 s35, {POLL_MAX}
        L_poll{lbl}:
        buffer_load_dword v231, v{vaddr}, {srd(sWS)}, s{soff} offen sc1
        s_sub_u32 s35, s35, 1
        s_waitcnt vmcnt(0)
        v_cmp_ne_u32 vcc, v231, v{vTAG}
        s_cmp_eq_u32 s35, 0
        s_cbranch_scc1 L_pollok{lbl}
        s_cbranch_vccz L_pollok{lbl}
        s_sleep 1
        s_branch L_poll{lbl}
        L_pollok{lbl}:
        """)
    vR15, vG = 240, 241
    vWA = 242
    vG3 = 250
    vPA = 251
    a(f"""
    v_mov_b32 v{vTAG}, s{sTAG}
    s_and_b32 s{sRP}, s{sW_}, 1
    s_lshr_b32 s{sKQ}, s{sW_}, 1
    v_and_b32 v{vR15}, 15, v{vL}
    v_lshrrev_b32 v{vG}, 4, v{vL}
    v_cmp_gt_u32 vcc, 48, v{vL}
    v_cndmask_b32 v{vG3}, 0, 1.0, vcc
    v_lshrrev_b32 v1, 2, v{vR15}
    v_lshl_add_u32 v2, v{vG}, 2, v1
    v_lshlrev_b32 v2, 7, v2
    s_mul_i32 s3, s{sKQ}, 14336
    v_add_u32 v2, s3, v2
    v_and_b32 v3, 2, v1
    v_and_b32 v4, 1, v{vG}
    v_lshl_or_b32 v3, v4, 2, v3
    v_lshlrev_b32 v3, 4, v3
    v_and_b32 v4, 3, v{vL}
    v_lshlrev_b32 v4, 3, v4
    v_xor_b32 v3, v3, v4
    v_add_u32 v2, v2, v3
    v_mov_b32 v5, 2048
    v_cndmask_b32 v5, 0, v5, vcc
    """)
    for cidx in range(4):
        a(f"""
        s_add_u32 s3, s{sKQ}, {cidx}
        s_and_b32 s3, s3, 3
        s_lshl_b32 s3, s3, 5
        v_xor_b32 v{vWA+cidx}, s3, v2
        v_add_u32 v{vWA+4+cidx}, v{vWA+cidx}, v5
        """)
    def wo_reads(base):
        L = []
        for hq in range(4):
            for cidx in range(4):
                for u in range(2):
                    d = base + (hq*4 + cidx)*4 + 2*u
                    L.append(f"ds_read_b64_tr_b16 v[{d}:{d+1}], v{vWA + 4*u + ((cidx + 2*(hq&1)) & 3)} offset:{hq*3584}")
        return L
    WB_, OF_ = 128, 192
    for r in wo_reads(WB_): a(r)
    for i in range(8): a(f"v_add_u32 v{vWA+i}, {L_WOA}, v{vWA+i}")
    a(f"""
    v_min_u32 v1, 5, v{vL}
    s_lshl_b32 s3, s{sARB}, 1
    s_sub_u32 s3, s3, 4
    v_add_u32 v1, s3, v1
    v_max_i32 v1, 0, v1
    v_lshlrev_b32 v{vPA}, 7, v1
    s_lshl_b32 s3, s{sAH}, 12
    s_add_u32 s{sPF}, s3, {FL1}
    """)
    poll("1", vPA, sPF)
    stamp(11)
    vK, vV = 2, 3
    QF = 124
    a(f"""
    v_add_u32 v{vK}, {KA}, v{vL16}
    v_add_u32 v{vV}, {VA}, v{vL16}
    s_lshl_b32 s{sT}, s{sARB}, 3
    s_sub_u32 s{sT}, s{sT}, 16
    s_mul_i32 s3, s{sW_}, 3
    s_add_u32 s{sT}, s{sT}, s3
    s_lshl_b32 s{sU}, s{sAH}, 7
    """)
    for i in range(3):
        a(f"""
        s_add_u32 s3, s{sU}, s{sT}
        s_lshl_b32 s3, s3, 10
        s_cmp_lt_i32 s{sT}, 0
        s_cselect_b32 s3, {BIG}, s3
        buffer_load_dwordx4 {q4(72+8*i)}, v{vK}, {srd(sWS)}, s3 offen sc1
        buffer_load_dwordx4 {q4(76+8*i)}, v{vV}, {srd(sWS)}, s3 offen sc1
        s_add_u32 s{sT}, s{sT}, 1
        """)
    a(f"""
    s_lshl_b32 s3, s{sARB}, 3
    s_add_u32 s3, s3, s{sW_}
    s_add_u32 s3, s3, s{sU}
    s_lshl_b32 s3, s3, 10
    buffer_load_dwordx4 {q4(QF)}, v{vL16}, {srd(sWS)}, s3 offen sc1
    s_mul_i32 s3, s{sW_}, 3072
    s_add_u32 s3, s3, {L_KV}
    v_add_u32 v4, s3, v{vL16}
    s_and_b32 s3, s{sW_}, 6
    s_lshl_b32 s3, s3, 10
    s_add_u32 s3, s3, {L_KV}
    v_add_u32 v5, s3, v{vL16}
    """)
    vKa = 5
    a(f"""
    v_mov_b32 v238, v4
    v_mov_b32 v239, v5
    v_lshlrev_b32 v1, 2, v{vG}
    v_sub_u32 v1, v1, v{vR15}
    v_mov_b32 v237, {NEG}
    s_bitcmp1_b32 s{sW_}, 0
    s_cselect_b64 s[96:97], -1, 0
    v_mov_b32 v236, v1
    """)
    vKa = 239; vKw = 238
    for i in range(4):
        a(f"""
        v_add_u32 v235, {i}, v236
        v_cmp_lt_i32 vcc, 0, v235
        v_cndmask_b32 v234, v237, 0, vcc
        v_cndmask_b32 v233, 0, v237, vcc
        v_cndmask_b32 v{0+i}, v234, v237, s[96:97]
        v_cndmask_b32 v{4+i}, 0, v234, s[96:97]
        v_cndmask_b32 v{64+i}, v233, 0, s[96:97]
        v_cndmask_b32 v{68+i}, v237, v233, s[96:97]
        """)
    for i in range(3):
        a(f"s_waitcnt vmcnt({5-2*i})")
        a(f"ds_write_b128 v{vKw}, {q4(72+8*i)} offset:{1024*i}")
        a(f"s_waitcnt vmcnt({4-2*i})" if i < 2 else "s_waitcnt vmcnt(1)")
        a(f"ds_write_b128 v{vKw}, {q4(76+8*i)} offset:{24576+1024*i}")
    a("s_waitcnt vmcnt(0) lgkmcnt(0)")
    a("s_barrier")
    stamp(12)
    a(f"""
    v_and_b32 v232, 3, v{vL}
    v_lshlrev_b32 v{vPA}, 2, v232
    s_lshl_b32 s3, s{sRB64}, 2
    s_add_u32 s3, s3, s{sKQ}
    s_lshl_b32 s3, s3, 7
    s_add_u32 s{sPF}, s3, {FLB}
    """)
    KBUF = 72; NKB = 6
    def kread(t): return f"ds_read_b128 {q4(KBUF + 4*(t % NKB))}, v{vKa} offset:{t*1024}"
    for t in range(NKB - 1): a(kread(t))
    for t in range(18):
        if t + NKB - 1 < 18: a(kread(t + NKB - 1))
        outstanding = min(18, t + NKB) - (t + 1)
        a(f"s_waitcnt lgkmcnt({outstanding})")
        c = q4(4*t) if t in (0, 1, 16, 17) else "0"
        a(f"v_mfma_f32_16x16x32_bf16 {q4(4*t)}, {q4(KBUF + 4*(t % NKB))}, {q4(QF)}, {c}")
    VB = [96 + 4*i for i in range(7)] + [72 + 4*i for i in range(6)]
    def vread(n):
        return f"ds_read_b128 {q4(VB[n % 13])}, v{vKa} offset:{24576 + (n>>1)*2048 + (n&1)*1024}"
    for n in range(7): a(vread(n))
    a(f"""
    s_lshl_b32 s3, s{sARB}, 3
    s_and_b32 s35, s{sW_}, 6
    s_add_u32 s3, s3, s35
    s_cmp_ge_u32 s3, 16
    s_cbranch_scc1 L_nofix
    s_nop 7
    """)
    for t in range(16):
        a(f"s_cmp_ge_u32 s3, {16 - t}")
        a("s_cbranch_scc1 L_nofix")
        for i in range(4): a(f"v_mov_b32 v{4*t+i}, v237")
    a.raw("L_nofix:")
    for n in range(7, 13): a(vread(n))
    vM, vT = 236, 235
    a(f"v_max3_f32 v{vM}, v0, v1, v2")
    a(f"v_max3_f32 v{vT}, v3, v4, v5")
    k = 6; tog = 0
    while k < 72:
        d = vM if tog == 0 else vT
        a(f"v_max3_f32 v{d}, v{d}, v{k}, v{k+1}")
        k += 2; tog ^= 1
    a(f"v_max_f32 v{vM}, v{vM}, v{vT}")
    a(f"s_mov_b32 s35, {CSC}")
    for sw in ("v_permlane32_swap_b32", "v_permlane16_swap_b32"):
        a(f"v_mov_b32 v{vT}, v{vM}")
        a(f"{sw} v{vM}, v{vT}")
        a(f"v_max_f32 v{vM}, v{vM}, v{vT}")
    a(f"v_mul_f32 v{vM}, s35, v{vM}")
    OACC = 224
    for u in range(9):
        b = 8*u
        for i in range(8): a(f"v_fma_f32 v{b+i}, v{b+i}, s35, -v{vM}")
        for i in range(8): a(f"v_exp_f32 v{b+i}, v{b+i}")
        for i in range(4): a(f"v_cvt_pk_bf16_f32 v{b+i}, v{b+2*i}, v{b+2*i+1}")
        issued = min(18, 13 + max(0, 2*(u) ))
        a(f"s_waitcnt lgkmcnt({max(0, min(15, issued - (2*u+2)))})")
        for dt in range(2):
            c = "0" if u == 0 else q4(OACC + 4*dt)
            a(f"v_mfma_f32_16x16x32_bf16 {q4(OACC+4*dt)}, {q4(VB[(2*u+dt) % 13])}, {q4(b)}, {c}")
        for n in (13 + 2*u, 14 + 2*u):
            if n < 18: a(vread(n))
    st = normalize(OACC, OACC+4, 234, 235, 120, vG3)
    for grp in st:
        for x in grp: a(x)
    a(f"""
    s_lshl_b32 s{sT}, s{sARB}, 3
    s_add_u32 s{sT}, s{sT}, s{sW_}
    s_lshl_b32 s3, s{sT}, 4
    s_add_u32 s3, s3, s{sAH}
    s_lshl_b32 s3, s3, 10
    s_add_u32 s3, s3, {OA}
    buffer_store_dwordx4 {q4(120)}, v{vL16}, {srd(sWS)}, s3 offen sc1
    s_lshr_b32 s3, s{sT}, 1
    s_lshl_b32 s3, s3, 2
    s_lshr_b32 s35, s{sAH}, 2
    s_add_u32 s3, s3, s35
    s_lshl_b32 s3, s3, 7
    s_and_b32 s35, s{sT}, 1
    s_lshl_b32 s35, s35, 2
    s_and_b32 s{sU}, s{sAH}, 3
    s_add_u32 s35, s35, s{sU}
    s_lshl_b32 s35, s35, 2
    s_add_u32 s3, s3, s35
    s_add_u32 s{sU}, s3, {FLA}
    s_waitcnt vmcnt(0)
    """)
    put_flag(sU)
    stamp(13)
    if stage < 3: return
    a(f"""
    s_cmp_eq_u32 s{sCB}, 7
    s_cbranch_scc1 L_fin
    """)
    ACC = 72
    vXW, vXR, vOut = 232, 236, 237
    for cidx in range(1, 4):
        a(f"""
        s_add_u32 s3, s{sKQ}, {cidx}
        s_and_b32 s3, s3, 3
        s_lshl_b32 s35, s{sRP}, 2
        s_add_u32 s3, s3, s35
        s_mul_i32 s3, s3, 6144
        s_add_u32 s3, s3, {(cidx-1)*2048}
        v_add_u32 v{vXW+cidx-1}, s3, v{vL16}
        """)
    a(f"""
    s_lshl_b32 s35, s{sRP}, 2
    s_add_u32 s3, s35, s{sKQ}
    s_mul_i32 s3, s3, 6144
    v_add_u32 v{vXR}, s3, v{vL16}
    s_lshl_b32 s3, s{sRB64}, 6
    s_lshl_b32 s35, s{sRP}, 5
    s_add_u32 s3, s3, s35
    v_add_u32 v1, s3, v{vR15}
    v_mul_u32_u24 v1, 1792, v1
    v_lshl_add_u32 v1, v{vG}, 3, v1
    s_lshl_b32 s3, s{sCB}, 7
    s_lshl_b32 s35, s{sKQ}, 5
    s_add_u32 s3, s3, s35
    v_add_u32 v{vOut}, s3, v1
    """)
    def proj(lbl, obase, wbase, scratch, outoff, pre):
        poll(lbl, vPA, sPF)
        a(f"""
        s_lshl_b32 s3, s{sRB64}, 2
        s_lshl_b32 s35, s{sRP}, 1
        s_add_u32 s3, s3, s35
        s_lshl_b32 s3, s3, 4
        s_lshl_b32 s35, s{sKQ}, 2
        s_add_u32 s3, s3, s35
        s_lshl_b32 s3, s3, 10
        s_add_u32 s3, s3, {obase}
        s_add_u32 s35, s3, 16384
        """)
        for hq in range(4):
            for tt in range(2):
                a(f"buffer_load_dwordx4 {q4(OF_ + (tt*4+hq)*4)}, v{vL16}, {srd(sWS)}, s{3 if tt == 0 else 35} offen offset:{hq*1024} sc1")
        pre()
        a("s_waitcnt lgkmcnt(0)")
        n = 0
        for hq in range(4):
            for tt in range(2):
                n += 1
                a(f"s_waitcnt vmcnt({8-n})")
                for cidx in range(4):
                    d = ACC + (tt*4+cidx)*4
                    c = "0" if hq == 0 else q4(d)
                    a(f"v_mfma_f32_16x16x32_bf16 {q4(d)}, {q4(wbase + (hq*4+cidx)*4)}, {q4(OF_ + (tt*4+hq)*4)}, {c}")
        for tt in range(2):
            for cidx in range(1, 4):
                a(f"ds_write_b128 v{vXW+cidx-1}, {q4(ACC + (tt*4+cidx)*4)} offset:{scratch + tt*1024}")
        a("s_waitcnt lgkmcnt(0)")
        a("s_barrier")
        RB_ = 104
        for tt in range(2):
            for s_ in range(3):
                a(f"ds_read_b128 {q4(RB_ + (tt*3+s_)*4)}, v{vXR} offset:{scratch + s_*2048 + tt*1024}")
        for tt in range(2):
            d = ACC + tt*16
            a(f"s_waitcnt lgkmcnt({3*(1-tt)})")
            for i in range(4):
                a(f"v_add_f32 v{d+i}, v{d+i}, v{RB_+tt*12+i}")
                a(f"v_add_f32 v{RB_+tt*12+4+i}, v{RB_+tt*12+4+i}, v{RB_+tt*12+8+i}")
            for i in range(4):
                a(f"v_add_f32 v{d+i}, v{d+i}, v{RB_+tt*12+4+i}")
            a(f"v_cvt_pk_bf16_f32 v{d}, v{d}, v{d+1}")
            a(f"v_cvt_pk_bf16_f32 v{d+1}, v{d+2}, v{d+3}")
            a(f"s_mov_b32 s3, {outoff + tt*16*1792}")
            a(f"buffer_store_dwordx2 v[{d}:{d+1}], v{vOut}, {srd(sOut)}, s3 offen")
    def preB():
        for r in wo_reads(0): a(r)
    proj("B", OB, WB_, 0, 896, preB)
    stamp(14)
    a(f"""
    v_and_b32 v231, 7, v{vL}
    v_lshlrev_b32 v{vPA}, 2, v231
    s_lshl_b32 s3, s{sRB64}, 1
    s_add_u32 s3, s3, s{sRP}
    s_lshl_b32 s3, s3, 2
    s_add_u32 s3, s3, s{sKQ}
    s_lshl_b32 s3, s3, 7
    s_add_u32 s{sPF}, s3, {FLA}
    """)
    for i in range(3): a(f"v_add_u32 v{vXW+i}, {L_KV}, v{vXW+i}")
    a(f"v_add_u32 v{vXR}, {L_KV}, v{vXR}")
    proj("A", OA, 0, 0, 0, lambda: None)

if __name__ == "__main__":
    stage = int(sys.argv[1]); stamps = int(sys.argv[2]); path = sys.argv[3]
    open(path, "w").write(gen(stage, stamps))
```

```python
import sys, struct, math
from asmlib import Asm

NAME = "concat_heads__sliding_block__sliding_local_dilated__prompt"
HEADER = open("cdna_kernels/%s.s.ref" % NAME).read().split("; Override launch")[0]
def f2u(x): return struct.unpack("<I", struct.pack("<f", x))[0]

XB, WB, WOB_BYTES, OUTB = 1835008, 1204224, 401408, 3670016
MB2 = 0x200000
QO, KO, VO = 0, MB2, 2*MB2
BRS = 3*MB2
OA, OB = 6*MB2, 7*MB2
FL1, FLB, FLA = 8*MB2, 8*MB2 + 0x20000, 8*MB2 + 0x28000
STAMP = 8*MB2 + 0x100000
WSB = 9*MB2
BIG = 0x40000000
NEG = f2u(-1e30)
CSC = f2u((28 ** -0.5) * math.log2(math.e))
SLOT = 40960
L_WOB, L_WOA, L_KV = 0, 57344, 114688
POLL_MAX = 40000

sWAVE, sBR, sLAM, sRB, sAH, sARB, sRB64, sCB, sTAG = 4, 5, 6, 7, 8, 9, 10, 11, 12
sX, sW, sWoA, sWoB, sWS, sOut = 36, 40, 44, 48, 52, 56
def srd(b): return f"s[{b}:{b+3}]"
def q4(r): return f"v[{r}:{r+3}]"
def q2(r): return f"v[{r}:{r+1}]"
vL, vL16, vTAG = 255, 254, 253

def gen(stamps=False, opt=None):
    opt = opt or {}
    a = Asm()
    def stamp(i):
        if stamps:
            a(f"s_memrealtime s[{64+2*i}:{65+2*i}]")
            a("s_waitcnt lgkmcnt(0)")
    a.raw(f"{NAME}_kernel:")
    a(f"""
    s_cmp_ge_u32 s2, 256
    s_cbranch_scc1 L_end
    s_load_dwordx16 s[16:31], s[0:1], 0
    s_load_dwordx2 s[32:33], s[0:1], 64
    v_lshrrev_b32 v1, 6, v0
    v_and_b32 v{vL}, 63, v0
    v_readfirstlane_b32 s{sWAVE}, v1
    s_and_b32 s13, s2, 7
    s_lshr_b32 s14, s2, 3
    s_lshr_b32 s{sBR}, s13, 2
    s_and_b32 s15, s13, 1
    s_lshl_b32 s15, s15, 2
    s_lshr_b32 s3, s14, 3
    s_add_u32 s{sLAM}, s15, s3
    s_and_b32 s15, s13, 2
    s_lshl_b32 s15, s15, 2
    s_and_b32 s3, s14, 7
    s_add_u32 s{sRB}, s15, s3
    v_lshlrev_b32 v{vL16}, 4, v{vL}
    s_mov_b32 s{sX+2}, {XB}
    s_mov_b32 s{sX+3}, 0x20000
    s_mov_b32 s{sW+2}, {WB}
    s_mov_b32 s{sW+3}, 0x20000
    v_lshrrev_b32 v1, 3, v{vL}
    v_and_b32 v2, 7, v{vL}
    v_lshrrev_b32 v3, 4, v{vL}
    """)
    if opt.get("exit0"):
        a("s_waitcnt lgkmcnt(0)")
        a("s_endpgm")
    a(f"""
    s_cmp_lt_u32 s{sWAVE}, 4
    s_cbranch_scc1 L_compute
    """)
    sel = f"""
    s_cmp_eq_u32 s{sBR}, 0
    s_cselect_b32 s{sX}, s16, s22
    s_cselect_b32 s{sX+1}, s17, s23
    s_cselect_b32 s{sW}, s18, s24
    s_cselect_b32 s{sW+1}, s19, s25
    """
    rest_setup = f"""
    s_lshl_b32 s{sAH}, s13, 1
    s_and_b32 s3, s14, 1
    s_add_u32 s{sAH}, s{sAH}, s3
    s_lshr_b32 s{sARB}, s14, 1
    s_lshl_b32 s{sRB64}, s13, 2
    s_lshr_b32 s3, s14, 3
    s_add_u32 s{sRB64}, s{sRB64}, s3
    s_and_b32 s{sCB}, s14, 7
    s_mov_b32 s{sWoA}, s20
    s_mov_b32 s{sWoA+1}, s21
    s_mov_b32 s{sWoA+2}, {WOB_BYTES}
    s_mov_b32 s{sWoA+3}, 0x20000
    s_mov_b32 s{sWoB}, s26
    s_mov_b32 s{sWoB+1}, s27
    s_mov_b32 s{sWoB+2}, {WOB_BYTES}
    s_mov_b32 s{sWoB+3}, 0x20000
    s_mov_b32 s{sWS}, s32
    s_mov_b32 s{sWS+1}, s33
    s_mov_b32 s{sWS+2}, {WSB}
    s_mov_b32 s{sWS+3}, 0x20000
    s_mov_b32 s{sOut}, s28
    s_mov_b32 s{sOut+1}, s29
    s_mov_b32 s{sOut+2}, {OUTB}
    s_mov_b32 s{sOut+3}, 0x20000
    """
    OSC = {0: "", 1: " sc1", 2: " nt", 3: " sc0 sc1"}[opt.get("osc", 0)]
    NT = " nt" if opt.get("nt", 1) else ""
    vXe, vXo, vW0, vW1, vWo = 10, 11, 13, 14, 15
    sLW, sLx, sLw, sT0, sT1 = 60, 61, 63, 34, 35
    a(f"""
    s_sub_u32 s{sLW}, s{sWAVE}, 4
    s_lshl_b32 s{sT0}, s{sRB}, 7
    s_lshl_b32 s{sT1}, s{sLW}, 5
    s_add_u32 s{sT0}, s{sT0}, s{sT1}
    v_add_u32 v4, s{sT0}, v1
    v_mul_u32_u24 v4, 896, v4
    v_xor_b32 v5, v2, v3
    v_lshl_add_u32 v{vXe}, v5, 4, v4
    v_xor_b32 v5, 4, v5
    v_lshl_add_u32 v{vXo}, v5, 4, v4
    v_add_u32 v{vXo}, 6144, v{vXo}
    s_lshl_b32 s{sLx}, s{sLW}, 12
    s_lshl_b32 s{sLw}, s{sLW}, 11
    s_lshl_b32 s{sT1}, s{sLW}, 4
    v_add_u32 v4, s{sT1}, v1
    v_mul_u32_u24 v4, 2688, v4
    s_lshl_b32 s{sT1}, s{sLAM}, 7
    v_add_u32 v4, s{sT1}, v4
    v_and_b32 v5, 1, v3
    v_lshlrev_b32 v5, 2, v5
    v_xor_b32 v5, v2, v5
    v_lshl_add_u32 v{vW0}, v5, 4, v4
    v_add_u32 v{vW1}, {8*2688-1024}, v{vW0}
    s_waitcnt lgkmcnt(0)
    """)
    a(sel)
    stamp(0)
    a(f"""
    s_cmp_eq_u32 s{sLAM}, 7
    s_cbranch_scc1 L_ld_idle
    """)
    def issue_chunk(c):
        if opt.get("nodma"): return
        slot = ((c + 1) % 4) * SLOT
        a(f"""
        s_add_u32 m0, s{sLx}, {slot}
        s_mov_b32 s{sT0}, {c*128}
        s_mov_b32 s{sT1}, {c*128 + 12288}
        buffer_load_dwordx4 v{vXe}, {srd(sX)}, s{sT0} offen{NT} lds
        buffer_load_dwordx4 v{vXo}, {srd(sX)}, s{sT0} offen offset:1024{NT} lds
        buffer_load_dwordx4 v{vXe}, {srd(sX)}, s{sT1} offen offset:2048{NT} lds
        buffer_load_dwordx4 v{vXo}, {srd(sX)}, s{sT1} offen offset:3072{NT} lds
        """)
        for p in range(3):
            a(f"""
            s_add_u32 m0, s{sLw}, {slot + 16384 + p*8192}
            s_mov_b32 s{sT1}, {c*64*2688 + p*896}
            buffer_load_dwordx4 v{vW0}, {srd(sW)}, s{sT1} offen{NT} lds
            buffer_load_dwordx4 v{vW1}, {srd(sW)}, s{sT1} offen offset:1024{NT} lds
            """)
    sLwo, sL1k = 98, 99
    sPD, sPS, sPO = 64+32, 100, 101
    sPD = 16
    vPf, vPw = 16, 17
    PFN = " nt" if opt.get("pnt", 1) else ""
    wo_setup = rest_setup + f"""
    v_and_b32 v5, 6, v1
    v_xor_b32 v5, v2, v5
    v_mul_u32_u24 v4, 896, v1
    s_lshl_b32 s{sT1}, s{sCB}, 7
    v_add_u32 v4, s{sT1}, v4
    v_lshl_add_u32 v{vWo}, v5, 4, v4
    s_cmp_eq_u32 s{sCB}, 7
    s_cselect_b64 vcc, -1, 0
    v_mov_b32 v7, {BIG}
    s_mul_i32 s{sLwo}, s{sLW}, 7168
    s_lshl_b32 s{sL1k}, s{sLW}, 10
    v_cndmask_b32 v{vWo}, v{vWo}, v7, vcc
    v_mov_b32 v1, 0
    ; wo prefetch: this CU covers lines [98j, 98j+98) of wo_B (waves 0,1) / wo_A (waves 2,3)
    s_mul_i32 s3, s14, 98
    s_and_b32 s{sT1}, s{sLW}, 1
    s_mul_i32 s{sT1}, s{sT1}, 49
    s_add_u32 s3, s3, s{sT1}
    v_min_u32 v4, 48, v{vL}
    v_add_u32 v4, s3, v4
    v_lshlrev_b32 v{vPw}, 7, v4
    """
    def issue_wo(i0, i1):
        if opt.get("nowo"): return
        for i in range(i0, i1):
            br = i >= 14
            a(f"""
            s_add_u32 m0, s{sL1k}, {4096*i}
            s_add_u32 s{sT1}, s{sLwo}, {(4*i - 56*br)*7168}
            buffer_load_dwordx4 v{vWo}, {srd(sWoA if br else sWoB)}, s{sT1} offen lds
            """)
            order.append("wo")
    def pf_setup():
        a(f"""
        s_and_b32 s{sT0}, s13, 2
        s_lshl_b32 s{sT0}, s{sT0}, 9
        s_lshl_b32 s{sT1}, s14, 5
        s_add_u32 s{sT0}, s{sT0}, s{sT1}
        v_min_u32 v4, 31, v{vL}
        v_add_u32 v4, s{sT0}, v4
        v_mul_u32_u24 v{vPf}, 896, v4
        v_min_u32 v4, 23, v{vL}
        v_cmp_le_u32 vcc, 12, v4
        v_cndmask_b32 v5, 0, 1, vcc
        v_mul_u32_u24 v6, 12, v5
        v_sub_u32 v6, v4, v6
        s_lshl_b32 s{sT0}, s14, 1
        v_add_u32 v5, s{sT0}, v5
        v_mul_u32_u24 v5, 2688, v5
        v_lshrrev_b32 v4, 2, v6
        v_mul_u32_u24 v4, 896, v4
        v_add_u32 v5, v5, v4
        v_and_b32 v6, 3, v6
        v_lshl_add_u32 v5, v6, 7, v5
        s_and_b32 s{sT0}, s13, 1
        s_lshl_b32 s{sT0}, s{sT0}, 9
        v_add_u32 v5, s{sT0}, v5
        s_bitcmp1_b32 s{sLW}, 0
        s_cselect_b64 vcc, -1, 0
        s_mov_b32 s{sPS}, 128
        s_cselect_b32 s{sPS}, 172032, s{sPS}
        s_cselect_b32 s44, s{sW}, s{sX}
        s_cselect_b32 s45, s{sW+1}, s{sX+1}
        s_cselect_b32 s46, s{sW+2}, s{sX+2}
        s_mov_b32 s47, 0x20000
        v_cndmask_b32 v{vPf}, v{vPf}, v5, vcc
        s_lshr_b32 s{sPO}, s{sLW}, 1
        s_add_u32 s{sPO}, s{sPO}, 1
        s_mul_i32 s{sPO}, s{sPO}, s{sPS}
        s_lshl_b32 s{sPS}, s{sPS}, 1
        """)
    def pf():
        a(f"""
        buffer_load_dword v20, v{vPf}, s[44:47], s{sPO} offen{PFN}
        s_add_u32 s{sPO}, s{sPO}, s{sPS}
        """)
        order.append("pf")
    def pf_wo():
        a(f"""
        s_cmp_lt_u32 s{sLW}, 2
        s_cbranch_scc1 L_pwB{len(order)}
        buffer_load_dword v20, v{vPw}, {srd(sWoA)}, 0 offen{PFN}
        s_branch L_pwD{len(order)}
        L_pwB{len(order)}:
        buffer_load_dword v20, v{vPw}, {srd(sWoB)}, 0 offen{PFN}
        L_pwD{len(order)}:
        """)
        order.append("pfw")
    order = []
    def D(c): issue_chunk(c); order.extend([c] * 10)
    def Wt(c):
        last = max(i for i, o in enumerate(order) if o == c)
        a(f"s_waitcnt vmcnt({len(order) - 1 - last})")
        if c == 0: stamp(1)
        a("s_barrier")
        if opt.get('cst') and c: stamp(4 + c)
    D(0); pf_setup(); pf(); D(1); Wt(0); pf(); D(2); Wt(1); pf(); D(3)
    a(wo_setup)
    Wt(2); D(4); Wt(3); D(5); Wt(4); D(6); pf_wo(); issue_wo(0, 10); Wt(5); issue_wo(10, 20); Wt(6)
    a(f"global_load_dword v{vTAG}, v1, s[30:31] sc1")
    issue_wo(20, 28)
    a("s_barrier")
    stamp(2)
    a("s_waitcnt vmcnt(8)")
    a("s_branch L_phase2")
    a.raw("L_ld_idle:")
    pf_setup(); pf(); pf(); pf()
    a(wo_setup)
    pf_wo()
    issue_wo(0, 20)
    a(f"global_load_dword v{vTAG}, v1, s[30:31] sc1")
    issue_wo(20, 28)
    a("s_waitcnt vmcnt(8)")
    a("s_branch L_phase2")

    a.raw("L_compute:")
    sCH, sRH = 60, 61
    def q16(r): return f"v[{r}:{r+15}]"
    def Acc(p, rt): return p*32 + rt*16
    def Fx(s, rt): return 96 + 20*s + 4*rt
    def Fw(s, p): return 96 + 20*s + 8 + 4*p
    vxa = [200, 201, 202, 203]; vwa = 204
    vQo, vVo = 205, 206
    slot0 = SLOT
    a(f"""
    s_waitcnt lgkmcnt(0)
    v_mov_b32 v1, 0
    s_or_b32 s3, s2, s{sWAVE}
    s_cmp_lg_u32 s3, 0
    s_cbranch_scc1 L_notag
    s_memrealtime s[34:35]
    s_waitcnt lgkmcnt(0)
    s_and_b32 s34, s34, 0xbfffbfff
    s_or_b32 s34, s34, 1
    v_mov_b32 v2, s34
    global_store_dword v1, v2, s[30:31] sc1
    L_notag:
    """)
    stamp(0)
    a(rest_setup)
    a(sel)
    if opt.get("pf", 1):
        a(f"""
        s_cmp_lg_u32 s{sWAVE}, 1
        s_cbranch_scc1 L_notouch
        v_min_u32 v4, 8, v{vL}
        v_lshlrev_b32 v4, 21, v4
        v_add_u32 v4, 0x1ff780, v4
        buffer_load_dword v220, v4, {srd(sWS)}, 0 offen sc1
        v_and_b32 v4, 1, v{vL}
        v_lshlrev_b32 v4, 21, v4
        buffer_load_dword v221, v4, {srd(sOut)}, 0 offen
        L_notouch:
        s_and_b32 s3, s14, 15
        s_or_b32 s3, s3, 0x100
        s_lshl_b32 s34, s{sWAVE}, 4
        s_or_b32 s3, s3, s34
        s_cmp_lg_u32 s3, 0x12f
        s_cbranch_scc1 L_nocode
        s_getpc_b64 s[34:35]
        v_lshlrev_b32 v4, 7, v{vL}
        global_load_dword v220, v4, s[34:35]
        v_add_u32 v4, 8192, v4
        global_load_dword v221, v4, s[34:35]
        L_nocode:
        """)
    if opt.get("l2pf", 0):
        a(f"""
        s_lshl_b32 s3, s14, 2
        s_add_u32 s3, s3, s{sWAVE}
        s_cmp_lt_u32 s3, 48
        s_cbranch_scc0 L_pf_w
        s_and_b32 s34, s3, 15
        s_lshl_b32 s34, s34, 6
        s_and_b32 s35, s13, 2
        s_lshl_b32 s35, s35, 9
        s_add_u32 s34, s34, s35
        v_add_u32 v4, s34, v{vL}
        v_mul_u32_u24 v4, 896, v4
        s_lshr_b32 s3, s3, 4
        s_lshl_b32 s3, s3, 7
        s_add_u32 s3, s3, 512
        buffer_load_dword v222, v4, {srd(sX)}, s3 offen
        s_branch L_pf_done
        L_pf_w:
        s_cmp_lt_u32 s3, 84
        s_cbranch_scc0 L_pf_wo
        s_sub_u32 s3, s3, 48
        s_lshl_b32 s3, s3, 6
        v_add_u32 v4, s3, v{vL}
        v_mul_u32_u24 v5, 0x5556, v4
        v_lshrrev_b32 v5, 18, v5
        v_mul_u32_u24 v6, 12, v5
        v_sub_u32 v6, v4, v6
        v_mul_u32_u24 v5, 2688, v5
        v_lshrrev_b32 v7, 2, v6
        v_mul_u32_u24 v7, 896, v7
        v_and_b32 v6, 3, v6
        v_lshl_add_u32 v5, v6, 7, v5
        v_add_u32 v4, v5, v7
        s_and_b32 s3, s13, 1
        s_lshl_b32 s3, s3, 9
        s_add_u32 s3, s3, {256*2688}
        buffer_load_dword v222, v4, {srd(sW)}, s3 offen
        s_branch L_pf_done
        L_pf_wo:
        s_sub_u32 s3, s3, 84
        s_lshl_b32 s3, s3, 13
        v_lshlrev_b32 v4, 7, v{vL}
        buffer_load_dword v222, v4, {srd(sWoB)}, s3 offen
        L_pf_done:
        """)
    a(f"""
    s_and_b32 s{sCH}, s{sWAVE}, 1
    s_lshr_b32 s{sRH}, s{sWAVE}, 1
    global_load_dword v{vTAG}, v1, s[30:31] sc1
    s_cmp_eq_u32 s{sLAM}, 7
    s_cbranch_scc1 L_cmp_idle
    v_and_b32 v2, 31, v{vL}
    v_lshrrev_b32 v3, 5, v{vL}
    ; x address
    s_lshl_b32 s3, s{sRH}, 6
    v_add_u32 v4, s3, v2
    v_lshlrev_b32 v4, 7, v4
    v_bfe_u32 v5, v2, 1, 3
    v_xor_b32 v5, v5, v3
    v_lshl_add_u32 v{vxa[0]}, v5, 4, v4
    v_add_u32 v{vxa[0]}, {slot0}, v{vxa[0]}
    v_xor_b32 v{vxa[1]}, 32, v{vxa[0]}
    v_xor_b32 v{vxa[2]}, 64, v{vxa[0]}
    v_xor_b32 v{vxa[3]}, 96, v{vxa[0]}
    ; w address
    v_bfe_u32 v4, v{vL}, 2, 2
    v_lshl_add_u32 v6, v3, 3, v4
    v_lshlrev_b32 v6, 7, v6
    v_add_u32 v6, {slot0 + 16384}, v6
    v_bfe_u32 v7, v{vL}, 4, 1
    v_lshlrev_b32 v7, 5, v7
    v_and_b32 v8, 1, v{vL}
    v_lshl_or_b32 v7, v8, 4, v7
    v_bfe_u32 v8, v{vL}, 1, 1
    v_lshl_or_b32 v7, v8, 3, v7
    s_lshl_b32 s3, s{sCH}, 6
    v_or_b32 v7, s3, v7
    v_and_b32 v8, 2, v4
    v_lshlrev_b32 v8, 5, v8
    v_xor_b32 v7, v7, v8
    v_add_u32 v{vwa}, v6, v7
    s_lshl_b32 s3, s{sLAM}, 1
    s_add_u32 s3, s3, s{sCH}
    s_lshl_b32 s34, s3, 2
    v_add_u32 v6, s34, v3
    v_lshlrev_b32 v6, 15, v6
    v_lshl_add_u32 v{vQo}, v2, 4, v6
    s_lshl_b32 s34, s3, 3
    v_bfe_u32 v6, v{vL}, 4, 1
    v_lshl_add_u32 v6, v6, 2, s34
    v_and_b32 v7, 1, v4
    v_lshl_add_u32 v6, v7, 1, v6
    v_lshrrev_b32 v7, 1, v4
    v_add_u32 v6, v6, v7
    v_mul_u32_u24 v7, 147, v6
    v_lshrrev_b32 v7, 10, v7
    v_mul_u32_u24 v8, 7, v7
    v_sub_u32 v8, v6, v8
    v_lshlrev_b32 v7, 17, v7
    v_lshl_add_u32 v7, v8, 8, v7
    v_lshl_add_u32 v7, v3, 6, v7
    v_and_b32 v8, 3, v{vL}
    v_lshl_add_u32 v{vVo}, v8, 4, v7
    """)
    for r in range(96): a(f"v_mov_b32 v{r}, 0")
    def reads(s, ks):
        L = []
        for rt in range(2):
            L.append(f"ds_read_b128 {q4(Fx(s,rt))}, v{vxa[ks]} offset:{rt*4096}")
        for p in (1, 2, 0):
            for u in range(2):
                d = Fw(s, p) + 2*u
                L.append(f"ds_read_b64_tr_b16 {q2(d)}, v{vwa} offset:{p*8192 + ks*2048 + u*512}")
        return L
    def kstep(s, rd, extra=()):
        M = []
        for p in (1, 2, 0):
            for rt in range(2):
                A, B = (Fx(s,rt), Fw(s,p)) if p == 2 else (Fw(s,p), Fx(s,rt))
                M.append(f"v_mfma_f32_32x32x16_bf16 {q16(Acc(p,rt))}, {q4(A)}, {q4(B)}, {q16(Acc(p,rt))}")
        if opt.get("nolds"): rd = []
        per = [3, 3, 2, 0, 0, 0]
        k = 0
        extra = list(extra)
        for i, m in enumerate(M):
            a(m)
            for _ in range(per[i]):
                if k < len(rd): a(rd[k]); k += 1
            if i >= 3:
                for _ in range(4):
                    if extra: a(extra.pop(0))
        for e in extra: a(e)
    sC, sD = 62, 63
    a("s_barrier")
    stamp(1)
    if opt.get("cyc"):
        a("s_memtime s[82:83]")
        a("s_waitcnt lgkmcnt(0)")
    for r in reads(0, 0): a(r)
    a(f"s_mov_b32 s{sC}, 0")
    a.raw("L_gemm:")
    a("s_waitcnt lgkmcnt(0)")
    kstep(0, reads(1, 1), [f"s_and_b32 s3, s{sC}, 3", f"s_cmp_eq_u32 s3, 2", f"s_mov_b32 s{sD}, {SLOT}",
                           f"s_cselect_b32 s{sD}, {(-3*SLOT) & 0xffffffff}, s{sD}",
                           f"v_add_u32 v{vxa[0]}, s{sD}, v{vxa[0]}", f"v_add_u32 v{vxa[1]}, s{sD}, v{vxa[1]}"])
    a("s_waitcnt lgkmcnt(0)")
    kstep(1, reads(0, 2), [f"v_add_u32 v{vxa[2]}, s{sD}, v{vxa[2]}"])
    a("s_waitcnt lgkmcnt(0)")
    kstep(0, reads(1, 3), [f"v_add_u32 v{vxa[3]}, s{sD}, v{vxa[3]}", f"v_add_u32 v{vwa}, s{sD}, v{vwa}",
                           f"s_add_u32 s{sC}, s{sC}, 1", f"s_cmp_lt_u32 s{sC}, 7"])
    a("s_waitcnt lgkmcnt(0)")
    a("s_barrier")
    kstep(1, reads(0, 0))
    a("s_cbranch_scc1 L_gemm")
    stamp(2)
    if opt.get("cyc"):
        a("s_memtime s[84:85]")
        a("s_waitcnt lgkmcnt(0)")
        a("s_sub_u32 s84, s84, s82")
        a("s_add_u32 s84, s84, s64")
        a("s_mov_b32 s82, s64")
    def cvt(d, s0): a(f"v_cvt_pk_bf16_f32 v{d}, v{s0}, v{s0+1}")
    a(f"""
    s_lshl_b32 s34, s{sRB}, 1
    s_add_u32 s34, s34, s{sRH}
    s_mul_i32 s3, s{sBR}, {BRS}
    s_lshl_b32 s35, s34, 12
    s_add_u32 s63, s3, s35
    s_add_u32 s63, s63, {VO}
    s_lshl_b32 s35, s34, 10
    s_add_u32 s3, s3, s35
    s_add_u32 s35, s3, {KO}
    s_add_u32 s96, s35, 65536
    s_add_u32 s97, s3, 65536
    """)
    def qk_store(p, s_lo, s_hi):
        for rt in range(2):
            for half in range(2):
                d = Acc(p, rt) + 8*half
                for i in range(4): cvt(d+i, d+2*i)
                a(f"buffer_store_dwordx4 {q4(d)}, v{vQo}, {srd(sWS)}, s{s_hi if half else s_lo} offen offset:{rt*512} sc1")
    qk_store(1, 35, 96)
    for rt in range(2):
        for b in range(2):
            d = 176 + (rt*2+b)*4; s0 = Acc(2, rt) + 4*b
            cvt(d, s0); cvt(d+1, s0+2); cvt(d+2, s0+8); cvt(d+3, s0+10)
            a(f"buffer_store_dwordx4 {q4(d)}, v{vVo}, {srd(sWS)}, s63 offen offset:{rt*2048 + b*128} sc1")
    qk_store(0, 3, 97)
    a(f"""
    s_lshl_b32 s3, s{sBR}, 5
    s_add_u32 s3, s3, s34
    s_lshl_b32 s3, s3, 4
    s_lshl_b32 s35, s{sLAM}, 1
    s_add_u32 s3, s3, s35
    s_add_u32 s3, s3, s{sCH}
    s_lshl_b32 s3, s3, 7
    s_add_u32 s63, s3, {FL1}
    """)
    stamp(3)
    def get_tag(lbl):
        a(f"""
        s_mov_b32 s35, {POLL_MAX}
        L_tag{lbl}:
        v_readfirstlane_b32 s{sTAG}, v{vTAG}
        s_cmp_lg_u32 s{sTAG}, 0
        s_cbranch_scc1 L_tagok{lbl}
        v_mov_b32 v1, 0
        global_load_dword v{vTAG}, v1, s[30:31] sc1
        s_sub_u32 s35, s35, 1
        s_waitcnt vmcnt(0)
        s_cmp_lg_u32 s35, 0
        s_cbranch_scc1 L_tag{lbl}
        L_tagok{lbl}:
        """)
    def put_flag(soff):
        a(f"""
        v_mov_b32 v231, 0
        s_mov_b64 exec, 1
        buffer_store_dword v{vTAG}, v231, {srd(sWS)}, s{soff} offen sc1
        s_mov_b64 exec, -1
        """)
    a("s_waitcnt vmcnt(0) lgkmcnt(0)")
    get_tag("c")
    put_flag(63)
    stamp(4)
    a("s_branch L_phase2")
    a.raw("L_cmp_idle:")
    a("s_waitcnt vmcnt(0)")
    a.raw("L_phase2:")
    get_tag("p")
    sRP, sKQ, sT, sU, sPF = 60, 61, 62, 63, 34
    def poll(lbl, vaddr, soff):
        a(f"""
        s_mov_b32 s35, {POLL_MAX}
        L_poll{lbl}:
        buffer_load_dword v231, v{vaddr}, {srd(sWS)}, s{soff} offen sc1
        s_sub_u32 s35, s35, 1
        s_waitcnt vmcnt(0)
        v_cmp_ne_u32 vcc, v231, v{vTAG}
        s_cmp_eq_u32 s35, 0
        s_cbranch_scc1 L_pollok{lbl}
        s_cbranch_vccz L_pollok{lbl}
        s_sleep 1
        s_branch L_poll{lbl}
        L_pollok{lbl}:
        """)
    vR15, vG = 240, 241
    vWA = 242
    vMG, vPA, vC = 250, 251, 252
    vNEG, vKa, vKw = 237, 239, 238
    vKq, vOo, vVa, vVb, vOne = 232, 233, 234, 235, 236
    vOoP = 233
    a(f"""
    v_mov_b32 v{vTAG}, s{sTAG}
    s_and_b32 s{sRP}, s{sWAVE}, 1
    s_lshr_b32 s{sKQ}, s{sWAVE}, 1
    v_and_b32 v{vR15}, 15, v{vL}
    v_lshrrev_b32 v{vG}, 4, v{vL}
    v_cmp_gt_u32 vcc, 48, v{vL}
    v_cndmask_b32 v{vMG}, 0, -1, vcc
    v_lshrrev_b32 v1, 2, v{vR15}
    v_lshl_add_u32 v2, v{vG}, 2, v1
    v_lshlrev_b32 v2, 7, v2
    s_mul_i32 s3, s{sKQ}, 14336
    v_add_u32 v2, s3, v2
    v_and_b32 v3, 2, v1
    v_and_b32 v4, 1, v{vG}
    v_lshl_or_b32 v3, v4, 2, v3
    v_lshlrev_b32 v3, 4, v3
    v_and_b32 v4, 3, v{vL}
    v_lshlrev_b32 v6, 3, v4
    v_xor_b32 v3, v3, v6
    v_add_u32 v2, v2, v3
    v_and_b32 v5, 2048, v{vMG}
    v_mov_b32 v7, {BIG}
    v_lshlrev_b32 v{vKq}, 15, v{vG}
    v_lshl_add_u32 v{vKq}, v{vR15}, 4, v{vKq}
    v_lshlrev_b32 v{vOo}, 6, v{vR15}
    v_lshl_add_u32 v{vOo}, v{vG}, 4, v{vOo}
    v_lshlrev_b32 v{vVa}, 8, v1
    v_lshl_add_u32 v{vVa}, v{vG}, 6, v{vVa}
    v_lshl_add_u32 v{vVa}, v4, 4, v{vVa}
    v_add_u32 v{vVb}, 1024, v{vVa}
    v_cmp_gt_u32 vcc, 12, v{vR15}
    v_cndmask_b32 v{vVb}, v7, v{vVb}, vcc
    v_cmp_eq_u32 vcc, 12, v{vR15}
    v_mov_b32 v7, 0x3f803f80
    v_cndmask_b32 v{vOne}, 0, v7, vcc
    v_mov_b32 v{vC}, {CSC}
    v_mov_b32 v{vNEG}, {NEG}
    """)
    for cidx in range(4):
        a(f"""
        s_add_u32 s3, s{sKQ}, {cidx}
        s_and_b32 s3, s3, 3
        s_lshl_b32 s3, s3, 5
        v_xor_b32 v{vWA+cidx}, s3, v2
        v_add_u32 v{vWA+4+cidx}, v{vWA+cidx}, v5
        """)
    a("s_barrier")
    def wo_reads(base):
        L = []
        for hq in range(4):
            for cidx in range(4):
                for u in range(2):
                    d = base + (hq*4 + cidx)*4 + 2*u
                    L.append(f"ds_read_b64_tr_b16 {q2(d)}, v{vWA + 4*u + ((cidx + 2*(hq&1)) & 3)} offset:{hq*3584}")
        return L
    def wo_mask(base):
        return [f"v_and_b32 v{base + f*4 + 2 + r}, v{vMG}, v{base + f*4 + 2 + r}" for f in range(16) for r in range(2)]
    WB_, OF_ = 128, 192
    for r in wo_reads(WB_): a(r)
    for i in range(8): a(f"v_add_u32 v{vWA+i}, {L_WOA}, v{vWA+i}")
    a(f"""
    s_and_b32 s3, s{sWAVE}, 6
    s_lshl_b32 s3, s3, 10
    s_add_u32 s3, s3, {L_KV}
    v_add_u32 v{vKa}, s3, v{vL16}
    v_lshlrev_b32 v8, 2, v{vG}
    v_sub_u32 v8, v8, v{vR15}
    s_bitcmp1_b32 s{sWAVE}, 0
    s_cselect_b64 s[96:97], -1, 0
    """)
    for i in range(4):
        a(f"""
        v_add_u32 v9, {i}, v8
        v_cmp_lt_i32 vcc, 0, v9
        v_cndmask_b32 v10, v{vNEG}, 0, vcc
        v_cndmask_b32 v11, 0, v{vNEG}, vcc
        v_cndmask_b32 v{0+i}, v10, v{vNEG}, s[96:97]
        v_cndmask_b32 v{4+i}, 0, v10, s[96:97]
        v_cndmask_b32 v{64+i}, v11, 0, s[96:97]
        v_cndmask_b32 v{68+i}, v{vNEG}, v11, s[96:97]
        """)
    QF = 124
    vQm = 228
    sHL0, sHL1, sHB, sHQ = 96, 97, 98, 100
    a(f"""
    s_mul_i32 s3, s{sAH}, 7
    s_lshr_b32 s{sHQ}, s3, 1
    s_lshl_b32 s{sHQ}, s{sHQ}, 15
    s_lshr_b32 s{sHL0}, s3, 3
    s_add_u32 s3, s3, 6
    s_lshr_b32 s{sHL1}, s3, 3
    s_sub_u32 s{sHL1}, s{sHL1}, s{sHL0}
    v_and_b32 v9, 1, v{vL}
    v_mul_u32_u24 v9, s{sHL1}, v9
    v_add_u32 v9, s{sHL0}, v9
    s_lshl_b32 s{sHB}, s{sAH}, 17
    s_mov_b32 s{sPF}, {FL1}
    v_cmp_lt_u32 vcc, 15, v{vL}
    v_cndmask_b32 v10, 0, -1, vcc
    s_bitcmp1_b32 s{sAH}, 0
    s_cselect_b64 vcc, -1, 0
    v_cndmask_b32 v{vQm}, -1, v10, vcc
    v_cndmask_b32 v{vQm+1}, v{vMG}, -1, vcc
    s_waitcnt lgkmcnt(0)
    """)
    for x in wo_mask(WB_): a(x)
    def qmask(r):
        for i in range(4): a(f"v_and_b32 v{r+i}, v{vQm + (i>>1)}, v{r+i}")
    a(f"""
    s_cmp_lt_u32 s{sWAVE}, 4
    s_cbranch_scc1 L_attnB
    """)
    a(f"""
    v_min_u32 v10, 17, v{vL}
    v_lshrrev_b32 v10, 1, v10
    s_lshl_b32 s3, s{sARB}, 1
    s_sub_u32 s3, s3, 4
    v_add_u32 v11, s3, v10
    v_max_i32 v11, 0, v11
    s_sub_u32 s3, s3, 3
    v_add_u32 v12, s3, v10
    v_max_i32 v12, 0, v12
    v_add_u32 v12, 32, v12
    v_cmp_lt_u32 vcc, 5, v10
    v_cndmask_b32 v10, v11, v12, vcc
    v_lshl_add_u32 v10, v10, 4, v9
    v_lshlrev_b32 v{vPA}, 7, v10
    s_sub_u32 s3, s{sWAVE}, 4
    s_mul_i32 s3, s3, 6
    s_lshl_b32 s{sT}, s{sARB}, 3
    s_sub_u32 s{sT}, s{sT}, 16
    s_add_u32 s{sT}, s{sT}, s3
    s_lshl_b32 s3, s3, 10
    s_add_u32 s3, s3, {L_KV}
    v_add_u32 v{vKw}, s3, v{vL16}
    s_add_u32 s96, s{sHQ}, {KO}
    """)
    a(f"s_cmp_lg_u32 s{sWAVE}, 7")
    a("s_cbranch_scc1 L_pollok1")
    poll("1", vPA, sPF)
    a("s_barrier")
    stamp(11)
    for i in range(6):
        a(f"""
        s_lshl_b32 s3, s{sT}, 10
        s_add_u32 s3, s3, s{sHB}
        s_add_u32 s3, s3, {VO - 1024*(i&1)}
        s_lshl_b32 s35, s{sT}, 8
        s_add_u32 s35, s35, s96
        s_cmp_lt_i32 s{sT}, 0
        s_cselect_b32 s3, {BIG}, s3
        s_cselect_b32 s35, {BIG}, s35
        buffer_load_dwordx4 {q4(72+8*i)}, v{vKq}, {srd(sWS)}, s35 offen sc1
        buffer_load_dwordx4 {q4(76+8*i)}, v{vVb if i & 1 else vVa}, {srd(sWS)}, s3 offen sc1
        s_add_u32 s{sT}, s{sT}, 1
        """)
    def q_load():
        a(f"""
        s_lshl_b32 s3, s{sARB}, 3
        s_add_u32 s3, s3, s{sWAVE}
        s_lshl_b32 s3, s3, 8
        s_add_u32 s3, s3, s{sHQ}
        buffer_load_dwordx4 {q4(QF)}, v{vKq}, {srd(sWS)}, s3 offen sc1
        """)
    q_load()
    for i in range(6):
        a(f"s_waitcnt vmcnt({1 + 2*(5-i) + 1})")
        if i == 0: stamp(5)
        a(f"ds_write_b128 v{vKw}, {q4(72+8*i)} offset:{1024*i}")
        a(f"s_waitcnt vmcnt({1 + 2*(5-i)})")
        if i & 1:
            for r in range(4): a(f"v_or_b32 v{76+8*i+r}, v{vOne}, v{76+8*i+r}")
        a(f"ds_write_b128 v{vKw}, {q4(76+8*i)} offset:{24576+1024*i}")
    a("s_waitcnt vmcnt(0)")
    a("s_branch L_b8")
    a.raw("L_attnB:")
    QB_, KB_, VB_, SB_, MB_, PB_, OB_, OUTB_, BS, BP, BP1 = 8, 16, 28, 44, 60, 72, 80, 96, 104, 108, 112
    sP = 99
    a(f"""
    s_lshl_b32 s{sP}, s{sARB}, 2
    s_add_u32 s{sP}, s{sP}, s{sWAVE}
    s_lshl_b32 s{sT}, s{sP}, 1
    v_sub_u32 v8, 0, v8
    s_cmp_eq_u32 s{sP}, 0
    s_cselect_b64 s[96:97], -1, 0
    """)
    for i in range(4):
        a(f"""
        v_subrev_u32 v9, {i}, v8
        v_and_b32 v9, 0x80000001, v9
        v_cmp_eq_u32 vcc, 0, v9
        v_cndmask_b32 v{BS+i}, v{vNEG}, 0, vcc
        v_cmp_eq_u32 vcc, 0x80000000, v9
        v_cndmask_b32 v{BP+i}, v{vNEG}, 0, vcc
        v_cndmask_b32 v{BP1+i}, v{BP+i}, v{vNEG}, s[96:97]
        """)
    a(f"""
    s_lshl_b32 s3, s{sT}, 8
    s_add_u32 s3, s3, s{sHQ}
    s_add_u32 s96, s3, {BRS}
    s_add_u32 s97, s96, {KO}
    s_sub_u32 s{sU}, s97, 256
    s_lshl_b32 s3, s{sT}, 10
    s_add_u32 s3, s3, s{sHB}
    s_add_u32 s101, s3, {BRS + VO}
    s_sub_u32 s13, s101, 2048
    s_cmp_eq_u32 s{sP}, 0
    s_cselect_b32 s{sU}, {BIG}, s{sU}
    s_cselect_b32 s13, {BIG}, s13
    """)
    a("s_barrier")
    stamp(11)
    a(f"""
    buffer_load_dwordx4 {q4(QB_)}, v{vKq}, {srd(sWS)}, s96 offen sc1
    buffer_load_dwordx4 {q4(KB_)}, v{vKq}, {srd(sWS)}, s{sU} offen sc1
    buffer_load_dwordx4 {q4(KB_+4)}, v{vKq}, {srd(sWS)}, s97 offen sc1
    buffer_load_dwordx4 {q4(QB_+4)}, v{vKq}, {srd(sWS)}, s96 offen offset:256 sc1
    buffer_load_dwordx4 {q4(KB_+8)}, v{vKq}, {srd(sWS)}, s97 offen offset:256 sc1
    buffer_load_dwordx4 {q4(VB_)}, v{vVa}, {srd(sWS)}, s13 offen sc1
    buffer_load_dwordx4 {q4(VB_+4)}, v{vVa}, {srd(sWS)}, s101 offen sc1
    buffer_load_dwordx4 {q4(VB_+8)}, v{vVb}, {srd(sWS)}, s13 offen sc1
    buffer_load_dwordx4 {q4(VB_+12)}, v{vVb}, {srd(sWS)}, s101 offen sc1
    """)
    q_load()
    def S(j, t): return SB_ + 8*j + 4*t
    a("s_waitcnt vmcnt(9)")
    stamp(5)
    qmask(QB_)
    a("s_waitcnt vmcnt(7)")
    a(f"v_mfma_f32_16x16x32_bf16 {q4(S(0,0))}, {q4(KB_)}, {q4(QB_)}, {q4(BP1)}")
    a(f"v_mfma_f32_16x16x32_bf16 {q4(S(0,1))}, {q4(KB_+4)}, {q4(QB_)}, {q4(BS)}")
    a("s_waitcnt vmcnt(6)")
    qmask(QB_+4)
    a("s_waitcnt vmcnt(5)")
    a(f"v_mfma_f32_16x16x32_bf16 {q4(S(1,0))}, {q4(KB_+4)}, {q4(QB_+4)}, {q4(BP)}")
    a(f"v_mfma_f32_16x16x32_bf16 {q4(S(1,1))}, {q4(KB_+8)}, {q4(QB_+4)}, {q4(BS)}")
    M = lambda j: MB_ + j
    T = lambda j: MB_ + 2 + j
    for j in range(2):
        s = S(j, 0)
        a(f"v_max3_f32 v{M(j)}, v{s}, v{s+1}, v{s+2}")
        a(f"v_max3_f32 v{T(j)}, v{s+3}, v{s+4}, v{s+5}")
        a(f"v_max3_f32 v{M(j)}, v{M(j)}, v{s+6}, v{s+7}")
        a(f"v_max_f32 v{M(j)}, v{M(j)}, v{T(j)}")
    for sw in ("v_permlane32_swap_b32", "v_permlane16_swap_b32"):
        for j in range(2): a(f"v_mov_b32 v{T(j)}, v{M(j)}")
        for j in range(2): a(f"{sw} v{M(j)}, v{T(j)}")
        for j in range(2): a(f"v_max_f32 v{M(j)}, v{M(j)}, v{T(j)}")
    for j in range(2): a(f"v_mul_f32 v{M(j)}, v{vC}, v{M(j)}")
    for j in range(2):
        for i in range(8): a(f"v_fma_f32 v{S(j,0)+i}, v{S(j,0)+i}, v{vC}, -v{M(j)}")
    for j in range(2):
        for i in range(8): a(f"v_exp_f32 v{S(j,0)+i}, v{S(j,0)+i}")
    for j in range(2):
        for i in range(4): cvt(PB_+4*j+i, S(j,0)+2*i)
    a("s_waitcnt vmcnt(1)")
    for r in range(8): a(f"v_or_b32 v{VB_+8+r}, v{vOne}, v{VB_+8+r}")
    for j in range(2):
        for dt in (1, 0):
            a(f"v_mfma_f32_16x16x32_bf16 {q4(OB_+8*j+4*dt)}, {q4(VB_+8*dt+2+2*j)}, {q4(PB_+4*j)}, 0")
    def normalize(O0, O1, ta, tb, dst):
        return [
            [f"v_mov_b32 v{ta}, v{O1}", f"v_mov_b32 v{tb}, v{O1}"],
            [f"v_permlane32_swap_b32 v{ta}, v{tb}"],
            [f"v_mov_b32 v{ta}, v{tb}"],
            [f"v_permlane16_swap_b32 v{ta}, v{tb}"],
            [f"v_rcp_f32 v{tb}, v{tb}"],
            [f"v_mul_f32 v{O0+i}, v{O0+i}, v{tb}" for i in range(4)] + [f"v_mul_f32 v{O1+i}, v{O1+i}, v{tb}" for i in range(4)],
            [f"v_cvt_pk_bf16_f32 v{dst}, v{O0}, v{O0+1}", f"v_cvt_pk_bf16_f32 v{dst+1}, v{O0+2}, v{O0+3}",
             f"v_cvt_pk_bf16_f32 v{dst+2}, v{O1}, v{O1+1}", f"v_cvt_pk_bf16_f32 v{dst+3}, v{O1+2}, v{O1+3}"],
            [f"v_bfi_b32 v{dst+3}, v{vMG}, v{dst+3}, v{vTAG}"],
        ]
    a(f"""
    s_lshl_b32 s3, s{sT}, 4
    s_add_u32 s3, s3, s{sAH}
    s_lshl_b32 s3, s3, 10
    s_add_u32 s3, s3, {OB}
    s_add_u32 s35, s3, 16384
    """)
    st = [normalize(OB_+8*j, OB_+8*j+4, MB_+2*j, MB_+2*j+1, OUTB_+4*j) for j in range(2)]
    for k in range(len(st[0])):
        for j in range(2):
            for x in st[j][k]: a(x)
    a(f"""
    buffer_store_dwordx4 {q4(OUTB_)}, v{vOo}, {srd(sWS)}, s3 offen sc1
    buffer_store_dwordx4 {q4(OUTB_+4)}, v{vOo}, {srd(sWS)}, s35 offen sc1
    s_waitcnt vmcnt(2)
    """)
    a.raw("L_b8:")
    stamp(6)
    qmask(QF)
    a("s_waitcnt lgkmcnt(0)")
    a("s_barrier")
    stamp(12)
    KBUF = 72; NKB = 6
    def kread(t): return f"ds_read_b128 {q4(KBUF + 4*(t % NKB))}, v{vKa} offset:{t*1024}"
    for t in range(NKB - 1): a(kread(t))
    a(f"""
    s_lshl_b32 s3, s{sRB64}, 2
    s_lshl_b32 s35, s{sRP}, 1
    s_add_u32 s3, s3, s35
    s_lshl_b32 s3, s3, 4
    s_lshl_b32 s35, s{sKQ}, 2
    s_add_u32 s3, s3, s35
    s_lshl_b32 s96, s3, 10
    """)
    for t in range(18):
        if t + NKB - 1 < 18: a(kread(t + NKB - 1))
        outstanding = min(18, t + NKB) - (t + 1)
        a(f"s_waitcnt lgkmcnt({outstanding})")
        c = q4(4*t) if t in (0, 1, 16, 17) else "0"
        a(f"v_mfma_f32_16x16x32_bf16 {q4(4*t)}, {q4(KBUF + 4*(t % NKB))}, {q4(QF)}, {c}")
    VB = [96 + 4*i for i in range(7)] + [72 + 4*i for i in range(6)]
    def vread(n):
        return f"ds_read_b128 {q4(VB[n % 13])}, v{vKa} offset:{24576 + (n>>1)*2048 + (n&1)*1024}"
    for n in range(7): a(vread(n))
    a(f"""
    s_lshl_b32 s3, s{sARB}, 3
    s_and_b32 s35, s{sWAVE}, 6
    s_add_u32 s3, s3, s35
    s_cmp_ge_u32 s3, 16
    s_cbranch_scc1 L_nofix
    s_nop 7
    """)
    for t in range(16):
        a(f"s_cmp_ge_u32 s3, {16 - t}")
        a("s_cbranch_scc1 L_nofix")
        for i in range(4): a(f"v_mov_b32 v{4*t+i}, v{vNEG}")
    a.raw("L_nofix:")
    for n in range(7, 13): a(vread(n))
    vM, vT = 236, 235
    a(f"v_max3_f32 v{vM}, v0, v1, v2")
    a(f"v_max3_f32 v{vT}, v3, v4, v5")
    k = 6; tog = 0
    while k < 72:
        d = vM if tog == 0 else vT
        a(f"v_max3_f32 v{d}, v{d}, v{k}, v{k+1}")
        k += 2; tog ^= 1
    a(f"v_max_f32 v{vM}, v{vM}, v{vT}")
    for sw in ("v_permlane32_swap_b32", "v_permlane16_swap_b32"):
        a(f"v_mov_b32 v{vT}, v{vM}")
        a(f"{sw} v{vM}, v{vT}")
        a(f"v_max_f32 v{vM}, v{vM}, v{vT}")
    a(f"v_mul_f32 v{vM}, v{vC}, v{vM}")
    def o_loads(obase):
        a(f"""
        s_add_u32 s3, s96, {obase}
        s_add_u32 s35, s3, 16384
        """)
        for hq in range(4):
            for tt in range(2):
                a(f"buffer_load_dwordx4 {q4(OF_ + (tt*4+hq)*4)}, v{vOoP}, {srd(sWS)}, s{3 if tt == 0 else 35} offen offset:{hq*1024} sc1")
    OACC = 224
    for u in range(9):
        b = 8*u
        if u == opt.get("obu", 4): o_loads(OB)
        for i in range(8): a(f"v_fma_f32 v{b+i}, v{b+i}, v{vC}, -v{vM}")
        for i in range(8): a(f"v_exp_f32 v{b+i}, v{b+i}")
        for i in range(4): a(f"v_cvt_pk_bf16_f32 v{b+i}, v{b+2*i}, v{b+2*i+1}")
        issued = min(18, 13 + 2*u)
        a(f"s_waitcnt lgkmcnt({max(0, min(15, issued - (2*u+2)))})")
        for dt in range(2):
            c = "0" if u == 0 else q4(OACC + 4*dt - 0)
            a(f"v_mfma_f32_16x16x32_bf16 {q4(OACC+4*dt)}, {q4(VB[(2*u+dt) % 13])}, {q4(b)}, {c}")
        for n in (13 + 2*u, 14 + 2*u):
            if n < 18: a(vread(n))
    a(f"""
    s_lshl_b32 s{sU}, s{sARB}, 3
    s_add_u32 s{sU}, s{sU}, s{sWAVE}
    s_lshl_b32 s3, s{sU}, 4
    s_add_u32 s3, s3, s{sAH}
    s_lshl_b32 s3, s3, 10
    s_add_u32 s98, s3, {OA}
    """)
    for grp in normalize(OACC, OACC+4, 234, 235, 120):
        for x in grp: a(x)
    a(f"buffer_store_dwordx4 {q4(120)}, v{vOo}, {srd(sWS)}, s98 offen sc1")
    stamp(13)
    a(f"""
    s_cmp_eq_u32 s{sCB}, 7
    s_cbranch_scc1 L_fin
    """)
    ACC = 72
    vXW, vXR, vOut, vChk = 224, 227, 228, 229
    for r in wo_reads(0): a(r)
    for cidx in range(1, 4):
        a(f"""
        s_add_u32 s3, s{sKQ}, {cidx}
        s_and_b32 s3, s3, 3
        s_lshl_b32 s35, s{sRP}, 2
        s_add_u32 s3, s3, s35
        s_mul_i32 s3, s3, 6144
        s_add_u32 s3, s3, {(cidx-1)*2048}
        v_add_u32 v{vXW+cidx-1}, s3, v{vL16}
        """)
    a(f"""
    s_lshl_b32 s35, s{sRP}, 2
    s_add_u32 s3, s35, s{sKQ}
    s_mul_i32 s3, s3, 6144
    v_add_u32 v{vXR}, s3, v{vL16}
    s_lshl_b32 s3, s{sRB64}, 6
    s_lshl_b32 s35, s{sRP}, 5
    s_add_u32 s3, s3, s35
    v_add_u32 v230, s3, v{vR15}
    v_mul_u32_u24 v230, 1792, v230
    v_lshl_add_u32 v230, v{vG}, 3, v230
    s_lshl_b32 s3, s{sCB}, 7
    s_lshl_b32 s35, s{sKQ}, 5
    s_add_u32 s3, s3, s35
    v_add_u32 v{vOut}, s3, v230
    s_mov_b32 s97, {POLL_MAX}
    """)
    def proj(lbl, obase, wbase, outoff, younger, mid):
        a(f"s_branch L_pj{lbl}_go")
        a.raw(f"L_pj{lbl}_retry:")
        a("s_sleep 2")
        o_loads(obase)
        a("s_waitcnt vmcnt(0)")
        a.raw(f"L_pj{lbl}_go:")
        n = 0
        for hq in range(4):
            for tt in range(2):
                n += 1
                f = OF_ + (tt*4+hq)*4
                a(f"s_waitcnt vmcnt({8-n+younger})")
                for cidx in range(4):
                    d = ACC + (tt*4+cidx)*4
                    c = "0" if hq == 0 else q4(d)
                    a(f"v_mfma_f32_16x16x32_bf16 {q4(d)}, {q4(wbase + (hq*4+cidx)*4)}, {q4(f)}, {c}")
                if n == 1: a(f"v_xor_b32 v{vChk}, v{f+3}, v{vTAG}")
                else: a(f"v_bitop3_b32 v{vChk}, v{f+3}, v{vTAG}, v{vChk} bitop3:0xbe")
        a(f"""
        v_cmp_ne_u32 vcc, 0, v{vChk}
        s_sub_u32 s97, s97, 1
        s_lshr_b32 s3, vcc_hi, 16
        s_cselect_b32 s3, s97, 0
        s_cmp_lg_u32 s3, 0
        s_cbranch_scc1 L_pj{lbl}_retry
        """)
        mid()
        for tt in range(2):
            for cidx in range(1, 4):
                a(f"ds_write_b128 v{vXW+cidx-1}, {q4(ACC + (tt*4+cidx)*4)} offset:{tt*1024}")
        a("s_waitcnt lgkmcnt(0)")
        a("s_barrier")
        RB_ = 104
        for tt in range(2):
            for s_ in range(3):
                a(f"ds_read_b128 {q4(RB_ + (tt*3+s_)*4)}, v{vXR} offset:{s_*2048 + tt*1024}")
        for tt in range(2):
            d = ACC + tt*16
            a(f"s_waitcnt lgkmcnt({3*(1-tt)})")
            for i in range(4):
                a(f"v_add_f32 v{d+i}, v{d+i}, v{RB_+tt*12+i}")
                a(f"v_add_f32 v{RB_+tt*12+4+i}, v{RB_+tt*12+4+i}, v{RB_+tt*12+8+i}")
            for i in range(4):
                a(f"v_add_f32 v{d+i}, v{d+i}, v{RB_+tt*12+4+i}")
            a(f"v_cvt_pk_bf16_f32 v{d}, v{d}, v{d+1}")
            a(f"v_cvt_pk_bf16_f32 v{d+1}, v{d+2}, v{d+3}")
            a(f"s_mov_b32 s3, {outoff + tt*16*1792}")
            a(f"buffer_store_dwordx2 {q2(d)}, v{vOut}, {srd(sOut)}, s3 offen{OSC}")
    def midB():
        stamp(7)
        o_loads(OA)
    proj("B", OB, WB_, 896, 1, midB)
    stamp(14)
    for x in wo_mask(0): a(x)
    for i in range(3): a(f"v_add_u32 v{vXW+i}, {L_KV}, v{vXW+i}")
    a(f"v_add_u32 v{vXR}, {L_KV}, v{vXR}")
    proj("A", OA, 0, 0, 2, lambda: stamp(8))
    a.raw("L_fin:")
    if stamps:
        stamp(15)
        a(f"""
        s_lshl_b32 s3, s2, 3
        s_add_u32 s3, s3, s{sWAVE}
        s_lshl_b32 s3, s3, 6
        s_add_u32 s3, s3, {STAMP}
        v_mov_b32 v1, 0
        s_mov_b64 exec, 1
        """)
        for i in range(16):
            a(f"v_mov_b32 v2, s{64+2*i}")
            a(f"buffer_store_dword v2, v1, {srd(sWS)}, s3 offen offset:{4*i}")
    a.raw("L_end:")
    a("s_endpgm")
    bad = a.check_branches()
    for b in bad: print("BRANCH HAZARD", b, file=sys.stderr)
    assert not bad
    out = HEADER + f"""; @launch grid=(256,1,1) block=(512,1,1) lds=163840
.amdgcn_target "amdgcn-amd-amdhsa--gfx950"
.text
.globl {NAME}_kernel
.p2align 8
.type {NAME}_kernel,@function
""" + a.text() + f""".fill 4096, 4, 0xBF800000
s_endpgm
.section .rodata,"a"
.p2align 6
.amdhsa_kernel {NAME}_kernel
  .amdhsa_next_free_vgpr 256
  .amdhsa_next_free_sgpr 102
  .amdhsa_accum_offset 256
  .amdhsa_group_segment_fixed_size 0
  .amdhsa_kernarg_size 72
  .amdhsa_user_sgpr_count 2
  .amdhsa_user_sgpr_kernarg_segment_ptr 1
  .amdhsa_system_sgpr_workgroup_id_x 1
.end_amdhsa_kernel
"""
    return out

if __name__ == "__main__":
    stamps = int(sys.argv[1]); path = sys.argv[2]
    opt = dict((kv.split("=")[0], int(kv.split("=")[1])) for kv in sys.argv[3:])
    open(path, "w").write(gen(stamps, opt))
```

```python
import sys, struct, math
from asmlib import Asm

NAME = "concat_heads__sliding_block__sliding_local_dilated__prompt"
HEADER = open("cdna_kernels/%s.s.ref" % NAME).read().split("; Override launch")[0]
def f2u(x): return struct.unpack("<I", struct.pack("<f", x))[0]

XB, WB, WOB_BYTES, OUTB = 1835008, 1204224, 401408, 3670016
MB2 = 0x200000
QO, KO, VO = 0, MB2, 2*MB2
BRS = 3*MB2
OA, OB = 6*MB2, 7*MB2
FL1, FLB, FLA = 8*MB2, 8*MB2 + 0x20000, 8*MB2 + 0x28000
STAMP = 8*MB2 + 0x100000
WSB = 9*MB2
BIG = 0x40000000
NEG = f2u(-1e30)
CSC = f2u((28 ** -0.5) * math.log2(math.e))
SLOT = 40960
L_WOB, L_WOA, L_KV = 0, 57344, 114688
POLL_MAX = 40000

sWAVE, sBR, sLAM, sRB, sAH, sARB, sRB64, sCB, sTAG = 4, 5, 6, 7, 8, 9, 10, 11, 12
sX, sW, sWoA, sWoB, sWS, sOut = 36, 40, 44, 48, 52, 56
def srd(b): return f"s[{b}:{b+3}]"
def q4(r): return f"v[{r}:{r+3}]"
def q2(r): return f"v[{r}:{r+1}]"
vL, vL16, vTAG = 255, 254, 253

def gen(stamps=False, opt=None):
    opt = opt or {}
    a = Asm()
    def stamp(i, late=False):
        if stamps and not (late and opt.get('cst')):
            a(f"s_memrealtime s[{64+2*i}:{65+2*i}]")
            a("s_waitcnt lgkmcnt(0)")
    a.raw(f"{NAME}_kernel:")
    a(f"""
    s_cmp_ge_u32 s2, 256
    s_cbranch_scc1 L_end
    s_load_dwordx16 s[16:31], s[0:1], 0
    s_load_dwordx2 s[32:33], s[0:1], 64
    v_lshrrev_b32 v1, 6, v0
    v_and_b32 v{vL}, 63, v0
    v_readfirstlane_b32 s{sWAVE}, v1
    s_and_b32 s13, s2, 7
    s_lshr_b32 s14, s2, 3
    s_lshr_b32 s{sBR}, s13, 2
    s_and_b32 s15, s13, 1
    s_lshl_b32 s15, s15, 2
    s_lshr_b32 s3, s14, 3
    s_add_u32 s{sLAM}, s15, s3
    s_and_b32 s15, s13, 2
    s_lshl_b32 s15, s15, 2
    s_and_b32 s3, s14, 7
    s_add_u32 s{sRB}, s15, s3
    v_lshlrev_b32 v{vL16}, 4, v{vL}
    s_mov_b32 s{sX+2}, {XB}
    s_mov_b32 s{sX+3}, 0x20000
    s_mov_b32 s{sW+2}, {WB}
    s_mov_b32 s{sW+3}, 0x20000
    v_lshrrev_b32 v1, 3, v{vL}
    v_and_b32 v2, 7, v{vL}
    v_lshrrev_b32 v3, 4, v{vL}
    """)
    if opt.get("exit0"):
        a("s_waitcnt lgkmcnt(0)")
        a("s_endpgm")
    a(f"""
    s_cmp_lt_u32 s{sWAVE}, 4
    s_cbranch_scc1 L_compute
    """)
    sel = f"""
    s_cmp_eq_u32 s{sBR}, 0
    s_cselect_b32 s{sX}, s16, s22
    s_cselect_b32 s{sX+1}, s17, s23
    s_cselect_b32 s{sW}, s18, s24
    s_cselect_b32 s{sW+1}, s19, s25
    """
    rest_setup = f"""
    s_lshl_b32 s{sAH}, s13, 1
    s_and_b32 s3, s14, 1
    s_add_u32 s{sAH}, s{sAH}, s3
    s_lshr_b32 s{sARB}, s14, 1
    s_lshl_b32 s{sRB64}, s13, 2
    s_lshr_b32 s3, s14, 3
    s_add_u32 s{sRB64}, s{sRB64}, s3
    s_and_b32 s{sCB}, s14, 7
    s_mov_b32 s{sWoA}, s20
    s_mov_b32 s{sWoA+1}, s21
    s_mov_b32 s{sWoA+2}, {WOB_BYTES}
    s_mov_b32 s{sWoA+3}, 0x20000
    s_mov_b32 s{sWoB}, s26
    s_mov_b32 s{sWoB+1}, s27
    s_mov_b32 s{sWoB+2}, {WOB_BYTES}
    s_mov_b32 s{sWoB+3}, 0x20000
    s_mov_b32 s{sWS}, s32
    s_mov_b32 s{sWS+1}, s33
    s_mov_b32 s{sWS+2}, {WSB}
    s_mov_b32 s{sWS+3}, 0x20000
    s_mov_b32 s{sOut}, s28
    s_mov_b32 s{sOut+1}, s29
    s_mov_b32 s{sOut+2}, {OUTB}
    s_mov_b32 s{sOut+3}, 0x20000
    """
    OSC = {0: "", 1: " sc1", 2: " nt", 3: " sc0 sc1"}[opt.get("osc", 0)]
    NT = " nt" if opt.get("nt", 0) else ""
    vXe, vXo, vW0, vW1, vWo = 10, 11, 13, 14, 15
    sLW, sLx, sLw, sT0, sT1 = 60, 61, 63, 34, 35
    a(f"""
    s_sub_u32 s{sLW}, s{sWAVE}, 4
    s_lshl_b32 s{sT0}, s{sRB}, 7
    s_lshl_b32 s{sT1}, s{sLW}, 5
    s_add_u32 s{sT0}, s{sT0}, s{sT1}
    v_add_u32 v4, s{sT0}, v1
    v_mul_u32_u24 v4, 896, v4
    v_xor_b32 v5, v2, v3
    v_lshl_add_u32 v{vXe}, v5, 4, v4
    v_xor_b32 v5, 4, v5
    v_lshl_add_u32 v{vXo}, v5, 4, v4
    v_add_u32 v{vXo}, 6144, v{vXo}
    s_lshl_b32 s{sLx}, s{sLW}, 12
    s_lshl_b32 s{sLw}, s{sLW}, 11
    s_lshl_b32 s{sT1}, s{sLW}, 4
    v_add_u32 v4, s{sT1}, v1
    v_mul_u32_u24 v4, 2688, v4
    s_lshl_b32 s{sT1}, s{sLAM}, 7
    v_add_u32 v4, s{sT1}, v4
    v_and_b32 v5, 1, v3
    v_lshlrev_b32 v5, 2, v5
    v_xor_b32 v5, v2, v5
    v_lshl_add_u32 v{vW0}, v5, 4, v4
    v_add_u32 v{vW1}, {8*2688-1024}, v{vW0}
    s_waitcnt lgkmcnt(0)
    """)
    a(sel)
    stamp(0)
    a(f"""
    s_cmp_eq_u32 s{sLAM}, 7
    s_cbranch_scc1 L_ld_idle
    """)
    def issue_chunk(c):
        if opt.get("nodma"): return
        slot = ((c + 1) % 4) * SLOT
        a(f"""
        s_add_u32 m0, s{sLx}, {slot}
        s_mov_b32 s{sT0}, {c*128}
        s_mov_b32 s{sT1}, {c*128 + 12288}
        buffer_load_dwordx4 v{vXe}, {srd(sX)}, s{sT0} offen{NT} lds
        buffer_load_dwordx4 v{vXo}, {srd(sX)}, s{sT0} offen offset:1024{NT} lds
        buffer_load_dwordx4 v{vXe}, {srd(sX)}, s{sT1} offen offset:2048{NT} lds
        buffer_load_dwordx4 v{vXo}, {srd(sX)}, s{sT1} offen offset:3072{NT} lds
        """)
        for p in range(3):
            a(f"""
            s_add_u32 m0, s{sLw}, {slot + 16384 + p*8192}
            s_mov_b32 s{sT1}, {c*64*2688 + p*896}
            buffer_load_dwordx4 v{vW0}, {srd(sW)}, s{sT1} offen{NT} lds
            buffer_load_dwordx4 v{vW1}, {srd(sW)}, s{sT1} offen offset:1024{NT} lds
            """)
    sLwo, sL1k = 98, 99
    sPD, sPS, sPO = 64+32, 100, 101
    sPD = 16
    vPf, vPw = 16, 17
    PFN = " nt" if opt.get("pnt", 0) else ""
    wo_setup = rest_setup + f"""
    v_and_b32 v5, 6, v1
    v_xor_b32 v5, v2, v5
    v_mul_u32_u24 v4, 896, v1
    s_lshl_b32 s{sT1}, s{sCB}, 7
    v_add_u32 v4, s{sT1}, v4
    v_lshl_add_u32 v{vWo}, v5, 4, v4
    s_cmp_eq_u32 s{sCB}, 7
    s_cselect_b64 vcc, -1, 0
    v_mov_b32 v7, {BIG}
    s_mul_i32 s{sLwo}, s{sLW}, 7168
    s_lshl_b32 s{sL1k}, s{sLW}, 10
    v_cndmask_b32 v{vWo}, v{vWo}, v7, vcc
    v_mov_b32 v1, 0
    ; wo prefetch: this CU covers lines [98j, 98j+98) of wo_B (waves 0,1) / wo_A (waves 2,3)
    s_mul_i32 s3, s14, 98
    s_and_b32 s{sT1}, s{sLW}, 1
    s_mul_i32 s{sT1}, s{sT1}, 49
    s_add_u32 s3, s3, s{sT1}
    v_min_u32 v4, 48, v{vL}
    v_add_u32 v4, s3, v4
    v_lshlrev_b32 v{vPw}, 7, v4
    """
    def issue_wo(i0, i1):
        if opt.get("nowo"): return
        for i in range(i0, i1):
            br = i >= 14
            a(f"""
            s_add_u32 m0, s{sL1k}, {4096*i}
            s_add_u32 s{sT1}, s{sLwo}, {(4*i - 56*br)*7168}
            buffer_load_dwordx4 v{vWo}, {srd(sWoA if br else sWoB)}, s{sT1} offen lds
            """)
            order.append("wo")
    def pf_setup():
        a(f"""
        s_and_b32 s{sT0}, s13, 2
        s_lshl_b32 s{sT0}, s{sT0}, 9
        s_lshl_b32 s{sT1}, s14, 5
        s_add_u32 s{sT0}, s{sT0}, s{sT1}
        v_min_u32 v4, 31, v{vL}
        v_add_u32 v4, s{sT0}, v4
        v_mul_u32_u24 v{vPf}, 896, v4
        v_min_u32 v4, 23, v{vL}
        v_cmp_le_u32 vcc, 12, v4
        v_cndmask_b32 v5, 0, 1, vcc
        v_mul_u32_u24 v6, 12, v5
        v_sub_u32 v6, v4, v6
        s_lshl_b32 s{sT0}, s14, 1
        v_add_u32 v5, s{sT0}, v5
        v_mul_u32_u24 v5, 2688, v5
        v_lshrrev_b32 v4, 2, v6
        v_mul_u32_u24 v4, 896, v4
        v_add_u32 v5, v5, v4
        v_and_b32 v6, 3, v6
        v_lshl_add_u32 v5, v6, 7, v5
        s_and_b32 s{sT0}, s13, 1
        s_lshl_b32 s{sT0}, s{sT0}, 9
        v_add_u32 v5, s{sT0}, v5
        s_bitcmp1_b32 s{sLW}, 0
        s_cselect_b64 vcc, -1, 0
        s_mov_b32 s{sPS}, 128
        s_cselect_b32 s{sPS}, 172032, s{sPS}
        s_cselect_b32 s44, s{sW}, s{sX}
        s_cselect_b32 s45, s{sW+1}, s{sX+1}
        s_cselect_b32 s46, s{sW+2}, s{sX+2}
        s_mov_b32 s47, 0x20000
        v_cndmask_b32 v{vPf}, v{vPf}, v5, vcc
        s_lshr_b32 s{sPO}, s{sLW}, 1
        s_add_u32 s{sPO}, s{sPO}, 1
        s_mul_i32 s{sPO}, s{sPO}, s{sPS}
        s_lshl_b32 s{sPS}, s{sPS}, 1
        """)
    def pf():
        a(f"""
        buffer_load_dword v20, v{vPf}, s[44:47], s{sPO} offen{PFN}
        s_add_u32 s{sPO}, s{sPO}, s{sPS}
        """)
        order.append("pf")
    def pf_wo():
        a(f"""
        s_cmp_lt_u32 s{sLW}, 2
        s_cbranch_scc1 L_pwB{len(order)}
        buffer_load_dword v20, v{vPw}, {srd(sWoA)}, 0 offen{PFN}
        s_branch L_pwD{len(order)}
        L_pwB{len(order)}:
        buffer_load_dword v20, v{vPw}, {srd(sWoB)}, 0 offen{PFN}
        L_pwD{len(order)}:
        """)
        order.append("pfw")
    order = []
    def D(c): issue_chunk(c); order.extend([c] * 10)
    def Wt(c):
        last = max(i for i, o in enumerate(order) if o == c)
        a(f"s_waitcnt vmcnt({len(order) - 1 - last})")
        if c == 0: stamp(1)
        a("s_barrier")
        if opt.get('cst') and c: stamp(4 + c)
    SEQS = {
     0: "D0 S P D1 W0 P D2 W1 P D3 O W2 D4 W3 D5 W4 D6 Q A W5 B W6",
     1: "D0 D1 W0 D2 W1 D3 O W2 D4 W3 D5 W4 D6 Q A W5 B W6",
     2: "D0 D1 W0 D2 D3 W1 D4 O W2 D5 W3 D6 Q W4 A W5 B W6",
     3: "D0 D1 W0 D2 W1 D3 D4 O W2 D5 W3 D6 Q W4 A W5 B W6",
     4: "D0 S P D1 W0 D2 P P W1 D3 O W2 D4 W3 D5 W4 D6 Q A W5 B W6",
     5: "D0 D1 S P P P W0 D2 W1 D3 O W2 D4 W3 D5 W4 D6 Q A W5 B W6",
     6: "D0 D1 W0 D2 W1 D3 O W2 D4 W3 D5 W4 D6 Q W5 A W6 B",
     7: "D0 D1 W0 D2 W1 D3 O W2 D4 W3 D5 Q W4 D6 W5 A W6 B",
     8: "D0 D1 W0 D2 W1 D3 O W2 D4 W3 D5 W4 D6 W5 A W6 B",
    }
    for t in SEQS[opt.get("seq", 6)].split():
        if t[0] == "D": D(int(t[1]))
        elif t[0] == "W": Wt(int(t[1]))
        elif t == "S": pf_setup()
        elif t == "P": pf()
        elif t == "O": a(wo_setup)
        elif t == "Q": pf_wo()
        elif t == "A": issue_wo(0, 10)
        elif t == "B": issue_wo(10, 20)
    a("s_barrier")
    stamp(2)
    a(f"global_load_dword v{vTAG}, v1, s[30:31] sc1")
    issue_wo(20, 28)
    a("s_waitcnt vmcnt(8)")
    a("s_branch L_phase2")
    a.raw("L_ld_idle:")
    a(wo_setup)
    pf_wo()
    issue_wo(0, 20)
    a(f"global_load_dword v{vTAG}, v1, s[30:31] sc1")
    issue_wo(20, 28)
    a("s_waitcnt vmcnt(8)")
    a("s_branch L_phase2")

    a.raw("L_compute:")
    sCH, sRH = 60, 61
    def q16(r): return f"v[{r}:{r+15}]"
    def Acc(p, rt): return p*32 + rt*16
    def Fx(s, rt): return 96 + 20*s + 4*rt
    def Fw(s, p): return 96 + 20*s + 8 + 4*p
    vxa = [200, 201, 202, 203]; vwa = 204
    vQo, vVo = 205, 206
    slot0 = SLOT
    a(f"""
    s_waitcnt lgkmcnt(0)
    v_mov_b32 v1, 0
    s_or_b32 s3, s2, s{sWAVE}
    s_cmp_lg_u32 s3, 0
    s_cbranch_scc1 L_notag
    s_memrealtime s[34:35]
    s_waitcnt lgkmcnt(0)
    s_and_b32 s34, s34, 0xbfffbfff
    s_or_b32 s34, s34, 1
    v_mov_b32 v2, s34
    global_store_dword v1, v2, s[30:31] sc1
    L_notag:
    """)
    stamp(0)
    a(rest_setup)
    a(sel)
    if opt.get("pf", 1):
        a(f"""
        s_cmp_lg_u32 s{sWAVE}, 1
        s_cbranch_scc1 L_notouch
        v_min_u32 v4, 8, v{vL}
        v_lshlrev_b32 v4, 21, v4
        v_add_u32 v4, 0x1ff780, v4
        buffer_load_dword v220, v4, {srd(sWS)}, 0 offen sc1
        v_and_b32 v4, 1, v{vL}
        v_lshlrev_b32 v4, 21, v4
        buffer_load_dword v221, v4, {srd(sOut)}, 0 offen
        L_notouch:
        s_and_b32 s3, s14, 15
        s_or_b32 s3, s3, 0x100
        s_lshl_b32 s34, s{sWAVE}, 4
        s_or_b32 s3, s3, s34
        s_cmp_lg_u32 s3, 0x12f
        s_cbranch_scc1 L_nocode
        s_getpc_b64 s[34:35]
        v_lshlrev_b32 v4, 7, v{vL}
        global_load_dword v220, v4, s[34:35]
        v_add_u32 v4, 8192, v4
        global_load_dword v221, v4, s[34:35]
        L_nocode:
        """)
    if opt.get("l2pf", 0):
        a(f"""
        s_lshl_b32 s3, s14, 2
        s_add_u32 s3, s3, s{sWAVE}
        s_cmp_lt_u32 s3, 48
        s_cbranch_scc0 L_pf_w
        s_and_b32 s34, s3, 15
        s_lshl_b32 s34, s34, 6
        s_and_b32 s35, s13, 2
        s_lshl_b32 s35, s35, 9
        s_add_u32 s34, s34, s35
        v_add_u32 v4, s34, v{vL}
        v_mul_u32_u24 v4, 896, v4
        s_lshr_b32 s3, s3, 4
        s_lshl_b32 s3, s3, 7
        s_add_u32 s3, s3, 512
        buffer_load_dword v222, v4, {srd(sX)}, s3 offen
        s_branch L_pf_done
        L_pf_w:
        s_cmp_lt_u32 s3, 84
        s_cbranch_scc0 L_pf_wo
        s_sub_u32 s3, s3, 48
        s_lshl_b32 s3, s3, 6
        v_add_u32 v4, s3, v{vL}
        v_mul_u32_u24 v5, 0x5556, v4
        v_lshrrev_b32 v5, 18, v5
        v_mul_u32_u24 v6, 12, v5
        v_sub_u32 v6, v4, v6
        v_mul_u32_u24 v5, 2688, v5
        v_lshrrev_b32 v7, 2, v6
        v_mul_u32_u24 v7, 896, v7
        v_and_b32 v6, 3, v6
        v_lshl_add_u32 v5, v6, 7, v5
        v_add_u32 v4, v5, v7
        s_and_b32 s3, s13, 1
        s_lshl_b32 s3, s3, 9
        s_add_u32 s3, s3, {256*2688}
        buffer_load_dword v222, v4, {srd(sW)}, s3 offen
        s_branch L_pf_done
        L_pf_wo:
        s_sub_u32 s3, s3, 84
        s_lshl_b32 s3, s3, 13
        v_lshlrev_b32 v4, 7, v{vL}
        buffer_load_dword v222, v4, {srd(sWoB)}, s3 offen
        L_pf_done:
        """)
    a(f"""
    s_and_b32 s{sCH}, s{sWAVE}, 1
    s_lshr_b32 s{sRH}, s{sWAVE}, 1
    global_load_dword v{vTAG}, v1, s[30:31] sc1
    s_cmp_eq_u32 s{sLAM}, 7
    s_cbranch_scc1 L_cmp_idle
    v_and_b32 v2, 31, v{vL}
    v_lshrrev_b32 v3, 5, v{vL}
    ; x address
    s_lshl_b32 s3, s{sRH}, 6
    v_add_u32 v4, s3, v2
    v_lshlrev_b32 v4, 7, v4
    v_bfe_u32 v5, v2, 1, 3
    v_xor_b32 v5, v5, v3
    v_lshl_add_u32 v{vxa[0]}, v5, 4, v4
    v_add_u32 v{vxa[0]}, {slot0}, v{vxa[0]}
    v_xor_b32 v{vxa[1]}, 32, v{vxa[0]}
    v_xor_b32 v{vxa[2]}, 64, v{vxa[0]}
    v_xor_b32 v{vxa[3]}, 96, v{vxa[0]}
    ; w address
    v_bfe_u32 v4, v{vL}, 2, 2
    v_lshl_add_u32 v6, v3, 3, v4
    v_lshlrev_b32 v6, 7, v6
    v_add_u32 v6, {slot0 + 16384}, v6
    v_bfe_u32 v7, v{vL}, 4, 1
    v_lshlrev_b32 v7, 5, v7
    v_and_b32 v8, 1, v{vL}
    v_lshl_or_b32 v7, v8, 4, v7
    v_bfe_u32 v8, v{vL}, 1, 1
    v_lshl_or_b32 v7, v8, 3, v7
    s_lshl_b32 s3, s{sCH}, 6
    v_or_b32 v7, s3, v7
    v_and_b32 v8, 2, v4
    v_lshlrev_b32 v8, 5, v8
    v_xor_b32 v7, v7, v8
    v_add_u32 v{vwa}, v6, v7
    s_lshl_b32 s3, s{sLAM}, 1
    s_add_u32 s3, s3, s{sCH}
    s_lshl_b32 s34, s3, 2
    v_add_u32 v6, s34, v3
    v_lshlrev_b32 v6, 15, v6
    v_lshl_add_u32 v{vQo}, v2, 4, v6
    s_lshl_b32 s34, s3, 3
    v_bfe_u32 v6, v{vL}, 4, 1
    v_lshl_add_u32 v6, v6, 2, s34
    v_and_b32 v7, 1, v4
    v_lshl_add_u32 v6, v7, 1, v6
    v_lshrrev_b32 v7, 1, v4
    v_add_u32 v6, v6, v7
    v_mul_u32_u24 v7, 147, v6
    v_lshrrev_b32 v7, 10, v7
    v_mul_u32_u24 v8, 7, v7
    v_sub_u32 v8, v6, v8
    v_lshlrev_b32 v7, 17, v7
    v_lshl_add_u32 v7, v8, 8, v7
    v_lshl_add_u32 v7, v3, 6, v7
    v_and_b32 v8, 3, v{vL}
    v_lshl_add_u32 v{vVo}, v8, 4, v7
    """)
    for r in range(96): a(f"v_mov_b32 v{r}, 0")
    def reads(s, ks):
        L = []
        for rt in range(2):
            L.append(f"ds_read_b128 {q4(Fx(s,rt))}, v{vxa[ks]} offset:{rt*4096}")
        for p in (1, 2, 0):
            for u in range(2):
                d = Fw(s, p) + 2*u
                L.append(f"ds_read_b64_tr_b16 {q2(d)}, v{vwa} offset:{p*8192 + ks*2048 + u*512}")
        return L
    def kstep(s, rd, extra=()):
        M = []
        for p in (1, 2, 0):
            for rt in range(2):
                A, B = (Fx(s,rt), Fw(s,p)) if p == 2 else (Fw(s,p), Fx(s,rt))
                M.append(f"v_mfma_f32_32x32x16_bf16 {q16(Acc(p,rt))}, {q4(A)}, {q4(B)}, {q16(Acc(p,rt))}")
        if opt.get("nolds"): rd = []
        per = [3, 3, 2, 0, 0, 0]
        k = 0
        extra = list(extra)
        for i, m in enumerate(M):
            a(m)
            for _ in range(per[i]):
                if k < len(rd): a(rd[k]); k += 1
            if i >= 3:
                for _ in range(4):
                    if extra: a(extra.pop(0))
        for e in extra: a(e)
    sC, sD = 62, 63
    a("s_barrier")
    stamp(1)
    if opt.get("cyc"):
        a("s_memtime s[82:83]")
        a("s_waitcnt lgkmcnt(0)")
    for r in reads(0, 0): a(r)
    a(f"s_mov_b32 s{sC}, 0")
    a.raw("L_gemm:")
    a("s_waitcnt lgkmcnt(0)")
    kstep(0, reads(1, 1), [f"s_and_b32 s3, s{sC}, 3", f"s_cmp_eq_u32 s3, 2", f"s_mov_b32 s{sD}, {SLOT}",
                           f"s_cselect_b32 s{sD}, {(-3*SLOT) & 0xffffffff}, s{sD}",
                           f"v_add_u32 v{vxa[0]}, s{sD}, v{vxa[0]}", f"v_add_u32 v{vxa[1]}, s{sD}, v{vxa[1]}"])
    a("s_waitcnt lgkmcnt(0)")
    kstep(1, reads(0, 2), [f"v_add_u32 v{vxa[2]}, s{sD}, v{vxa[2]}"])
    a("s_waitcnt lgkmcnt(0)")
    kstep(0, reads(1, 3), [f"v_add_u32 v{vxa[3]}, s{sD}, v{vxa[3]}", f"v_add_u32 v{vwa}, s{sD}, v{vwa}",
                           f"s_add_u32 s{sC}, s{sC}, 1", f"s_cmp_lt_u32 s{sC}, 7"])
    a("s_waitcnt lgkmcnt(0)")
    a("s_cbranch_scc0 L_nobar")
    a("s_barrier")
    a.raw("L_nobar:")
    kstep(1, reads(0, 0))
    a("s_cbranch_scc1 L_gemm")
    stamp(2)
    if opt.get("cyc"):
        a("s_memtime s[84:85]")
        a("s_waitcnt lgkmcnt(0)")
        a("s_sub_u32 s84, s84, s82")
        a("s_add_u32 s84, s84, s64")
        a("s_mov_b32 s82, s64")
    def cvt(d, s0): a(f"v_cvt_pk_bf16_f32 v{d}, v{s0}, v{s0+1}")
    a(f"""
    s_lshl_b32 s34, s{sRB}, 1
    s_add_u32 s34, s34, s{sRH}
    s_mul_i32 s3, s{sBR}, {BRS}
    s_lshl_b32 s35, s34, 12
    s_add_u32 s63, s3, s35
    s_add_u32 s63, s63, {VO}
    s_lshl_b32 s35, s34, 10
    s_add_u32 s3, s3, s35
    s_add_u32 s35, s3, {KO}
    s_add_u32 s96, s35, 65536
    s_add_u32 s97, s3, 65536
    """)
    def qk_store(p, s_lo, s_hi):
        for rt in range(2):
            for half in range(2):
                d = Acc(p, rt) + 8*half
                for i in range(4): cvt(d+i, d+2*i)
                a(f"buffer_store_dwordx4 {q4(d)}, v{vQo}, {srd(sWS)}, s{s_hi if half else s_lo} offen offset:{rt*512} sc1")
    qk_store(1, 35, 96)
    for rt in range(2):
        for b in range(2):
            d = 176 + (rt*2+b)*4; s0 = Acc(2, rt) + 4*b
            cvt(d, s0); cvt(d+1, s0+2); cvt(d+2, s0+8); cvt(d+3, s0+10)
            a(f"buffer_store_dwordx4 {q4(d)}, v{vVo}, {srd(sWS)}, s63 offen offset:{rt*2048 + b*128} sc1")
    qk_store(0, 3, 97)
    a(f"""
    s_lshl_b32 s3, s{sBR}, 5
    s_add_u32 s3, s3, s34
    s_lshl_b32 s3, s3, 4
    s_lshl_b32 s35, s{sLAM}, 1
    s_add_u32 s3, s3, s35
    s_add_u32 s3, s3, s{sCH}
    s_lshl_b32 s3, s3, 7
    s_add_u32 s63, s3, {FL1}
    """)
    a("s_barrier")
    stamp(3)
    def get_tag(lbl):
        a(f"""
        s_mov_b32 s35, {POLL_MAX}
        L_tag{lbl}:
        v_readfirstlane_b32 s{sTAG}, v{vTAG}
        s_cmp_lg_u32 s{sTAG}, 0
        s_cbranch_scc1 L_tagok{lbl}
        v_mov_b32 v1, 0
        global_load_dword v{vTAG}, v1, s[30:31] sc1
        s_sub_u32 s35, s35, 1
        s_waitcnt vmcnt(0)
        s_cmp_lg_u32 s35, 0
        s_cbranch_scc1 L_tag{lbl}
        L_tagok{lbl}:
        """)
    def put_flag(soff):
        a(f"""
        v_mov_b32 v231, 0
        s_mov_b64 exec, 1
        buffer_store_dword v{vTAG}, v231, {srd(sWS)}, s{soff} offen sc1
        s_mov_b64 exec, -1
        """)
    a("s_waitcnt vmcnt(0) lgkmcnt(0)")
    get_tag("c")
    put_flag(63)
    stamp(4)
    a("s_branch L_phase2")
    a.raw("L_cmp_idle:")
    a("s_waitcnt vmcnt(0)")
    a.raw("L_phase2:")
    get_tag("p")
    sRP, sKQ, sT, sU, sPF = 60, 61, 62, 63, 34
    def poll(lbl, vaddr, soff):
        a(f"""
        s_mov_b32 s35, {POLL_MAX}
        L_poll{lbl}:
        buffer_load_dword v231, v{vaddr}, {srd(sWS)}, s{soff} offen sc1
        s_sub_u32 s35, s35, 1
        s_waitcnt vmcnt(0)
        v_cmp_ne_u32 vcc, v231, v{vTAG}
        s_cmp_eq_u32 s35, 0
        s_cbranch_scc1 L_pollok{lbl}
        s_cbranch_vccz L_pollok{lbl}
        s_sleep 1
        s_branch L_poll{lbl}
        L_pollok{lbl}:
        """)
    vR15, vG = 240, 241
    vWA = 242
    vMG, vPA, vC = 250, 251, 252
    vNEG, vKa, vKw = 237, 239, 238
    vKq, vOo, vVa, vVb, vOne = 232, 233, 234, 235, 236
    vOoP = 233
    a(f"""
    v_mov_b32 v{vTAG}, s{sTAG}
    s_and_b32 s{sRP}, s{sWAVE}, 1
    s_lshr_b32 s{sKQ}, s{sWAVE}, 1
    v_and_b32 v{vR15}, 15, v{vL}
    v_lshrrev_b32 v{vG}, 4, v{vL}
    v_cmp_gt_u32 vcc, 48, v{vL}
    v_cndmask_b32 v{vMG}, 0, -1, vcc
    v_lshrrev_b32 v1, 2, v{vR15}
    v_lshl_add_u32 v2, v{vG}, 2, v1
    v_lshlrev_b32 v2, 7, v2
    s_mul_i32 s3, s{sKQ}, 14336
    v_add_u32 v2, s3, v2
    v_and_b32 v3, 2, v1
    v_and_b32 v4, 1, v{vG}
    v_lshl_or_b32 v3, v4, 2, v3
    v_lshlrev_b32 v3, 4, v3
    v_and_b32 v4, 3, v{vL}
    v_lshlrev_b32 v6, 3, v4
    v_xor_b32 v3, v3, v6
    v_add_u32 v2, v2, v3
    v_and_b32 v5, 2048, v{vMG}
    v_mov_b32 v7, {BIG}
    v_lshlrev_b32 v{vKq}, 15, v{vG}
    v_lshl_add_u32 v{vKq}, v{vR15}, 4, v{vKq}
    v_lshlrev_b32 v{vOo}, 6, v{vR15}
    v_lshl_add_u32 v{vOo}, v{vG}, 4, v{vOo}
    v_lshlrev_b32 v{vVa}, 8, v1
    v_lshl_add_u32 v{vVa}, v{vG}, 6, v{vVa}
    v_lshl_add_u32 v{vVa}, v4, 4, v{vVa}
    v_add_u32 v{vVb}, 1024, v{vVa}
    v_cmp_gt_u32 vcc, 12, v{vR15}
    v_cndmask_b32 v{vVb}, v7, v{vVb}, vcc
    v_cmp_eq_u32 vcc, 12, v{vR15}
    v_mov_b32 v7, 0x3f803f80
    v_cndmask_b32 v{vOne}, 0, v7, vcc
    v_mov_b32 v{vC}, {CSC}
    v_mov_b32 v{vNEG}, {NEG}
    """)
    for cidx in range(4):
        a(f"""
        s_add_u32 s3, s{sKQ}, {cidx}
        s_and_b32 s3, s3, 3
        s_lshl_b32 s3, s3, 5
        v_xor_b32 v{vWA+cidx}, s3, v2
        v_add_u32 v{vWA+4+cidx}, v{vWA+cidx}, v5
        """)
    a("s_barrier")
    def wo_reads(base):
        L = []
        for hq in range(4):
            for cidx in range(4):
                for u in range(2):
                    d = base + (hq*4 + cidx)*4 + 2*u
                    L.append(f"ds_read_b64_tr_b16 {q2(d)}, v{vWA + 4*u + ((cidx + 2*(hq&1)) & 3)} offset:{hq*3584}")
        return L
    def wo_mask(base):
        return [f"v_and_b32 v{base + f*4 + 2 + r}, v{vMG}, v{base + f*4 + 2 + r}" for f in range(16) for r in range(2)]
    WB_, OF_ = 128, 192
    for r in wo_reads(WB_): a(r)
    for i in range(8): a(f"v_add_u32 v{vWA+i}, {L_WOA}, v{vWA+i}")
    a(f"""
    s_and_b32 s3, s{sWAVE}, 6
    s_lshl_b32 s3, s3, 10
    s_add_u32 s3, s3, {L_KV}
    v_add_u32 v{vKa}, s3, v{vL16}
    v_lshlrev_b32 v8, 2, v{vG}
    v_sub_u32 v8, v8, v{vR15}
    s_bitcmp1_b32 s{sWAVE}, 0
    s_cselect_b64 s[96:97], -1, 0
    """)
    for i in range(4):
        a(f"""
        v_add_u32 v9, {i}, v8
        v_cmp_lt_i32 vcc, 0, v9
        v_cndmask_b32 v10, v{vNEG}, 0, vcc
        v_cndmask_b32 v11, 0, v{vNEG}, vcc
        v_cndmask_b32 v{0+i}, v10, v{vNEG}, s[96:97]
        v_cndmask_b32 v{4+i}, 0, v10, s[96:97]
        v_cndmask_b32 v{64+i}, v11, 0, s[96:97]
        v_cndmask_b32 v{68+i}, v{vNEG}, v11, s[96:97]
        """)
    QF = 124
    vQm = 228
    sHL0, sHL1, sHB, sHQ = 96, 97, 98, 100
    a(f"""
    s_mul_i32 s3, s{sAH}, 7
    s_lshr_b32 s{sHQ}, s3, 1
    s_lshl_b32 s{sHQ}, s{sHQ}, 15
    s_lshr_b32 s{sHL0}, s3, 3
    s_add_u32 s3, s3, 6
    s_lshr_b32 s{sHL1}, s3, 3
    s_sub_u32 s{sHL1}, s{sHL1}, s{sHL0}
    v_and_b32 v9, 1, v{vL}
    v_mul_u32_u24 v9, s{sHL1}, v9
    v_add_u32 v9, s{sHL0}, v9
    s_lshl_b32 s{sHB}, s{sAH}, 17
    s_mov_b32 s{sPF}, {FL1}
    v_cmp_lt_u32 vcc, 15, v{vL}
    v_cndmask_b32 v10, 0, -1, vcc
    s_bitcmp1_b32 s{sAH}, 0
    s_cselect_b64 vcc, -1, 0
    v_cndmask_b32 v{vQm}, -1, v10, vcc
    v_cndmask_b32 v{vQm+1}, v{vMG}, -1, vcc
    s_waitcnt lgkmcnt(0)
    """)
    for x in wo_mask(WB_): a(x)
    def qmask(r):
        for i in range(4): a(f"v_and_b32 v{r+i}, v{vQm + (i>>1)}, v{r+i}")
    a(f"""
    s_cmp_lt_u32 s{sWAVE}, 4
    s_cbranch_scc1 L_attnB
    """)
    a(f"""
    v_min_u32 v10, 17, v{vL}
    v_lshrrev_b32 v10, 1, v10
    s_lshl_b32 s3, s{sARB}, 1
    s_sub_u32 s3, s3, 4
    v_add_u32 v11, s3, v10
    v_max_i32 v11, 0, v11
    s_sub_u32 s3, s3, 3
    v_add_u32 v12, s3, v10
    v_max_i32 v12, 0, v12
    v_add_u32 v12, 32, v12
    v_cmp_lt_u32 vcc, 5, v10
    v_cndmask_b32 v10, v11, v12, vcc
    v_lshl_add_u32 v10, v10, 4, v9
    v_lshlrev_b32 v{vPA}, 7, v10
    s_sub_u32 s3, s{sWAVE}, 4
    s_mul_i32 s3, s3, 6
    s_lshl_b32 s{sT}, s{sARB}, 3
    s_sub_u32 s{sT}, s{sT}, 16
    s_add_u32 s{sT}, s{sT}, s3
    s_lshl_b32 s3, s3, 10
    s_add_u32 s3, s3, {L_KV}
    v_add_u32 v{vKw}, s3, v{vL16}
    s_add_u32 s96, s{sHQ}, {KO}
    """)
    a(f"s_cmp_lg_u32 s{sWAVE}, 7")
    a("s_cbranch_scc1 L_pollok1")
    poll("1", vPA, sPF)
    a("s_barrier")
    stamp(11)
    for i in range(6):
        a(f"""
        s_lshl_b32 s3, s{sT}, 10
        s_add_u32 s3, s3, s{sHB}
        s_add_u32 s3, s3, {VO - 1024*(i&1)}
        s_lshl_b32 s35, s{sT}, 8
        s_add_u32 s35, s35, s96
        s_cmp_lt_i32 s{sT}, 0
        s_cselect_b32 s3, {BIG}, s3
        s_cselect_b32 s35, {BIG}, s35
        buffer_load_dwordx4 {q4(72+8*i)}, v{vKq}, {srd(sWS)}, s35 offen sc1
        buffer_load_dwordx4 {q4(76+8*i)}, v{vVb if i & 1 else vVa}, {srd(sWS)}, s3 offen sc1
        s_add_u32 s{sT}, s{sT}, 1
        """)
    def q_load():
        a(f"""
        s_lshl_b32 s3, s{sARB}, 3
        s_add_u32 s3, s3, s{sWAVE}
        s_lshl_b32 s3, s3, 8
        s_add_u32 s3, s3, s{sHQ}
        buffer_load_dwordx4 {q4(QF)}, v{vKq}, {srd(sWS)}, s3 offen sc1
        """)
    q_load()
    for i in range(6):
        a(f"s_waitcnt vmcnt({1 + 2*(5-i) + 1})")
        if i == 0: stamp(5, True)
        a(f"ds_write_b128 v{vKw}, {q4(72+8*i)} offset:{1024*i}")
        a(f"s_waitcnt vmcnt({1 + 2*(5-i)})")
        if i & 1:
            for r in range(4): a(f"v_or_b32 v{76+8*i+r}, v{vOne}, v{76+8*i+r}")
        a(f"ds_write_b128 v{vKw}, {q4(76+8*i)} offset:{24576+1024*i}")
    a("s_waitcnt vmcnt(0)")
    a("s_branch L_b8")
    a.raw("L_attnB:")
    QB_, KB_, VB_, SB_, MB_, PB_, OB_, OUTB_, BS, BP, BP1 = 8, 16, 28, 44, 60, 72, 80, 96, 104, 108, 112
    sP = 99
    a(f"""
    s_lshl_b32 s{sP}, s{sARB}, 2
    s_add_u32 s{sP}, s{sP}, s{sWAVE}
    s_lshl_b32 s{sT}, s{sP}, 1
    v_sub_u32 v8, 0, v8
    s_cmp_eq_u32 s{sP}, 0
    s_cselect_b64 s[96:97], -1, 0
    """)
    for i in range(4):
        a(f"""
        v_subrev_u32 v9, {i}, v8
        v_and_b32 v9, 0x80000001, v9
        v_cmp_eq_u32 vcc, 0, v9
        v_cndmask_b32 v{BS+i}, v{vNEG}, 0, vcc
        v_cmp_eq_u32 vcc, 0x80000000, v9
        v_cndmask_b32 v{BP+i}, v{vNEG}, 0, vcc
        v_cndmask_b32 v{BP1+i}, v{BP+i}, v{vNEG}, s[96:97]
        """)
    a(f"""
    s_lshl_b32 s3, s{sT}, 8
    s_add_u32 s3, s3, s{sHQ}
    s_add_u32 s96, s3, {BRS}
    s_add_u32 s97, s96, {KO}
    s_sub_u32 s{sU}, s97, 256
    s_lshl_b32 s3, s{sT}, 10
    s_add_u32 s3, s3, s{sHB}
    s_add_u32 s101, s3, {BRS + VO}
    s_sub_u32 s13, s101, 2048
    s_cmp_eq_u32 s{sP}, 0
    s_cselect_b32 s{sU}, {BIG}, s{sU}
    s_cselect_b32 s13, {BIG}, s13
    """)
    a("s_barrier")
    stamp(11)
    a(f"""
    buffer_load_dwordx4 {q4(QB_)}, v{vKq}, {srd(sWS)}, s96 offen sc1
    buffer_load_dwordx4 {q4(KB_)}, v{vKq}, {srd(sWS)}, s{sU} offen sc1
    buffer_load_dwordx4 {q4(KB_+4)}, v{vKq}, {srd(sWS)}, s97 offen sc1
    buffer_load_dwordx4 {q4(QB_+4)}, v{vKq}, {srd(sWS)}, s96 offen offset:256 sc1
    buffer_load_dwordx4 {q4(KB_+8)}, v{vKq}, {srd(sWS)}, s97 offen offset:256 sc1
    buffer_load_dwordx4 {q4(VB_)}, v{vVa}, {srd(sWS)}, s13 offen sc1
    buffer_load_dwordx4 {q4(VB_+4)}, v{vVa}, {srd(sWS)}, s101 offen sc1
    buffer_load_dwordx4 {q4(VB_+8)}, v{vVb}, {srd(sWS)}, s13 offen sc1
    buffer_load_dwordx4 {q4(VB_+12)}, v{vVb}, {srd(sWS)}, s101 offen sc1
    """)
    q_load()
    def S(j, t): return SB_ + 8*j + 4*t
    a("s_waitcnt vmcnt(9)")
    stamp(5, True)
    qmask(QB_)
    a("s_waitcnt vmcnt(7)")
    a(f"v_mfma_f32_16x16x32_bf16 {q4(S(0,0))}, {q4(KB_)}, {q4(QB_)}, {q4(BP1)}")
    a(f"v_mfma_f32_16x16x32_bf16 {q4(S(0,1))}, {q4(KB_+4)}, {q4(QB_)}, {q4(BS)}")
    a("s_waitcnt vmcnt(6)")
    qmask(QB_+4)
    a("s_waitcnt vmcnt(5)")
    a(f"v_mfma_f32_16x16x32_bf16 {q4(S(1,0))}, {q4(KB_+4)}, {q4(QB_+4)}, {q4(BP)}")
    a(f"v_mfma_f32_16x16x32_bf16 {q4(S(1,1))}, {q4(KB_+8)}, {q4(QB_+4)}, {q4(BS)}")
    M = lambda j: MB_ + j
    T = lambda j: MB_ + 2 + j
    for j in range(2):
        s = S(j, 0)
        a(f"v_max3_f32 v{M(j)}, v{s}, v{s+1}, v{s+2}")
        a(f"v_max3_f32 v{T(j)}, v{s+3}, v{s+4}, v{s+5}")
        a(f"v_max3_f32 v{M(j)}, v{M(j)}, v{s+6}, v{s+7}")
        a(f"v_max_f32 v{M(j)}, v{M(j)}, v{T(j)}")
    for sw in ("v_permlane32_swap_b32", "v_permlane16_swap_b32"):
        for j in range(2): a(f"v_mov_b32 v{T(j)}, v{M(j)}")
        for j in range(2): a(f"{sw} v{M(j)}, v{T(j)}")
        for j in range(2): a(f"v_max_f32 v{M(j)}, v{M(j)}, v{T(j)}")
    for j in range(2): a(f"v_mul_f32 v{M(j)}, v{vC}, v{M(j)}")
    for j in range(2):
        for i in range(8): a(f"v_fma_f32 v{S(j,0)+i}, v{S(j,0)+i}, v{vC}, -v{M(j)}")
    for j in range(2):
        for i in range(8): a(f"v_exp_f32 v{S(j,0)+i}, v{S(j,0)+i}")
    for j in range(2):
        for i in range(4): cvt(PB_+4*j+i, S(j,0)+2*i)
    a("s_waitcnt vmcnt(1)")
    for r in range(8): a(f"v_or_b32 v{VB_+8+r}, v{vOne}, v{VB_+8+r}")
    for j in range(2):
        for dt in (1, 0):
            a(f"v_mfma_f32_16x16x32_bf16 {q4(OB_+8*j+4*dt)}, {q4(VB_+8*dt+2+2*j)}, {q4(PB_+4*j)}, 0")
    def normalize(O0, O1, ta, tb, dst):
        return [
            [f"v_mov_b32 v{ta}, v{O1}", f"v_mov_b32 v{tb}, v{O1}"],
            [f"v_permlane32_swap_b32 v{ta}, v{tb}"],
            [f"v_mov_b32 v{ta}, v{tb}"],
            [f"v_permlane16_swap_b32 v{ta}, v{tb}"],
            [f"v_rcp_f32 v{tb}, v{tb}"],
            [f"v_mul_f32 v{O0+i}, v{O0+i}, v{tb}" for i in range(4)] + [f"v_mul_f32 v{O1+i}, v{O1+i}, v{tb}" for i in range(4)],
            [f"v_cvt_pk_bf16_f32 v{dst}, v{O0}, v{O0+1}", f"v_cvt_pk_bf16_f32 v{dst+1}, v{O0+2}, v{O0+3}",
             f"v_cvt_pk_bf16_f32 v{dst+2}, v{O1}, v{O1+1}", f"v_cvt_pk_bf16_f32 v{dst+3}, v{O1+2}, v{O1+3}"],
            [f"v_bfi_b32 v{dst+3}, v{vMG}, v{dst+3}, v{vTAG}"],
        ]
    a(f"""
    s_lshl_b32 s3, s{sT}, 4
    s_add_u32 s3, s3, s{sAH}
    s_lshl_b32 s3, s3, 10
    s_add_u32 s3, s3, {OB}
    s_add_u32 s35, s3, 16384
    """)
    st = [normalize(OB_+8*j, OB_+8*j+4, MB_+2*j, MB_+2*j+1, OUTB_+4*j) for j in range(2)]
    for k in range(len(st[0])):
        for j in range(2):
            for x in st[j][k]: a(x)
    a(f"""
    buffer_store_dwordx4 {q4(OUTB_)}, v{vOo}, {srd(sWS)}, s3 offen sc1
    buffer_store_dwordx4 {q4(OUTB_+4)}, v{vOo}, {srd(sWS)}, s35 offen sc1
    s_waitcnt vmcnt(2)
    """)
    a.raw("L_b8:")
    stamp(6, True)
    qmask(QF)
    a("s_waitcnt lgkmcnt(0)")
    a("s_barrier")
    stamp(12)
    if opt.get("cyc2"):
        a("s_memtime s[82:83]")
        a("s_waitcnt lgkmcnt(0)")
    KBUF = 72; NKB = 6
    def kread(t): return f"ds_read_b128 {q4(KBUF + 4*(t % NKB))}, v{vKa} offset:{t*1024}"
    for t in range(NKB - 1): a(kread(t))
    a(f"""
    s_lshl_b32 s3, s{sRB64}, 2
    s_lshl_b32 s35, s{sRP}, 1
    s_add_u32 s3, s3, s35
    s_lshl_b32 s3, s3, 4
    s_lshl_b32 s35, s{sKQ}, 2
    s_add_u32 s3, s3, s35
    s_lshl_b32 s96, s3, 10
    """)
    for t in range(18):
        if t + NKB - 1 < 18: a(kread(t + NKB - 1))
        outstanding = min(18, t + NKB) - (t + 1)
        a(f"s_waitcnt lgkmcnt({outstanding})")
        c = q4(4*t) if t in (0, 1, 16, 17) else "0"
        a(f"v_mfma_f32_16x16x32_bf16 {q4(4*t)}, {q4(KBUF + 4*(t % NKB))}, {q4(QF)}, {c}")
    VB = [96 + 4*i for i in range(7)] + [72 + 4*i for i in range(6)]
    def vread(n):
        return f"ds_read_b128 {q4(VB[n % 13])}, v{vKa} offset:{24576 + (n>>1)*2048 + (n&1)*1024}"
    for n in range(7): a(vread(n))
    a(f"""
    s_lshl_b32 s3, s{sARB}, 3
    s_and_b32 s35, s{sWAVE}, 6
    s_add_u32 s3, s3, s35
    s_cmp_ge_u32 s3, 16
    s_cbranch_scc1 L_nofix
    s_nop 7
    """)
    for t in range(16):
        a(f"s_cmp_ge_u32 s3, {16 - t}")
        a("s_cbranch_scc1 L_nofix")
        for i in range(4): a(f"v_mov_b32 v{4*t+i}, v{vNEG}")
    a.raw("L_nofix:")
    for n in range(7, 13): a(vread(n))
    vM, vT = 236, 235
    a(f"v_max3_f32 v{vM}, v0, v1, v2")
    a(f"v_max3_f32 v{vT}, v3, v4, v5")
    k = 6; tog = 0
    while k < 72:
        d = vM if tog == 0 else vT
        a(f"v_max3_f32 v{d}, v{d}, v{k}, v{k+1}")
        k += 2; tog ^= 1
    a(f"v_max_f32 v{vM}, v{vM}, v{vT}")
    for sw in ("v_permlane32_swap_b32", "v_permlane16_swap_b32"):
        a(f"v_mov_b32 v{vT}, v{vM}")
        a(f"{sw} v{vM}, v{vT}")
        a(f"v_max_f32 v{vM}, v{vM}, v{vT}")
    a(f"v_mul_f32 v{vM}, v{vC}, v{vM}")
    def o_loads(obase):
        a(f"""
        s_add_u32 s3, s96, {obase}
        s_add_u32 s35, s3, 16384
        """)
        for hq in range(4):
            for tt in range(2):
                a(f"buffer_load_dwordx4 {q4(OF_ + (tt*4+hq)*4)}, v{vOoP}, {srd(sWS)}, s{3 if tt == 0 else 35} offen offset:{hq*1024} sc1")
    OACC = 224
    for u in range(9):
        b = 8*u
        if u == opt.get("obu", 4): o_loads(OB)
        for i in range(8): a(f"v_fma_f32 v{b+i}, v{b+i}, v{vC}, -v{vM}")
        for i in range(8): a(f"v_exp_f32 v{b+i}, v{b+i}")
        for i in range(4): a(f"v_cvt_pk_bf16_f32 v{b+i}, v{b+2*i}, v{b+2*i+1}")
        issued = min(18, 13 + 2*u)
        a(f"s_waitcnt lgkmcnt({max(0, min(15, issued - (2*u+2)))})")
        for dt in range(2):
            c = "0" if u == 0 else q4(OACC + 4*dt - 0)
            a(f"v_mfma_f32_16x16x32_bf16 {q4(OACC+4*dt)}, {q4(VB[(2*u+dt) % 13])}, {q4(b)}, {c}")
        for n in (13 + 2*u, 14 + 2*u):
            if n < 18: a(vread(n))
    a(f"""
    s_lshl_b32 s{sU}, s{sARB}, 3
    s_add_u32 s{sU}, s{sU}, s{sWAVE}
    s_lshl_b32 s3, s{sU}, 4
    s_add_u32 s3, s3, s{sAH}
    s_lshl_b32 s3, s3, 10
    s_add_u32 s98, s3, {OA}
    """)
    for grp in normalize(OACC, OACC+4, 234, 235, 120):
        for x in grp: a(x)
    a(f"buffer_store_dwordx4 {q4(120)}, v{vOo}, {srd(sWS)}, s98 offen sc1")
    stamp(13)
    if opt.get("cyc2"):
        a("s_memtime s[84:85]")
        a("s_waitcnt lgkmcnt(0)")
        a("s_sub_u32 s84, s84, s82")
        a("s_add_u32 s84, s84, s64")
        a("s_mov_b32 s82, s64")
    a(f"""
    s_cmp_eq_u32 s{sCB}, 7
    s_cbranch_scc1 L_fin
    """)
    ACC = 72
    vXW, vXR, vOut, vChk = 224, 227, 228, 229
    for r in wo_reads(0): a(r)
    for cidx in range(1, 4):
        a(f"""
        s_add_u32 s3, s{sKQ}, {cidx}
        s_and_b32 s3, s3, 3
        s_lshl_b32 s35, s{sRP}, 2
        s_add_u32 s3, s3, s35
        s_mul_i32 s3, s3, 6144
        s_add_u32 s3, s3, {(cidx-1)*2048}
        v_add_u32 v{vXW+cidx-1}, s3, v{vL16}
        """)
    a(f"""
    s_lshl_b32 s35, s{sRP}, 2
    s_add_u32 s3, s35, s{sKQ}
    s_mul_i32 s3, s3, 6144
    v_add_u32 v{vXR}, s3, v{vL16}
    s_lshl_b32 s3, s{sRB64}, 6
    s_lshl_b32 s35, s{sRP}, 5
    s_add_u32 s3, s3, s35
    v_add_u32 v230, s3, v{vR15}
    v_mul_u32_u24 v230, 1792, v230
    v_lshl_add_u32 v230, v{vG}, 3, v230
    s_lshl_b32 s3, s{sCB}, 7
    s_lshl_b32 s35, s{sKQ}, 5
    s_add_u32 s3, s3, s35
    v_add_u32 v{vOut}, s3, v230
    s_mov_b32 s97, {POLL_MAX}
    """)
    def proj(lbl, obase, wbase, outoff, younger, mid):
        a(f"s_branch L_pj{lbl}_go")
        a.raw(f"L_pj{lbl}_retry:")
        a("s_sleep 2")
        o_loads(obase)
        a("s_waitcnt vmcnt(0)")
        a.raw(f"L_pj{lbl}_go:")
        n = 0
        for hq in range(4):
            for tt in range(2):
                n += 1
                f = OF_ + (tt*4+hq)*4
                a(f"s_waitcnt vmcnt({8-n+younger})")
                for cidx in range(4):
                    d = ACC + (tt*4+cidx)*4
                    c = "0" if hq == 0 else q4(d)
                    a(f"v_mfma_f32_16x16x32_bf16 {q4(d)}, {q4(wbase + (hq*4+cidx)*4)}, {q4(f)}, {c}")
                if n == 1: a(f"v_xor_b32 v{vChk}, v{f+3}, v{vTAG}")
                else: a(f"v_bitop3_b32 v{vChk}, v{f+3}, v{vTAG}, v{vChk} bitop3:0xbe")
        a(f"""
        v_cmp_ne_u32 vcc, 0, v{vChk}
        s_sub_u32 s97, s97, 1
        s_lshr_b32 s3, vcc_hi, 16
        s_cselect_b32 s3, s97, 0
        s_cmp_lg_u32 s3, 0
        s_cbranch_scc1 L_pj{lbl}_retry
        """)
        mid()
        for tt in range(2):
            for cidx in range(1, 4):
                a(f"ds_write_b128 v{vXW+cidx-1}, {q4(ACC + (tt*4+cidx)*4)} offset:{tt*1024}")
        a("s_waitcnt lgkmcnt(0)")
        a("s_barrier")
        RB_ = 104
        for tt in range(2):
            for s_ in range(3):
                a(f"ds_read_b128 {q4(RB_ + (tt*3+s_)*4)}, v{vXR} offset:{s_*2048 + tt*1024}")
        for tt in range(2):
            d = ACC + tt*16
            a(f"s_waitcnt lgkmcnt({3*(1-tt)})")
            for i in range(4):
                a(f"v_add_f32 v{d+i}, v{d+i}, v{RB_+tt*12+i}")
                a(f"v_add_f32 v{RB_+tt*12+4+i}, v{RB_+tt*12+4+i}, v{RB_+tt*12+8+i}")
            for i in range(4):
                a(f"v_add_f32 v{d+i}, v{d+i}, v{RB_+tt*12+4+i}")
            a(f"v_cvt_pk_bf16_f32 v{d}, v{d}, v{d+1}")
            a(f"v_cvt_pk_bf16_f32 v{d+1}, v{d+2}, v{d+3}")
            a(f"s_mov_b32 s3, {outoff + tt*16*1792}")
            a(f"buffer_store_dwordx2 {q2(d)}, v{vOut}, {srd(sOut)}, s3 offen{OSC}")
    def midB():
        stamp(7, True)
        o_loads(OA)
    proj("B", OB, WB_, 896, 1, midB)
    stamp(14)
    for x in wo_mask(0): a(x)
    for i in range(3): a(f"v_add_u32 v{vXW+i}, {L_KV}, v{vXW+i}")
    a(f"v_add_u32 v{vXR}, {L_KV}, v{vXR}")
    proj("A", OA, 0, 0, 2, lambda: stamp(8, True))
    a.raw("L_fin:")
    if stamps:
        stamp(15)
        a(f"""
        s_lshl_b32 s3, s2, 3
        s_add_u32 s3, s3, s{sWAVE}
        s_lshl_b32 s3, s3, 6
        s_add_u32 s3, s3, {STAMP}
        v_mov_b32 v1, 0
        s_mov_b64 exec, 1
        """)
        for i in range(16):
            a(f"v_mov_b32 v2, s{64+2*i}")
            a(f"buffer_store_dword v2, v1, {srd(sWS)}, s3 offen offset:{4*i}")
    a.raw("L_end:")
    a("s_endpgm")
    bad = a.check_branches()
    for b in bad: print("BRANCH HAZARD", b, file=sys.stderr)
    assert not bad
    out = HEADER + f"""; @launch grid=(256,1,1) block=(512,1,1) lds=163840
.amdgcn_target "amdgcn-amd-amdhsa--gfx950"
.text
.globl {NAME}_kernel
.p2align 8
.type {NAME}_kernel,@function
""" + a.text() + f""".fill 4096, 4, 0xBF800000
s_endpgm
.section .rodata,"a"
.p2align 6
.amdhsa_kernel {NAME}_kernel
  .amdhsa_next_free_vgpr 256
  .amdhsa_next_free_sgpr 102
  .amdhsa_accum_offset 256
  .amdhsa_group_segment_fixed_size 0
  .amdhsa_kernarg_size 72
  .amdhsa_user_sgpr_count 2
  .amdhsa_user_sgpr_kernarg_segment_ptr 1
  .amdhsa_system_sgpr_workgroup_id_x 1
.end_amdhsa_kernel
"""
    return out

if __name__ == "__main__":
    stamps = int(sys.argv[1]); path = sys.argv[2]
    opt = dict((kv.split("=")[0], int(kv.split("=")[1])) for kv in sys.argv[3:])
    open(path, "w").write(gen(stamps, opt))
```

```python
import sys, struct, math
from asmlib import Asm

NAME = "concat_heads__sliding_block__sliding_local_dilated__prompt"
HEADER = open("cdna_kernels/%s.s.ref" % NAME).read().split("; Override launch")[0]
def f2u(x): return struct.unpack("<I", struct.pack("<f", x))[0]

XB, WB, WOB_BYTES, OUTB = 1835008, 1204224, 401408, 3670016
MB2 = 0x200000
QO, KO, VO = 0, MB2, 2*MB2
BRS = 3*MB2
OA, OB = 6*MB2, 7*MB2
FL1, FLB, FLA = 8*MB2, 8*MB2 + 0x20000, 8*MB2 + 0x28000
STAMP = 8*MB2 + 0x100000
WSB = 9*MB2
BIG = 0x40000000
NEG = f2u(-1e30)
CSC = f2u((28 ** -0.5) * math.log2(math.e))
SLOT = 40960
L_WOB, L_WOA, L_KV = 0, 57344, 114688
POLL_MAX = 40000

sWAVE, sBR, sLAM, sRB, sAH, sARB, sRB64, sCB, sTAG = 4, 5, 6, 7, 8, 9, 10, 11, 12
sX, sW, sWoA, sWoB, sWS, sOut = 36, 40, 44, 48, 52, 56
def srd(b): return f"s[{b}:{b+3}]"
def q4(r): return f"v[{r}:{r+3}]"
def q2(r): return f"v[{r}:{r+1}]"
vL, vL16, vTAG = 255, 254, 253

def gen(stamps=False, opt=None):
    opt = opt or {}
    a = Asm()
    def stamp(i, late=False):
        if stamps and not (late and opt.get('cst')):
            a(f"s_memrealtime s[{64+2*i}:{65+2*i}]")
            a("s_waitcnt lgkmcnt(0)")
    a.raw(f"{NAME}_kernel:")
    a(f"""
    s_cmp_ge_u32 s2, 256
    s_cbranch_scc1 L_end
    s_load_dwordx16 s[16:31], s[0:1], 0
    s_load_dwordx2 s[32:33], s[0:1], 64
    v_lshrrev_b32 v1, 6, v0
    v_and_b32 v{vL}, 63, v0
    v_readfirstlane_b32 s{sWAVE}, v1
    s_and_b32 s13, s2, 7
    s_lshr_b32 s14, s2, 3
    s_lshr_b32 s{sBR}, s13, 2
    s_and_b32 s15, s13, 1
    s_lshl_b32 s15, s15, 2
    s_lshr_b32 s3, s14, 3
    s_add_u32 s{sLAM}, s15, s3
    s_and_b32 s15, s13, 2
    s_lshl_b32 s15, s15, 2
    s_and_b32 s3, s14, 7
    s_add_u32 s{sRB}, s15, s3
    v_lshlrev_b32 v{vL16}, 4, v{vL}
    s_mov_b32 s{sX+2}, {XB}
    s_mov_b32 s{sX+3}, 0x20000
    s_mov_b32 s{sW+2}, {WB}
    s_mov_b32 s{sW+3}, 0x20000
    v_lshrrev_b32 v1, 3, v{vL}
    v_and_b32 v2, 7, v{vL}
    v_lshrrev_b32 v3, 4, v{vL}
    """)
    if opt.get("exit0"):
        a("s_waitcnt lgkmcnt(0)")
        a("s_endpgm")
    a(f"""
    s_cmp_lt_u32 s{sWAVE}, 4
    s_cbranch_scc1 L_compute
    """)
    sel = f"""
    s_cmp_eq_u32 s{sBR}, 0
    s_cselect_b32 s{sX}, s16, s22
    s_cselect_b32 s{sX+1}, s17, s23
    s_cselect_b32 s{sW}, s18, s24
    s_cselect_b32 s{sW+1}, s19, s25
    """
    rest_setup = f"""
    s_lshl_b32 s{sAH}, s13, 1
    s_and_b32 s3, s14, 1
    s_add_u32 s{sAH}, s{sAH}, s3
    s_lshr_b32 s{sARB}, s14, 1
    s_lshl_b32 s{sRB64}, s13, 2
    s_lshr_b32 s3, s14, 3
    s_add_u32 s{sRB64}, s{sRB64}, s3
    s_and_b32 s{sCB}, s14, 7
    s_mov_b32 s{sWoA}, s20
    s_mov_b32 s{sWoA+1}, s21
    s_mov_b32 s{sWoA+2}, {WOB_BYTES}
    s_mov_b32 s{sWoA+3}, 0x20000
    s_mov_b32 s{sWoB}, s26
    s_mov_b32 s{sWoB+1}, s27
    s_mov_b32 s{sWoB+2}, {WOB_BYTES}
    s_mov_b32 s{sWoB+3}, 0x20000
    s_mov_b32 s{sWS}, s32
    s_mov_b32 s{sWS+1}, s33
    s_mov_b32 s{sWS+2}, {WSB}
    s_mov_b32 s{sWS+3}, 0x20000
    s_mov_b32 s{sOut}, s28
    s_mov_b32 s{sOut+1}, s29
    s_mov_b32 s{sOut+2}, {OUTB}
    s_mov_b32 s{sOut+3}, 0x20000
    """
    OSC = {0: "", 1: " sc1", 2: " nt", 3: " sc0 sc1"}[opt.get("osc", 0)]
    NT = " nt" if opt.get("nt", 0) else ""
    vXe, vXo, vW0, vW1, vWo = 10, 11, 13, 14, 15
    sLW, sLx, sLw, sT0, sT1 = 60, 61, 63, 34, 35
    a(f"""
    s_sub_u32 s{sLW}, s{sWAVE}, 4
    s_lshl_b32 s{sT0}, s{sRB}, 7
    s_lshl_b32 s{sT1}, s{sLW}, 5
    s_add_u32 s{sT0}, s{sT0}, s{sT1}
    v_add_u32 v4, s{sT0}, v1
    v_mul_u32_u24 v4, 896, v4
    v_xor_b32 v5, v2, v3
    v_lshl_add_u32 v{vXe}, v5, 4, v4
    v_xor_b32 v5, 4, v5
    v_lshl_add_u32 v{vXo}, v5, 4, v4
    v_add_u32 v{vXo}, 6144, v{vXo}
    s_lshl_b32 s{sLx}, s{sLW}, 12
    s_lshl_b32 s{sLw}, s{sLW}, 11
    s_lshl_b32 s{sT1}, s{sLW}, 4
    v_add_u32 v4, s{sT1}, v1
    v_mul_u32_u24 v4, 2688, v4
    s_lshl_b32 s{sT1}, s{sLAM}, 7
    v_add_u32 v4, s{sT1}, v4
    v_and_b32 v5, 1, v3
    v_lshlrev_b32 v5, 2, v5
    v_xor_b32 v5, v2, v5
    v_lshl_add_u32 v{vW0}, v5, 4, v4
    v_add_u32 v{vW1}, {8*2688-1024}, v{vW0}
    s_waitcnt lgkmcnt(0)
    """)
    a(sel)
    stamp(0)
    a(f"""
    s_cmp_eq_u32 s{sLAM}, 7
    s_cbranch_scc1 L_ld_idle
    """)
    def issue_chunk(c):
        if opt.get("nodma"): return
        slot = ((c + 1) % 4) * SLOT
        a(f"""
        s_add_u32 m0, s{sLx}, {slot}
        s_mov_b32 s{sT0}, {c*128}
        s_mov_b32 s{sT1}, {c*128 + 12288}
        buffer_load_dwordx4 v{vXe}, {srd(sX)}, s{sT0} offen{NT} lds
        buffer_load_dwordx4 v{vXo}, {srd(sX)}, s{sT0} offen offset:1024{NT} lds
        buffer_load_dwordx4 v{vXe}, {srd(sX)}, s{sT1} offen offset:2048{NT} lds
        buffer_load_dwordx4 v{vXo}, {srd(sX)}, s{sT1} offen offset:3072{NT} lds
        """)
        for p in range(3):
            a(f"""
            s_add_u32 m0, s{sLw}, {slot + 16384 + p*8192}
            s_mov_b32 s{sT1}, {c*64*2688 + p*896}
            buffer_load_dwordx4 v{vW0}, {srd(sW)}, s{sT1} offen{NT} lds
            buffer_load_dwordx4 v{vW1}, {srd(sW)}, s{sT1} offen offset:1024{NT} lds
            """)
    sLwo, sL1k = 98, 99
    sPD, sPS, sPO = 64+32, 100, 101
    sPD = 16
    vPf, vPw = 16, 17
    PFN = " nt" if opt.get("pnt", 0) else ""
    wo_setup = rest_setup + f"""
    v_and_b32 v5, 6, v1
    v_xor_b32 v5, v2, v5
    v_mul_u32_u24 v4, 896, v1
    s_lshl_b32 s{sT1}, s{sCB}, 7
    v_add_u32 v4, s{sT1}, v4
    v_lshl_add_u32 v{vWo}, v5, 4, v4
    s_cmp_eq_u32 s{sCB}, 7
    s_cselect_b64 vcc, -1, 0
    v_mov_b32 v7, {BIG}
    s_mul_i32 s{sLwo}, s{sLW}, 7168
    s_lshl_b32 s{sL1k}, s{sLW}, 10
    v_cndmask_b32 v{vWo}, v{vWo}, v7, vcc
    v_mov_b32 v1, 0
    ; wo prefetch: this CU covers lines [98j, 98j+98) of wo_B (waves 0,1) / wo_A (waves 2,3)
    s_mul_i32 s3, s14, 98
    s_and_b32 s{sT1}, s{sLW}, 1
    s_mul_i32 s{sT1}, s{sT1}, 49
    s_add_u32 s3, s3, s{sT1}
    v_min_u32 v4, 48, v{vL}
    v_add_u32 v4, s3, v4
    v_lshlrev_b32 v{vPw}, 7, v4
    """
    def issue_wo(i0, i1):
        if opt.get("nowo"): return
        for i in range(i0, i1):
            br = i >= 14
            a(f"""
            s_add_u32 m0, s{sL1k}, {4096*i}
            s_add_u32 s{sT1}, s{sLwo}, {(4*i - 56*br)*7168}
            buffer_load_dwordx4 v{vWo}, {srd(sWoA if br else sWoB)}, s{sT1} offen lds
            """)
            order.append("wo")
    def pf_setup():
        a(f"""
        s_and_b32 s{sT0}, s13, 2
        s_lshl_b32 s{sT0}, s{sT0}, 9
        s_lshl_b32 s{sT1}, s14, 5
        s_add_u32 s{sT0}, s{sT0}, s{sT1}
        v_min_u32 v4, 31, v{vL}
        v_add_u32 v4, s{sT0}, v4
        v_mul_u32_u24 v{vPf}, 896, v4
        v_min_u32 v4, 23, v{vL}
        v_cmp_le_u32 vcc, 12, v4
        v_cndmask_b32 v5, 0, 1, vcc
        v_mul_u32_u24 v6, 12, v5
        v_sub_u32 v6, v4, v6
        s_lshl_b32 s{sT0}, s14, 1
        v_add_u32 v5, s{sT0}, v5
        v_mul_u32_u24 v5, 2688, v5
        v_lshrrev_b32 v4, 2, v6
        v_mul_u32_u24 v4, 896, v4
        v_add_u32 v5, v5, v4
        v_and_b32 v6, 3, v6
        v_lshl_add_u32 v5, v6, 7, v5
        s_and_b32 s{sT0}, s13, 1
        s_lshl_b32 s{sT0}, s{sT0}, 9
        v_add_u32 v5, s{sT0}, v5
        s_bitcmp1_b32 s{sLW}, 0
        s_cselect_b64 vcc, -1, 0
        s_mov_b32 s{sPS}, 128
        s_cselect_b32 s{sPS}, 172032, s{sPS}
        s_cselect_b32 s44, s{sW}, s{sX}
        s_cselect_b32 s45, s{sW+1}, s{sX+1}
        s_cselect_b32 s46, s{sW+2}, s{sX+2}
        s_mov_b32 s47, 0x20000
        v_cndmask_b32 v{vPf}, v{vPf}, v5, vcc
        s_lshr_b32 s{sPO}, s{sLW}, 1
        s_add_u32 s{sPO}, s{sPO}, 1
        s_mul_i32 s{sPO}, s{sPO}, s{sPS}
        s_lshl_b32 s{sPS}, s{sPS}, 1
        """)
    def pf():
        a(f"""
        buffer_load_dword v20, v{vPf}, s[44:47], s{sPO} offen{PFN}
        s_add_u32 s{sPO}, s{sPO}, s{sPS}
        """)
        order.append("pf")
    def pf_wo():
        a(f"""
        s_cmp_lt_u32 s{sLW}, 2
        s_cbranch_scc1 L_pwB{len(order)}
        buffer_load_dword v20, v{vPw}, {srd(sWoA)}, 0 offen{PFN}
        s_branch L_pwD{len(order)}
        L_pwB{len(order)}:
        buffer_load_dword v20, v{vPw}, {srd(sWoB)}, 0 offen{PFN}
        L_pwD{len(order)}:
        """)
        order.append("pfw")
    order = []
    def D(c): issue_chunk(c); order.extend([c] * 10)
    def Wt(c):
        last = max(i for i, o in enumerate(order) if o == c)
        a(f"s_waitcnt vmcnt({len(order) - 1 - last})")
        if c == 0: stamp(1)
        a("s_barrier")
        if opt.get('cst') and c: stamp(4 + c)
    SEQS = {
     0: "D0 S P D1 W0 P D2 W1 P D3 O W2 D4 W3 D5 W4 D6 Q A W5 B W6",
     1: "D0 D1 W0 D2 W1 D3 O W2 D4 W3 D5 W4 D6 Q A W5 B W6",
     2: "D0 D1 W0 D2 D3 W1 D4 O W2 D5 W3 D6 Q W4 A W5 B W6",
     3: "D0 D1 W0 D2 W1 D3 D4 O W2 D5 W3 D6 Q W4 A W5 B W6",
     4: "D0 S P D1 W0 D2 P P W1 D3 O W2 D4 W3 D5 W4 D6 Q A W5 B W6",
     5: "D0 D1 S P P P W0 D2 W1 D3 O W2 D4 W3 D5 W4 D6 Q A W5 B W6",
     6: "D0 D1 W0 D2 W1 D3 O W2 D4 W3 D5 W4 D6 Q W5 A W6 B",
     7: "D0 D1 W0 D2 W1 D3 O W2 D4 W3 D5 Q W4 D6 W5 A W6 B",
     8: "D0 D1 W0 D2 W1 D3 O W2 D4 W3 D5 W4 D6 W5 A W6 B",
    }
    for t in SEQS[opt.get("seq", 6)].split():
        if t[0] == "D": D(int(t[1]))
        elif t[0] == "W": Wt(int(t[1]))
        elif t == "S": pf_setup()
        elif t == "P": pf()
        elif t == "O": a(wo_setup)
        elif t == "Q": pf_wo()
        elif t == "A": issue_wo(0, 10)
        elif t == "B": issue_wo(10, 20)
    a("s_barrier")
    stamp(2)
    a(f"global_load_dword v{vTAG}, v1, s[30:31] sc1")
    issue_wo(20, 28)
    a("s_waitcnt vmcnt(8)")
    a("s_branch L_phase2")
    a.raw("L_ld_idle:")
    a(wo_setup)
    pf_wo()
    issue_wo(0, 20)
    a(f"global_load_dword v{vTAG}, v1, s[30:31] sc1")
    issue_wo(20, 28)
    a("s_waitcnt vmcnt(8)")
    a("s_branch L_phase2")

    a.raw("L_compute:")
    sCH, sRH = 60, 61
    def q16(r): return f"v[{r}:{r+15}]"
    def Acc(p, rt): return p*32 + rt*16
    def Fx(s, rt): return 96 + 20*s + 4*rt
    def Fw(s, p): return 96 + 20*s + 8 + 4*p
    vxa = [200, 201, 202, 203]; vwa = 204
    vQo, vVo = 205, 206
    slot0 = SLOT
    a(f"""
    s_waitcnt lgkmcnt(0)
    v_mov_b32 v1, 0
    s_or_b32 s3, s2, s{sWAVE}
    s_cmp_lg_u32 s3, 0
    s_cbranch_scc1 L_notag
    s_memrealtime s[34:35]
    s_waitcnt lgkmcnt(0)
    s_and_b32 s34, s34, 0xbfffbfff
    s_or_b32 s34, s34, 1
    v_mov_b32 v2, s34
    global_store_dword v1, v2, s[30:31] sc1
    L_notag:
    """)
    stamp(0)
    a(rest_setup)
    a(sel)
    if opt.get("pf", 1):
        a(f"""
        s_cmp_lg_u32 s{sWAVE}, 1
        s_cbranch_scc1 L_notouch
        v_min_u32 v4, 8, v{vL}
        v_lshlrev_b32 v4, 21, v4
        v_add_u32 v4, 0x1ff780, v4
        buffer_load_dword v220, v4, {srd(sWS)}, 0 offen sc1
        v_and_b32 v4, 1, v{vL}
        v_lshlrev_b32 v4, 21, v4
        buffer_load_dword v221, v4, {srd(sOut)}, 0 offen
        L_notouch:
        s_and_b32 s3, s14, 15
        s_or_b32 s3, s3, 0x100
        s_lshl_b32 s34, s{sWAVE}, 4
        s_or_b32 s3, s3, s34
        s_cmp_lg_u32 s3, 0x12f
        s_cbranch_scc1 L_nocode
        s_getpc_b64 s[34:35]
        v_lshlrev_b32 v4, 7, v{vL}
        global_load_dword v220, v4, s[34:35]
        v_add_u32 v4, 8192, v4
        global_load_dword v221, v4, s[34:35]
        L_nocode:
        """)
    if opt.get("l2pf", 0):
        a(f"""
        s_lshl_b32 s3, s14, 2
        s_add_u32 s3, s3, s{sWAVE}
        s_cmp_lt_u32 s3, 48
        s_cbranch_scc0 L_pf_w
        s_and_b32 s34, s3, 15
        s_lshl_b32 s34, s34, 6
        s_and_b32 s35, s13, 2
        s_lshl_b32 s35, s35, 9
        s_add_u32 s34, s34, s35
        v_add_u32 v4, s34, v{vL}
        v_mul_u32_u24 v4, 896, v4
        s_lshr_b32 s3, s3, 4
        s_lshl_b32 s3, s3, 7
        s_add_u32 s3, s3, 512
        buffer_load_dword v222, v4, {srd(sX)}, s3 offen
        s_branch L_pf_done
        L_pf_w:
        s_cmp_lt_u32 s3, 84
        s_cbranch_scc0 L_pf_wo
        s_sub_u32 s3, s3, 48
        s_lshl_b32 s3, s3, 6
        v_add_u32 v4, s3, v{vL}
        v_mul_u32_u24 v5, 0x5556, v4
        v_lshrrev_b32 v5, 18, v5
        v_mul_u32_u24 v6, 12, v5
        v_sub_u32 v6, v4, v6
        v_mul_u32_u24 v5, 2688, v5
        v_lshrrev_b32 v7, 2, v6
        v_mul_u32_u24 v7, 896, v7
        v_and_b32 v6, 3, v6
        v_lshl_add_u32 v5, v6, 7, v5
        v_add_u32 v4, v5, v7
        s_and_b32 s3, s13, 1
        s_lshl_b32 s3, s3, 9
        s_add_u32 s3, s3, {256*2688}
        buffer_load_dword v222, v4, {srd(sW)}, s3 offen
        s_branch L_pf_done
        L_pf_wo:
        s_sub_u32 s3, s3, 84
        s_lshl_b32 s3, s3, 13
        v_lshlrev_b32 v4, 7, v{vL}
        buffer_load_dword v222, v4, {srd(sWoB)}, s3 offen
        L_pf_done:
        """)
    a(f"""
    s_and_b32 s{sCH}, s{sWAVE}, 1
    s_lshr_b32 s{sRH}, s{sWAVE}, 1
    global_load_dword v{vTAG}, v1, s[30:31] sc1
    s_cmp_eq_u32 s{sLAM}, 7
    s_cbranch_scc1 L_cmp_idle
    v_and_b32 v2, 31, v{vL}
    v_lshrrev_b32 v3, 5, v{vL}
    ; x address
    s_lshl_b32 s3, s{sRH}, 6
    v_add_u32 v4, s3, v2
    v_lshlrev_b32 v4, 7, v4
    v_bfe_u32 v5, v2, 1, 3
    v_xor_b32 v5, v5, v3
    v_lshl_add_u32 v{vxa[0]}, v5, 4, v4
    v_add_u32 v{vxa[0]}, {slot0}, v{vxa[0]}
    v_xor_b32 v{vxa[1]}, 32, v{vxa[0]}
    v_xor_b32 v{vxa[2]}, 64, v{vxa[0]}
    v_xor_b32 v{vxa[3]}, 96, v{vxa[0]}
    ; w address
    v_bfe_u32 v4, v{vL}, 2, 2
    v_lshl_add_u32 v6, v3, 3, v4
    v_lshlrev_b32 v6, 7, v6
    v_add_u32 v6, {slot0 + 16384}, v6
    v_bfe_u32 v7, v{vL}, 4, 1
    v_lshlrev_b32 v7, 5, v7
    v_and_b32 v8, 1, v{vL}
    v_lshl_or_b32 v7, v8, 4, v7
    v_bfe_u32 v8, v{vL}, 1, 1
    v_lshl_or_b32 v7, v8, 3, v7
    s_lshl_b32 s3, s{sCH}, 6
    v_or_b32 v7, s3, v7
    v_and_b32 v8, 2, v4
    v_lshlrev_b32 v8, 5, v8
    v_xor_b32 v7, v7, v8
    v_add_u32 v{vwa}, v6, v7
    s_lshl_b32 s3, s{sLAM}, 1
    s_add_u32 s3, s3, s{sCH}
    s_lshl_b32 s34, s3, 2
    v_add_u32 v6, s34, v3
    v_lshlrev_b32 v6, 15, v6
    v_lshl_add_u32 v{vQo}, v2, 4, v6
    s_lshl_b32 s34, s3, 3
    v_bfe_u32 v6, v{vL}, 4, 1
    v_lshl_add_u32 v6, v6, 2, s34
    v_and_b32 v7, 1, v4
    v_lshl_add_u32 v6, v7, 1, v6
    v_lshrrev_b32 v7, 1, v4
    v_add_u32 v6, v6, v7
    v_mul_u32_u24 v7, 147, v6
    v_lshrrev_b32 v7, 10, v7
    v_mul_u32_u24 v8, 7, v7
    v_sub_u32 v8, v6, v8
    v_lshlrev_b32 v7, 17, v7
    v_lshl_add_u32 v7, v8, 8, v7
    v_lshl_add_u32 v7, v3, 6, v7
    v_and_b32 v8, 3, v{vL}
    v_lshl_add_u32 v{vVo}, v8, 4, v7
    """)
    for r in range(96): a(f"v_mov_b32 v{r}, 0")
    def reads(s, ks):
        L = []
        for rt in range(2):
            L.append(f"ds_read_b128 {q4(Fx(s,rt))}, v{vxa[ks]} offset:{rt*4096}")
        for p in (1, 2, 0):
            for u in range(2):
                d = Fw(s, p) + 2*u
                L.append(f"ds_read_b64_tr_b16 {q2(d)}, v{vwa} offset:{p*8192 + ks*2048 + u*512}")
        return L
    def kstep(s, rd, extra=()):
        M = []
        for p in (1, 2, 0):
            for rt in range(2):
                A, B = (Fx(s,rt), Fw(s,p)) if p == 2 else (Fw(s,p), Fx(s,rt))
                M.append(f"v_mfma_f32_32x32x16_bf16 {q16(Acc(p,rt))}, {q4(A)}, {q4(B)}, {q16(Acc(p,rt))}")
        if opt.get("nolds"): rd = []
        per = [3, 3, 2, 0, 0, 0]
        k = 0
        extra = list(extra)
        for i, m in enumerate(M):
            a(m)
            for _ in range(per[i]):
                if k < len(rd): a(rd[k]); k += 1
            if i >= 3:
                for _ in range(4):
                    if extra: a(extra.pop(0))
        for e in extra: a(e)
    sC, sD = 62, 63
    a("s_barrier")
    stamp(1)
    if opt.get("cyc"):
        a("s_memtime s[82:83]")
        a("s_waitcnt lgkmcnt(0)")
    for r in reads(0, 0): a(r)
    a(f"s_mov_b32 s{sC}, 0")
    a.raw("L_gemm:")
    a("s_waitcnt lgkmcnt(0)")
    kstep(0, reads(1, 1), [f"s_and_b32 s3, s{sC}, 3", f"s_cmp_eq_u32 s3, 2", f"s_mov_b32 s{sD}, {SLOT}",
                           f"s_cselect_b32 s{sD}, {(-3*SLOT) & 0xffffffff}, s{sD}",
                           f"v_add_u32 v{vxa[0]}, s{sD}, v{vxa[0]}", f"v_add_u32 v{vxa[1]}, s{sD}, v{vxa[1]}"])
    a("s_waitcnt lgkmcnt(0)")
    kstep(1, reads(0, 2), [f"v_add_u32 v{vxa[2]}, s{sD}, v{vxa[2]}"])
    a("s_waitcnt lgkmcnt(0)")
    kstep(0, reads(1, 3), [f"v_add_u32 v{vxa[3]}, s{sD}, v{vxa[3]}", f"v_add_u32 v{vwa}, s{sD}, v{vwa}",
                           f"s_add_u32 s{sC}, s{sC}, 1", f"s_cmp_lt_u32 s{sC}, 7"])
    a("s_waitcnt lgkmcnt(0)")
    a("s_cbranch_scc0 L_nobar")
    a("s_barrier")
    a.raw("L_nobar:")
    kstep(1, reads(0, 0))
    a("s_cbranch_scc1 L_gemm")
    stamp(2)
    if opt.get("cyc"):
        a("s_memtime s[84:85]")
        a("s_waitcnt lgkmcnt(0)")
        a("s_sub_u32 s84, s84, s82")
        a("s_add_u32 s84, s84, s64")
        a("s_mov_b32 s82, s64")
    def cvt(d, s0): a(f"v_cvt_pk_bf16_f32 v{d}, v{s0}, v{s0+1}")
    a(f"""
    s_lshl_b32 s34, s{sRB}, 1
    s_add_u32 s34, s34, s{sRH}
    s_mul_i32 s3, s{sBR}, {BRS}
    s_lshl_b32 s35, s34, 12
    s_add_u32 s63, s3, s35
    s_add_u32 s63, s63, {VO}
    s_lshl_b32 s35, s34, 10
    s_add_u32 s3, s3, s35
    s_add_u32 s35, s3, {KO}
    s_add_u32 s96, s35, 65536
    s_add_u32 s97, s3, 65536
    """)
    def qk_store(p, s_lo, s_hi):
        for rt in range(2):
            for half in range(2):
                d = Acc(p, rt) + 8*half
                for i in range(4): cvt(d+i, d+2*i)
                a(f"buffer_store_dwordx4 {q4(d)}, v{vQo}, {srd(sWS)}, s{s_hi if half else s_lo} offen offset:{rt*512} sc1")
    qk_store(1, 35, 96)
    for rt in range(2):
        for b in range(2):
            d = 176 + (rt*2+b)*4; s0 = Acc(2, rt) + 4*b
            cvt(d, s0); cvt(d+1, s0+2); cvt(d+2, s0+8); cvt(d+3, s0+10)
            a(f"buffer_store_dwordx4 {q4(d)}, v{vVo}, {srd(sWS)}, s63 offen offset:{rt*2048 + b*128} sc1")
    qk_store(0, 3, 97)
    a(f"""
    s_lshl_b32 s3, s{sBR}, 5
    s_add_u32 s3, s3, s34
    s_lshl_b32 s3, s3, 4
    s_lshl_b32 s35, s{sLAM}, 1
    s_add_u32 s3, s3, s35
    s_add_u32 s3, s3, s{sCH}
    s_lshl_b32 s3, s3, 7
    s_add_u32 s63, s3, {FL1}
    """)
    a("s_barrier")
    stamp(3)
    def get_tag(lbl):
        a(f"""
        s_mov_b32 s35, {POLL_MAX}
        L_tag{lbl}:
        v_readfirstlane_b32 s{sTAG}, v{vTAG}
        s_cmp_lg_u32 s{sTAG}, 0
        s_cbranch_scc1 L_tagok{lbl}
        v_mov_b32 v1, 0
        global_load_dword v{vTAG}, v1, s[30:31] sc1
        s_sub_u32 s35, s35, 1
        s_waitcnt vmcnt(0)
        s_cmp_lg_u32 s35, 0
        s_cbranch_scc1 L_tag{lbl}
        L_tagok{lbl}:
        """)
    def put_flag(soff):
        a(f"""
        v_mov_b32 v231, 0
        s_mov_b64 exec, 1
        buffer_store_dword v{vTAG}, v231, {srd(sWS)}, s{soff} offen sc1
        s_mov_b64 exec, -1
        """)
    a("s_waitcnt vmcnt(0) lgkmcnt(0)")
    get_tag("c")
    put_flag(63)
    stamp(4)
    a("s_branch L_phase2")
    a.raw("L_cmp_idle:")
    a("s_waitcnt vmcnt(0)")
    a.raw("L_phase2:")
    get_tag("p")
    sRP, sKQ, sT, sU, sPF = 60, 61, 62, 63, 34
    def poll(lbl, vaddr, soff):
        a(f"""
        s_mov_b32 s35, {POLL_MAX}
        L_poll{lbl}:
        buffer_load_dword v231, v{vaddr}, {srd(sWS)}, s{soff} offen sc1
        s_sub_u32 s35, s35, 1
        s_waitcnt vmcnt(0)
        v_cmp_ne_u32 vcc, v231, v{vTAG}
        s_cmp_eq_u32 s35, 0
        s_cbranch_scc1 L_pollok{lbl}
        s_cbranch_vccz L_pollok{lbl}
        s_sleep 1
        s_branch L_poll{lbl}
        L_pollok{lbl}:
        """)
    vR15, vG = 240, 241
    vWA = 242
    vMG, vPA, vC = 250, 251, 252
    vNEG, vKa, vKw = 237, 239, 238
    vKq, vOo, vVa, vVb, vOne = 232, 233, 234, 235, 236
    vOoP = 233
    a(f"""
    v_mov_b32 v{vTAG}, s{sTAG}
    s_and_b32 s{sRP}, s{sWAVE}, 1
    s_lshr_b32 s{sKQ}, s{sWAVE}, 1
    v_and_b32 v{vR15}, 15, v{vL}
    v_lshrrev_b32 v{vG}, 4, v{vL}
    v_cmp_gt_u32 vcc, 48, v{vL}
    v_cndmask_b32 v{vMG}, 0, -1, vcc
    v_lshrrev_b32 v1, 2, v{vR15}
    v_lshl_add_u32 v2, v{vG}, 2, v1
    v_lshlrev_b32 v2, 7, v2
    s_mul_i32 s3, s{sKQ}, 14336
    v_add_u32 v2, s3, v2
    v_and_b32 v3, 2, v1
    v_and_b32 v4, 1, v{vG}
    v_lshl_or_b32 v3, v4, 2, v3
    v_lshlrev_b32 v3, 4, v3
    v_and_b32 v4, 3, v{vL}
    v_lshlrev_b32 v6, 3, v4
    v_xor_b32 v3, v3, v6
    v_add_u32 v2, v2, v3
    v_and_b32 v5, 2048, v{vMG}
    v_mov_b32 v7, {BIG}
    v_lshlrev_b32 v{vKq}, 15, v{vG}
    v_lshl_add_u32 v{vKq}, v{vR15}, 4, v{vKq}
    v_lshlrev_b32 v{vOo}, 6, v{vR15}
    v_lshl_add_u32 v{vOo}, v{vG}, 4, v{vOo}
    v_lshlrev_b32 v{vVa}, 8, v1
    v_lshl_add_u32 v{vVa}, v{vG}, 6, v{vVa}
    v_lshl_add_u32 v{vVa}, v4, 4, v{vVa}
    v_add_u32 v{vVb}, 1024, v{vVa}
    v_cmp_gt_u32 vcc, 12, v{vR15}
    v_cndmask_b32 v{vVb}, v7, v{vVb}, vcc
    v_cmp_eq_u32 vcc, 12, v{vR15}
    v_mov_b32 v7, 0x3f803f80
    v_cndmask_b32 v{vOne}, 0, v7, vcc
    v_mov_b32 v{vC}, {CSC}
    v_mov_b32 v{vNEG}, {NEG}
    """)
    for cidx in range(4):
        a(f"""
        s_add_u32 s3, s{sKQ}, {cidx}
        s_and_b32 s3, s3, 3
        s_lshl_b32 s3, s3, 5
        v_xor_b32 v{vWA+cidx}, s3, v2
        v_add_u32 v{vWA+4+cidx}, v{vWA+cidx}, v5
        """)
    a("s_barrier")
    def wo_reads(base):
        L = []
        for hq in range(4):
            for cidx in range(4):
                for u in range(2):
                    d = base + (hq*4 + cidx)*4 + 2*u
                    L.append(f"ds_read_b64_tr_b16 {q2(d)}, v{vWA + 4*u + ((cidx + 2*(hq&1)) & 3)} offset:{hq*3584}")
        return L
    def wo_mask(base):
        return [f"v_and_b32 v{base + f*4 + 2 + r}, v{vMG}, v{base + f*4 + 2 + r}" for f in range(16) for r in range(2)]
    WB_, OF_ = 128, 192
    for r in wo_reads(WB_): a(r)
    for i in range(8): a(f"v_add_u32 v{vWA+i}, {L_WOA}, v{vWA+i}")
    a(f"""
    s_and_b32 s3, s{sWAVE}, 6
    s_lshl_b32 s3, s3, 10
    s_add_u32 s3, s3, {L_KV}
    v_add_u32 v{vKa}, s3, v{vL16}
    v_lshlrev_b32 v8, 2, v{vG}
    v_sub_u32 v8, v8, v{vR15}
    s_bitcmp1_b32 s{sWAVE}, 0
    s_cselect_b64 s[96:97], -1, 0
    """)
    for i in range(4):
        a(f"""
        v_add_u32 v9, {i}, v8
        v_cmp_lt_i32 vcc, 0, v9
        v_cndmask_b32 v10, v{vNEG}, 0, vcc
        v_cndmask_b32 v11, 0, v{vNEG}, vcc
        v_cndmask_b32 v{0+i}, v10, v{vNEG}, s[96:97]
        v_cndmask_b32 v{4+i}, 0, v10, s[96:97]
        v_cndmask_b32 v{64+i}, v11, 0, s[96:97]
        v_cndmask_b32 v{68+i}, v{vNEG}, v11, s[96:97]
        """)
    QF = 124
    vQm = 228
    sHL0, sHL1, sHB, sHQ = 96, 97, 98, 100
    a(f"""
    s_mul_i32 s3, s{sAH}, 7
    s_lshr_b32 s{sHQ}, s3, 1
    s_lshl_b32 s{sHQ}, s{sHQ}, 15
    s_lshr_b32 s{sHL0}, s3, 3
    s_add_u32 s3, s3, 6
    s_lshr_b32 s{sHL1}, s3, 3
    s_sub_u32 s{sHL1}, s{sHL1}, s{sHL0}
    v_and_b32 v9, 1, v{vL}
    v_mul_u32_u24 v9, s{sHL1}, v9
    v_add_u32 v9, s{sHL0}, v9
    s_lshl_b32 s{sHB}, s{sAH}, 17
    s_mov_b32 s{sPF}, {FL1}
    v_cmp_lt_u32 vcc, 15, v{vL}
    v_cndmask_b32 v10, 0, -1, vcc
    s_bitcmp1_b32 s{sAH}, 0
    s_cselect_b64 vcc, -1, 0
    v_cndmask_b32 v{vQm}, -1, v10, vcc
    v_cndmask_b32 v{vQm+1}, v{vMG}, -1, vcc
    s_waitcnt lgkmcnt(0)
    """)
    for x in wo_mask(WB_): a(x)
    def qmask(r):
        for i in range(4): a(f"v_and_b32 v{r+i}, v{vQm + (i>>1)}, v{r+i}")
    a(f"""
    s_cmp_lt_u32 s{sWAVE}, 4
    s_cbranch_scc1 L_attnB
    """)
    a(f"""
    v_min_u32 v10, 17, v{vL}
    v_lshrrev_b32 v10, 1, v10
    s_lshl_b32 s3, s{sARB}, 1
    s_sub_u32 s3, s3, 4
    v_add_u32 v11, s3, v10
    v_max_i32 v11, 0, v11
    s_sub_u32 s3, s3, 3
    v_add_u32 v12, s3, v10
    v_max_i32 v12, 0, v12
    v_add_u32 v12, 32, v12
    v_cmp_lt_u32 vcc, 5, v10
    v_cndmask_b32 v10, v11, v12, vcc
    v_lshl_add_u32 v10, v10, 4, v9
    v_lshlrev_b32 v{vPA}, 7, v10
    s_sub_u32 s3, s{sWAVE}, 4
    s_mul_i32 s3, s3, 6
    s_lshl_b32 s{sT}, s{sARB}, 3
    s_sub_u32 s{sT}, s{sT}, 16
    s_add_u32 s{sT}, s{sT}, s3
    s_lshl_b32 s3, s3, 10
    s_add_u32 s3, s3, {L_KV}
    v_add_u32 v{vKw}, s3, v{vL16}
    s_add_u32 s96, s{sHQ}, {KO}
    """)
    a(f"s_cmp_lg_u32 s{sWAVE}, 7")
    a("s_cbranch_scc1 L_pollok1")
    poll("1", vPA, sPF)
    a("s_barrier")
    stamp(11)
    for i in range(6):
        a(f"""
        s_lshl_b32 s3, s{sT}, 10
        s_add_u32 s3, s3, s{sHB}
        s_add_u32 s3, s3, {VO - 1024*(i&1)}
        s_lshl_b32 s35, s{sT}, 8
        s_add_u32 s35, s35, s96
        s_cmp_lt_i32 s{sT}, 0
        s_cselect_b32 s3, {BIG}, s3
        s_cselect_b32 s35, {BIG}, s35
        buffer_load_dwordx4 {q4(72+8*i)}, v{vKq}, {srd(sWS)}, s35 offen sc1
        buffer_load_dwordx4 {q4(76+8*i)}, v{vVb if i & 1 else vVa}, {srd(sWS)}, s3 offen sc1
        s_add_u32 s{sT}, s{sT}, 1
        """)
    def q_load():
        a(f"""
        s_lshl_b32 s3, s{sARB}, 3
        s_add_u32 s3, s3, s{sWAVE}
        s_lshl_b32 s3, s3, 8
        s_add_u32 s3, s3, s{sHQ}
        buffer_load_dwordx4 {q4(QF)}, v{vKq}, {srd(sWS)}, s3 offen sc1
        """)
    q_load()
    for i in range(6):
        a(f"s_waitcnt vmcnt({1 + 2*(5-i) + 1})")
        if i == 0: stamp(5, True)
        a(f"ds_write_b128 v{vKw}, {q4(72+8*i)} offset:{1024*i}")
        a(f"s_waitcnt vmcnt({1 + 2*(5-i)})")
        if i & 1:
            for r in range(4): a(f"v_or_b32 v{76+8*i+r}, v{vOne}, v{76+8*i+r}")
        a(f"ds_write_b128 v{vKw}, {q4(76+8*i)} offset:{24576+1024*i}")
    a("s_waitcnt vmcnt(0)")
    a("s_branch L_b8")
    a.raw("L_attnB:")
    QB_, KB_, VB_, SB_, MB_, PB_, OB_, OUTB_, BS, BP, BP1 = 8, 16, 28, 44, 60, 72, 80, 96, 104, 108, 112
    sP = 99
    a(f"""
    s_lshl_b32 s{sP}, s{sARB}, 2
    s_add_u32 s{sP}, s{sP}, s{sWAVE}
    s_lshl_b32 s{sT}, s{sP}, 1
    v_sub_u32 v8, 0, v8
    s_cmp_eq_u32 s{sP}, 0
    s_cselect_b64 s[96:97], -1, 0
    """)
    for i in range(4):
        a(f"""
        v_subrev_u32 v9, {i}, v8
        v_and_b32 v9, 0x80000001, v9
        v_cmp_eq_u32 vcc, 0, v9
        v_cndmask_b32 v{BS+i}, v{vNEG}, 0, vcc
        v_cmp_eq_u32 vcc, 0x80000000, v9
        v_cndmask_b32 v{BP+i}, v{vNEG}, 0, vcc
        v_cndmask_b32 v{BP1+i}, v{BP+i}, v{vNEG}, s[96:97]
        """)
    a(f"""
    s_lshl_b32 s3, s{sT}, 8
    s_add_u32 s3, s3, s{sHQ}
    s_add_u32 s96, s3, {BRS}
    s_add_u32 s97, s96, {KO}
    s_sub_u32 s{sU}, s97, 256
    s_lshl_b32 s3, s{sT}, 10
    s_add_u32 s3, s3, s{sHB}
    s_add_u32 s101, s3, {BRS + VO}
    s_sub_u32 s13, s101, 2048
    s_cmp_eq_u32 s{sP}, 0
    s_cselect_b32 s{sU}, {BIG}, s{sU}
    s_cselect_b32 s13, {BIG}, s13
    """)
    a("s_barrier")
    stamp(11)
    a(f"""
    buffer_load_dwordx4 {q4(QB_)}, v{vKq}, {srd(sWS)}, s96 offen sc1
    buffer_load_dwordx4 {q4(KB_)}, v{vKq}, {srd(sWS)}, s{sU} offen sc1
    buffer_load_dwordx4 {q4(KB_+4)}, v{vKq}, {srd(sWS)}, s97 offen sc1
    buffer_load_dwordx4 {q4(QB_+4)}, v{vKq}, {srd(sWS)}, s96 offen offset:256 sc1
    buffer_load_dwordx4 {q4(KB_+8)}, v{vKq}, {srd(sWS)}, s97 offen offset:256 sc1
    buffer_load_dwordx4 {q4(VB_)}, v{vVa}, {srd(sWS)}, s13 offen sc1
    buffer_load_dwordx4 {q4(VB_+4)}, v{vVa}, {srd(sWS)}, s101 offen sc1
    buffer_load_dwordx4 {q4(VB_+8)}, v{vVb}, {srd(sWS)}, s13 offen sc1
    buffer_load_dwordx4 {q4(VB_+12)}, v{vVb}, {srd(sWS)}, s101 offen sc1
    """)
    q_load()
    def S(j, t): return SB_ + 8*j + 4*t
    a("s_waitcnt vmcnt(9)")
    stamp(5, True)
    qmask(QB_)
    a("s_waitcnt vmcnt(7)")
    a(f"v_mfma_f32_16x16x32_bf16 {q4(S(0,0))}, {q4(KB_)}, {q4(QB_)}, {q4(BP1)}")
    a(f"v_mfma_f32_16x16x32_bf16 {q4(S(0,1))}, {q4(KB_+4)}, {q4(QB_)}, {q4(BS)}")
    a("s_waitcnt vmcnt(6)")
    qmask(QB_+4)
    a("s_waitcnt vmcnt(5)")
    a(f"v_mfma_f32_16x16x32_bf16 {q4(S(1,0))}, {q4(KB_+4)}, {q4(QB_+4)}, {q4(BP)}")
    a(f"v_mfma_f32_16x16x32_bf16 {q4(S(1,1))}, {q4(KB_+8)}, {q4(QB_+4)}, {q4(BS)}")
    M = lambda j: MB_ + j
    T = lambda j: MB_ + 2 + j
    for j in range(2):
        s = S(j, 0)
        a(f"v_max3_f32 v{M(j)}, v{s}, v{s+1}, v{s+2}")
        a(f"v_max3_f32 v{T(j)}, v{s+3}, v{s+4}, v{s+5}")
        a(f"v_max3_f32 v{M(j)}, v{M(j)}, v{s+6}, v{s+7}")
        a(f"v_max_f32 v{M(j)}, v{M(j)}, v{T(j)}")
    for sw in ("v_permlane32_swap_b32", "v_permlane16_swap_b32"):
        for j in range(2): a(f"v_mov_b32 v{T(j)}, v{M(j)}")
        for j in range(2): a(f"{sw} v{M(j)}, v{T(j)}")
        for j in range(2): a(f"v_max_f32 v{M(j)}, v{M(j)}, v{T(j)}")
    for j in range(2): a(f"v_mul_f32 v{M(j)}, v{vC}, v{M(j)}")
    for j in range(2):
        for i in range(8): a(f"v_fma_f32 v{S(j,0)+i}, v{S(j,0)+i}, v{vC}, -v{M(j)}")
    for j in range(2):
        for i in range(8): a(f"v_exp_f32 v{S(j,0)+i}, v{S(j,0)+i}")
    for j in range(2):
        for i in range(4): cvt(PB_+4*j+i, S(j,0)+2*i)
    a("s_waitcnt vmcnt(1)")
    for r in range(8): a(f"v_or_b32 v{VB_+8+r}, v{vOne}, v{VB_+8+r}")
    for j in range(2):
        for dt in (1, 0):
            a(f"v_mfma_f32_16x16x32_bf16 {q4(OB_+8*j+4*dt)}, {q4(VB_+8*dt+2+2*j)}, {q4(PB_+4*j)}, 0")
    def normalize(O0, O1, ta, tb, dst):
        return [
            [f"v_mov_b32 v{ta}, v{O1}", f"v_mov_b32 v{tb}, v{O1}"],
            [f"v_permlane32_swap_b32 v{ta}, v{tb}"],
            [f"v_mov_b32 v{ta}, v{tb}"],
            [f"v_permlane16_swap_b32 v{ta}, v{tb}"],
            [f"v_rcp_f32 v{tb}, v{tb}"],
            [f"v_mul_f32 v{O0+i}, v{O0+i}, v{tb}" for i in range(4)] + [f"v_mul_f32 v{O1+i}, v{O1+i}, v{tb}" for i in range(4)],
            [f"v_cvt_pk_bf16_f32 v{dst}, v{O0}, v{O0+1}", f"v_cvt_pk_bf16_f32 v{dst+1}, v{O0+2}, v{O0+3}",
             f"v_cvt_pk_bf16_f32 v{dst+2}, v{O1}, v{O1+1}", f"v_cvt_pk_bf16_f32 v{dst+3}, v{O1+2}, v{O1+3}"],
            [f"v_bfi_b32 v{dst+3}, v{vMG}, v{dst+3}, v{vTAG}"],
        ]
    a(f"""
    s_lshl_b32 s3, s{sT}, 4
    s_add_u32 s3, s3, s{sAH}
    s_lshl_b32 s3, s3, 10
    s_add_u32 s3, s3, {OB}
    s_add_u32 s35, s3, 16384
    """)
    st = [normalize(OB_+8*j, OB_+8*j+4, MB_+2*j, MB_+2*j+1, OUTB_+4*j) for j in range(2)]
    for k in range(len(st[0])):
        for j in range(2):
            for x in st[j][k]: a(x)
    a(f"""
    buffer_store_dwordx4 {q4(OUTB_)}, v{vOo}, {srd(sWS)}, s3 offen sc1
    buffer_store_dwordx4 {q4(OUTB_+4)}, v{vOo}, {srd(sWS)}, s35 offen sc1
    s_waitcnt vmcnt(2)
    """)
    a.raw("L_b8:")
    stamp(6, True)
    qmask(QF)
    a("s_waitcnt lgkmcnt(0)")
    a("s_barrier")
    stamp(12)
    if opt.get("cyc2"):
        a("s_memtime s[82:83]")
        a("s_waitcnt lgkmcnt(0)")
    KBUF = 72; NKB = 6
    def kread(t): return f"ds_read_b128 {q4(KBUF + 4*(t % NKB))}, v{vKa} offset:{t*1024}"
    for t in range(NKB - 1): a(kread(t))
    a(f"""
    s_lshl_b32 s3, s{sRB64}, 2
    s_lshl_b32 s35, s{sRP}, 1
    s_add_u32 s3, s3, s35
    s_lshl_b32 s3, s3, 4
    s_lshl_b32 s35, s{sKQ}, 2
    s_add_u32 s3, s3, s35
    s_lshl_b32 s96, s3, 10
    """)
    for t in range(18):
        if t + NKB - 1 < 18: a(kread(t + NKB - 1))
        outstanding = min(18, t + NKB) - (t + 1)
        a(f"s_waitcnt lgkmcnt({outstanding})")
        c = q4(4*t) if t in (0, 1, 16, 17) else "0"
        a(f"v_mfma_f32_16x16x32_bf16 {q4(4*t)}, {q4(KBUF + 4*(t % NKB))}, {q4(QF)}, {c}")
    VB = [96 + 4*i for i in range(7)] + [72 + 4*i for i in range(6)]
    def vread(n):
        return f"ds_read_b128 {q4(VB[n % 13])}, v{vKa} offset:{24576 + (n>>1)*2048 + (n&1)*1024}"
    for n in range(7): a(vread(n))
    a(f"""
    s_lshl_b32 s3, s{sARB}, 3
    s_and_b32 s35, s{sWAVE}, 6
    s_add_u32 s3, s3, s35
    s_cmp_ge_u32 s3, 16
    s_cbranch_scc1 L_nofix
    s_nop 7
    """)
    for t in range(16):
        a(f"s_cmp_ge_u32 s3, {16 - t}")
        a("s_cbranch_scc1 L_nofix")
        for i in range(4): a(f"v_mov_b32 v{4*t+i}, v{vNEG}")
    a.raw("L_nofix:")
    for n in range(7, 13): a(vread(n))
    vM, vT = 236, 235
    a(f"v_max3_f32 v{vM}, v0, v1, v2")
    a(f"v_max3_f32 v{vT}, v3, v4, v5")
    k = 6; tog = 0
    while k < 72:
        d = vM if tog == 0 else vT
        a(f"v_max3_f32 v{d}, v{d}, v{k}, v{k+1}")
        k += 2; tog ^= 1
    a(f"v_max_f32 v{vM}, v{vM}, v{vT}")
    for sw in ("v_permlane32_swap_b32", "v_permlane16_swap_b32"):
        a(f"v_mov_b32 v{vT}, v{vM}")
        a(f"{sw} v{vM}, v{vT}")
        a(f"v_max_f32 v{vM}, v{vM}, v{vT}")
    a(f"v_mul_f32 v{vM}, v{vC}, v{vM}")
    def o_loads(obase):
        a(f"""
        s_add_u32 s3, s96, {obase}
        s_add_u32 s35, s3, 16384
        """)
        for hq in range(4):
            for tt in range(2):
                a(f"buffer_load_dwordx4 {q4(OF_ + (tt*4+hq)*4)}, v{vOoP}, {srd(sWS)}, s{3 if tt == 0 else 35} offen offset:{hq*1024} sc1")
    OACC = 224
    for u in range(9):
        b = 8*u
        if u == opt.get("obu", 4): o_loads(OB)
        for i in range(8): a(f"v_fma_f32 v{b+i}, v{b+i}, v{vC}, -v{vM}")
        for i in range(8): a(f"v_exp_f32 v{b+i}, v{b+i}")
        for i in range(4): a(f"v_cvt_pk_bf16_f32 v{b+i}, v{b+2*i}, v{b+2*i+1}")
        issued = min(18, 13 + 2*u)
        a(f"s_waitcnt lgkmcnt({max(0, min(15, issued - (2*u+2)))})")
        for dt in range(2):
            c = "0" if u == 0 else q4(OACC + 4*dt - 0)
            a(f"v_mfma_f32_16x16x32_bf16 {q4(OACC+4*dt)}, {q4(VB[(2*u+dt) % 13])}, {q4(b)}, {c}")
        for n in (13 + 2*u, 14 + 2*u):
            if n < 18: a(vread(n))
    a(f"""
    s_lshl_b32 s{sU}, s{sARB}, 3
    s_add_u32 s{sU}, s{sU}, s{sWAVE}
    s_lshl_b32 s3, s{sU}, 4
    s_add_u32 s3, s3, s{sAH}
    s_lshl_b32 s3, s3, 10
    s_add_u32 s98, s3, {OA}
    """)
    for grp in normalize(OACC, OACC+4, 234, 235, 120):
        for x in grp: a(x)
    a(f"buffer_store_dwordx4 {q4(120)}, v{vOo}, {srd(sWS)}, s98 offen sc1")
    stamp(13)
    if opt.get("cyc2"):
        a("s_memtime s[84:85]")
        a("s_waitcnt lgkmcnt(0)")
        a("s_sub_u32 s84, s84, s82")
        a("s_add_u32 s84, s84, s64")
        a("s_mov_b32 s82, s64")
    a(f"""
    s_cmp_eq_u32 s{sCB}, 7
    s_cbranch_scc1 L_fin
    """)
    ACC = 72
    vXW, vXR, vOut, vChk = 224, 227, 228, 229
    for r in wo_reads(0): a(r)
    for cidx in range(1, 4):
        a(f"""
        s_add_u32 s3, s{sKQ}, {cidx}
        s_and_b32 s3, s3, 3
        s_lshl_b32 s35, s{sRP}, 2
        s_add_u32 s3, s3, s35
        s_mul_i32 s3, s3, 6144
        s_add_u32 s3, s3, {(cidx-1)*2048}
        v_add_u32 v{vXW+cidx-1}, s3, v{vL16}
        """)
    a(f"""
    s_lshl_b32 s35, s{sRP}, 2
    s_add_u32 s3, s35, s{sKQ}
    s_mul_i32 s3, s3, 6144
    v_add_u32 v{vXR}, s3, v{vL16}
    s_lshl_b32 s3, s{sRB64}, 6
    s_lshl_b32 s35, s{sRP}, 5
    s_add_u32 s3, s3, s35
    v_add_u32 v230, s3, v{vR15}
    v_mul_u32_u24 v230, 1792, v230
    v_lshl_add_u32 v230, v{vG}, 3, v230
    s_lshl_b32 s3, s{sCB}, 7
    s_lshl_b32 s35, s{sKQ}, 5
    s_add_u32 s3, s3, s35
    v_add_u32 v{vOut}, s3, v230
    s_mov_b32 s97, {POLL_MAX}
    """)
    def proj(lbl, obase, wbase, outoff, younger, mid):
        a(f"s_branch L_pj{lbl}_go")
        a.raw(f"L_pj{lbl}_retry:")
        a("s_sleep 2")
        o_loads(obase)
        a("s_waitcnt vmcnt(0)")
        a.raw(f"L_pj{lbl}_go:")
        n = 0
        for hq in range(4):
            for tt in range(2):
                n += 1
                f = OF_ + (tt*4+hq)*4
                a(f"s_waitcnt vmcnt({8-n+younger})")
                for cidx in range(4):
                    d = ACC + (tt*4+cidx)*4
                    c = "0" if hq == 0 else q4(d)
                    a(f"v_mfma_f32_16x16x32_bf16 {q4(d)}, {q4(wbase + (hq*4+cidx)*4)}, {q4(f)}, {c}")
                if n == 1: a(f"v_xor_b32 v{vChk}, v{f+3}, v{vTAG}")
                else: a(f"v_bitop3_b32 v{vChk}, v{f+3}, v{vTAG}, v{vChk} bitop3:0xbe")
        a(f"""
        v_cmp_ne_u32 vcc, 0, v{vChk}
        s_sub_u32 s97, s97, 1
        s_lshr_b32 s3, vcc_hi, 16
        s_cselect_b32 s3, s97, 0
        s_cmp_lg_u32 s3, 0
        s_cbranch_scc1 L_pj{lbl}_retry
        """)
        mid()
        for tt in range(2):
            for cidx in range(1, 4):
                a(f"ds_write_b128 v{vXW+cidx-1}, {q4(ACC + (tt*4+cidx)*4)} offset:{tt*1024}")
        a("s_waitcnt lgkmcnt(0)")
        a("s_barrier")
        RB_ = 104
        for tt in range(2):
            for s_ in range(3):
                a(f"ds_read_b128 {q4(RB_ + (tt*3+s_)*4)}, v{vXR} offset:{s_*2048 + tt*1024}")
        for tt in range(2):
            d = ACC + tt*16
            a(f"s_waitcnt lgkmcnt({3*(1-tt)})")
            for i in range(4):
                a(f"v_add_f32 v{d+i}, v{d+i}, v{RB_+tt*12+i}")
                a(f"v_add_f32 v{RB_+tt*12+4+i}, v{RB_+tt*12+4+i}, v{RB_+tt*12+8+i}")
            for i in range(4):
                a(f"v_add_f32 v{d+i}, v{d+i}, v{RB_+tt*12+4+i}")
            a(f"v_cvt_pk_bf16_f32 v{d}, v{d}, v{d+1}")
            a(f"v_cvt_pk_bf16_f32 v{d+1}, v{d+2}, v{d+3}")
            a(f"s_mov_b32 s3, {outoff + tt*16*1792}")
            a(f"buffer_store_dwordx2 {q2(d)}, v{vOut}, {srd(sOut)}, s3 offen{OSC}")
    def midB():
        stamp(7, True)
        o_loads(OA)
    proj("B", OB, WB_, 896, 1, midB)
    stamp(14)
    for x in wo_mask(0): a(x)
    for i in range(3): a(f"v_add_u32 v{vXW+i}, {L_KV}, v{vXW+i}")
    a(f"v_add_u32 v{vXR}, {L_KV}, v{vXR}")
    proj("A", OA, 0, 0, 2, lambda: stamp(8, True))
    a.raw("L_fin:")
    if stamps:
        stamp(15)
        a(f"""
        s_lshl_b32 s3, s2, 3
        s_add_u32 s3, s3, s{sWAVE}
        s_lshl_b32 s3, s3, 6
        s_add_u32 s3, s3, {STAMP}
        v_mov_b32 v1, 0
        s_mov_b64 exec, 1
        """)
        if opt.get("dbgst"):
            ids = [1, 2, 3, 4, 5, 6, 7, 8, 9, 11, 12, 13, 14, 15]
            a("s_not_b32 s3, s64")
            a("v_mov_b32 v2, s3")
            a("global_atomic_umax v1, v2, s[30:31] offset:4")
            for k, i in enumerate(ids):
                a(f"s_sub_u32 s3, s{64+2*i}, s64")
                a("s_cmp_lt_u32 s3, 100000")
                a(f"s_cselect_b32 s3, s{64+2*i}, 0")
                a("v_mov_b32 v2, s3")
                a(f"global_atomic_umax v1, v2, s[30:31] offset:{8+4*k}")
            a("s_endpgm")
        for i in range(16):
            a(f"v_mov_b32 v2, s{64+2*i}")
            a(f"buffer_store_dword v2, v1, {srd(sWS)}, s3 offen offset:{4*i}")
    a.raw("L_end:")
    a("s_endpgm")
    bad = a.check_branches()
    for b in bad: print("BRANCH HAZARD", b, file=sys.stderr)
    assert not bad
    out = HEADER + f"""; @launch grid=(256,1,1) block=(512,1,1) lds=163840
.amdgcn_target "amdgcn-amd-amdhsa--gfx950"
.text
.globl {NAME}_kernel
.p2align 8
.type {NAME}_kernel,@function
""" + a.text() + f""".fill 4096, 4, 0xBF800000
s_endpgm
.section .rodata,"a"
.p2align 6
.amdhsa_kernel {NAME}_kernel
  .amdhsa_next_free_vgpr 256
  .amdhsa_next_free_sgpr 102
  .amdhsa_accum_offset 256
  .amdhsa_group_segment_fixed_size 0
  .amdhsa_kernarg_size 72
  .amdhsa_user_sgpr_count 2
  .amdhsa_user_sgpr_kernarg_segment_ptr 1
  .amdhsa_system_sgpr_workgroup_id_x 1
.end_amdhsa_kernel
"""
    return out

if __name__ == "__main__":
    stamps = int(sys.argv[1]); path = sys.argv[2]
    opt = dict((kv.split("=")[0], int(kv.split("=")[1])) for kv in sys.argv[3:])
    open(path, "w").write(gen(stamps, opt))
```

```python
import sys, struct, math
from asmlib import Asm

NAME = "concat_heads__sliding_block__sliding_local_dilated__prompt"
HEADER = open("cdna_kernels/%s.s.ref" % NAME).read().split("; Override launch")[0]
def f2u(x): return struct.unpack("<I", struct.pack("<f", x))[0]

XB, WB, WOB_BYTES, OUTB = 1835008, 1204224, 401408, 3670016
MB2 = 0x200000
QO, KO, VO = 0, MB2, 2*MB2
BRS = 3*MB2
OA, OB = 6*MB2, 7*MB2
FL1 = 8*MB2
STAMP = 8*MB2 + 0x100000
WSB = 9*MB2
BIG = 0x40000000
NEG = f2u(-1e30)
CSC = f2u((28 ** -0.5) * math.log2(math.e))
SLOT = 40960
L_WOB, L_WOA, L_KV = 0, 57344, 114688
POLL_MAX = 40000

sWAVE, sBR, sLAM, sRB, sAH, sARB, sRB64, sCB, sTAG = 4, 5, 6, 7, 8, 9, 10, 11, 12
sX, sW, sWoA, sWoB, sWS, sOut = 36, 40, 44, 48, 52, 56
def srd(b): return f"s[{b}:{b+3}]"
def q4(r): return f"v[{r}:{r+3}]"
def q2(r): return f"v[{r}:{r+1}]"
def q16(r): return f"v[{r}:{r+15}]"
vL, vL16, vTAG = 255, 254, 253

def gen(stamps=False, opt=None):
    opt = opt or {}
    a = Asm()
    def stamp(i):
        if stamps:
            a(f"s_memrealtime s[{64+2*i}:{65+2*i}]")
            a("s_waitcnt lgkmcnt(0)")
    def mk_srd(d, p, n):
        return f"s_mov_b32 s{d}, s{p}\ns_mov_b32 s{d+1}, s{p+1}\ns_mov_b32 s{d+2}, {n}\ns_mov_b32 s{d+3}, 0x20000\n"
    MAP = f"""
    s_lshr_b32 s{sLAM}, s14, 2
    s_and_b32 s15, s13, 3
    s_lshl_b32 s15, s15, 2
    s_and_b32 s3, s14, 3
    s_add_u32 s{sRB}, s15, s3
    """ if opt.get("map", 1) else f"""
    s_and_b32 s15, s13, 1
    s_lshl_b32 s15, s15, 2
    s_lshr_b32 s3, s14, 3
    s_add_u32 s{sLAM}, s15, s3
    s_and_b32 s15, s13, 2
    s_lshl_b32 s15, s15, 2
    s_and_b32 s3, s14, 7
    s_add_u32 s{sRB}, s15, s3
    """
    TAGC = f"""
    s_or_b32 s3, s2, s{sWAVE}
    s_cmp_lg_u32 s3, 0
    s_cbranch_scc1 L_notag
    s_memrealtime s[34:35]
    s_waitcnt lgkmcnt(0)
    s_and_b32 s35, s34, 0x1fff
    s_lshl_b32 s35, s35, 1
    s_or_b32 s35, s35, 1
    s_bfe_u32 s3, s34, 0xf000d
    s_lshl_b32 s3, s3, 15
    s_or_b32 s35, s35, s3
    s_lshl_b32 s34, s34, 3
    s_and_b32 s34, s34, 0x80000000
    s_or_b32 s34, s34, s35
    v_mov_b32 v2, s34
    global_store_dword v1, v2, s[30:31] sc1
    L_notag:
    """
    MAPB = f"""
    s_and_b32 s15, s13, 1
    s_lshl_b32 s15, s15, 2
    s_and_b32 s3, s14, 3
    s_add_u32 s{sLAM}, s15, s3
    s_and_b32 s15, s13, 2
    s_lshl_b32 s15, s15, 2
    s_lshr_b32 s3, s14, 2
    s_add_u32 s{sRB}, s15, s3
    """
    a.raw(f"{NAME}_kernel:")
    a(f"""
    s_cmp_ge_u32 s2, 256
    s_cbranch_scc1 L_end
    s_load_dwordx16 s[16:31], s[0:1], 0
    s_load_dwordx2 s[32:33], s[0:1], 64
    v_lshrrev_b32 v1, 6, v0
    v_and_b32 v{vL}, 63, v0
    v_readfirstlane_b32 s{sWAVE}, v1
    s_and_b32 s13, s2, 7
    s_lshr_b32 s14, s2, 3
    s_lshr_b32 s{sBR}, s13, 2
    s_xor_b32 s{sBR}, s{sBR}, {opt.get('swap', 0)}
    {MAP}
    v_lshlrev_b32 v{vL16}, 4, v{vL}
    v_lshrrev_b32 v1, 3, v{vL}
    v_and_b32 v2, 7, v{vL}
    v_lshrrev_b32 v3, 4, v{vL}
    s_cmp_lg_u32 s{sBR}, 0
    s_cbranch_scc1 L_brB
    s_cmp_lt_u32 s{sWAVE}, 4
    s_cbranch_scc1 L_compute
    """)
    rest_setup = f"""
    s_lshl_b32 s{sAH}, s13, 1
    s_and_b32 s3, s14, 1
    s_add_u32 s{sAH}, s{sAH}, s3
    s_lshr_b32 s{sARB}, s14, 1
    s_lshl_b32 s{sRB64}, s13, 2
    s_lshr_b32 s3, s14, 3
    s_add_u32 s{sRB64}, s{sRB64}, s3
    s_and_b32 s{sCB}, s14, 7
    """ + mk_srd(sWoA, 20, WOB_BYTES) + mk_srd(sWoB, 26, WOB_BYTES) + mk_srd(sWS, 32, WSB) + mk_srd(sOut, 28, OUTB)
    def prefetch(l):
        if not opt.get("pf", 1): return
        a(f"""
        s_cmp_lg_u32 s{sWAVE}, 1
        s_cbranch_scc1 L_notouch{l}
        v_min_u32 v4, 8, v{vL}
        v_lshlrev_b32 v4, 21, v4
        v_add_u32 v4, 0x1ff780, v4
        buffer_load_dword v217, v4, {srd(sWS)}, 0 offen sc1
        v_and_b32 v4, 1, v{vL}
        v_lshlrev_b32 v4, 21, v4
        buffer_load_dword v218, v4, {srd(sOut)}, 0 offen
        L_notouch{l}:
        s_and_b32 s3, s14, 15
        s_lshl_b32 s34, s{sWAVE}, 4
        s_or_b32 s3, s3, s34
        s_cmp_lg_u32 s3, 0x2f
        s_cbranch_scc1 L_nocode{l}
        s_getpc_b64 s[34:35]
        L_pc{l}:
        s_sub_u32 s34, s34, L_pc{l}-{NAME}_kernel
        s_subb_u32 s35, s35, 0
        v_lshlrev_b32 v4, 7, v{vL}
        global_load_dword v217, v4, s[34:35]
        v_add_u32 v4, 8192, v4
        global_load_dword v218, v4, s[34:35]
        v_add_u32 v4, 8192, v4
        global_load_dword v219, v4, s[34:35]
        L_nocode{l}:
        """)
    def get_tag(lbl):
        a(f"""
        s_mov_b32 s35, {POLL_MAX}
        L_tag{lbl}:
        v_readfirstlane_b32 s{sTAG}, v{vTAG}
        s_cmp_lg_u32 s{sTAG}, 0
        s_cbranch_scc1 L_tagok{lbl}
        v_mov_b32 v227, 0
        global_load_dword v{vTAG}, v227, s[30:31] sc1
        s_sub_u32 s35, s35, 1
        s_waitcnt vmcnt(0)
        s_cmp_lg_u32 s35, 0
        s_cbranch_scc1 L_tag{lbl}
        L_tagok{lbl}:
        """)
    def poll(lbl, vaddr, vd):
        a(f"""
        s_mov_b32 s35, {POLL_MAX}
        L_poll{lbl}:
        buffer_load_dword v{vd}, v{vaddr}, {srd(sWS)}, s15 offen sc1
        s_sub_u32 s35, s35, 1
        s_waitcnt vmcnt(0)
        v_cmp_ne_u32 vcc, v{vd}, v{vTAG}
        s_cmp_eq_u32 s35, 0
        s_cbranch_scc1 L_pollok{lbl}
        s_cbranch_vccz L_pollok{lbl}
        s_branch L_poll{lbl}
        L_pollok{lbl}:
        """)
    sRP, sKQ, sT, sU = 60, 61, 62, 63
    vR15, vG, vWA, vMG, vV0, vC = 240, 241, 242, 250, 251, 252
    vNEG, vKa, vKw = 237, 239, 238
    vKq, vOo, vVa, vVb, vOne = 232, 233, 234, 235, 236
    vQm, vOn0, vOn1, vV1 = 228, 230, 231, 226
    sHB, sHQ, sP = 98, 100, 99
    sK = [16, 17, 18, 19, 20, 21]; sV = [22, 23, 24, 25, 26, 27]; sQA = 32
    sOB, sOA = 96, 28
    t0, t1, t2, t3, t4 = 220, 221, 222, 223, 224
    vPA = 225
    FLV = 64*16*128
    p2common = f"""
    s_and_b32 s{sRP}, s{sWAVE}, 1
    s_lshr_b32 s{sKQ}, s{sWAVE}, 1
    v_and_b32 v{vR15}, 15, v{vL}
    v_lshrrev_b32 v{vG}, 4, v{vL}
    v_cmp_gt_u32 vcc, 48, v{vL}
    v_cndmask_b32 v{vMG}, 0, -1, vcc
    v_lshrrev_b32 v{t0}, 2, v{vR15}
    v_lshl_add_u32 v{t1}, v{vG}, 2, v{t0}
    v_lshlrev_b32 v{t1}, 7, v{t1}
    s_mul_i32 s3, s{sKQ}, 14336
    v_add_u32 v{t1}, s3, v{t1}
    v_and_b32 v{t2}, 2, v{t0}
    v_and_b32 v{t3}, 1, v{vG}
    v_lshl_or_b32 v{t2}, v{t3}, 2, v{t2}
    v_lshlrev_b32 v{t2}, 4, v{t2}
    v_and_b32 v{t3}, 3, v{vL}
    v_lshlrev_b32 v{t4}, 3, v{t3}
    v_xor_b32 v{t2}, v{t2}, v{t4}
    v_add_u32 v{t1}, v{t1}, v{t2}
    v_and_b32 v{t2}, 2048, v{vMG}
    """ + "".join(f"""
    s_add_u32 s3, s{sKQ}, {c}
    s_and_b32 s3, s3, 3
    s_lshl_b32 s3, s3, 5
    v_xor_b32 v{vWA+c}, s3, v{t1}
    v_add_u32 v{vWA+4+c}, v{vWA+c}, v{t2}
    """ for c in range(4)) + f"""
    v_mov_b32 v{t4}, {BIG}
    v_lshlrev_b32 v{vKq}, 9, v{vG}
    v_lshl_add_u32 v{vKq}, v{vR15}, 4, v{vKq}
    v_lshlrev_b32 v{vOo}, 6, v{vR15}
    v_lshl_add_u32 v{vOo}, v{vG}, 4, v{vOo}
    v_lshlrev_b32 v{vVa}, 8, v{t0}
    v_lshl_add_u32 v{vVa}, v{vG}, 6, v{vVa}
    v_lshl_add_u32 v{vVa}, v{t3}, 4, v{vVa}
    v_add_u32 v{vVb}, 1024, v{vVa}
    v_cmp_gt_u32 vcc, 12, v{vR15}
    v_cndmask_b32 v{vVb}, v{t4}, v{vVb}, vcc
    v_cmp_eq_u32 vcc, 12, v{vR15}
    v_mov_b32 v{t4}, 0x3f803f80
    v_cndmask_b32 v{vOne}, 0, v{t4}, vcc
    v_mov_b32 v{vC}, {CSC}
    v_mov_b32 v{vNEG}, {NEG}
    s_and_b32 s3, s{sWAVE}, 6
    s_lshl_b32 s3, s3, 10
    s_add_u32 s3, s3, {L_KV}
    v_add_u32 v{vKa}, s3, v{vL16}
    s_mul_i32 s3, s{sAH}, 7
    s_lshr_b32 s{sHQ}, s3, 1
    s_lshl_b32 s{sHQ}, s{sHQ}, 9
    s_lshl_b32 s{sHB}, s3, 8
    v_cmp_lt_u32 vcc, 15, v{vL}
    v_cndmask_b32 v{t0}, 0, -1, vcc
    s_bitcmp1_b32 s{sAH}, 0
    s_cselect_b64 vcc, -1, 0
    v_cndmask_b32 v{vQm}, -1, v{t0}, vcc
    v_cndmask_b32 v{vQm+1}, v{vMG}, -1, vcc
    s_mul_i32 s3, s{sWAVE}, 3
    s_lshl_b32 s{sT}, s{sARB}, 3
    s_sub_u32 s{sT}, s{sT}, 16
    s_add_u32 s{sT}, s{sT}, s3
    s_lshl_b32 s3, s3, 10
    s_add_u32 s3, s3, {L_KV}
    v_add_u32 v{vKw}, s3, v{vL16}
    v_subrev_u32 v{t0}, 1024, v{vVb}
    s_bitcmp1_b32 s{sWAVE}, 0
    s_cselect_b64 vcc, -1, 0
    v_cndmask_b32 v{vV0}, v{vVa}, v{t0}, vcc
    v_cndmask_b32 v{vV1}, v{t0}, v{vVa}, vcc
    v_cndmask_b32 v{vOn0}, 0, v{vOne}, vcc
    v_cndmask_b32 v{vOn1}, v{vOne}, 0, vcc
    """ + "".join(f"""
    s_ashr_i32 s34, s{sT}, 1
    s_mul_i32 s34, s34, 28672
    s_and_b32 s35, s{sT}, 1
    s_lshl_b32 s3, s35, 10
    s_add_u32 s3, s3, s34
    s_add_u32 s3, s3, s{sHB}
    s_add_u32 s3, s3, {VO}
    s_lshl_b32 s35, s35, 8
    s_add_u32 s35, s35, s34
    s_add_u32 s35, s35, s{sHQ}
    s_add_u32 s35, s35, {KO}
    s_cmp_lt_i32 s{sT}, 0
    s_cselect_b32 s{sV[i]}, {BIG}, s3
    s_cselect_b32 s{sK[i]}, {BIG}, s35
    s_add_u32 s{sT}, s{sT}, 1
    """ for i in range(3)) + f"""
    s_lshl_b32 s3, s{sARB}, 3
    s_add_u32 s3, s3, s{sWAVE}
    s_lshr_b32 s34, s3, 1
    s_mul_i32 s34, s34, 28672
    s_and_b32 s35, s3, 1
    s_lshl_b32 s35, s35, 8
    s_add_u32 s35, s35, s34
    s_add_u32 s{sQA}, s35, s{sHQ}
    s_lshl_b32 s3, s3, 4
    s_add_u32 s3, s3, s{sAH}
    s_lshl_b32 s3, s3, 10
    s_add_u32 s33, s3, {OA}
    s_mul_i32 s3, s{sAH}, 7
    s_lshr_b32 s34, s3, 3
    s_add_u32 s3, s3, 6
    s_lshr_b32 s35, s3, 3
    s_sub_u32 s35, s35, s34
    v_and_b32 v{t0}, 1, v{vL}
    v_mul_u32_u24 v{t0}, s35, v{t0}
    v_add_u32 v{t0}, s34, v{t0}
    v_min_u32 v{t1}, 11, v{vL}
    v_lshrrev_b32 v{t1}, 1, v{t1}
    s_lshl_b32 s3, s{sARB}, 1
    s_sub_u32 s3, s3, 4
    v_add_u32 v{t1}, s3, v{t1}
    v_max_i32 v{t1}, 0, v{t1}
    v_lshl_add_u32 v{t1}, v{t1}, 4, v{t0}
    v_lshlrev_b32 v{vPA}, 7, v{t1}
    s_lshl_b32 s3, s{sRB64}, 2
    s_lshl_b32 s35, s{sRP}, 1
    s_add_u32 s3, s3, s35
    s_lshl_b32 s3, s3, 4
    s_lshl_b32 s35, s{sKQ}, 2
    s_add_u32 s3, s3, s35
    s_lshl_b32 s3, s3, 10
    s_add_u32 s{sOB}, s3, {OB}
    s_add_u32 s{sOB+1}, s{sOB}, 16384
    s_add_u32 s{sOA}, s3, {OA}
    s_add_u32 s{sOA+1}, s{sOA}, 16384
    s_mov_b32 s15, {FL1}
    """
    def normalize(O0, O1, ta, tb, dst):
        return [
            [f"v_mov_b32 v{ta}, v{O1}", f"v_mov_b32 v{tb}, v{O1}"],
            [f"v_permlane32_swap_b32 v{ta}, v{tb}"],
            [f"v_mov_b32 v{ta}, v{tb}"],
            [f"v_permlane16_swap_b32 v{ta}, v{tb}"],
            [f"v_rcp_f32 v{tb}, v{tb}"],
            [f"v_mul_f32 v{O0+i}, v{O0+i}, v{tb}" for i in range(4)] + [f"v_mul_f32 v{O1+i}, v{O1+i}, v{tb}" for i in range(4)],
            [f"v_cvt_pk_bf16_f32 v{dst}, v{O0}, v{O0+1}", f"v_cvt_pk_bf16_f32 v{dst+1}, v{O0+2}, v{O0+3}",
             f"v_cvt_pk_bf16_f32 v{dst+2}, v{O1}, v{O1+1}", f"v_cvt_pk_bf16_f32 v{dst+3}, v{O1+2}, v{O1+3}"],
            [f"v_bfi_b32 v{dst+3}, v{vMG}, v{dst+3}, v{vTAG}"],
        ]
    vXe, vXo, vW0, vW1, vWo, vPw = 10, 11, 13, 14, 15, 17
    sLW, sLx, sLw, sT0, sT1 = 96, 97, 101, 34, 35
    sLwo, sL1k = 14, 15
    a(f"""
    s_sub_u32 s{sLW}, s{sWAVE}, 4
    s_lshl_b32 s{sT0}, s{sRB}, 7
    s_lshl_b32 s{sT1}, s{sLW}, 5
    s_add_u32 s{sT0}, s{sT0}, s{sT1}
    v_add_u32 v4, s{sT0}, v1
    v_mul_u32_u24 v4, 896, v4
    v_xor_b32 v5, v2, v3
    v_lshl_add_u32 v{vXe}, v5, 4, v4
    v_xor_b32 v5, 4, v5
    v_lshl_add_u32 v{vXo}, v5, 4, v4
    v_add_u32 v{vXo}, 6144, v{vXo}
    s_lshl_b32 s{sLx}, s{sLW}, 12
    s_lshl_b32 s{sLw}, s{sLW}, 11
    s_lshl_b32 s{sT1}, s{sLW}, 4
    v_add_u32 v4, s{sT1}, v1
    v_mul_u32_u24 v4, 2688, v4
    s_lshl_b32 s{sT1}, s{sLAM}, 7
    v_add_u32 v4, s{sT1}, v4
    v_and_b32 v5, 1, v3
    v_lshlrev_b32 v5, 2, v5
    v_xor_b32 v5, v2, v5
    v_lshl_add_u32 v{vW0}, v5, 4, v4
    v_add_u32 v{vW1}, {8*2688-1024}, v{vW0}
    s_mov_b32 s{sX+2}, {XB}
    s_mov_b32 s{sX+3}, 0x20000
    s_mov_b32 s{sW+2}, {WB}
    s_mov_b32 s{sW+3}, 0x20000
    s_waitcnt lgkmcnt(0)
    s_mov_b32 s{sX}, s16
    s_mov_b32 s{sX+1}, s17
    s_mov_b32 s{sW}, s18
    s_mov_b32 s{sW+1}, s19
    """)
    stamp(0)
    a(f"""
    s_cmp_eq_u32 s{sLAM}, 7
    s_cbranch_scc1 L_ld_idle
    """)
    order = []
    def D(c):
        slot = ((c + 1) % 4) * SLOT
        a(f"""
        s_add_u32 m0, s{sLx}, {slot}
        s_mov_b32 s{sT0}, {c*128}
        s_mov_b32 s{sT1}, {c*128 + 12288}
        buffer_load_dwordx4 v{vXe}, {srd(sX)}, s{sT0} offen lds
        buffer_load_dwordx4 v{vXo}, {srd(sX)}, s{sT0} offen offset:1024 lds
        buffer_load_dwordx4 v{vXe}, {srd(sX)}, s{sT1} offen offset:2048 lds
        buffer_load_dwordx4 v{vXo}, {srd(sX)}, s{sT1} offen offset:3072 lds
        """)
        for p in (1, 2, 0):
            a(f"""
            s_add_u32 m0, s{sLw}, {slot + 16384 + p*8192}
            s_mov_b32 s{sT1}, {c*64*2688 + p*896}
            buffer_load_dwordx4 v{vW0}, {srd(sW)}, s{sT1} offen lds
            buffer_load_dwordx4 v{vW1}, {srd(sW)}, s{sT1} offen offset:1024 lds
            """)
        order.extend([c] * 10)
    def Wt(c):
        last = max(i for i, o in enumerate(order) if o == c)
        a(f"s_waitcnt vmcnt({len(order) - 1 - last})")
        if c == 0: stamp(1)
        a("s_barrier")
    wo_setup = rest_setup + f"""
    v_and_b32 v5, 6, v1
    v_xor_b32 v5, v2, v5
    v_mul_u32_u24 v4, 896, v1
    s_lshl_b32 s{sT1}, s{sCB}, 7
    v_add_u32 v4, s{sT1}, v4
    v_lshl_add_u32 v{vWo}, v5, 4, v4
    s_cmp_eq_u32 s{sCB}, 7
    s_cselect_b64 vcc, -1, 0
    v_mov_b32 v7, {BIG}
    v_cndmask_b32 v{vWo}, v{vWo}, v7, vcc
    v_mov_b32 v1, 0
    s_mul_i32 s3, s14, 98
    s_and_b32 s{sT1}, s{sLW}, 1
    s_mul_i32 s{sT1}, s{sT1}, 49
    s_add_u32 s3, s3, s{sT1}
    v_min_u32 v4, 48, v{vL}
    v_add_u32 v4, s3, v4
    v_lshlrev_b32 v{vPw}, 7, v4
    s_mul_i32 s{sLwo}, s{sLW}, 7168
    s_lshl_b32 s{sL1k}, s{sLW}, 10
    global_load_dword v{vTAG}, v1, s[30:31] sc1
    """
    def issue_wo(i0, i1):
        for i in range(i0, i1):
            br = i >= 14
            a(f"""
            s_add_u32 m0, s{sL1k}, {4096*i}
            s_add_u32 s{sT1}, s{sLwo}, {(4*i - 56*br)*7168}
            buffer_load_dwordx4 v{vWo}, {srd(sWoA if br else sWoB)}, s{sT1} offen lds
            """)
            order.append("wo")
    def pf_wo(l):
        a(f"""
        s_cmp_lt_u32 s{sLW}, 2
        s_cbranch_scc1 L_pwB{l}
        buffer_load_dword v20, v{vPw}, {srd(sWoA)}, 0 offen
        s_branch L_pwD{l}
        L_pwB{l}:
        buffer_load_dword v20, v{vPw}, {srd(sWoB)}, 0 offen
        L_pwD{l}:
        """)
        order.append("pfw")
    D(0); D(1); Wt(0); D(2); Wt(1); D(3)
    a(wo_setup); order.append("tag")
    if opt.get("seq", 0) == 1:
        Wt(2); D(4); Wt(3); D(5); pf_wo(0); Wt(4); D(6); issue_wo(0, 10); Wt(5); issue_wo(10, 20); Wt(6)
    elif opt.get("seq", 0) == 0:
        Wt(2); D(4); Wt(3); D(5); Wt(4); D(6); pf_wo(0); Wt(5)
        DEF = opt.get("defer", 2)
        if DEF < 4: issue_wo(0, 10)
        Wt(6)
        if DEF >= 2: a("s_barrier")
        if DEF == 4: issue_wo(0, 10)
        issue_wo(10, 20)
        if DEF == 1: a("s_barrier")
    else:
        Wt(2); D(4); Wt(3); D(5); Wt(4); D(6); pf_wo(0); Wt(5); issue_wo(0, 14); Wt(6); a("s_sleep 16"); issue_wo(14, 20)
    a("s_branch L_ld2")
    a.raw("L_ld_idle:")
    a(wo_setup)
    pf_wo(1)
    issue_wo(0, 20)
    a.raw("L_ld2:")
    issue_wo(20, 28)
    a(p2common)
    a("s_waitcnt vmcnt(28)" if opt.get("nowait", 1) else "s_waitcnt vmcnt(0)")
    get_tag("l")
    a(f"""
    s_cmp_lg_u32 s{sWAVE}, 7
    s_cbranch_scc1 L_pollok1
    """)
    poll("1", vPA, 9)
    stamp(2)
    a("s_branch L_phase2")

    a.raw("L_compute:")
    sCH, sRH = 96, 97
    sSQ, sSK, sSV, sSQh, sSKh, sFl = 36, 37, 38, 39, 40, 41
    def Acc(p, rt): return p*32 + rt*16
    def Fx(s, rt): return 96 + 20*s + 4*rt
    def Fw(s, p): return 96 + 20*s + 8 + 4*p
    vxa = [200, 201, 202, 203]; vwa = 204
    vQo, vVo = 205, 206
    slot0 = SLOT
    a(f"""
    s_waitcnt lgkmcnt(0)
    v_mov_b32 v1, 0
    {'' if opt.get('swap', 0) else TAGC}
    """)
    stamp(0)
    a(rest_setup)
    prefetch('a')
    a(f"""
    s_and_b32 s{sCH}, s{sWAVE}, 1
    s_lshr_b32 s{sRH}, s{sWAVE}, 1
    s_cmp_eq_u32 s{sLAM}, 7
    s_cbranch_scc1 L_cmp_idle
    v_and_b32 v2, 31, v{vL}
    v_lshrrev_b32 v3, 5, v{vL}
    v_bfe_u32 v4, v{vL}, 2, 2
    s_lshl_b32 s3, s{sLAM}, 1
    s_add_u32 s3, s3, s{sCH}
    s_lshl_b32 s34, s3, 11
    v_add_u32 v{vQo}, s34, v{vL16}
    v_bfe_u32 v6, v{vL}, 4, 1
    v_lshlrev_b32 v6, 2, v6
    v_and_b32 v7, 1, v4
    v_lshl_add_u32 v6, v7, 1, v6
    v_lshrrev_b32 v7, 1, v4
    v_add_u32 v6, v6, v7
    v_lshl_add_u32 v7, v6, 8, s34
    v_lshl_add_u32 v7, v3, 6, v7
    v_and_b32 v8, 3, v{vL}
    v_lshl_add_u32 v{vVo}, v8, 4, v7
    s_lshl_b32 s34, s{sRB}, 1
    s_add_u32 s34, s34, s{sRH}
    s_mul_i32 s{sSQ}, s34, 57344
    s_add_u32 s{sSQh}, s{sSQ}, 28672
    s_add_u32 s{sSK}, s{sSQ}, {KO}
    s_add_u32 s{sSKh}, s{sSQh}, {KO}
    s_add_u32 s{sSV}, s{sSQ}, {VO}
    s_add_u32 s15, s{sSQh}, {VO}
    s_lshl_b32 s34, s34, 4
    s_add_u32 s34, s34, s3
    s_lshl_b32 s34, s34, 7
    s_add_u32 s{sFl}, s34, {FL1}
    """)
    def qkv_stores(data):
        for p, lo, hi in ((1, sSK, sSKh), (2, None, None), (0, sSQ, sSQh)):
            for rt in range(2):
                for half in range(2):
                    d = data(p, rt, half)
                    if p == 2: a(f"buffer_store_dwordx4 {q4(d)}, v{vVo}, {srd(sWS)}, s{sSV} offen offset:{rt*2048 + half*128} sc1")
                    else: a(f"buffer_store_dwordx4 {q4(d)}, v{vQo}, {srd(sWS)}, s{hi if half else lo} offen offset:{rt*512} sc1")
    a(f"""
    global_load_dword v{vTAG}, v1, s[30:31] sc1
    s_lshl_b32 s3, s{sRH}, 6
    v_add_u32 v5, s3, v2
    v_lshlrev_b32 v5, 7, v5
    v_bfe_u32 v6, v2, 1, 3
    v_xor_b32 v6, v6, v3
    v_lshl_add_u32 v{vxa[0]}, v6, 4, v5
    v_add_u32 v{vxa[0]}, {slot0}, v{vxa[0]}
    v_xor_b32 v{vxa[1]}, 32, v{vxa[0]}
    v_xor_b32 v{vxa[2]}, 64, v{vxa[0]}
    v_xor_b32 v{vxa[3]}, 96, v{vxa[0]}
    v_lshl_add_u32 v6, v3, 3, v4
    v_lshlrev_b32 v6, 7, v6
    v_add_u32 v6, {slot0 + 16384}, v6
    v_bfe_u32 v7, v{vL}, 4, 1
    v_lshlrev_b32 v7, 5, v7
    v_and_b32 v8, 1, v{vL}
    v_lshl_or_b32 v7, v8, 4, v7
    v_bfe_u32 v8, v{vL}, 1, 1
    v_lshl_or_b32 v7, v8, 3, v7
    s_lshl_b32 s3, s{sCH}, 6
    v_or_b32 v7, s3, v7
    v_and_b32 v8, 2, v4
    v_lshlrev_b32 v8, 5, v8
    v_xor_b32 v7, v7, v8
    v_add_u32 v{vwa}, v6, v7
    """)
    def reads(s, ks):
        L = [f"ds_read_b128 {q4(Fx(s,rt))}, v{vxa[ks]} offset:{rt*4096}" for rt in range(2)]
        for p in (1, 2, 0):
            for u in range(2):
                L.append(f"ds_read_b64_tr_b16 {q2(Fw(s, p) + 2*u)}, v{vwa} offset:{p*8192 + ks*2048 + u*512}")
        return L
    def kstep(s, rd, extra=(), zero=False):
        M = []
        for p in (1, 2, 0):
            for rt in range(2):
                A, B = (Fx(s,rt), Fw(s,p)) if p == 2 else (Fw(s,p), Fx(s,rt))
                M.append(f"v_mfma_f32_32x32x16_bf16 {q16(Acc(p,rt))}, {q4(A)}, {q4(B)}, {'0' if zero else q16(Acc(p,rt))}")
        per = [3, 3, 2, 0, 0, 0]
        k = 0
        extra = list(extra)
        for i, m in enumerate(M):
            a(m)
            for _ in range(per[i]):
                if k < len(rd): a(rd[k]); k += 1
            if i >= 3:
                for _ in range(4):
                    if extra: a(extra.pop(0))
        for e in extra: a(e)
    sC, sD = 42, 43
    a("s_barrier")
    stamp(1)
    for r in reads(0, 0): a(r)
    a(f"s_mov_b32 s{sC}, 0")
    ex0 = [f"s_and_b32 s3, s{sC}, 3", f"s_cmp_eq_u32 s3, 2", f"s_mov_b32 s{sD}, {SLOT}",
           f"s_cselect_b32 s{sD}, {(-3*SLOT) & 0xffffffff}, s{sD}",
           f"v_add_u32 v{vxa[0]}, s{sD}, v{vxa[0]}", f"v_add_u32 v{vxa[1]}, s{sD}, v{vxa[1]}"]
    a("s_waitcnt lgkmcnt(0)")
    kstep(0, reads(1, 1), ex0, zero=True)
    a("s_branch L_gemm1")
    a.raw("L_gemm:")
    a("s_waitcnt lgkmcnt(0)")
    kstep(0, reads(1, 1), ex0)
    a.raw("L_gemm1:")
    a("s_waitcnt lgkmcnt(0)")
    kstep(1, reads(0, 2), [f"v_add_u32 v{vxa[2]}, s{sD}, v{vxa[2]}"])
    a("s_waitcnt lgkmcnt(0)")
    kstep(0, reads(1, 3), [f"v_add_u32 v{vxa[3]}, s{sD}, v{vxa[3]}", f"v_add_u32 v{vwa}, s{sD}, v{vwa}",
                           f"s_add_u32 s{sC}, s{sC}, 1", f"s_cmp_lt_u32 s{sC}, 6"])
    a("s_waitcnt lgkmcnt(0)")
    a("s_barrier")
    kstep(1, reads(0, 0))
    a("s_cbranch_scc1 L_gemm")
    def cvt(d, s0): a(f"v_cvt_pk_bf16_f32 v{d}, v{s0}, v{s0+1}")
    def mf(p, rt, ks):
        A, B = (Fx(ks,rt), Fw(ks,p)) if p == 2 else (Fw(ks,p), Fx(ks,rt))
        return f"v_mfma_f32_32x32x16_bf16 {q16(Acc(p,rt))}, {q4(A)}, {q4(B)}, {q16(Acc(p,rt))}"
    rd = []
    for ks in (1, 2, 3):
        r = reads(ks, ks); rd += r[0:4]
    for ks in (1, 2, 3): rd += reads(ks, ks)[6:8]
    for ks in (1, 2, 3): rd += reads(ks, ks)[4:6]
    a("s_waitcnt vmcnt(0) lgkmcnt(0)")
    k = 0
    for p in (1, 0, 2):
        for rt in range(2):
            a(mf(p, rt, 0))
            for _ in range(3): a(rd[k]); k += 1
    def epi(p):
        L = []
        for rt in range(2):
            for half in range(2):
                if p == 2:
                    d = 176 + (rt*2+half)*4; s0 = Acc(2, rt) + 4*half
                    L += [f"v_cvt_pk_bf16_f32 v{d}, v{s0}, v{s0+1}", f"v_cvt_pk_bf16_f32 v{d+1}, v{s0+2}, v{s0+3}",
                          f"v_cvt_pk_bf16_f32 v{d+2}, v{s0+8}, v{s0+9}", f"v_cvt_pk_bf16_f32 v{d+3}, v{s0+10}, v{s0+11}",
                          f"buffer_store_dwordx4 {q4(d)}, v{vVo}, {srd(sWS)}, s{15 if rt else sSV} offen offset:{half*128} sc1"]
                else:
                    d = Acc(p, rt) + 8*half
                    lo, hi = (sSK, sSKh) if p == 1 else (sSQ, sSQh)
                    L += [f"v_cvt_pk_bf16_f32 v{d+i}, v{d+2*i}, v{d+2*i+1}" for i in range(4)]
                    L += [f"buffer_store_dwordx4 {q4(d)}, v{vQo}, {srd(sWS)}, s{hi if rt else lo} offen offset:{half*1024} sc1"]
        return L
    for n, ks in enumerate((1, 2, 3)):
        a(f"s_waitcnt lgkmcnt({min(15, k - 4*(n+1))})")
        for rt in range(2):
            a(mf(1, rt, ks))
            if k < 24: a(rd[k]); k += 1
    pend = epi(1)
    for p, nxt, base in ((0, 0, 12), (2, None, 18)):
        for n, ks in enumerate((1, 2, 3)):
            a(f"s_waitcnt lgkmcnt({24 - base - 2*(n+1)})")
            for rt in range(2):
                a(mf(p, rt, ks))
                if n or rt:
                    for _ in range(4):
                        if pend: a(pend.pop(0))
        for x in pend: a(x)
        pend = epi(p)
    stamp(3)
    for x in pend: a(x)
    if opt.get("defer", 2) in (1, 2): a("s_barrier")
    stamp(2)
    a("v_mov_b32 v227, 0")
    a("s_waitcnt vmcnt(0)")
    get_tag("c")
    a(f"""
    s_mov_b64 exec, 1
    buffer_store_dword v{vTAG}, v227, {srd(sWS)}, s{sFl} offen sc1
    s_mov_b64 exec, -1
    """)
    stamp(4)
    if opt.get("defer", 2) >= 3: a("s_barrier")
    a("s_branch L_cmp2")
    a.raw("L_cmp_idle:")
    a(f"global_load_dword v{vTAG}, v1, s[30:31] sc1")
    a("s_waitcnt vmcnt(0)")
    get_tag("i")
    a.raw("L_cmp2:")
    a(p2common)
    a("s_branch L_phase2")
    a.raw("L_brB:")
    SLB = 43008
    SB0 = 34816
    a(MAPB)
    a(f"""
    s_cmp_lt_u32 s{sWAVE}, 4
    s_cbranch_scc1 L_cmpB
    """)
    vXh = 12
    sLh = 63
    a(f"""
    s_sub_u32 s{sLW}, s{sWAVE}, 4
    s_lshl_b32 s{sT0}, s{sRB}, 7
    s_lshl_b32 s{sT1}, s{sLW}, 5
    s_add_u32 s{sT0}, s{sT0}, s{sT1}
    v_add_u32 v4, s{sT0}, v1
    v_mul_u32_u24 v4, 896, v4
    v_xor_b32 v5, v2, v3
    v_lshl_add_u32 v{vXe}, v5, 4, v4
    v_xor_b32 v5, 4, v5
    v_lshl_add_u32 v{vXo}, v5, 4, v4
    v_add_u32 v{vXo}, 6144, v{vXo}
    s_lshl_b32 s{sLx}, s{sLW}, 12
    s_lshl_b32 s{sLw}, s{sLW}, 11
    s_lshl_b32 s{sLh}, s{sLW}, 9
    s_lshl_b32 s{sT1}, s{sLW}, 4
    v_add_u32 v4, s{sT1}, v1
    v_mul_u32_u24 v4, 2688, v4
    s_mul_i32 s{sT1}, s{sLAM}, 112
    v_add_u32 v4, s{sT1}, v4
    v_and_b32 v5, 1, v3
    v_lshlrev_b32 v5, 1, v5
    v_xor_b32 v5, v2, v5
    v_mov_b32 v7, {BIG}
    v_lshl_add_u32 v{vW0}, v5, 4, v4
    v_cmp_eq_u32 vcc, 7, v5
    v_xor_b32 v6, 4, v5
    v_cndmask_b32 v{vW0}, v{vW0}, v7, vcc
    v_lshl_add_u32 v{vW1}, v6, 4, v4
    v_cmp_eq_u32 vcc, 7, v6
    v_add_u32 v{vW1}, {8*2688-1024}, v{vW1}
    v_cndmask_b32 v{vW1}, v{vW1}, v7, vcc
    s_lshl_b32 s{sT0}, s{sRB}, 7
    s_lshl_b32 s{sT1}, s{sLW}, 2
    s_add_u32 s{sT0}, s{sT0}, s{sT1}
    s_sub_u32 s{sT0}, s{sT0}, 16
    v_add_u32 v4, s{sT0}, v1
    v_mul_i32_i24 v4, 896, v4
    s_lshl_b32 s{sT1}, s{sLW}, 1
    v_add_u32 v5, s{sT1}, v3
    v_and_b32 v5, 7, v5
    v_xor_b32 v5, v2, v5
    v_lshl_add_u32 v{vXh}, v5, 4, v4
    s_cmp_eq_u32 s{sRB}, 0
    s_cselect_b64 vcc, -1, 0
    v_cndmask_b32 v{vXh}, v{vXh}, v7, vcc
    s_mov_b32 s{sX+2}, {XB}
    s_mov_b32 s{sX+3}, 0x20000
    s_mov_b32 s{sW+2}, {WB}
    s_mov_b32 s{sW+3}, 0x20000
    s_waitcnt lgkmcnt(0)
    s_mov_b32 s{sX}, s22
    s_mov_b32 s{sX+1}, s23
    s_mov_b32 s{sW}, s24
    s_mov_b32 s{sW+1}, s25
    """)
    stamp(0)
    del order[:]
    def DB(c):
        slot = SB0 + ((c + 2) % 3) * SLB
        a(f"""
        s_add_u32 m0, s{sLx}, {slot + 2048}
        s_mov_b32 s{sT0}, {c*128}
        s_mov_b32 s{sT1}, {c*128 + 12288}
        buffer_load_dwordx4 v{vXe}, {srd(sX)}, s{sT0} offen lds
        buffer_load_dwordx4 v{vXo}, {srd(sX)}, s{sT0} offen offset:1024 lds
        buffer_load_dwordx4 v{vXe}, {srd(sX)}, s{sT1} offen offset:2048 lds
        buffer_load_dwordx4 v{vXo}, {srd(sX)}, s{sT1} offen offset:3072 lds
        """)
        for p in range(3):
            a(f"""
            s_add_u32 m0, s{sLw}, {slot + 18432 + p*8192}
            s_mov_b32 s{sT1}, {c*64*2688 + p*896}
            buffer_load_dwordx4 v{vW0}, {srd(sW)}, s{sT1} offen lds
            buffer_load_dwordx4 v{vW1}, {srd(sW)}, s{sT1} offen offset:1024 lds
            """)
        a(f"""
        s_add_u32 m0, s{sLh}, {slot}
        s_mov_b64 exec, 0xffffffff
        buffer_load_dwordx4 v{vXh}, {srd(sX)}, s{sT0} offen lds
        s_mov_b64 exec, -1
        """)
        order.extend([c] * 11)
    DB(0); DB(1); Wt(0); DB(2); Wt(1); DB(3)
    a(wo_setup); order.append("tag")
    Wt(2); DB(4); Wt(3); DB(5); Wt(4); DB(6); pf_wo(2); Wt(5); issue_wo(0, 10); Wt(6); issue_wo(10, 20)
    a("s_branch L_ld2")
    a.raw("L_cmpB:")
    sHH = 96
    def Qa(rt, ft): return ((rt-1)*2+ft)*4
    def Ka(rt, ft): return 32 + (rt*2+ft)*4
    def Va(rt, ft): return 72 + (rt*2+ft)*4
    def Gx(s, rt): return 112 + 44*s + 4*rt
    def Gw(s, p, ft): return 112 + 44*s + 20 + (p*2+ft)*4
    bxa = [200, 201]; bwa = [202, 203]
    vBS, vBP, vBP1 = 204, 208, 212
    sl0 = SB0 + 2 * SLB
    a(f"""
    s_and_b32 s{sHH}, s{sWAVE}, 1
    s_lshr_b32 s{sRH}, s{sWAVE}, 1
    v_and_b32 v2, 15, v{vL}
    s_lshl_b32 s3, s{sRH}, 6
    v_add_u32 v4, s3, v2
    v_lshlrev_b32 v4, 7, v4
    v_lshrrev_b32 v5, 1, v2
    v_xor_b32 v5, v5, v3
    v_lshl_add_u32 v{bxa[0]}, v5, 4, v4
    v_add_u32 v{bxa[0]}, {sl0}, v{bxa[0]}
    v_xor_b32 v{bxa[1]}, 64, v{bxa[0]}
    v_lshrrev_b32 v4, 2, v2
    v_and_b32 v5, 3, v{vL}
    v_lshl_add_u32 v6, v3, 3, v4
    v_lshlrev_b32 v6, 7, v6
    v_add_u32 v6, {sl0 + 18432}, v6
    v_and_b32 v7, 2, v4
    v_and_b32 v8, 1, v3
    v_lshl_or_b32 v7, v8, 2, v7
    v_lshlrev_b32 v7, 4, v7
    s_mul_i32 s3, s{sHH}, 56
    v_lshl_add_u32 v8, v5, 3, s3
    v_xor_b32 v9, v8, v7
    v_add_u32 v{bwa[0]}, v6, v9
    v_add_u32 v8, 32, v8
    v_cmp_eq_u32 vcc, 56, v8
    v_mov_b32 v9, 120
    v_cndmask_b32 v8, v8, v9, vcc
    v_xor_b32 v9, v8, v7
    v_add_u32 v{bwa[1]}, v6, v9
    v_cmp_eq_u32 vcc, 12, v2
    v_cndmask_b32 v216, 0, 1.0, vcc
    v_mov_b32 v217, v216
    v_mov_b32 v218, v216
    v_mov_b32 v219, v216
    s_lshl_b32 s34, s{sRB}, 1
    s_add_u32 s34, s34, s{sRH}
    s_lshl_b32 s37, s34, 6
    s_lshl_b32 s3, s{sLAM}, 1
    s_add_u32 s3, s3, s{sHH}
    s_add_u32 s3, s3, s37
    s_lshl_b32 s3, s3, 10
    s_add_u32 s36, s3, {OB}
    s_mov_b32 s37, s34
    v_mov_b32 v1, 0
    s_waitcnt lgkmcnt(0)
    {TAGC if opt.get('swap', 0) else ''}
    """)
    stamp(0)
    pc = [l for l in p2common.split("\n") if l.strip()]
    cut = next(k for k in range(len(pc)) if pc[k].strip().startswith("s_mul_i32 s3, s%d, 3" % sWAVE))
    bias = f"""
    v_mov_b32 v224, {NEG}
    v_and_b32 v220, 15, v{vL}
    v_lshrrev_b32 v221, 4, v{vL}
    v_lshlrev_b32 v221, 2, v221
    v_sub_u32 v220, v220, v221
    """ + "".join(f"""
    v_subrev_u32 v221, {i}, v220
    v_and_b32 v222, 0x80000001, v221
    v_cmp_eq_u32 vcc, 0, v222
    v_cndmask_b32 v{vBS+i}, v224, 0, vcc
    v_cmp_eq_u32 vcc, 0x80000000, v222
    v_cndmask_b32 v{vBP+i}, v224, 0, vcc
    """ for i in range(4)) + """
    s_cmp_eq_u32 s37, 0
    s_cselect_b64 vcc, -1, 0
    """ + "".join(f"v_cndmask_b32 v{vBP1+i}, v{vBP+i}, v224, vcc\n" for i in range(4))
    pieces = [rest_setup + f"v_mov_b32 v227, 0\nglobal_load_dword v{vTAG}, v227, s[30:31] sc1\n" + bias, "\n".join(pc[:cut]), "\n".join(pc[cut:])]
    def breads(s, ks):
        L = [f"ds_read_b128 {q4(Gx(s,rt))}, v{bxa[ks]} offset:{rt*2048}" for rt in (1, 2, 3, 4, 0)]
        for p in range(3):
            for ft in range(2):
                for u in range(2):
                    L.append(f"ds_read_b64_tr_b16 {q2(Gw(s,p,ft) + 2*u)}, v{bwa[ft]} offset:{p*8192 + ks*4096 + u*512}")
        return L
    def bstep(s, rd, zero=False):
        M = []
        C = lambda r, z='0': z if zero else q4(r)
        for rt in (1, 2, 3, 4, 0):
            for ft in range(2):
                if rt: M.append(f"v_mfma_f32_16x16x32_bf16 {q4(Qa(rt,ft))}, {q4(Gw(s,0,ft))}, {q4(Gx(s,rt))}, {C(Qa(rt,ft))}")
                M.append(f"v_mfma_f32_16x16x32_bf16 {q4(Ka(rt,ft))}, {q4(Gw(s,1,ft))}, {q4(Gx(s,rt))}, {C(Ka(rt,ft))}")
                M.append(f"v_mfma_f32_16x16x32_bf16 {q4(Va(rt,ft))}, {q4(Gx(s,rt))}, {q4(Gw(s,2,ft))}, {C(Va(rt,ft), q4(216) if ft else '0')}")
        for i, m in enumerate(M):
            a(m)
            if i < len(rd): a(rd[i])
    a("s_barrier")
    stamp(1)
    for r in breads(0, 0): a(r)
    a(f"s_mov_b32 s{sC}, 0")
    a("s_waitcnt lgkmcnt(0)")
    bstep(0, breads(1, 1), zero=True)
    a(pieces[0]); a(pieces[1])
    a(f"""
    s_mul_i32 s3, s{sC}, 86
    s_lshr_b32 s3, s3, 8
    s_mul_i32 s3, s3, 3
    s_cmp_eq_u32 s3, s{sC}
    s_mov_b32 s{sD}, {SLB}
    s_cselect_b32 s{sD}, {(-2*SLB) & 0xffffffff}, s{sD}
    v_add_u32 v{bxa[0]}, s{sD}, v{bxa[0]}
    v_add_u32 v{bxa[1]}, s{sD}, v{bxa[1]}
    v_add_u32 v{bwa[0]}, s{sD}, v{bwa[0]}
    v_add_u32 v{bwa[1]}, s{sD}, v{bwa[1]}
    s_cmp_eq_u32 s{sC}, 6
    s_waitcnt lgkmcnt(0)
    s_cbranch_scc1 L_nobarB0
    s_barrier
    L_nobarB0:
    """)
    bstep(1, breads(0, 0))
    a(pieces[2])
    a(f"s_mov_b32 s{sC}, 1")
    a.raw("L_gemmB:")
    a("s_waitcnt lgkmcnt(0)")
    bstep(0, breads(1, 1))
    a(f"""
    s_mul_i32 s3, s{sC}, 86
    s_lshr_b32 s3, s3, 8
    s_mul_i32 s3, s3, 3
    s_cmp_eq_u32 s3, s{sC}
    s_mov_b32 s{sD}, {SLB}
    s_cselect_b32 s{sD}, {(-2*SLB) & 0xffffffff}, s{sD}
    v_add_u32 v{bxa[0]}, s{sD}, v{bxa[0]}
    v_add_u32 v{bxa[1]}, s{sD}, v{bxa[1]}
    v_add_u32 v{bwa[0]}, s{sD}, v{bwa[0]}
    v_add_u32 v{bwa[1]}, s{sD}, v{bwa[1]}
    s_cmp_eq_u32 s{sC}, 6
    s_waitcnt lgkmcnt(0)
    s_cbranch_scc1 L_nobarB
    s_barrier
    L_nobarB:
    """)
    bstep(1, breads(0, 0))
    a(f"""
    s_add_u32 s{sC}, s{sC}, 1
    s_cmp_lt_u32 s{sC}, 7
    s_cbranch_scc1 L_gemmB
    """)
    stamp(3)
    def Qf(j): return 112 + 4*(j-1)
    def Kf(rt): return 128 + 4*rt
    def Vf(dt, rt): return 148 + 10*dt + 2*rt
    a("s_waitcnt vmcnt(0) lgkmcnt(0)")
    get_tag("b")
    for rt in (1, 2, 3, 4, 0):
        for ft in range(2):
            if rt:
                cvt(Qf(rt)+2*ft, Qa(rt,ft)); cvt(Qf(rt)+2*ft+1, Qa(rt,ft)+2)
            cvt(Kf(rt)+2*ft, Ka(rt,ft)); cvt(Kf(rt)+2*ft+1, Ka(rt,ft)+2)
            cvt(Vf(ft,rt), Va(rt,ft)); cvt(Vf(ft,rt)+1, Va(rt,ft)+2)
    stamp(4)
    a.raw("L_phase2:")
    def wo_reads(base):
        L = []
        for hq in range(4):
            for cidx in range(4):
                for u in range(2):
                    d = base + (hq*4 + cidx)*4 + 2*u
                    L.append(f"ds_read_b64_tr_b16 {q2(d)}, v{vWA + 4*u + ((cidx + 2*(hq&1)) & 3)} offset:{hq*3584}")
        return L
    def wo_mask(base):
        return [f"v_and_b32 v{base + f*4 + 2 + r}, v{vMG}, v{base + f*4 + 2 + r}" for f in range(16) for r in range(2)]
    WB_, OF_ = 128, 192
    QF = 216
    KS, VS = 180, 192
    QB_, KB_, VB_ = 8, 16, 28
    sBud = 14
    def qmask(r):
        for i in range(4): a(f"v_and_b32 v{r+i}, v{vQm + (i>>1)}, v{r+i}")
    a("s_barrier")
    stamp(11)
    for i in range(3):
        a(f"buffer_load_dwordx4 {q4(KS+4*i)}, v{vKq}, {srd(sWS)}, s{sK[i]} offen sc1")
    a(f"buffer_load_dwordx4 {q4(QF)}, v{vKq}, {srd(sWS)}, s{sQA} offen sc1")
    for i in range(3):
        a(f"buffer_load_dwordx4 {q4(VS+4*i)}, v{vV1 if i == 1 else vV0}, {srd(sWS)}, s{sV[i]} offen sc1")
    a(f"""
    s_lshr_b32 s3, s{sWAVE}, 2
    s_cmp_gt_u32 s{sBR}, s3
    s_cbranch_scc0 L_noB1
    """)
    def SB(j, t): return 8*(j-1) + 4*t
    for j in range(1, 5):
        bp = vBP1 if j == 1 else vBP
        a(f"v_mfma_f32_16x16x32_bf16 {q4(SB(j,0))}, {q4(Kf(j-1))}, {q4(Qf(j))}, {q4(bp)}")
        a(f"v_mfma_f32_16x16x32_bf16 {q4(SB(j,1))}, {q4(Kf(j))}, {q4(Qf(j))}, {q4(vBS)}")
    M = lambda j: 32 + (j-1)
    T = lambda j: 36 + (j-1)
    for j in range(1, 5):
        s = SB(j, 0)
        a(f"v_max3_f32 v{M(j)}, v{s}, v{s+1}, v{s+2}")
        a(f"v_max3_f32 v{T(j)}, v{s+3}, v{s+4}, v{s+5}")
        a(f"v_max3_f32 v{M(j)}, v{M(j)}, v{s+6}, v{s+7}")
        a(f"v_max_f32 v{M(j)}, v{M(j)}, v{T(j)}")
    for sw in ("v_permlane32_swap_b32", "v_permlane16_swap_b32"):
        for j in range(1, 5): a(f"v_mov_b32 v{T(j)}, v{M(j)}")
        for j in range(1, 5): a(f"{sw} v{M(j)}, v{T(j)}")
        for j in range(1, 5): a(f"v_max_f32 v{M(j)}, v{M(j)}, v{T(j)}")
    for j in range(1, 5): a(f"v_mul_f32 v{M(j)}, v{vC}, v{M(j)}")
    for j in range(1, 5):
        for i in range(8): a(f"v_fma_f32 v{SB(j,0)+i}, v{SB(j,0)+i}, v{vC}, -v{M(j)}")
    for j in range(1, 5):
        for i in range(8): a(f"v_exp_f32 v{SB(j,0)+i}, v{SB(j,0)+i}")
    P = lambda j: 40 + 4*(j-1)
    for j in range(1, 5):
        for i in range(4): cvt(P(j)+i, SB(j,0)+2*i)
    O = lambda j, dt: 72 + 8*(j-1) + 4*dt
    for j in range(1, 5):
        for dt in (1, 0):
            a(f"v_mfma_f32_16x16x32_bf16 {q4(O(j,dt))}, {q4(Vf(dt,j-1))}, {q4(P(j))}, 0")
    st = [normalize(O(j,0), O(j,1), 56+2*(j-1), 57+2*(j-1), 112+4*(j-1)) for j in range(1, 5)]
    for k in range(len(st[0])):
        for j in range(4):
            for x in st[j][k]: a(x)
    a.raw("L_noB1:")
    a(f"""
    s_mov_b32 s{sBud}, {POLL_MAX}
    v_lshlrev_b32 v8, 2, v{vG}
    v_sub_u32 v8, v8, v{vR15}
    s_bitcmp1_b32 s{sWAVE}, 0
    s_cselect_b64 s[34:35], -1, 0
    """)
    for i in range(4):
        a(f"""
        v_add_u32 v9, {i}, v8
        v_cmp_lt_i32 vcc, 0, v9
        v_cndmask_b32 v10, v{vNEG}, 0, vcc
        v_cndmask_b32 v11, 0, v{vNEG}, vcc
        v_cndmask_b32 v{0+i}, v10, v{vNEG}, s[34:35]
        v_cndmask_b32 v{4+i}, 0, v10, s[34:35]
        v_cndmask_b32 v{64+i}, v11, 0, s[34:35]
        v_cndmask_b32 v{68+i}, v{vNEG}, v11, s[34:35]
        """)
    a(f"""
    s_cmp_ge_u32 s{sARB}, 2
    s_cbranch_scc1 L_nofix
    s_waitcnt vmcnt(4)
    v_not_b32 v9, v{vQm}
    v_not_b32 v10, v{vQm+1}
    v_and_b32 v9, 0xff7f, v9
    v_and_b32 v10, 0xff7f, v10
    """)
    for i in range(3):
        qmask(KS+4*i)
        a(f"""
        s_cmp_eq_u32 s{sK[i]}, {BIG}
        s_cbranch_scc0 L_fx{i}
        v_or_b32 v{KS+4*i}, v9, v{KS+4*i}
        v_or_b32 v{KS+4*i+2}, v10, v{KS+4*i+2}
        L_fx{i}:
        """)
    a.raw("L_nofix:")
    for i in range(3):
        a(f"s_waitcnt vmcnt({6-i})")
        if i == 0: stamp(5)
        a(f"ds_write_b128 v{vKw}, {q4(KS+4*i)} offset:{1024*i}")
    for i in range(3):
        a(f"s_waitcnt vmcnt({2-i})")
        for r in range(4): a(f"v_or_b32 v{VS+4*i+r}, v{vOn1 if i == 1 else vOn0}, v{VS+4*i+r}")
        a(f"ds_write_b128 v{vKw}, {q4(VS+4*i)} offset:{24576+1024*i}")
    a(f"""
    s_lshr_b32 s3, s{sWAVE}, 2
    s_cmp_gt_u32 s{sBR}, s3
    s_cbranch_scc0 L_noB2
    """)
    for j in range(1, 5):
        a(f"buffer_store_dwordx4 {q4(112+4*(j-1))}, v{vOo}, {srd(sWS)}, s36 offen sc1")
        if j < 4: a("s_add_u32 s36, s36, 16384")
    a.raw("L_noB2:")
    stamp(6)
    qmask(QF)
    a(f"""
    s_cmp_ge_u32 s{sARB}, 2
    s_cbranch_scc1 L_nofixq
    v_not_b32 v9, v{vQm}
    v_not_b32 v10, v{vQm+1}
    v_and_b32 v9, 0x3f80, v9
    v_or_b32 v{QF}, v9, v{QF}
    v_and_b32 v10, 0x3f80, v10
    v_or_b32 v{QF+2}, v10, v{QF+2}
    L_nofixq:
    s_waitcnt lgkmcnt(0)
    s_barrier
    """)
    stamp(12)
    KBUF = 72; NKB = 6
    def kread(t): return f"ds_read_b128 {q4(KBUF + 4*(t % NKB))}, v{vKa} offset:{t*1024}"
    for t in range(NKB - 1): a(kread(t))
    vM, vT = 120, 121
    def mx(t):
        r = 4*t
        if t == 0:
            a(f"v_max_f32 v{vM}, v0, v1"); a(f"v_max_f32 v{vT}, v2, v3")
        else:
            a(f"v_max3_f32 v{vM}, v{vM}, v{r}, v{r+1}"); a(f"v_max3_f32 v{vT}, v{vT}, v{r+2}, v{r+3}")
    LAG = 4
    for t in range(18):
        if t + NKB - 1 < 18: a(kread(t + NKB - 1))
        outstanding = min(18, t + NKB) - (t + 1)
        a(f"s_waitcnt lgkmcnt({outstanding})")
        c = q4(4*t) if t in (0, 1, 16, 17) else "0"
        a(f"v_mfma_f32_16x16x32_bf16 {q4(4*t)}, {q4(KBUF + 4*(t % NKB))}, {q4(QF)}, {c}")
        if t >= LAG: mx(t - LAG)
    VBUF = [96 + 4*i for i in range(6)]
    NVB = len(VBUF)
    WA_ = 8
    ACCB = [0, 4, 72, 76, 80, 84, 88, 92]
    ACCA = [96, 100, 104, 108, 112, 116, 120, 124]
    sNext = 27
    lq = []
    def lds(ins, tag): a(ins); lq.append(tag)
    def lwait(tag):
        last = max(i for i, t in enumerate(lq) if t == tag)
        a(f"s_waitcnt lgkmcnt({min(15, len(lq) - 1 - last)})")
    def vread(n):
        lds(f"ds_read_b128 {q4(VBUF[n % NVB])}, v{vKa} offset:{24576 + (n>>1)*2048 + (n&1)*1024}", ("v", n))
    for n in range(NVB): vread(n)
    for t in range(18 - LAG, 18): mx(t)
    a(f"v_max_f32 v{vM}, v{vM}, v{vT}")
    for sw in ("v_permlane32_swap_b32", "v_permlane16_swap_b32"):
        a(f"v_mov_b32 v{vT}, v{vM}")
        a(f"{sw} v{vM}, v{vT}")
        a(f"v_max_f32 v{vM}, v{vM}, v{vT}")
    a(f"v_mul_f32 v{vM}, v{vC}, v{vM}")
    stamp(7)
    def o_load(f, s0):
        hq, tt = f >> 1, f & 1
        return f"buffer_load_dwordx4 {q4(OF_ + f*4)}, v{vOo}, {srd(sWS)}, s{s0 + tt} offen offset:{hq*1024} sc1"
    def frag(lbl, f, wbase, acc, wait, after):
        hq, tt = f >> 1, f & 1
        r = OF_ + f*4
        a(f"""
        s_cmp_lg_u32 s{sNext}, {f}
        s_cbranch_scc1 L_sk{lbl}{f}
        {wait}
        v_cmp_ne_u32 vcc, v{r+3}, v{vTAG}
        s_lshr_b32 s3, vcc_hi, 16
        s_cbranch_scc1 L_sk{lbl}{f}
        """)
        for cidx in range(4):
            d = acc[tt*4+cidx]
            a(f"v_mfma_f32_16x16x32_bf16 {q4(d)}, {q4(wbase + (hq*4+cidx)*4)}, {q4(r)}, {'0' if f < 2 else q4(d)}")
        a(f"s_add_u32 s{sNext}, s{sNext}, 1")
        if after is not None: a(o_load(f, after))
        a.raw(f"L_sk{lbl}{f}:")
    OACC = 224
    war = wo_reads(WA_); wam = wo_mask(WA_)
    LU, FU = opt.get("lu", 4), opt.get("fu", 5)
    a(f"s_mov_b32 s{sNext}, 0")
    wbr = wo_reads(WB_); wbm = wo_mask(WB_)
    for x in wbr[:8]: lds(x, ("b", 0))
    for x in wbr[8:16]: lds(x, ("b", 1))
    for u in range(9):
        b = 8*u
        for i in range(8): a(f"v_fma_f32 v{b+i}, v{b+i}, v{vC}, -v{vM}")
        if LU <= u < LU + 4:
            for f in (2*(u-LU), 2*(u-LU)+1): a(o_load(f, sOB))
        for i in range(8): a(f"v_exp_f32 v{b+i}, v{b+i}")
        if opt.get('inpv', 0) and FU <= u < FU + 4:
            for f in range(2*(u-FU), 2*(u-FU)+2): frag("P", f, WB_, ACCB, f"s_waitcnt vmcnt({7-f})", None)
        for i in range(4): a(f"v_cvt_pk_bf16_f32 v{b+i}, v{b+2*i}, v{b+2*i+1}")
        lwait(("v", 2*u+1))
        for dt in range(2):
            c = "0" if u == 0 else q4(OACC + 4*dt)
            a(f"v_mfma_f32_16x16x32_bf16 {q4(OACC+4*dt)}, {q4(VBUF[(2*u+dt) % NVB])}, {q4(b)}, {c}")
        for n in (NVB + 2*u, NVB + 1 + 2*u):
            if n < 18: vread(n)
        if u < 2:
            for x in wbr[16+8*u: 24+8*u]: lds(x, ("b", 2+u))
        if u == 1:
            for i in range(8): a(f"v_add_u32 v{vWA+i}, {L_WOA}, v{vWA+i}")
        if 1 <= u <= 4:
            lwait(("b", u-1))
            for x in wbm[8*(u-1): 8*u]: a(x)
        if u >= 1:
            for x in war[4*(u-1): 4*u]: lds(x, ("w", u-1))
        if u >= 3:
            lwait(("w", u-3))
            for x in wam[4*(u-3): 4*(u-2)]: a(x)
    for grp in normalize(OACC, OACC+4, 232, 234, 236):
        for x in grp: a(x)
    a(f"buffer_store_dwordx4 {q4(236)}, v{vOo}, {srd(sWS)}, s33 offen sc1")
    stamp(13)
    a(f"""
    s_cmp_eq_u32 s{sCB}, 7
    s_cbranch_scc1 L_fin
    """)
    vXW, vXR, vOut = 224, 228, 230
    a(f"""
    s_lshl_b32 s3, s{sKQ}, 14
    s_lshl_b32 s35, s{sRP}, 13
    s_add_u32 s35, s35, s3
    v_lshlrev_b32 v231, 8, v{vR15}
    v_add_u32 v231, s35, v231
    v_xor_b32 v232, v{vG}, v{vR15}
    """)
    for cidx in range(4):
        a(f"""
        s_add_u32 s3, s{sKQ}, {cidx}
        s_and_b32 s3, s3, 3
        s_lshl_b32 s3, s3, 2
        v_xor_b32 v234, s3, v232
        v_lshl_add_u32 v{vXW+cidx}, v234, 4, v231
        """)
    a(f"""
    v_lshrrev_b32 v231, 3, v{vL}
    s_lshl_b32 s3, s{sWAVE}, 3
    v_add_u32 v231, s3, v231
    v_and_b32 v232, 7, v{vL}
    v_lshlrev_b32 v234, 1, v232
    v_and_b32 v235, 15, v231
    v_xor_b32 v234, v234, v235
    v_lshlrev_b32 v234, 4, v234
    v_lshl_add_u32 v{vXR}, v231, 8, v234
    v_xor_b32 v{vXR+1}, 16, v{vXR}
    s_lshl_b32 s3, s{sRB64}, 6
    v_add_u32 v231, s3, v231
    v_mul_u32_u24 v231, 1792, v231
    v_lshl_add_u32 v231, v232, 4, v231
    s_lshl_b32 s3, s{sCB}, 7
    v_add_u32 v{vOut}, s3, v231
    s_waitcnt lgkmcnt(0)
    """)
    for x in wam[24:]: a(x)
    def finish(lbl, wbase, acc, s0, after):
        a(f"""
        s_cmp_eq_u32 s{sNext}, 8
        s_cbranch_scc1 L_done{lbl}
        L_again{lbl}:
        """)
        for f in range(8):
            a(f"s_cmp_gt_u32 s{sNext}, {f}")
            a(f"s_cbranch_scc1 L_rl{lbl}{f}")
            a(o_load(f, s0))
            a.raw(f"L_rl{lbl}{f}:")
        a("s_waitcnt vmcnt(0)")
        a.raw(f"L_first{lbl}:")
        for f in range(8): frag(lbl, f, wbase, acc, "", after)
        a(f"""
        s_cmp_eq_u32 s{sBud}, 0
        s_cbranch_scc1 L_done{lbl}
        s_sub_u32 s{sBud}, s{sBud}, 1
        s_cmp_lg_u32 s{sNext}, 8
        s_cbranch_scc1 L_again{lbl}
        {"s_waitcnt vmcnt(0)" if after is not None else ""}
        L_done{lbl}:
        """)
    def exch_write(acc):
        for tt in range(2):
            for cidx in range(4):
                a(f"ds_write_b128 v{vXW+cidx}, {q4(acc[tt*4+cidx])} offset:{tt*4096}")
        a("s_waitcnt lgkmcnt(0)")
        a("s_barrier")
    def exch_final(RB_, outoff):
        for k in range(4):
            for h in range(2):
                a(f"ds_read_b128 {q4(RB_ + (k*2+h)*4)}, v{vXR+h} offset:{k*16384}")
        a("s_waitcnt lgkmcnt(4)")
        for i in range(8): a(f"v_add_f32 v{RB_+i}, v{RB_+i}, v{RB_+8+i}")
        a("s_waitcnt lgkmcnt(0)")
        for i in range(8): a(f"v_add_f32 v{RB_+16+i}, v{RB_+16+i}, v{RB_+24+i}")
        for i in range(8): a(f"v_add_f32 v{RB_+i}, v{RB_+i}, v{RB_+16+i}")
        for i in range(4): a(f"v_cvt_pk_bf16_f32 v{RB_+8+i}, v{RB_+2*i}, v{RB_+2*i+1}")
        a(f"s_mov_b32 s3, {outoff}")
        a(f"buffer_store_dwordx4 {q4(RB_+8)}, v{vOut}, {srd(sOut)}, s3 offen")
    if not opt.get('inpv', 0):
        for f in range(8): frag("R", f, WB_, ACCB, f"s_waitcnt vmcnt({8-f})", None)
    finish("B", WB_, ACCB, sOB, None)
    stamp(8)
    for f in range(8): a(o_load(f, sOA))
    a(f"s_mov_b32 s{sNext}, 0")
    a("s_barrier")
    exch_write(ACCB)
    if opt.get("rechk", 1):
        a("s_waitcnt vmcnt(0)")
        for f in range(8):
            a(f"""
            v_cmp_ne_u32 vcc, v{OF_+f*4+3}, v{vTAG}
            s_lshr_b32 s3, vcc_hi, 16
            s_cbranch_scc0 L_ok{f}
            {o_load(f, sOA)}
            L_ok{f}:
            """)
    exch_final(128, 896)
    for i in range(4): a(f"v_add_u32 v{vXW+i}, 65536, v{vXW+i}")
    for i in range(2): a(f"v_add_u32 v{vXR+i}, 65536, v{vXR+i}")
    stamp(14)
    for f in range(8): frag("Q", f, WA_, ACCA, "s_waitcnt vmcnt(1)" if opt.get("rechk", 1) else f"s_waitcnt vmcnt({8-f})", None)
    finish("A", WA_, ACCA, sOA, None)
    stamp(9)
    exch_write(ACCA)
    exch_final(160, 0)
    a.raw("L_fin:")
    if stamps:
        stamp(15)
        a(f"""
        s_sub_u32 s84, {POLL_MAX}, s{sBud}
        s_mul_i32 s84, s84, 100
        s_add_u32 s84, s84, s64
        s_lshl_b32 s3, s2, 3
        s_add_u32 s3, s3, s{sWAVE}
        s_lshl_b32 s3, s3, 6
        s_add_u32 s3, s3, {STAMP}
        v_mov_b32 v1, 0
        s_mov_b64 exec, 1
        """)
        if opt.get("dbgst"):
            ids = [1, 2, 3, 4, 5, 6, 7, 8, 9, 11, 12, 13, 14, 15]
            a("s_not_b32 s3, s64")
            a("v_mov_b32 v2, s3")
            a("global_atomic_umax v1, v2, s[30:31] offset:4")
            for k, i in enumerate(ids):
                a(f"s_sub_u32 s3, s{64+2*i}, s64")
                a("s_cmp_lt_u32 s3, 100000")
                a(f"s_cselect_b32 s3, s{64+2*i}, 0")
                a("v_mov_b32 v2, s3")
                a(f"global_atomic_umax v1, v2, s[30:31] offset:{8+4*k}")
            a("s_endpgm")
        for i in range(16):
            a(f"v_mov_b32 v2, s{64+2*i}")
            a(f"buffer_store_dword v2, v1, {srd(sWS)}, s3 offen offset:{4*i}")
    a.raw("L_end:")
    a("s_endpgm")
    bad = a.check_branches()
    for b in bad: print("BRANCH HAZARD", b, file=sys.stderr)
    assert not bad
    out = HEADER + f"""; @launch grid=(256,1,1) block=(512,1,1) lds=163840
.amdgcn_target "amdgcn-amd-amdhsa--gfx950"
.text
.globl {NAME}_kernel
.p2align 8
.type {NAME}_kernel,@function
""" + a.text() + f""".fill 1280, 4, 0xBF800000
s_endpgm
.section .rodata,"a"
.p2align 6
.amdhsa_kernel {NAME}_kernel
  .amdhsa_next_free_vgpr 256
  .amdhsa_next_free_sgpr 102
  .amdhsa_accum_offset 256
  .amdhsa_group_segment_fixed_size 0
  .amdhsa_kernarg_size 72
  .amdhsa_user_sgpr_count 2
  .amdhsa_user_sgpr_kernarg_segment_ptr 1
  .amdhsa_system_sgpr_workgroup_id_x 1
.end_amdhsa_kernel
"""
    return out

if __name__ == "__main__":
    stamps = int(sys.argv[1]); path = sys.argv[2]
    opt = dict((kv.split("=")[0], int(kv.split("=")[1])) for kv in sys.argv[3:])
    open(path, "w").write(gen(stamps, opt))
```

```python
import sys, struct, math
from asmlib import Asm

NAME = "concat_heads__sliding_block__sliding_local_dilated__prompt"
HEADER = open("cdna_kernels/%s.s.ref" % NAME).read().split("; Override launch")[0]
def f2u(x): return struct.unpack("<I", struct.pack("<f", x))[0]

XB, WB, WOB_BYTES, OUTB = 1835008, 1204224, 401408, 3670016
MB2 = 0x200000
QO, KO, VO = 0, MB2, 2*MB2
BRS = 3*MB2
OA, OB = 6*MB2, 7*MB2
FL1 = 8*MB2
STAMP = 8*MB2 + 0x100000
WSB = 9*MB2
BIG = 0x40000000
NEG = f2u(-1e30)
CSC = f2u((28 ** -0.5) * math.log2(math.e))
SLOT = 40960
L_WOB, L_WOA, L_KV = 0, 57344, 114688
POLL_MAX = 40000

sWAVE, sBR, sLAM, sRB, sAH, sARB, sRB64, sCB, sTAG = 4, 5, 6, 7, 8, 9, 10, 11, 12
sX, sW, sWoA, sWoB, sWS, sOut = 36, 40, 44, 48, 52, 56
def srd(b): return f"s[{b}:{b+3}]"
def q4(r): return f"v[{r}:{r+3}]"
def q2(r): return f"v[{r}:{r+1}]"
def q16(r): return f"v[{r}:{r+15}]"
vL, vL16, vTAG = 255, 254, 253

def gen(stamps=False, opt=None):
    opt = opt or {}
    a = Asm()
    def stamp(i):
        if stamps:
            a(f"s_memrealtime s[{64+2*i}:{65+2*i}]")
            a("s_waitcnt lgkmcnt(0)")
    def mk_srd(d, p, n):
        return f"s_mov_b32 s{d}, s{p}\ns_mov_b32 s{d+1}, s{p+1}\ns_mov_b32 s{d+2}, {n}\ns_mov_b32 s{d+3}, 0x20000\n"
    MAP = f"""
    s_lshr_b32 s{sLAM}, s14, 2
    s_and_b32 s15, s13, 3
    s_lshl_b32 s15, s15, 2
    s_and_b32 s3, s14, 3
    s_add_u32 s{sRB}, s15, s3
    """ if opt.get("map", 0) else f"""
    s_and_b32 s15, s13, 1
    s_lshl_b32 s15, s15, 2
    s_lshr_b32 s3, s14, 3
    s_add_u32 s{sLAM}, s15, s3
    s_and_b32 s15, s13, 2
    s_lshl_b32 s15, s15, 2
    s_and_b32 s3, s14, 7
    s_add_u32 s{sRB}, s15, s3
    """
    TAGC = f"""
    s_or_b32 s3, s2, s{sWAVE}
    s_cmp_lg_u32 s3, 0
    s_cbranch_scc1 L_notag
    s_memrealtime s[34:35]
    s_waitcnt lgkmcnt(0)
    s_and_b32 s35, s34, 0x1fff
    s_lshl_b32 s35, s35, 1
    s_or_b32 s35, s35, 1
    s_bfe_u32 s3, s34, 0xf000d
    s_lshl_b32 s3, s3, 15
    s_or_b32 s35, s35, s3
    s_lshl_b32 s34, s34, 3
    s_and_b32 s34, s34, 0x80000000
    s_or_b32 s34, s34, s35
    v_mov_b32 v2, s34
    global_store_dword v1, v2, s[30:31] sc1
    L_notag:
    """
    MAPB = f"""
    s_and_b32 s15, s13, 1
    s_lshl_b32 s15, s15, 2
    s_and_b32 s3, s14, 3
    s_add_u32 s{sLAM}, s15, s3
    s_and_b32 s15, s13, 2
    s_lshl_b32 s15, s15, 2
    s_lshr_b32 s3, s14, 2
    s_add_u32 s{sRB}, s15, s3
    """
    a.raw(f"{NAME}_kernel:")
    a(f"""
    s_cmp_ge_u32 s2, 256
    s_cbranch_scc1 L_end
    s_load_dwordx16 s[16:31], s[0:1], 0
    s_load_dwordx2 s[32:33], s[0:1], 64
    v_lshrrev_b32 v1, 6, v0
    v_and_b32 v{vL}, 63, v0
    v_readfirstlane_b32 s{sWAVE}, v1
    s_and_b32 s13, s2, 7
    s_lshr_b32 s14, s2, 3
    s_lshr_b32 s{sBR}, s13, 2
    s_xor_b32 s{sBR}, s{sBR}, {opt.get('swap', 0)}
    {MAP}
    v_lshlrev_b32 v{vL16}, 4, v{vL}
    v_lshrrev_b32 v1, 3, v{vL}
    v_and_b32 v2, 7, v{vL}
    v_lshrrev_b32 v3, 4, v{vL}
    s_cmp_lg_u32 s{sBR}, 0
    s_cbranch_scc1 L_brB
    s_cmp_lt_u32 s{sWAVE}, 4
    s_cbranch_scc1 L_compute
    """)
    rest_setup = f"""
    s_lshl_b32 s{sAH}, s13, 1
    s_and_b32 s3, s14, 1
    s_add_u32 s{sAH}, s{sAH}, s3
    s_lshr_b32 s{sARB}, s14, 1
    s_lshl_b32 s{sRB64}, s13, 2
    s_lshr_b32 s3, s14, 3
    s_add_u32 s{sRB64}, s{sRB64}, s3
    s_and_b32 s{sCB}, s14, 7
    """ + mk_srd(sWoA, 20, WOB_BYTES) + mk_srd(sWoB, 26, WOB_BYTES) + mk_srd(sWS, 32, WSB) + mk_srd(sOut, 28, OUTB)
    def prefetch(l):
        if not opt.get("pf", 1): return
        a(f"""
        s_cmp_lg_u32 s{sWAVE}, 1
        s_cbranch_scc1 L_notouch{l}
        v_min_u32 v4, 8, v{vL}
        v_lshlrev_b32 v4, 21, v4
        v_add_u32 v4, 0x1ff780, v4
        buffer_load_dword v217, v4, {srd(sWS)}, 0 offen sc1
        v_and_b32 v4, 1, v{vL}
        v_lshlrev_b32 v4, 21, v4
        buffer_load_dword v218, v4, {srd(sOut)}, 0 offen
        L_notouch{l}:
        s_and_b32 s3, s14, 15
        s_lshl_b32 s34, s{sWAVE}, 4
        s_or_b32 s3, s3, s34
        s_cmp_lg_u32 s3, 0x2f
        s_cbranch_scc1 L_nocode{l}
        s_getpc_b64 s[34:35]
        L_pc{l}:
        s_sub_u32 s34, s34, L_pc{l}-{NAME}_kernel
        s_subb_u32 s35, s35, 0
        v_lshlrev_b32 v4, 7, v{vL}
        global_load_dword v217, v4, s[34:35]
        v_add_u32 v4, 8192, v4
        global_load_dword v218, v4, s[34:35]
        v_add_u32 v4, 8192, v4
        global_load_dword v219, v4, s[34:35]
        L_nocode{l}:
        """)
    def get_tag(lbl):
        a(f"""
        s_mov_b32 s35, {POLL_MAX}
        L_tag{lbl}:
        v_readfirstlane_b32 s{sTAG}, v{vTAG}
        s_cmp_lg_u32 s{sTAG}, 0
        s_cbranch_scc1 L_tagok{lbl}
        v_mov_b32 v227, 0
        global_load_dword v{vTAG}, v227, s[30:31] sc1
        s_sub_u32 s35, s35, 1
        s_waitcnt vmcnt(0)
        s_cmp_lg_u32 s35, 0
        s_cbranch_scc1 L_tag{lbl}
        L_tagok{lbl}:
        """)
    def poll(lbl, vaddr, vd):
        a(f"""
        s_mov_b32 s35, {POLL_MAX}
        L_poll{lbl}:
        buffer_load_dword v{vd}, v{vaddr}, {srd(sWS)}, s15 offen sc1
        s_sub_u32 s35, s35, 1
        s_waitcnt vmcnt(0)
        v_cmp_ne_u32 vcc, v{vd}, v{vTAG}
        s_cmp_eq_u32 s35, 0
        s_cbranch_scc1 L_pollok{lbl}
        s_cbranch_vccz L_pollok{lbl}
        s_branch L_poll{lbl}
        L_pollok{lbl}:
        """)
    sRP, sKQ, sT, sU = 60, 61, 62, 63
    vR15, vG, vWA, vMG, vV0, vC = 240, 241, 242, 250, 251, 252
    vNEG, vKa, vKw = 237, 239, 238
    vKq, vOo, vVa, vVb, vOne = 232, 233, 234, 235, 236
    vQm, vOn0, vOn1, vV1 = 228, 230, 231, 226
    sHB, sHQ, sP = 98, 100, 99
    sK = [16, 17, 18, 19, 20, 21]; sV = [22, 23, 24, 25, 26, 27]; sQA = 32
    sOB, sOA = 96, 28
    t0, t1, t2, t3, t4 = 220, 221, 222, 223, 224
    vPA = 225
    FLV = 64*16*128
    p2common = f"""
    s_and_b32 s{sRP}, s{sWAVE}, 1
    s_lshr_b32 s{sKQ}, s{sWAVE}, 1
    v_and_b32 v{vR15}, 15, v{vL}
    v_lshrrev_b32 v{vG}, 4, v{vL}
    v_cmp_gt_u32 vcc, 48, v{vL}
    v_cndmask_b32 v{vMG}, 0, -1, vcc
    v_lshrrev_b32 v{t0}, 2, v{vR15}
    v_lshl_add_u32 v{t1}, v{vG}, 2, v{t0}
    v_lshlrev_b32 v{t1}, 7, v{t1}
    s_mul_i32 s3, s{sKQ}, 14336
    v_add_u32 v{t1}, s3, v{t1}
    v_and_b32 v{t2}, 2, v{t0}
    v_and_b32 v{t3}, 1, v{vG}
    v_lshl_or_b32 v{t2}, v{t3}, 2, v{t2}
    v_lshlrev_b32 v{t2}, 4, v{t2}
    v_and_b32 v{t3}, 3, v{vL}
    v_lshlrev_b32 v{t4}, 3, v{t3}
    v_xor_b32 v{t2}, v{t2}, v{t4}
    v_add_u32 v{t1}, v{t1}, v{t2}
    v_and_b32 v{t2}, 2048, v{vMG}
    """ + "".join(f"""
    s_add_u32 s3, s{sKQ}, {c}
    s_and_b32 s3, s3, 3
    s_lshl_b32 s3, s3, 5
    v_xor_b32 v{vWA+c}, s3, v{t1}
    v_add_u32 v{vWA+4+c}, v{vWA+c}, v{t2}
    """ for c in range(4)) + f"""
    v_mov_b32 v{t4}, {BIG}
    v_lshlrev_b32 v{vKq}, 9, v{vG}
    v_lshl_add_u32 v{vKq}, v{vR15}, 4, v{vKq}
    v_lshlrev_b32 v{vOo}, 6, v{vR15}
    v_lshl_add_u32 v{vOo}, v{vG}, 4, v{vOo}
    v_lshlrev_b32 v{vVa}, 8, v{t0}
    v_lshl_add_u32 v{vVa}, v{vG}, 6, v{vVa}
    v_lshl_add_u32 v{vVa}, v{t3}, 4, v{vVa}
    v_add_u32 v{vVb}, 1024, v{vVa}
    v_cmp_gt_u32 vcc, 12, v{vR15}
    v_cndmask_b32 v{vVb}, v{t4}, v{vVb}, vcc
    v_cmp_eq_u32 vcc, 12, v{vR15}
    v_mov_b32 v{t4}, 0x3f803f80
    v_cndmask_b32 v{vOne}, 0, v{t4}, vcc
    v_mov_b32 v{vC}, {CSC}
    v_mov_b32 v{vNEG}, {NEG}
    s_and_b32 s3, s{sWAVE}, 6
    s_lshl_b32 s3, s3, 10
    s_add_u32 s3, s3, {L_KV}
    v_add_u32 v{vKa}, s3, v{vL16}
    s_mul_i32 s3, s{sAH}, 7
    s_lshr_b32 s{sHQ}, s3, 1
    s_lshl_b32 s{sHQ}, s{sHQ}, 9
    s_lshl_b32 s{sHB}, s3, 8
    v_cmp_lt_u32 vcc, 15, v{vL}
    v_cndmask_b32 v{t0}, 0, -1, vcc
    s_bitcmp1_b32 s{sAH}, 0
    s_cselect_b64 vcc, -1, 0
    v_cndmask_b32 v{vQm}, -1, v{t0}, vcc
    v_cndmask_b32 v{vQm+1}, v{vMG}, -1, vcc
    s_mul_i32 s3, s{sWAVE}, 3
    s_lshl_b32 s{sT}, s{sARB}, 3
    s_sub_u32 s{sT}, s{sT}, 16
    s_add_u32 s{sT}, s{sT}, s3
    s_lshl_b32 s3, s3, 10
    s_add_u32 s3, s3, {L_KV}
    v_add_u32 v{vKw}, s3, v{vL16}
    v_subrev_u32 v{t0}, 1024, v{vVb}
    s_bitcmp1_b32 s{sWAVE}, 0
    s_cselect_b64 vcc, -1, 0
    v_cndmask_b32 v{vV0}, v{vVa}, v{t0}, vcc
    v_cndmask_b32 v{vV1}, v{t0}, v{vVa}, vcc
    v_cndmask_b32 v{vOn0}, 0, v{vOne}, vcc
    v_cndmask_b32 v{vOn1}, v{vOne}, 0, vcc
    """ + "".join(f"""
    s_ashr_i32 s34, s{sT}, 1
    s_mul_i32 s34, s34, 28672
    s_and_b32 s35, s{sT}, 1
    s_lshl_b32 s3, s35, 10
    s_add_u32 s3, s3, s34
    s_add_u32 s3, s3, s{sHB}
    s_add_u32 s3, s3, {VO}
    s_lshl_b32 s35, s35, 8
    s_add_u32 s35, s35, s34
    s_add_u32 s35, s35, s{sHQ}
    s_add_u32 s35, s35, {KO}
    s_cmp_lt_i32 s{sT}, 0
    s_cselect_b32 s{sV[i]}, {BIG}, s3
    s_cselect_b32 s{sK[i]}, {BIG}, s35
    s_add_u32 s{sT}, s{sT}, 1
    """ for i in range(3)) + f"""
    s_lshl_b32 s3, s{sARB}, 3
    s_add_u32 s3, s3, s{sWAVE}
    s_lshr_b32 s34, s3, 1
    s_mul_i32 s34, s34, 28672
    s_and_b32 s35, s3, 1
    s_lshl_b32 s35, s35, 8
    s_add_u32 s35, s35, s34
    s_add_u32 s{sQA}, s35, s{sHQ}
    s_lshl_b32 s3, s3, 4
    s_add_u32 s3, s3, s{sAH}
    s_lshl_b32 s3, s3, 10
    s_add_u32 s33, s3, {OA}
    s_mul_i32 s3, s{sAH}, 7
    s_lshr_b32 s34, s3, 3
    s_add_u32 s3, s3, 6
    s_lshr_b32 s35, s3, 3
    s_sub_u32 s35, s35, s34
    v_and_b32 v{t0}, 1, v{vL}
    v_mul_u32_u24 v{t0}, s35, v{t0}
    v_add_u32 v{t0}, s34, v{t0}
    v_min_u32 v{t1}, 11, v{vL}
    v_lshrrev_b32 v{t1}, 1, v{t1}
    s_lshl_b32 s3, s{sARB}, 1
    s_sub_u32 s3, s3, 4
    v_add_u32 v{t1}, s3, v{t1}
    v_max_i32 v{t1}, 0, v{t1}
    v_lshl_add_u32 v{t1}, v{t1}, 4, v{t0}
    v_lshlrev_b32 v{vPA}, 7, v{t1}
    s_lshl_b32 s3, s{sRB64}, 2
    s_lshl_b32 s35, s{sRP}, 1
    s_add_u32 s3, s3, s35
    s_lshl_b32 s3, s3, 4
    s_lshl_b32 s35, s{sKQ}, 2
    s_add_u32 s3, s3, s35
    s_lshl_b32 s3, s3, 10
    s_add_u32 s{sOB}, s3, {OB}
    s_add_u32 s{sOB+1}, s{sOB}, 16384
    s_add_u32 s{sOA}, s3, {OA}
    s_add_u32 s{sOA+1}, s{sOA}, 16384
    s_mov_b32 s15, {FL1}
    """
    def normalize(O0, O1, ta, tb, dst):
        return [
            [f"v_mov_b32 v{ta}, v{O1}", f"v_mov_b32 v{tb}, v{O1}"],
            [f"v_permlane32_swap_b32 v{ta}, v{tb}"],
            [f"v_mov_b32 v{ta}, v{tb}"],
            [f"v_permlane16_swap_b32 v{ta}, v{tb}"],
            [f"v_rcp_f32 v{tb}, v{tb}"],
            [f"v_mul_f32 v{O0+i}, v{O0+i}, v{tb}" for i in range(4)] + [f"v_mul_f32 v{O1+i}, v{O1+i}, v{tb}" for i in range(4)],
            [f"v_cvt_pk_bf16_f32 v{dst}, v{O0}, v{O0+1}", f"v_cvt_pk_bf16_f32 v{dst+1}, v{O0+2}, v{O0+3}",
             f"v_cvt_pk_bf16_f32 v{dst+2}, v{O1}, v{O1+1}", f"v_cvt_pk_bf16_f32 v{dst+3}, v{O1+2}, v{O1+3}"],
            [f"v_bfi_b32 v{dst+3}, v{vMG}, v{dst+3}, v{vTAG}"],
        ]
    vXe, vXo, vW0, vW1, vWo, vPw = 10, 11, 13, 14, 15, 17
    sLW, sLx, sLw, sT0, sT1 = 96, 97, 101, 34, 35
    sLwo, sL1k = 14, 15
    a(f"""
    s_sub_u32 s{sLW}, s{sWAVE}, 4
    s_lshl_b32 s{sT0}, s{sRB}, 7
    s_lshl_b32 s{sT1}, s{sLW}, 5
    s_add_u32 s{sT0}, s{sT0}, s{sT1}
    v_add_u32 v4, s{sT0}, v1
    v_mul_u32_u24 v4, 896, v4
    v_xor_b32 v5, v2, v3
    v_lshl_add_u32 v{vXe}, v5, 4, v4
    v_xor_b32 v5, 4, v5
    v_lshl_add_u32 v{vXo}, v5, 4, v4
    v_add_u32 v{vXo}, 6144, v{vXo}
    s_lshl_b32 s{sLx}, s{sLW}, 12
    s_lshl_b32 s{sLw}, s{sLW}, 11
    s_lshl_b32 s{sT1}, s{sLW}, 4
    v_add_u32 v4, s{sT1}, v1
    v_mul_u32_u24 v4, 2688, v4
    s_lshl_b32 s{sT1}, s{sLAM}, 7
    v_add_u32 v4, s{sT1}, v4
    v_and_b32 v5, 1, v3
    v_lshlrev_b32 v5, 2, v5
    v_xor_b32 v5, v2, v5
    v_lshl_add_u32 v{vW0}, v5, 4, v4
    v_add_u32 v{vW1}, {8*2688-1024}, v{vW0}
    s_mov_b32 s{sX+2}, {XB}
    s_mov_b32 s{sX+3}, 0x20000
    s_mov_b32 s{sW+2}, {WB}
    s_mov_b32 s{sW+3}, 0x20000
    s_waitcnt lgkmcnt(0)
    s_mov_b32 s{sX}, s16
    s_mov_b32 s{sX+1}, s17
    s_mov_b32 s{sW}, s18
    s_mov_b32 s{sW+1}, s19
    """)
    stamp(0)
    a(f"""
    s_cmp_eq_u32 s{sLAM}, 7
    s_cbranch_scc1 L_ld_idle
    """)
    order = []
    def D(c):
        slot = ((c + 1) % 4) * SLOT
        a(f"""
        s_add_u32 m0, s{sLx}, {slot}
        s_mov_b32 s{sT0}, {c*128}
        s_mov_b32 s{sT1}, {c*128 + 12288}
        buffer_load_dwordx4 v{vXe}, {srd(sX)}, s{sT0} offen lds
        buffer_load_dwordx4 v{vXo}, {srd(sX)}, s{sT0} offen offset:1024 lds
        buffer_load_dwordx4 v{vXe}, {srd(sX)}, s{sT1} offen offset:2048 lds
        buffer_load_dwordx4 v{vXo}, {srd(sX)}, s{sT1} offen offset:3072 lds
        """)
        for p in (1, 2, 0):
            a(f"""
            s_add_u32 m0, s{sLw}, {slot + 16384 + p*8192}
            s_mov_b32 s{sT1}, {c*64*2688 + p*896}
            buffer_load_dwordx4 v{vW0}, {srd(sW)}, s{sT1} offen lds
            buffer_load_dwordx4 v{vW1}, {srd(sW)}, s{sT1} offen offset:1024 lds
            """)
        order.extend([c] * 10)
    def Wt(c):
        last = max(i for i, o in enumerate(order) if o == c)
        a(f"s_waitcnt vmcnt({len(order) - 1 - last})")
        if c == 0: stamp(1)
        a("s_barrier")
    wo_setup = rest_setup + f"""
    v_and_b32 v5, 6, v1
    v_xor_b32 v5, v2, v5
    v_mul_u32_u24 v4, 896, v1
    s_lshl_b32 s{sT1}, s{sCB}, 7
    v_add_u32 v4, s{sT1}, v4
    v_lshl_add_u32 v{vWo}, v5, 4, v4
    s_cmp_eq_u32 s{sCB}, 7
    s_cselect_b64 vcc, -1, 0
    v_mov_b32 v7, {BIG}
    v_cndmask_b32 v{vWo}, v{vWo}, v7, vcc
    v_mov_b32 v1, 0
    s_mul_i32 s3, s14, 98
    s_and_b32 s{sT1}, s{sLW}, 1
    s_mul_i32 s{sT1}, s{sT1}, 49
    s_add_u32 s3, s3, s{sT1}
    v_min_u32 v4, 48, v{vL}
    v_add_u32 v4, s3, v4
    v_lshlrev_b32 v{vPw}, 7, v4
    s_mul_i32 s{sLwo}, s{sLW}, 7168
    s_lshl_b32 s{sL1k}, s{sLW}, 10
    global_load_dword v{vTAG}, v1, s[30:31] sc1
    """
    def issue_wo(i0, i1):
        for i in range(i0, i1):
            br = i >= 14
            a(f"""
            s_add_u32 m0, s{sL1k}, {4096*i}
            s_add_u32 s{sT1}, s{sLwo}, {(4*i - 56*br)*7168}
            buffer_load_dwordx4 v{vWo}, {srd(sWoA if br else sWoB)}, s{sT1} offen lds
            """)
            order.append("wo")
    vPf = 16
    sPS, sPO = 60, 61
    PFN = " nt" if opt.get("pnt", 1) else ""
    def pf_setup(wmul):
        a(f"""
        s_and_b32 s{sT0}, s13, 2
        s_lshl_b32 s{sT0}, s{sT0}, 9
        s_lshl_b32 s{sT1}, s14, 5
        s_add_u32 s{sT0}, s{sT0}, s{sT1}
        v_min_u32 v4, 31, v{vL}
        v_add_u32 v4, s{sT0}, v4
        v_mul_u32_u24 v{vPf}, 896, v4
        v_min_u32 v4, 23, v{vL}
        v_cmp_le_u32 vcc, 12, v4
        v_cndmask_b32 v5, 0, 1, vcc
        v_mul_u32_u24 v6, 12, v5
        v_sub_u32 v6, v4, v6
        s_lshl_b32 s{sT0}, s14, 1
        v_add_u32 v5, s{sT0}, v5
        v_mul_u32_u24 v5, 2688, v5
        v_lshrrev_b32 v4, 2, v6
        v_mul_u32_u24 v4, 896, v4
        v_add_u32 v5, v5, v4
        v_and_b32 v6, 3, v6
        v_lshl_add_u32 v5, v6, 7, v5
        s_and_b32 s{sT0}, s13, 1
        s_mul_i32 s{sT0}, s{sT0}, {wmul}
        v_add_u32 v5, s{sT0}, v5
        s_bitcmp1_b32 s{sLW}, 0
        s_cselect_b64 vcc, -1, 0
        s_mov_b32 s{sPS}, 128
        s_cselect_b32 s{sPS}, 172032, s{sPS}
        s_cselect_b32 s44, s{sW}, s{sX}
        s_cselect_b32 s45, s{sW+1}, s{sX+1}
        s_cselect_b32 s46, s{sW+2}, s{sX+2}
        s_mov_b32 s47, 0x20000
        v_cndmask_b32 v{vPf}, v{vPf}, v5, vcc
        s_lshr_b32 s{sPO}, s{sLW}, 1
        s_add_u32 s{sPO}, s{sPO}, 1
        s_mul_i32 s{sPO}, s{sPO}, s{sPS}
        s_lshl_b32 s{sPS}, s{sPS}, 1
        """)
    def pf():
        a(f"""
        buffer_load_dword v20, v{vPf}, s[44:47], s{sPO} offen{PFN}
        s_add_u32 s{sPO}, s{sPO}, s{sPS}
        """)
        order.append("pf")
    PM = opt.get("pm", 1)
    def head(Dx, wmul):
        if PM == 0: Dx(0); Dx(1); Wt(0); Dx(2); Wt(1); Dx(3)
        elif PM == 1: Dx(0); pf_setup(wmul); pf(); Dx(1); Wt(0); Dx(2); pf(); pf(); Wt(1); Dx(3)
        elif PM == 2: Dx(0); pf_setup(wmul); pf(); Dx(1); Wt(0); pf(); Dx(2); Wt(1); pf(); Dx(3)
        elif PM == 3: Dx(0); pf_setup(wmul); pf(); pf(); pf(); Dx(1); Wt(0); Dx(2); Wt(1); Dx(3)
    def pf_wo(l):
        a(f"""
        s_cmp_lt_u32 s{sLW}, 2
        s_cbranch_scc1 L_pwB{l}
        buffer_load_dword v20, v{vPw}, {srd(sWoA)}, 0 offen
        s_branch L_pwD{l}
        L_pwB{l}:
        buffer_load_dword v20, v{vPw}, {srd(sWoB)}, 0 offen
        L_pwD{l}:
        """)
        order.append("pfw")
    head(D, 512)
    a(wo_setup); order.append("tag")
    if opt.get("seq", 0) == 1:
        Wt(2); D(4); Wt(3); D(5); pf_wo(0); Wt(4); D(6); issue_wo(0, 10); Wt(5); issue_wo(10, 20); Wt(6)
    elif opt.get("seq", 0) == 0:
        Wt(2); D(4); Wt(3); D(5); Wt(4); D(6); pf_wo(0); Wt(5)
        DEF = opt.get("defer", 2)
        if DEF < 4: issue_wo(0, 10)
        Wt(6)
        if DEF >= 2: a("s_barrier")
        if DEF == 4: issue_wo(0, 10)
        issue_wo(10, 20)
        if DEF == 1: a("s_barrier")
    else:
        Wt(2); D(4); Wt(3); D(5); Wt(4); D(6); pf_wo(0); Wt(5); issue_wo(0, 14); Wt(6); a("s_sleep 16"); issue_wo(14, 20)
    a("s_branch L_ld2")
    a.raw("L_ld_idle:")
    if PM: pf_setup(512); pf(); pf(); pf()
    a(wo_setup)
    pf_wo(1)
    issue_wo(0, 20)
    a.raw("L_ld2:")
    issue_wo(20, 28)
    a(p2common)
    a("s_waitcnt vmcnt(28)" if opt.get("nowait", 0) else "s_waitcnt vmcnt(0)")
    get_tag("l")
    a(f"""
    s_cmp_lg_u32 s{sWAVE}, 7
    s_cbranch_scc1 L_pollok1
    """)
    poll("1", vPA, 9)
    stamp(2)
    a("s_branch L_phase2")

    a.raw("L_compute:")
    sCH, sRH = 96, 97
    sSQ, sSK, sSV, sSQh, sSKh, sFl = 36, 37, 38, 39, 40, 41
    def Acc(p, rt): return p*32 + rt*16
    def Fx(s, rt): return 96 + 20*s + 4*rt
    def Fw(s, p): return 96 + 20*s + 8 + 4*p
    vxa = [200, 201, 202, 203]; vwa = 204
    vQo, vVo = 205, 206
    slot0 = SLOT
    a(f"""
    s_waitcnt lgkmcnt(0)
    v_mov_b32 v1, 0
    {'' if opt.get('swap', 0) else TAGC}
    """)
    stamp(0)
    a(rest_setup)
    prefetch('a')
    a(f"""
    s_and_b32 s{sCH}, s{sWAVE}, 1
    s_lshr_b32 s{sRH}, s{sWAVE}, 1
    s_cmp_eq_u32 s{sLAM}, 7
    s_cbranch_scc1 L_cmp_idle
    v_and_b32 v2, 31, v{vL}
    v_lshrrev_b32 v3, 5, v{vL}
    v_bfe_u32 v4, v{vL}, 2, 2
    s_lshl_b32 s3, s{sLAM}, 1
    s_add_u32 s3, s3, s{sCH}
    s_lshl_b32 s34, s3, 11
    v_add_u32 v{vQo}, s34, v{vL16}
    v_bfe_u32 v6, v{vL}, 4, 1
    v_lshlrev_b32 v6, 2, v6
    v_and_b32 v7, 1, v4
    v_lshl_add_u32 v6, v7, 1, v6
    v_lshrrev_b32 v7, 1, v4
    v_add_u32 v6, v6, v7
    v_lshl_add_u32 v7, v6, 8, s34
    v_lshl_add_u32 v7, v3, 6, v7
    v_and_b32 v8, 3, v{vL}
    v_lshl_add_u32 v{vVo}, v8, 4, v7
    s_lshl_b32 s34, s{sRB}, 1
    s_add_u32 s34, s34, s{sRH}
    s_mul_i32 s{sSQ}, s34, 57344
    s_add_u32 s{sSQh}, s{sSQ}, 28672
    s_add_u32 s{sSK}, s{sSQ}, {KO}
    s_add_u32 s{sSKh}, s{sSQh}, {KO}
    s_add_u32 s{sSV}, s{sSQ}, {VO}
    s_add_u32 s15, s{sSQh}, {VO}
    s_lshl_b32 s34, s34, 4
    s_add_u32 s34, s34, s3
    s_lshl_b32 s34, s34, 7
    s_add_u32 s{sFl}, s34, {FL1}
    """)
    def qkv_stores(data):
        for p, lo, hi in ((1, sSK, sSKh), (2, None, None), (0, sSQ, sSQh)):
            for rt in range(2):
                for half in range(2):
                    d = data(p, rt, half)
                    if p == 2: a(f"buffer_store_dwordx4 {q4(d)}, v{vVo}, {srd(sWS)}, s{sSV} offen offset:{rt*2048 + half*128} sc1")
                    else: a(f"buffer_store_dwordx4 {q4(d)}, v{vQo}, {srd(sWS)}, s{hi if half else lo} offen offset:{rt*512} sc1")
    a(f"""
    global_load_dword v{vTAG}, v1, s[30:31] sc1
    s_lshl_b32 s3, s{sRH}, 6
    v_add_u32 v5, s3, v2
    v_lshlrev_b32 v5, 7, v5
    v_bfe_u32 v6, v2, 1, 3
    v_xor_b32 v6, v6, v3
    v_lshl_add_u32 v{vxa[0]}, v6, 4, v5
    v_add_u32 v{vxa[0]}, {slot0}, v{vxa[0]}
    v_xor_b32 v{vxa[1]}, 32, v{vxa[0]}
    v_xor_b32 v{vxa[2]}, 64, v{vxa[0]}
    v_xor_b32 v{vxa[3]}, 96, v{vxa[0]}
    v_lshl_add_u32 v6, v3, 3, v4
    v_lshlrev_b32 v6, 7, v6
    v_add_u32 v6, {slot0 + 16384}, v6
    v_bfe_u32 v7, v{vL}, 4, 1
    v_lshlrev_b32 v7, 5, v7
    v_and_b32 v8, 1, v{vL}
    v_lshl_or_b32 v7, v8, 4, v7
    v_bfe_u32 v8, v{vL}, 1, 1
    v_lshl_or_b32 v7, v8, 3, v7
    s_lshl_b32 s3, s{sCH}, 6
    v_or_b32 v7, s3, v7
    v_and_b32 v8, 2, v4
    v_lshlrev_b32 v8, 5, v8
    v_xor_b32 v7, v7, v8
    v_add_u32 v{vwa}, v6, v7
    """)
    def reads(s, ks):
        L = [f"ds_read_b128 {q4(Fx(s,rt))}, v{vxa[ks]} offset:{rt*4096}" for rt in range(2)]
        for p in (1, 2, 0):
            for u in range(2):
                L.append(f"ds_read_b64_tr_b16 {q2(Fw(s, p) + 2*u)}, v{vwa} offset:{p*8192 + ks*2048 + u*512}")
        return L
    def kstep(s, rd, extra=(), zero=False):
        M = []
        for p in (1, 2, 0):
            for rt in range(2):
                A, B = (Fx(s,rt), Fw(s,p)) if p == 2 else (Fw(s,p), Fx(s,rt))
                M.append(f"v_mfma_f32_32x32x16_bf16 {q16(Acc(p,rt))}, {q4(A)}, {q4(B)}, {'0' if zero else q16(Acc(p,rt))}")
        per = [3, 3, 2, 0, 0, 0]
        k = 0
        extra = list(extra)
        for i, m in enumerate(M):
            a(m)
            for _ in range(per[i]):
                if k < len(rd): a(rd[k]); k += 1
            if i >= 3:
                for _ in range(4):
                    if extra: a(extra.pop(0))
        for e in extra: a(e)
    sC, sD = 42, 43
    a("s_barrier")
    stamp(1)
    for r in reads(0, 0): a(r)
    a(f"s_mov_b32 s{sC}, 0")
    ex0 = [f"s_and_b32 s3, s{sC}, 3", f"s_cmp_eq_u32 s3, 2", f"s_mov_b32 s{sD}, {SLOT}",
           f"s_cselect_b32 s{sD}, {(-3*SLOT) & 0xffffffff}, s{sD}",
           f"v_add_u32 v{vxa[0]}, s{sD}, v{vxa[0]}", f"v_add_u32 v{vxa[1]}, s{sD}, v{vxa[1]}"]
    a("s_waitcnt lgkmcnt(0)")
    kstep(0, reads(1, 1), ex0, zero=True)
    a("s_branch L_gemm1")
    a.raw("L_gemm:")
    a("s_waitcnt lgkmcnt(0)")
    kstep(0, reads(1, 1), ex0)
    a.raw("L_gemm1:")
    a("s_waitcnt lgkmcnt(0)")
    kstep(1, reads(0, 2), [f"v_add_u32 v{vxa[2]}, s{sD}, v{vxa[2]}"])
    a("s_waitcnt lgkmcnt(0)")
    kstep(0, reads(1, 3), [f"v_add_u32 v{vxa[3]}, s{sD}, v{vxa[3]}", f"v_add_u32 v{vwa}, s{sD}, v{vwa}",
                           f"s_add_u32 s{sC}, s{sC}, 1", f"s_cmp_lt_u32 s{sC}, 6"])
    a("s_waitcnt lgkmcnt(0)")
    a("s_barrier")
    kstep(1, reads(0, 0))
    a("s_cbranch_scc1 L_gemm")
    def cvt(d, s0): a(f"v_cvt_pk_bf16_f32 v{d}, v{s0}, v{s0+1}")
    def mf(p, rt, ks):
        A, B = (Fx(ks,rt), Fw(ks,p)) if p == 2 else (Fw(ks,p), Fx(ks,rt))
        return f"v_mfma_f32_32x32x16_bf16 {q16(Acc(p,rt))}, {q4(A)}, {q4(B)}, {q16(Acc(p,rt))}"
    rd = []
    for ks in (1, 2, 3):
        r = reads(ks, ks); rd += r[0:4]
    for ks in (1, 2, 3): rd += reads(ks, ks)[6:8]
    for ks in (1, 2, 3): rd += reads(ks, ks)[4:6]
    a("s_waitcnt vmcnt(0) lgkmcnt(0)")
    k = 0
    for p in (1, 0, 2):
        for rt in range(2):
            a(mf(p, rt, 0))
            for _ in range(3): a(rd[k]); k += 1
    def epi(p):
        L = []
        for rt in range(2):
            for half in range(2):
                if p == 2:
                    d = 176 + (rt*2+half)*4; s0 = Acc(2, rt) + 4*half
                    L += [f"v_cvt_pk_bf16_f32 v{d}, v{s0}, v{s0+1}", f"v_cvt_pk_bf16_f32 v{d+1}, v{s0+2}, v{s0+3}",
                          f"v_cvt_pk_bf16_f32 v{d+2}, v{s0+8}, v{s0+9}", f"v_cvt_pk_bf16_f32 v{d+3}, v{s0+10}, v{s0+11}",
                          f"buffer_store_dwordx4 {q4(d)}, v{vVo}, {srd(sWS)}, s{15 if rt else sSV} offen offset:{half*128} sc1"]
                else:
                    d = Acc(p, rt) + 8*half
                    lo, hi = (sSK, sSKh) if p == 1 else (sSQ, sSQh)
                    L += [f"v_cvt_pk_bf16_f32 v{d+i}, v{d+2*i}, v{d+2*i+1}" for i in range(4)]
                    L += [f"buffer_store_dwordx4 {q4(d)}, v{vQo}, {srd(sWS)}, s{hi if rt else lo} offen offset:{half*1024} sc1"]
        return L
    for n, ks in enumerate((1, 2, 3)):
        a(f"s_waitcnt lgkmcnt({min(15, k - 4*(n+1))})")
        for rt in range(2):
            a(mf(1, rt, ks))
            if k < 24: a(rd[k]); k += 1
    pend = epi(1)
    for p, nxt, base in ((0, 0, 12), (2, None, 18)):
        for n, ks in enumerate((1, 2, 3)):
            a(f"s_waitcnt lgkmcnt({24 - base - 2*(n+1)})")
            for rt in range(2):
                a(mf(p, rt, ks))
                if n or rt:
                    for _ in range(4):
                        if pend: a(pend.pop(0))
        for x in pend: a(x)
        pend = epi(p)
    stamp(3)
    for x in pend: a(x)
    if opt.get("defer", 2) in (1, 2): a("s_barrier")
    stamp(2)
    a("v_mov_b32 v227, 0")
    a("s_waitcnt vmcnt(0)")
    get_tag("c")
    a(f"""
    s_mov_b64 exec, 1
    buffer_store_dword v{vTAG}, v227, {srd(sWS)}, s{sFl} offen sc1
    s_mov_b64 exec, -1
    """)
    stamp(4)
    if opt.get("defer", 2) >= 3: a("s_barrier")
    a("s_branch L_cmp2")
    a.raw("L_cmp_idle:")
    a(f"global_load_dword v{vTAG}, v1, s[30:31] sc1")
    a("s_waitcnt vmcnt(0)")
    get_tag("i")
    a.raw("L_cmp2:")
    a(p2common)
    a("s_branch L_phase2")
    a.raw("L_brB:")
    SLB = 43008
    SB0 = 34816
    a(MAPB)
    a(f"""
    s_cmp_lt_u32 s{sWAVE}, 4
    s_cbranch_scc1 L_cmpB
    """)
    vXh = 12
    sLh = 63
    a(f"""
    s_sub_u32 s{sLW}, s{sWAVE}, 4
    s_lshl_b32 s{sT0}, s{sRB}, 7
    s_lshl_b32 s{sT1}, s{sLW}, 5
    s_add_u32 s{sT0}, s{sT0}, s{sT1}
    v_add_u32 v4, s{sT0}, v1
    v_mul_u32_u24 v4, 896, v4
    v_xor_b32 v5, v2, v3
    v_lshl_add_u32 v{vXe}, v5, 4, v4
    v_xor_b32 v5, 4, v5
    v_lshl_add_u32 v{vXo}, v5, 4, v4
    v_add_u32 v{vXo}, 6144, v{vXo}
    s_lshl_b32 s{sLx}, s{sLW}, 12
    s_lshl_b32 s{sLw}, s{sLW}, 11
    s_lshl_b32 s{sLh}, s{sLW}, 9
    s_lshl_b32 s{sT1}, s{sLW}, 4
    v_add_u32 v4, s{sT1}, v1
    v_mul_u32_u24 v4, 2688, v4
    s_mul_i32 s{sT1}, s{sLAM}, 112
    v_add_u32 v4, s{sT1}, v4
    v_and_b32 v5, 1, v3
    v_lshlrev_b32 v5, 1, v5
    v_xor_b32 v5, v2, v5
    v_mov_b32 v7, {BIG}
    v_lshl_add_u32 v{vW0}, v5, 4, v4
    v_cmp_eq_u32 vcc, 7, v5
    v_xor_b32 v6, 4, v5
    v_cndmask_b32 v{vW0}, v{vW0}, v7, vcc
    v_lshl_add_u32 v{vW1}, v6, 4, v4
    v_cmp_eq_u32 vcc, 7, v6
    v_add_u32 v{vW1}, {8*2688-1024}, v{vW1}
    v_cndmask_b32 v{vW1}, v{vW1}, v7, vcc
    s_lshl_b32 s{sT0}, s{sRB}, 7
    s_lshl_b32 s{sT1}, s{sLW}, 2
    s_add_u32 s{sT0}, s{sT0}, s{sT1}
    s_sub_u32 s{sT0}, s{sT0}, 16
    v_add_u32 v4, s{sT0}, v1
    v_mul_i32_i24 v4, 896, v4
    s_lshl_b32 s{sT1}, s{sLW}, 1
    v_add_u32 v5, s{sT1}, v3
    v_and_b32 v5, 7, v5
    v_xor_b32 v5, v2, v5
    v_lshl_add_u32 v{vXh}, v5, 4, v4
    s_cmp_eq_u32 s{sRB}, 0
    s_cselect_b64 vcc, -1, 0
    v_cndmask_b32 v{vXh}, v{vXh}, v7, vcc
    s_mov_b32 s{sX+2}, {XB}
    s_mov_b32 s{sX+3}, 0x20000
    s_mov_b32 s{sW+2}, {WB}
    s_mov_b32 s{sW+3}, 0x20000
    s_waitcnt lgkmcnt(0)
    s_mov_b32 s{sX}, s22
    s_mov_b32 s{sX+1}, s23
    s_mov_b32 s{sW}, s24
    s_mov_b32 s{sW+1}, s25
    """)
    stamp(0)
    del order[:]
    def DB(c):
        slot = SB0 + ((c + 2) % 3) * SLB
        a(f"""
        s_add_u32 m0, s{sLx}, {slot + 2048}
        s_mov_b32 s{sT0}, {c*128}
        s_mov_b32 s{sT1}, {c*128 + 12288}
        buffer_load_dwordx4 v{vXe}, {srd(sX)}, s{sT0} offen lds
        buffer_load_dwordx4 v{vXo}, {srd(sX)}, s{sT0} offen offset:1024 lds
        buffer_load_dwordx4 v{vXe}, {srd(sX)}, s{sT1} offen offset:2048 lds
        buffer_load_dwordx4 v{vXo}, {srd(sX)}, s{sT1} offen offset:3072 lds
        """)
        for p in range(3):
            a(f"""
            s_add_u32 m0, s{sLw}, {slot + 18432 + p*8192}
            s_mov_b32 s{sT1}, {c*64*2688 + p*896}
            buffer_load_dwordx4 v{vW0}, {srd(sW)}, s{sT1} offen lds
            buffer_load_dwordx4 v{vW1}, {srd(sW)}, s{sT1} offen offset:1024 lds
            """)
        a(f"""
        s_add_u32 m0, s{sLh}, {slot}
        s_mov_b64 exec, 0xffffffff
        buffer_load_dwordx4 v{vXh}, {srd(sX)}, s{sT0} offen lds
        s_mov_b64 exec, -1
        """)
        order.extend([c] * 11)
    head(DB, 384)
    a(wo_setup); order.append("tag")
    Wt(2); DB(4); Wt(3); DB(5); Wt(4); DB(6); pf_wo(2); Wt(5); issue_wo(0, 10); Wt(6); issue_wo(10, 20)
    a("s_branch L_ld2")
    a.raw("L_cmpB:")
    sHH = 96
    def Qa(rt, ft): return ((rt-1)*2+ft)*4
    def Ka(rt, ft): return 32 + (rt*2+ft)*4
    def Va(rt, ft): return 72 + (rt*2+ft)*4
    def Gx(s, rt): return 112 + 44*s + 4*rt
    def Gw(s, p, ft): return 112 + 44*s + 20 + (p*2+ft)*4
    bxa = [200, 201]; bwa = [202, 203]
    vBS, vBP, vBP1 = 204, 208, 212
    sl0 = SB0 + 2 * SLB
    a(f"""
    s_and_b32 s{sHH}, s{sWAVE}, 1
    s_lshr_b32 s{sRH}, s{sWAVE}, 1
    v_and_b32 v2, 15, v{vL}
    s_lshl_b32 s3, s{sRH}, 6
    v_add_u32 v4, s3, v2
    v_lshlrev_b32 v4, 7, v4
    v_lshrrev_b32 v5, 1, v2
    v_xor_b32 v5, v5, v3
    v_lshl_add_u32 v{bxa[0]}, v5, 4, v4
    v_add_u32 v{bxa[0]}, {sl0}, v{bxa[0]}
    v_xor_b32 v{bxa[1]}, 64, v{bxa[0]}
    v_lshrrev_b32 v4, 2, v2
    v_and_b32 v5, 3, v{vL}
    v_lshl_add_u32 v6, v3, 3, v4
    v_lshlrev_b32 v6, 7, v6
    v_add_u32 v6, {sl0 + 18432}, v6
    v_and_b32 v7, 2, v4
    v_and_b32 v8, 1, v3
    v_lshl_or_b32 v7, v8, 2, v7
    v_lshlrev_b32 v7, 4, v7
    s_mul_i32 s3, s{sHH}, 56
    v_lshl_add_u32 v8, v5, 3, s3
    v_xor_b32 v9, v8, v7
    v_add_u32 v{bwa[0]}, v6, v9
    v_add_u32 v8, 32, v8
    v_cmp_eq_u32 vcc, 56, v8
    v_mov_b32 v9, 120
    v_cndmask_b32 v8, v8, v9, vcc
    v_xor_b32 v9, v8, v7
    v_add_u32 v{bwa[1]}, v6, v9
    v_cmp_eq_u32 vcc, 12, v2
    v_cndmask_b32 v216, 0, 1.0, vcc
    v_mov_b32 v217, v216
    v_mov_b32 v218, v216
    v_mov_b32 v219, v216
    s_lshl_b32 s34, s{sRB}, 1
    s_add_u32 s34, s34, s{sRH}
    s_lshl_b32 s37, s34, 6
    s_lshl_b32 s3, s{sLAM}, 1
    s_add_u32 s3, s3, s{sHH}
    s_add_u32 s3, s3, s37
    s_lshl_b32 s3, s3, 10
    s_add_u32 s36, s3, {OB}
    s_mov_b32 s37, s34
    v_mov_b32 v1, 0
    s_waitcnt lgkmcnt(0)
    {TAGC if opt.get('swap', 0) else ''}
    """)
    stamp(0)
    pc = [l for l in p2common.split("\n") if l.strip()]
    cut = next(k for k in range(len(pc)) if pc[k].strip().startswith("s_mul_i32 s3, s%d, 3" % sWAVE))
    bias = f"""
    v_mov_b32 v224, {NEG}
    v_and_b32 v220, 15, v{vL}
    v_lshrrev_b32 v221, 4, v{vL}
    v_lshlrev_b32 v221, 2, v221
    v_sub_u32 v220, v220, v221
    """ + "".join(f"""
    v_subrev_u32 v221, {i}, v220
    v_and_b32 v222, 0x80000001, v221
    v_cmp_eq_u32 vcc, 0, v222
    v_cndmask_b32 v{vBS+i}, v224, 0, vcc
    v_cmp_eq_u32 vcc, 0x80000000, v222
    v_cndmask_b32 v{vBP+i}, v224, 0, vcc
    """ for i in range(4)) + """
    s_cmp_eq_u32 s37, 0
    s_cselect_b64 vcc, -1, 0
    """ + "".join(f"v_cndmask_b32 v{vBP1+i}, v{vBP+i}, v224, vcc\n" for i in range(4))
    pieces = [rest_setup + f"v_mov_b32 v227, 0\nglobal_load_dword v{vTAG}, v227, s[30:31] sc1\n" + bias, "\n".join(pc[:cut]), "\n".join(pc[cut:])]
    def breads(s, ks):
        L = [f"ds_read_b128 {q4(Gx(s,rt))}, v{bxa[ks]} offset:{rt*2048}" for rt in (1, 2, 3, 4, 0)]
        for p in range(3):
            for ft in range(2):
                for u in range(2):
                    L.append(f"ds_read_b64_tr_b16 {q2(Gw(s,p,ft) + 2*u)}, v{bwa[ft]} offset:{p*8192 + ks*4096 + u*512}")
        return L
    def bstep(s, rd, zero=False):
        M = []
        C = lambda r, z='0': z if zero else q4(r)
        for rt in (1, 2, 3, 4, 0):
            for ft in range(2):
                if rt: M.append(f"v_mfma_f32_16x16x32_bf16 {q4(Qa(rt,ft))}, {q4(Gw(s,0,ft))}, {q4(Gx(s,rt))}, {C(Qa(rt,ft))}")
                M.append(f"v_mfma_f32_16x16x32_bf16 {q4(Ka(rt,ft))}, {q4(Gw(s,1,ft))}, {q4(Gx(s,rt))}, {C(Ka(rt,ft))}")
                M.append(f"v_mfma_f32_16x16x32_bf16 {q4(Va(rt,ft))}, {q4(Gx(s,rt))}, {q4(Gw(s,2,ft))}, {C(Va(rt,ft), q4(216) if ft else '0')}")
        for i, m in enumerate(M):
            a(m)
            if i < len(rd): a(rd[i])
    a("s_barrier")
    stamp(1)
    for r in breads(0, 0): a(r)
    a(f"s_mov_b32 s{sC}, 0")
    a("s_waitcnt lgkmcnt(0)")
    bstep(0, breads(1, 1), zero=True)
    a(pieces[0]); a(pieces[1])
    a(f"""
    s_mul_i32 s3, s{sC}, 86
    s_lshr_b32 s3, s3, 8
    s_mul_i32 s3, s3, 3
    s_cmp_eq_u32 s3, s{sC}
    s_mov_b32 s{sD}, {SLB}
    s_cselect_b32 s{sD}, {(-2*SLB) & 0xffffffff}, s{sD}
    v_add_u32 v{bxa[0]}, s{sD}, v{bxa[0]}
    v_add_u32 v{bxa[1]}, s{sD}, v{bxa[1]}
    v_add_u32 v{bwa[0]}, s{sD}, v{bwa[0]}
    v_add_u32 v{bwa[1]}, s{sD}, v{bwa[1]}
    s_cmp_eq_u32 s{sC}, 6
    s_waitcnt lgkmcnt(0)
    s_cbranch_scc1 L_nobarB0
    s_barrier
    L_nobarB0:
    """)
    bstep(1, breads(0, 0))
    a(pieces[2])
    a(f"s_mov_b32 s{sC}, 1")
    a.raw("L_gemmB:")
    a("s_waitcnt lgkmcnt(0)")
    bstep(0, breads(1, 1))
    a(f"""
    s_mul_i32 s3, s{sC}, 86
    s_lshr_b32 s3, s3, 8
    s_mul_i32 s3, s3, 3
    s_cmp_eq_u32 s3, s{sC}
    s_mov_b32 s{sD}, {SLB}
    s_cselect_b32 s{sD}, {(-2*SLB) & 0xffffffff}, s{sD}
    v_add_u32 v{bxa[0]}, s{sD}, v{bxa[0]}
    v_add_u32 v{bxa[1]}, s{sD}, v{bxa[1]}
    v_add_u32 v{bwa[0]}, s{sD}, v{bwa[0]}
    v_add_u32 v{bwa[1]}, s{sD}, v{bwa[1]}
    s_cmp_eq_u32 s{sC}, 6
    s_waitcnt lgkmcnt(0)
    s_cbranch_scc1 L_nobarB
    s_barrier
    L_nobarB:
    """)
    bstep(1, breads(0, 0))
    a(f"""
    s_add_u32 s{sC}, s{sC}, 1
    s_cmp_lt_u32 s{sC}, 7
    s_cbranch_scc1 L_gemmB
    """)
    stamp(3)
    def Qf(j): return 168 + 4*(j-1)
    def Kf(rt): return 128 + 4*rt
    def Vf(dt, rt): return 148 + 10*dt + 2*rt
    a("s_waitcnt vmcnt(0) lgkmcnt(0)")
    get_tag("b")
    for rt in (1, 2, 3, 4, 0):
        for ft in range(2):
            if rt:
                cvt(Qf(rt)+2*ft, Qa(rt,ft)); cvt(Qf(rt)+2*ft+1, Qa(rt,ft)+2)
            cvt(Kf(rt)+2*ft, Ka(rt,ft)); cvt(Kf(rt)+2*ft+1, Ka(rt,ft)+2)
            cvt(Vf(ft,rt), Va(rt,ft)); cvt(Vf(ft,rt)+1, Va(rt,ft)+2)
    stamp(4)
    a.raw("L_phase2:")
    def wo_reads(base):
        L = []
        for hq in range(4):
            for cidx in range(4):
                for u in range(2):
                    d = base + (hq*4 + cidx)*4 + 2*u
                    L.append(f"ds_read_b64_tr_b16 {q2(d)}, v{vWA + 4*u + ((cidx + 2*(hq&1)) & 3)} offset:{hq*3584}")
        return L
    def wo_mask(base):
        return [f"v_and_b32 v{base + f*4 + 2 + r}, v{vMG}, v{base + f*4 + 2 + r}" for f in range(16) for r in range(2)]
    WB_, OF_ = 128, 192
    QF = 124
    KS, VS = 72, 84
    QB_, KB_, VB_ = 8, 16, 28
    sBud = 14
    def qmask(r):
        for i in range(4): a(f"v_and_b32 v{r+i}, v{vQm + (i>>1)}, v{r+i}")
    a("s_barrier")
    stamp(11)
    for i in range(3):
        a(f"buffer_load_dwordx4 {q4(KS+4*i)}, v{vKq}, {srd(sWS)}, s{sK[i]} offen sc1")
    a(f"buffer_load_dwordx4 {q4(QF)}, v{vKq}, {srd(sWS)}, s{sQA} offen sc1")
    for i in range(3):
        a(f"buffer_load_dwordx4 {q4(VS+4*i)}, v{vV1 if i == 1 else vV0}, {srd(sWS)}, s{sV[i]} offen sc1")
    a(f"""
    s_lshr_b32 s3, s{sWAVE}, 2
    s_cmp_gt_u32 s{sBR}, s3
    s_cbranch_scc0 L_noB1
    """)
    def SB(j, t): return 8*(j-1) + 4*t
    for j in range(1, 5):
        bp = vBP1 if j == 1 else vBP
        a(f"v_mfma_f32_16x16x32_bf16 {q4(SB(j,0))}, {q4(Kf(j-1))}, {q4(Qf(j))}, {q4(bp)}")
        a(f"v_mfma_f32_16x16x32_bf16 {q4(SB(j,1))}, {q4(Kf(j))}, {q4(Qf(j))}, {q4(vBS)}")
    M = lambda j: 32 + (j-1)
    T = lambda j: 36 + (j-1)
    for j in range(1, 5):
        s = SB(j, 0)
        a(f"v_max3_f32 v{M(j)}, v{s}, v{s+1}, v{s+2}")
        a(f"v_max3_f32 v{T(j)}, v{s+3}, v{s+4}, v{s+5}")
        a(f"v_max3_f32 v{M(j)}, v{M(j)}, v{s+6}, v{s+7}")
        a(f"v_max_f32 v{M(j)}, v{M(j)}, v{T(j)}")
    for sw in ("v_permlane32_swap_b32", "v_permlane16_swap_b32"):
        for j in range(1, 5): a(f"v_mov_b32 v{T(j)}, v{M(j)}")
        for j in range(1, 5): a(f"{sw} v{M(j)}, v{T(j)}")
        for j in range(1, 5): a(f"v_max_f32 v{M(j)}, v{M(j)}, v{T(j)}")
    for j in range(1, 5): a(f"v_mul_f32 v{M(j)}, v{vC}, v{M(j)}")
    for j in range(1, 5):
        for i in range(8): a(f"v_fma_f32 v{SB(j,0)+i}, v{SB(j,0)+i}, v{vC}, -v{M(j)}")
    for j in range(1, 5):
        for i in range(8): a(f"v_exp_f32 v{SB(j,0)+i}, v{SB(j,0)+i}")
    P = lambda j: 40 + 4*(j-1)
    for j in range(1, 5):
        for i in range(4): cvt(P(j)+i, SB(j,0)+2*i)
    O = lambda j, dt: 8*(j-1) + 4*dt
    for j in range(1, 5):
        for dt in (1, 0):
            a(f"v_mfma_f32_16x16x32_bf16 {q4(O(j,dt))}, {q4(Vf(dt,j-1))}, {q4(P(j))}, 0")
    st = [normalize(O(j,0), O(j,1), 56+2*(j-1), 57+2*(j-1), 100+4*(j-1)) for j in range(1, 5)]
    for k in range(len(st[0])):
        for j in range(4):
            for x in st[j][k]: a(x)
    a.raw("L_noB1:")
    for r in wo_reads(WB_): a(r)
    a(f"""
    s_mov_b32 s{sBud}, {POLL_MAX}
    v_lshlrev_b32 v8, 2, v{vG}
    v_sub_u32 v8, v8, v{vR15}
    s_bitcmp1_b32 s{sWAVE}, 0
    s_cselect_b64 s[34:35], -1, 0
    """)
    for i in range(4):
        a(f"""
        v_add_u32 v9, {i}, v8
        v_cmp_lt_i32 vcc, 0, v9
        v_cndmask_b32 v10, v{vNEG}, 0, vcc
        v_cndmask_b32 v11, 0, v{vNEG}, vcc
        v_cndmask_b32 v{0+i}, v10, v{vNEG}, s[34:35]
        v_cndmask_b32 v{4+i}, 0, v10, s[34:35]
        v_cndmask_b32 v{64+i}, v11, 0, s[34:35]
        v_cndmask_b32 v{68+i}, v{vNEG}, v11, s[34:35]
        """)
    for i in range(8): a(f"v_add_u32 v{vWA+i}, {L_WOA}, v{vWA+i}")
    a("s_waitcnt lgkmcnt(0)")
    for x in wo_mask(WB_): a(x)
    a(f"""
    s_cmp_ge_u32 s{sARB}, 2
    s_cbranch_scc1 L_nofix
    s_waitcnt vmcnt(4)
    v_not_b32 v9, v{vQm}
    v_not_b32 v10, v{vQm+1}
    v_and_b32 v9, 0xff7f, v9
    v_and_b32 v10, 0xff7f, v10
    """)
    for i in range(3):
        qmask(KS+4*i)
        a(f"""
        s_cmp_eq_u32 s{sK[i]}, {BIG}
        s_cbranch_scc0 L_fx{i}
        v_or_b32 v{KS+4*i}, v9, v{KS+4*i}
        v_or_b32 v{KS+4*i+2}, v10, v{KS+4*i+2}
        L_fx{i}:
        """)
    a.raw("L_nofix:")
    for i in range(3):
        a(f"s_waitcnt vmcnt({6-i})")
        if i == 0: stamp(5)
        a(f"ds_write_b128 v{vKw}, {q4(KS+4*i)} offset:{1024*i}")
    for i in range(3):
        a(f"s_waitcnt vmcnt({2-i})")
        for r in range(4): a(f"v_or_b32 v{VS+4*i+r}, v{vOn1 if i == 1 else vOn0}, v{VS+4*i+r}")
        a(f"ds_write_b128 v{vKw}, {q4(VS+4*i)} offset:{24576+1024*i}")
    a(f"""
    s_lshr_b32 s3, s{sWAVE}, 2
    s_cmp_gt_u32 s{sBR}, s3
    s_cbranch_scc0 L_noB2
    """)
    for j in range(1, 5):
        a(f"buffer_store_dwordx4 {q4(100+4*(j-1))}, v{vOo}, {srd(sWS)}, s36 offen sc1")
        if j < 4: a("s_add_u32 s36, s36, 16384")
    a.raw("L_noB2:")
    stamp(6)
    qmask(QF)
    a(f"""
    s_cmp_ge_u32 s{sARB}, 2
    s_cbranch_scc1 L_nofixq
    v_not_b32 v9, v{vQm}
    v_not_b32 v10, v{vQm+1}
    v_and_b32 v9, 0x3f80, v9
    v_or_b32 v{QF}, v9, v{QF}
    v_and_b32 v10, 0x3f80, v10
    v_or_b32 v{QF+2}, v10, v{QF+2}
    L_nofixq:
    s_waitcnt lgkmcnt(0)
    s_barrier
    """)
    stamp(12)
    KBUF = 72; NKB = 6
    def kread(t): return f"ds_read_b128 {q4(KBUF + 4*(t % NKB))}, v{vKa} offset:{t*1024}"
    for t in range(NKB - 1): a(kread(t))
    vM, vT = 120, 121
    def mx(t):
        r = 4*t
        if t == 0:
            a(f"v_max_f32 v{vM}, v0, v1"); a(f"v_max_f32 v{vT}, v2, v3")
        else:
            a(f"v_max3_f32 v{vM}, v{vM}, v{r}, v{r+1}"); a(f"v_max3_f32 v{vT}, v{vT}, v{r+2}, v{r+3}")
    LAG = 4
    for t in range(18):
        if t + NKB - 1 < 18: a(kread(t + NKB - 1))
        outstanding = min(18, t + NKB) - (t + 1)
        a(f"s_waitcnt lgkmcnt({outstanding})")
        c = q4(4*t) if t in (0, 1, 16, 17) else "0"
        a(f"v_mfma_f32_16x16x32_bf16 {q4(4*t)}, {q4(KBUF + 4*(t % NKB))}, {q4(QF)}, {c}")
        if t >= LAG: mx(t - LAG)
    VBUF = [96 + 4*i for i in range(6)]
    NVB = len(VBUF)
    WA_ = 0
    ACCB = [64, 68, 72, 76, 80, 84, 88, 92]
    ACCA = [96, 100, 104, 108, 112, 116, 120, 124]
    sNext = 27
    lq = []
    def lds(ins, tag): a(ins); lq.append(tag)
    def lwait(tag):
        last = max(i for i, t in enumerate(lq) if t == tag)
        a(f"s_waitcnt lgkmcnt({min(15, len(lq) - 1 - last)})")
    def vread(n):
        lds(f"ds_read_b128 {q4(VBUF[n % NVB])}, v{vKa} offset:{24576 + (n>>1)*2048 + (n&1)*1024}", ("v", n))
    for n in range(NVB): vread(n)
    for t in range(18 - LAG, 18): mx(t)
    a(f"v_max_f32 v{vM}, v{vM}, v{vT}")
    for sw in ("v_permlane32_swap_b32", "v_permlane16_swap_b32"):
        a(f"v_mov_b32 v{vT}, v{vM}")
        a(f"{sw} v{vM}, v{vT}")
        a(f"v_max_f32 v{vM}, v{vM}, v{vT}")
    a(f"v_mul_f32 v{vM}, v{vC}, v{vM}")
    stamp(7)
    def o_load(f, s0):
        hq, tt = f >> 1, f & 1
        return f"buffer_load_dwordx4 {q4(OF_ + f*4)}, v{vOo}, {srd(sWS)}, s{s0 + tt} offen offset:{hq*1024} sc1"
    def frag(lbl, f, wbase, acc, wait, after):
        hq, tt = f >> 1, f & 1
        r = OF_ + f*4
        a(f"""
        s_cmp_lg_u32 s{sNext}, {f}
        s_cbranch_scc1 L_sk{lbl}{f}
        {wait}
        v_cmp_ne_u32 vcc, v{r+3}, v{vTAG}
        s_lshr_b32 s3, vcc_hi, 16
        s_cbranch_scc1 L_sk{lbl}{f}
        """)
        for cidx in range(4):
            d = acc[tt*4+cidx]
            a(f"v_mfma_f32_16x16x32_bf16 {q4(d)}, {q4(wbase + (hq*4+cidx)*4)}, {q4(r)}, {'0' if f < 2 else q4(d)}")
        a(f"s_add_u32 s{sNext}, s{sNext}, 1")
        if after is not None: a(o_load(f, after))
        a.raw(f"L_sk{lbl}{f}:")
    OACC = 224
    war = wo_reads(WA_); wam = wo_mask(WA_)
    LU, FU = opt.get("lu", 4), opt.get("fu", 5)
    a(f"s_mov_b32 s{sNext}, 0")
    for u in range(9):
        b = 8*u
        for i in range(8): a(f"v_fma_f32 v{b+i}, v{b+i}, v{vC}, -v{vM}")
        if LU <= u < LU + 4:
            for f in (2*(u-LU), 2*(u-LU)+1): a(o_load(f, sOB))
        for i in range(8): a(f"v_exp_f32 v{b+i}, v{b+i}")
        if opt.get('inpv', 0) and FU <= u < FU + 4:
            for f in range(2*(u-FU), 2*(u-FU)+2): frag("P", f, WB_, ACCB, f"s_waitcnt vmcnt({7-f})", None)
        for i in range(4): a(f"v_cvt_pk_bf16_f32 v{b+i}, v{b+2*i}, v{b+2*i+1}")
        lwait(("v", 2*u+1))
        for dt in range(2):
            c = "0" if u == 0 else q4(OACC + 4*dt)
            a(f"v_mfma_f32_16x16x32_bf16 {q4(OACC+4*dt)}, {q4(VBUF[(2*u+dt) % NVB])}, {q4(b)}, {c}")
        for n in (NVB + 2*u, NVB + 1 + 2*u):
            if n < 18: vread(n)
    for x in war: a(x)
    for grp in normalize(OACC, OACC+4, 232, 234, 236):
        for x in grp: a(x)
    a(f"buffer_store_dwordx4 {q4(236)}, v{vOo}, {srd(sWS)}, s33 offen sc1")
    stamp(13)
    a(f"""
    s_cmp_eq_u32 s{sCB}, 7
    s_cbranch_scc1 L_fin
    """)
    vXW, vXR, vOut = 224, 228, 230
    a(f"""
    s_lshl_b32 s3, s{sKQ}, 14
    s_lshl_b32 s35, s{sRP}, 13
    s_add_u32 s35, s35, s3
    v_lshlrev_b32 v231, 8, v{vR15}
    v_add_u32 v231, s35, v231
    v_xor_b32 v232, v{vG}, v{vR15}
    """)
    for cidx in range(4):
        a(f"""
        s_add_u32 s3, s{sKQ}, {cidx}
        s_and_b32 s3, s3, 3
        s_lshl_b32 s3, s3, 2
        v_xor_b32 v234, s3, v232
        v_lshl_add_u32 v{vXW+cidx}, v234, 4, v231
        """)
    a(f"""
    v_lshrrev_b32 v231, 3, v{vL}
    s_lshl_b32 s3, s{sWAVE}, 3
    v_add_u32 v231, s3, v231
    v_and_b32 v232, 7, v{vL}
    v_lshlrev_b32 v234, 1, v232
    v_and_b32 v235, 15, v231
    v_xor_b32 v234, v234, v235
    v_lshlrev_b32 v234, 4, v234
    v_lshl_add_u32 v{vXR}, v231, 8, v234
    v_xor_b32 v{vXR+1}, 16, v{vXR}
    s_lshl_b32 s3, s{sRB64}, 6
    v_add_u32 v231, s3, v231
    v_mul_u32_u24 v231, 1792, v231
    v_lshl_add_u32 v231, v232, 4, v231
    s_lshl_b32 s3, s{sCB}, 7
    v_add_u32 v{vOut}, s3, v231
    """)
    def finish(lbl, wbase, acc, s0, after):
        a(f"""
        s_cmp_eq_u32 s{sNext}, 8
        s_cbranch_scc1 L_done{lbl}
        L_again{lbl}:
        """)
        for f in range(8):
            a(f"s_cmp_gt_u32 s{sNext}, {f}")
            a(f"s_cbranch_scc1 L_rl{lbl}{f}")
            a(o_load(f, s0))
            a.raw(f"L_rl{lbl}{f}:")
        a("s_waitcnt vmcnt(0)")
        a.raw(f"L_first{lbl}:")
        for f in range(8): frag(lbl, f, wbase, acc, "", after)
        a(f"""
        s_cmp_eq_u32 s{sBud}, 0
        s_cbranch_scc1 L_done{lbl}
        s_sub_u32 s{sBud}, s{sBud}, 1
        s_cmp_lg_u32 s{sNext}, 8
        s_cbranch_scc1 L_again{lbl}
        {"s_waitcnt vmcnt(0)" if after is not None else ""}
        L_done{lbl}:
        """)
    def exch_write(acc):
        for tt in range(2):
            for cidx in range(4):
                a(f"ds_write_b128 v{vXW+cidx}, {q4(acc[tt*4+cidx])} offset:{tt*4096}")
        a("s_waitcnt lgkmcnt(0)")
        a("s_barrier")
    def exch_final(RB_, outoff):
        for k in range(4):
            for h in range(2):
                a(f"ds_read_b128 {q4(RB_ + (k*2+h)*4)}, v{vXR+h} offset:{k*16384}")
        a("s_waitcnt lgkmcnt(4)")
        for i in range(8): a(f"v_add_f32 v{RB_+i}, v{RB_+i}, v{RB_+8+i}")
        a("s_waitcnt lgkmcnt(0)")
        for i in range(8): a(f"v_add_f32 v{RB_+16+i}, v{RB_+16+i}, v{RB_+24+i}")
        for i in range(8): a(f"v_add_f32 v{RB_+i}, v{RB_+i}, v{RB_+16+i}")
        for i in range(4): a(f"v_cvt_pk_bf16_f32 v{RB_+8+i}, v{RB_+2*i}, v{RB_+2*i+1}")
        a(f"s_mov_b32 s3, {outoff}")
        a(f"buffer_store_dwordx4 {q4(RB_+8)}, v{vOut}, {srd(sOut)}, s3 offen")
    if not opt.get('inpv', 0):
        for f in range(8): frag("R", f, WB_, ACCB, f"s_waitcnt vmcnt({8-f})", None)
    finish("B", WB_, ACCB, sOB, None)
    stamp(8)
    for f in range(8): a(o_load(f, sOA))
    a(f"s_mov_b32 s{sNext}, 0")
    a("s_waitcnt lgkmcnt(0)")
    for x in wam: a(x)
    a("s_barrier")
    exch_write(ACCB)
    if opt.get("rechk", 1):
        a("s_waitcnt vmcnt(0)")
        for f in range(8):
            a(f"""
            v_cmp_ne_u32 vcc, v{OF_+f*4+3}, v{vTAG}
            s_lshr_b32 s3, vcc_hi, 16
            s_cbranch_scc0 L_ok{f}
            {o_load(f, sOA)}
            L_ok{f}:
            """)
    exch_final(128, 896)
    for i in range(4): a(f"v_add_u32 v{vXW+i}, 65536, v{vXW+i}")
    for i in range(2): a(f"v_add_u32 v{vXR+i}, 65536, v{vXR+i}")
    stamp(14)
    for f in range(8): frag("Q", f, WA_, ACCA, "s_waitcnt vmcnt(1)" if opt.get("rechk", 1) else f"s_waitcnt vmcnt({8-f})", None)
    finish("A", WA_, ACCA, sOA, None)
    stamp(9)
    exch_write(ACCA)
    exch_final(160, 0)
    a.raw("L_fin:")
    if stamps:
        stamp(15)
        a(f"""
        s_sub_u32 s84, {POLL_MAX}, s{sBud}
        s_mul_i32 s84, s84, 100
        s_add_u32 s84, s84, s64
        s_lshl_b32 s3, s2, 3
        s_add_u32 s3, s3, s{sWAVE}
        s_lshl_b32 s3, s3, 6
        s_add_u32 s3, s3, {STAMP}
        v_mov_b32 v1, 0
        s_mov_b64 exec, 1
        """)
        if opt.get("dbgst"):
            ids = [1, 2, 3, 4, 5, 6, 7, 8, 9, 11, 12, 13, 14, 15]
            a("s_not_b32 s3, s64")
            a("v_mov_b32 v2, s3")
            a("global_atomic_umax v1, v2, s[30:31] offset:4")
            for k, i in enumerate(ids):
                a(f"s_sub_u32 s3, s{64+2*i}, s64")
                a("s_cmp_lt_u32 s3, 100000")
                a(f"s_cselect_b32 s3, s{64+2*i}, 0")
                a("v_mov_b32 v2, s3")
                a(f"global_atomic_umax v1, v2, s[30:31] offset:{8+4*k}")
            a("s_endpgm")
        for i in range(16):
            a(f"v_mov_b32 v2, s{64+2*i}")
            a(f"buffer_store_dword v2, v1, {srd(sWS)}, s3 offen offset:{4*i}")
    a.raw("L_end:")
    a("s_endpgm")
    bad = a.check_branches()
    for b in bad: print("BRANCH HAZARD", b, file=sys.stderr)
    assert not bad
    out = HEADER + f"""; @launch grid=(256,1,1) block=(512,1,1) lds=163840
.amdgcn_target "amdgcn-amd-amdhsa--gfx950"
.text
.globl {NAME}_kernel
.p2align 8
.type {NAME}_kernel,@function
""" + a.text() + f""".fill 1280, 4, 0xBF800000
s_endpgm
.section .rodata,"a"
.p2align 6
.amdhsa_kernel {NAME}_kernel
  .amdhsa_next_free_vgpr 256
  .amdhsa_next_free_sgpr 102
  .amdhsa_accum_offset 256
  .amdhsa_group_segment_fixed_size 0
  .amdhsa_kernarg_size 72
  .amdhsa_user_sgpr_count 2
  .amdhsa_user_sgpr_kernarg_segment_ptr 1
  .amdhsa_system_sgpr_workgroup_id_x 1
.end_amdhsa_kernel
"""
    return out

if __name__ == "__main__":
    stamps = int(sys.argv[1]); path = sys.argv[2]
    opt = dict((kv.split("=")[0], int(kv.split("=")[1])) for kv in sys.argv[3:])
    open(path, "w").write(gen(stamps, opt))
```

```python
import sys, struct, math
from asmlib import Asm

NAME = "concat_heads__sliding_block__sliding_local_dilated__prompt"
HEADER = open("cdna_kernels/%s.s.ref" % NAME).read().split("; Override launch")[0]
def f2u(x): return struct.unpack("<I", struct.pack("<f", x))[0]

XB, WB, WOB_BYTES, OUTB = 1835008, 1204224, 401408, 3670016
MB2 = 0x200000
QO, KO, VO = 0, MB2, 2*MB2
BRS = 3*MB2
OA, OB = 6*MB2, 7*MB2
FL1 = 8*MB2
STAMP = 8*MB2 + 0x100000
WSB = 9*MB2
BIG = 0x40000000
NEG = f2u(-1e30)
CSC = f2u((28 ** -0.5) * math.log2(math.e))
SLOT = 40960
L_WOB, L_WOA, L_KV = 0, 57344, 114688
POLL_MAX = 40000

sWAVE, sBR, sLAM, sRB, sAH, sARB, sRB64, sCB, sTAG = 4, 5, 6, 7, 8, 9, 10, 11, 12
sX, sW, sWoA, sWoB, sWS, sOut = 36, 40, 44, 48, 52, 56
def srd(b): return f"s[{b}:{b+3}]"
def q4(r): return f"v[{r}:{r+3}]"
def q2(r): return f"v[{r}:{r+1}]"
def q16(r): return f"v[{r}:{r+15}]"
vL, vL16, vTAG = 255, 254, 253

def gen(stamps=False, opt=None):
    opt = opt or {}
    a = Asm()
    def stamp(i):
        if stamps:
            a(f"s_memrealtime s[{64+2*i}:{65+2*i}]")
            a("s_waitcnt lgkmcnt(0)")
    def mk_srd(d, p, n):
        return f"s_mov_b32 s{d}, s{p}\ns_mov_b32 s{d+1}, s{p+1}\ns_mov_b32 s{d+2}, {n}\ns_mov_b32 s{d+3}, 0x20000\n"
    MAP = f"""
    s_lshr_b32 s{sLAM}, s14, 2
    s_and_b32 s15, s13, 3
    s_lshl_b32 s15, s15, 2
    s_and_b32 s3, s14, 3
    s_add_u32 s{sRB}, s15, s3
    """ if opt.get("map", 0) else f"""
    s_and_b32 s15, s13, 1
    s_lshl_b32 s15, s15, 2
    s_lshr_b32 s3, s14, 3
    s_add_u32 s{sLAM}, s15, s3
    s_and_b32 s15, s13, 2
    s_lshl_b32 s15, s15, 2
    s_and_b32 s3, s14, 7
    s_add_u32 s{sRB}, s15, s3
    """
    TAGC = f"""
    s_or_b32 s3, s2, s{sWAVE}
    s_cmp_lg_u32 s3, 0
    s_cbranch_scc1 L_notag
    s_memrealtime s[34:35]
    s_waitcnt lgkmcnt(0)
    s_and_b32 s35, s34, 0x1fff
    s_lshl_b32 s35, s35, 1
    s_or_b32 s35, s35, 1
    s_bfe_u32 s3, s34, 0xf000d
    s_lshl_b32 s3, s3, 15
    s_or_b32 s35, s35, s3
    s_lshl_b32 s34, s34, 3
    s_and_b32 s34, s34, 0x80000000
    s_or_b32 s34, s34, s35
    v_mov_b32 v2, s34
    global_store_dword v1, v2, s[30:31] sc1
    L_notag:
    """
    MAPB = f"""
    s_and_b32 s15, s13, 1
    s_lshl_b32 s15, s15, 2
    s_and_b32 s3, s14, 3
    s_add_u32 s{sLAM}, s15, s3
    s_and_b32 s15, s13, 2
    s_lshl_b32 s15, s15, 2
    s_lshr_b32 s3, s14, 2
    s_add_u32 s{sRB}, s15, s3
    """
    a.raw(f"{NAME}_kernel:")
    a(f"""
    s_cmp_ge_u32 s2, 256
    s_cbranch_scc1 L_end
    s_load_dwordx16 s[16:31], s[0:1], 0
    s_load_dwordx2 s[32:33], s[0:1], 64
    v_lshrrev_b32 v1, 6, v0
    v_and_b32 v{vL}, 63, v0
    v_readfirstlane_b32 s{sWAVE}, v1
    s_and_b32 s13, s2, 7
    s_lshr_b32 s14, s2, 3
    s_lshr_b32 s{sBR}, s13, 2
    s_xor_b32 s{sBR}, s{sBR}, {opt.get('swap', 0)}
    {MAP}
    v_lshlrev_b32 v{vL16}, 4, v{vL}
    v_lshrrev_b32 v1, 3, v{vL}
    v_and_b32 v2, 7, v{vL}
    v_lshrrev_b32 v3, 4, v{vL}
    s_cmp_lg_u32 s{sBR}, 0
    s_cbranch_scc1 L_brB
    s_cmp_lt_u32 s{sWAVE}, 4
    s_cbranch_scc1 L_compute
    """)
    rest_setup = f"""
    s_lshl_b32 s{sAH}, s13, 1
    s_and_b32 s3, s14, 1
    s_add_u32 s{sAH}, s{sAH}, s3
    s_lshr_b32 s{sARB}, s14, 1
    s_lshl_b32 s{sRB64}, s13, 2
    s_lshr_b32 s3, s14, 3
    s_add_u32 s{sRB64}, s{sRB64}, s3
    s_and_b32 s{sCB}, s14, 7
    """ + mk_srd(sWoA, 20, WOB_BYTES) + mk_srd(sWoB, 26, WOB_BYTES) + mk_srd(sWS, 32, WSB) + mk_srd(sOut, 28, OUTB)
    def prefetch(l):
        if not opt.get("pf", 1): return
        a(f"""
        s_cmp_lg_u32 s{sWAVE}, 1
        s_cbranch_scc1 L_notouch{l}
        v_min_u32 v4, 8, v{vL}
        v_lshlrev_b32 v4, 21, v4
        v_add_u32 v4, 0x1ff780, v4
        buffer_load_dword v217, v4, {srd(sWS)}, 0 offen sc1
        v_and_b32 v4, 1, v{vL}
        v_lshlrev_b32 v4, 21, v4
        buffer_load_dword v218, v4, {srd(sOut)}, 0 offen
        L_notouch{l}:
        s_and_b32 s3, s14, 15
        s_lshl_b32 s34, s{sWAVE}, 4
        s_or_b32 s3, s3, s34
        s_cmp_lg_u32 s3, 0x2f
        s_cbranch_scc1 L_nocode{l}
        s_getpc_b64 s[34:35]
        L_pc{l}:
        s_sub_u32 s34, s34, L_pc{l}-{NAME}_kernel
        s_subb_u32 s35, s35, 0
        v_lshlrev_b32 v4, 7, v{vL}
        global_load_dword v217, v4, s[34:35]
        v_add_u32 v4, 8192, v4
        global_load_dword v218, v4, s[34:35]
        v_add_u32 v4, 8192, v4
        global_load_dword v219, v4, s[34:35]
        L_nocode{l}:
        """)
    def get_tag(lbl):
        a(f"""
        s_mov_b32 s35, {POLL_MAX}
        L_tag{lbl}:
        v_readfirstlane_b32 s{sTAG}, v{vTAG}
        s_cmp_lg_u32 s{sTAG}, 0
        s_cbranch_scc1 L_tagok{lbl}
        v_mov_b32 v227, 0
        global_load_dword v{vTAG}, v227, s[30:31] sc1
        s_sub_u32 s35, s35, 1
        s_waitcnt vmcnt(0)
        s_cmp_lg_u32 s35, 0
        s_cbranch_scc1 L_tag{lbl}
        L_tagok{lbl}:
        """)
    def poll(lbl, vaddr, vd):
        a(f"""
        s_mov_b32 s35, {POLL_MAX}
        L_poll{lbl}:
        buffer_load_dword v{vd}, v{vaddr}, {srd(sWS)}, s15 offen sc1
        s_sub_u32 s35, s35, 1
        s_waitcnt vmcnt(0)
        v_cmp_ne_u32 vcc, v{vd}, v{vTAG}
        s_cmp_eq_u32 s35, 0
        s_cbranch_scc1 L_pollok{lbl}
        s_cbranch_vccz L_pollok{lbl}
        s_branch L_poll{lbl}
        L_pollok{lbl}:
        """)
    sRP, sKQ, sT, sU = 60, 61, 62, 63
    vR15, vG, vWA, vMG, vV0, vC = 240, 241, 242, 250, 251, 252
    vNEG, vKa, vKw = 237, 239, 238
    vKq, vOo, vVa, vVb, vOne = 232, 233, 234, 235, 236
    vQm, vOn0, vOn1, vV1 = 228, 230, 231, 226
    sHB, sHQ, sP = 98, 100, 99
    sK = [16, 17, 18, 19, 20, 21]; sV = [22, 23, 24, 25, 26, 27]; sQA = 32
    sOB, sOA = 96, 28
    t0, t1, t2, t3, t4 = 220, 221, 222, 223, 224
    vPA = 225
    FLV = 64*16*128
    p2common = f"""
    s_and_b32 s{sRP}, s{sWAVE}, 1
    s_lshr_b32 s{sKQ}, s{sWAVE}, 1
    v_and_b32 v{vR15}, 15, v{vL}
    v_lshrrev_b32 v{vG}, 4, v{vL}
    v_cmp_gt_u32 vcc, 48, v{vL}
    v_cndmask_b32 v{vMG}, 0, -1, vcc
    v_lshrrev_b32 v{t0}, 2, v{vR15}
    v_lshl_add_u32 v{t1}, v{vG}, 2, v{t0}
    v_lshlrev_b32 v{t1}, 7, v{t1}
    s_mul_i32 s3, s{sKQ}, 14336
    v_add_u32 v{t1}, s3, v{t1}
    v_and_b32 v{t2}, 2, v{t0}
    v_and_b32 v{t3}, 1, v{vG}
    v_lshl_or_b32 v{t2}, v{t3}, 2, v{t2}
    v_lshlrev_b32 v{t2}, 4, v{t2}
    v_and_b32 v{t3}, 3, v{vL}
    v_lshlrev_b32 v{t4}, 3, v{t3}
    v_xor_b32 v{t2}, v{t2}, v{t4}
    v_add_u32 v{t1}, v{t1}, v{t2}
    v_and_b32 v{t2}, 2048, v{vMG}
    """ + "".join(f"""
    s_add_u32 s3, s{sKQ}, {c}
    s_and_b32 s3, s3, 3
    s_lshl_b32 s3, s3, 5
    v_xor_b32 v{vWA+c}, s3, v{t1}
    v_add_u32 v{vWA+4+c}, v{vWA+c}, v{t2}
    """ for c in range(4)) + f"""
    v_mov_b32 v{t4}, {BIG}
    v_lshlrev_b32 v{vKq}, 9, v{vG}
    v_lshl_add_u32 v{vKq}, v{vR15}, 4, v{vKq}
    v_lshlrev_b32 v{vOo}, 6, v{vR15}
    v_lshl_add_u32 v{vOo}, v{vG}, 4, v{vOo}
    v_lshlrev_b32 v{vVa}, 8, v{t0}
    v_lshl_add_u32 v{vVa}, v{vG}, 6, v{vVa}
    v_lshl_add_u32 v{vVa}, v{t3}, 4, v{vVa}
    v_add_u32 v{vVb}, 1024, v{vVa}
    v_cmp_gt_u32 vcc, 12, v{vR15}
    v_cndmask_b32 v{vVb}, v{t4}, v{vVb}, vcc
    v_cmp_eq_u32 vcc, 12, v{vR15}
    v_mov_b32 v{t4}, 0x3f803f80
    v_cndmask_b32 v{vOne}, 0, v{t4}, vcc
    v_mov_b32 v{vC}, {CSC}
    v_mov_b32 v{vNEG}, {NEG}
    s_and_b32 s3, s{sWAVE}, 6
    s_lshl_b32 s3, s3, 10
    s_add_u32 s3, s3, {L_KV}
    v_add_u32 v{vKa}, s3, v{vL16}
    s_mul_i32 s3, s{sAH}, 7
    s_lshr_b32 s{sHQ}, s3, 1
    s_lshl_b32 s{sHQ}, s{sHQ}, 9
    s_lshl_b32 s{sHB}, s3, 8
    v_cmp_lt_u32 vcc, 15, v{vL}
    v_cndmask_b32 v{t0}, 0, -1, vcc
    s_bitcmp1_b32 s{sAH}, 0
    s_cselect_b64 vcc, -1, 0
    v_cndmask_b32 v{vQm}, -1, v{t0}, vcc
    v_cndmask_b32 v{vQm+1}, v{vMG}, -1, vcc
    s_mul_i32 s3, s{sWAVE}, 3
    s_lshl_b32 s{sT}, s{sARB}, 3
    s_sub_u32 s{sT}, s{sT}, 16
    s_add_u32 s{sT}, s{sT}, s3
    s_lshl_b32 s3, s3, 10
    s_add_u32 s3, s3, {L_KV}
    v_add_u32 v{vKw}, s3, v{vL16}
    v_subrev_u32 v{t0}, 1024, v{vVb}
    s_bitcmp1_b32 s{sWAVE}, 0
    s_cselect_b64 vcc, -1, 0
    v_cndmask_b32 v{vV0}, v{vVa}, v{t0}, vcc
    v_cndmask_b32 v{vV1}, v{t0}, v{vVa}, vcc
    v_cndmask_b32 v{vOn0}, 0, v{vOne}, vcc
    v_cndmask_b32 v{vOn1}, v{vOne}, 0, vcc
    """ + "".join(f"""
    s_ashr_i32 s34, s{sT}, 1
    s_mul_i32 s34, s34, 28672
    s_and_b32 s35, s{sT}, 1
    s_lshl_b32 s3, s35, 10
    s_add_u32 s3, s3, s34
    s_add_u32 s3, s3, s{sHB}
    s_add_u32 s3, s3, {VO}
    s_lshl_b32 s35, s35, 8
    s_add_u32 s35, s35, s34
    s_add_u32 s35, s35, s{sHQ}
    s_add_u32 s35, s35, {KO}
    s_cmp_lt_i32 s{sT}, 0
    s_cselect_b32 s{sV[i]}, {BIG}, s3
    s_cselect_b32 s{sK[i]}, {BIG}, s35
    s_add_u32 s{sT}, s{sT}, 1
    """ for i in range(3)) + f"""
    s_lshl_b32 s3, s{sARB}, 3
    s_add_u32 s3, s3, s{sWAVE}
    s_lshr_b32 s34, s3, 1
    s_mul_i32 s34, s34, 28672
    s_and_b32 s35, s3, 1
    s_lshl_b32 s35, s35, 8
    s_add_u32 s35, s35, s34
    s_add_u32 s{sQA}, s35, s{sHQ}
    s_lshl_b32 s3, s3, 4
    s_add_u32 s3, s3, s{sAH}
    s_lshl_b32 s3, s3, 10
    s_add_u32 s33, s3, {OA}
    s_mul_i32 s3, s{sAH}, 7
    s_lshr_b32 s34, s3, 3
    s_add_u32 s3, s3, 6
    s_lshr_b32 s35, s3, 3
    s_sub_u32 s35, s35, s34
    v_and_b32 v{t0}, 1, v{vL}
    v_mul_u32_u24 v{t0}, s35, v{t0}
    v_add_u32 v{t0}, s34, v{t0}
    v_min_u32 v{t1}, 11, v{vL}
    v_lshrrev_b32 v{t1}, 1, v{t1}
    s_lshl_b32 s3, s{sARB}, 1
    s_sub_u32 s3, s3, 4
    v_add_u32 v{t1}, s3, v{t1}
    v_max_i32 v{t1}, 0, v{t1}
    v_lshl_add_u32 v{t1}, v{t1}, 4, v{t0}
    v_lshlrev_b32 v{vPA}, 7, v{t1}
    s_lshl_b32 s3, s{sRB64}, 2
    s_lshl_b32 s35, s{sRP}, 1
    s_add_u32 s3, s3, s35
    s_lshl_b32 s3, s3, 4
    s_lshl_b32 s35, s{sKQ}, 2
    s_add_u32 s3, s3, s35
    s_lshl_b32 s3, s3, 10
    s_add_u32 s{sOB}, s3, {OB}
    s_add_u32 s{sOB+1}, s{sOB}, 16384
    s_add_u32 s{sOA}, s3, {OA}
    s_add_u32 s{sOA+1}, s{sOA}, 16384
    s_mov_b32 s15, {FL1}
    """
    def normalize(O0, O1, ta, tb, dst):
        return [
            [f"v_mov_b32 v{ta}, v{O1}", f"v_mov_b32 v{tb}, v{O1}"],
            [f"v_permlane32_swap_b32 v{ta}, v{tb}"],
            [f"v_mov_b32 v{ta}, v{tb}"],
            [f"v_permlane16_swap_b32 v{ta}, v{tb}"],
            [f"v_rcp_f32 v{tb}, v{tb}"],
            [f"v_mul_f32 v{O0+i}, v{O0+i}, v{tb}" for i in range(4)] + [f"v_mul_f32 v{O1+i}, v{O1+i}, v{tb}" for i in range(4)],
            [f"v_cvt_pk_bf16_f32 v{dst}, v{O0}, v{O0+1}", f"v_cvt_pk_bf16_f32 v{dst+1}, v{O0+2}, v{O0+3}",
             f"v_cvt_pk_bf16_f32 v{dst+2}, v{O1}, v{O1+1}", f"v_cvt_pk_bf16_f32 v{dst+3}, v{O1+2}, v{O1+3}"],
            [f"v_bfi_b32 v{dst+3}, v{vMG}, v{dst+3}, v{vTAG}"],
        ]
    vXe, vXo, vW0, vW1, vWo, vPw = 10, 11, 13, 14, 15, 17
    sLW, sLx, sLw, sT0, sT1 = 96, 97, 101, 34, 35
    sLwo, sL1k = 14, 15
    a(f"""
    s_sub_u32 s{sLW}, s{sWAVE}, 4
    s_lshl_b32 s{sT0}, s{sRB}, 7
    s_lshl_b32 s{sT1}, s{sLW}, 5
    s_add_u32 s{sT0}, s{sT0}, s{sT1}
    v_add_u32 v4, s{sT0}, v1
    v_mul_u32_u24 v4, 896, v4
    v_xor_b32 v5, v2, v3
    v_lshl_add_u32 v{vXe}, v5, 4, v4
    v_xor_b32 v5, 4, v5
    v_lshl_add_u32 v{vXo}, v5, 4, v4
    v_add_u32 v{vXo}, 6144, v{vXo}
    s_lshl_b32 s{sLx}, s{sLW}, 12
    s_lshl_b32 s{sLw}, s{sLW}, 11
    s_lshl_b32 s{sT1}, s{sLW}, 4
    v_add_u32 v4, s{sT1}, v1
    v_mul_u32_u24 v4, 2688, v4
    s_lshl_b32 s{sT1}, s{sLAM}, 7
    v_add_u32 v4, s{sT1}, v4
    v_and_b32 v5, 1, v3
    v_lshlrev_b32 v5, 2, v5
    v_xor_b32 v5, v2, v5
    v_lshl_add_u32 v{vW0}, v5, 4, v4
    v_add_u32 v{vW1}, {8*2688-1024}, v{vW0}
    s_mov_b32 s{sX+2}, {XB}
    s_mov_b32 s{sX+3}, 0x20000
    s_mov_b32 s{sW+2}, {WB}
    s_mov_b32 s{sW+3}, 0x20000
    s_waitcnt lgkmcnt(0)
    s_mov_b32 s{sX}, s16
    s_mov_b32 s{sX+1}, s17
    s_mov_b32 s{sW}, s18
    s_mov_b32 s{sW+1}, s19
    """)
    stamp(0)
    a(f"""
    s_cmp_eq_u32 s{sLAM}, 7
    s_cbranch_scc1 L_ld_idle
    """)
    order = []
    def D(c):
        slot = ((c + 1) % 4) * SLOT
        a(f"""
        s_add_u32 m0, s{sLx}, {slot}
        s_mov_b32 s{sT0}, {c*128}
        s_mov_b32 s{sT1}, {c*128 + 12288}
        buffer_load_dwordx4 v{vXe}, {srd(sX)}, s{sT0} offen lds
        buffer_load_dwordx4 v{vXo}, {srd(sX)}, s{sT0} offen offset:1024 lds
        buffer_load_dwordx4 v{vXe}, {srd(sX)}, s{sT1} offen offset:2048 lds
        buffer_load_dwordx4 v{vXo}, {srd(sX)}, s{sT1} offen offset:3072 lds
        """)
        for p in (1, 2, 0):
            a(f"""
            s_add_u32 m0, s{sLw}, {slot + 16384 + p*8192}
            s_mov_b32 s{sT1}, {c*64*2688 + p*896}
            buffer_load_dwordx4 v{vW0}, {srd(sW)}, s{sT1} offen lds
            buffer_load_dwordx4 v{vW1}, {srd(sW)}, s{sT1} offen offset:1024 lds
            """)
        order.extend([c] * 10)
    def Wt(c):
        last = max(i for i, o in enumerate(order) if o == c)
        a(f"s_waitcnt vmcnt({len(order) - 1 - last})")
        if c == 0: stamp(1)
        a("s_barrier")
    wo_setup = rest_setup + f"""
    v_and_b32 v5, 6, v1
    v_xor_b32 v5, v2, v5
    v_mul_u32_u24 v4, 896, v1
    s_lshl_b32 s{sT1}, s{sCB}, 7
    v_add_u32 v4, s{sT1}, v4
    v_lshl_add_u32 v{vWo}, v5, 4, v4
    s_cmp_eq_u32 s{sCB}, 7
    s_cselect_b64 vcc, -1, 0
    v_mov_b32 v7, {BIG}
    v_cndmask_b32 v{vWo}, v{vWo}, v7, vcc
    v_mov_b32 v1, 0
    s_mul_i32 s3, s14, 98
    s_and_b32 s{sT1}, s{sLW}, 1
    s_mul_i32 s{sT1}, s{sT1}, 49
    s_add_u32 s3, s3, s{sT1}
    v_min_u32 v4, 48, v{vL}
    v_add_u32 v4, s3, v4
    v_lshlrev_b32 v{vPw}, 7, v4
    s_mul_i32 s{sLwo}, s{sLW}, 7168
    s_lshl_b32 s{sL1k}, s{sLW}, 10
    global_load_dword v{vTAG}, v1, s[30:31] sc1
    """
    def issue_wo(i0, i1):
        for i in range(i0, i1):
            br = i >= 14
            a(f"""
            s_add_u32 m0, s{sL1k}, {4096*i}
            s_add_u32 s{sT1}, s{sLwo}, {(4*i - 56*br)*7168}
            buffer_load_dwordx4 v{vWo}, {srd(sWoA if br else sWoB)}, s{sT1} offen lds
            """)
            order.append("wo")
    vPf = 16
    sPS, sPO = 60, 61
    PFN = " nt" if opt.get("pnt", 0) else ""
    def pf_setup(wmul):
        a(f"""
        s_and_b32 s{sT0}, s13, 2
        s_lshl_b32 s{sT0}, s{sT0}, 9
        s_lshl_b32 s{sT1}, s14, 5
        s_add_u32 s{sT0}, s{sT0}, s{sT1}
        v_min_u32 v4, 31, v{vL}
        v_add_u32 v4, s{sT0}, v4
        v_mul_u32_u24 v{vPf}, 896, v4
        v_min_u32 v4, 23, v{vL}
        v_cmp_le_u32 vcc, 12, v4
        v_cndmask_b32 v5, 0, 1, vcc
        v_mul_u32_u24 v6, 12, v5
        v_sub_u32 v6, v4, v6
        s_lshl_b32 s{sT0}, s14, 1
        v_add_u32 v5, s{sT0}, v5
        v_mul_u32_u24 v5, 2688, v5
        v_lshrrev_b32 v4, 2, v6
        v_mul_u32_u24 v4, 896, v4
        v_add_u32 v5, v5, v4
        v_and_b32 v6, 3, v6
        v_lshl_add_u32 v5, v6, 7, v5
        s_and_b32 s{sT0}, s13, 1
        s_mul_i32 s{sT0}, s{sT0}, {wmul}
        v_add_u32 v5, s{sT0}, v5
        s_bitcmp1_b32 s{sLW}, 0
        s_cselect_b64 vcc, -1, 0
        s_mov_b32 s{sPS}, 128
        s_cselect_b32 s{sPS}, 172032, s{sPS}
        s_cselect_b32 s44, s{sW}, s{sX}
        s_cselect_b32 s45, s{sW+1}, s{sX+1}
        s_cselect_b32 s46, s{sW+2}, s{sX+2}
        s_mov_b32 s47, 0x20000
        v_cndmask_b32 v{vPf}, v{vPf}, v5, vcc
        s_lshr_b32 s{sPO}, s{sLW}, 1
        s_add_u32 s{sPO}, s{sPO}, 1
        s_mul_i32 s{sPO}, s{sPO}, s{sPS}
        s_lshl_b32 s{sPS}, s{sPS}, 1
        """)
    def pf():
        a(f"""
        buffer_load_dword v20, v{vPf}, s[44:47], s{sPO} offen{PFN}
        s_add_u32 s{sPO}, s{sPO}, s{sPS}
        """)
        order.append("pf")
    PMA, PMB = opt.get("pma", 0), opt.get("pmb", 2)
    def head(Dx, wmul):
        PM = PMA if wmul == 512 else PMB
        if PM == 0: Dx(0); Dx(1); Wt(0); Dx(2); Wt(1); Dx(3)
        elif PM == 1: Dx(0); pf_setup(wmul); pf(); Dx(1); Wt(0); Dx(2); pf(); pf(); Wt(1); Dx(3)
        elif PM == 2: Dx(0); pf_setup(wmul); pf(); Dx(1); Wt(0); pf(); Dx(2); Wt(1); pf(); Dx(3)
        elif PM == 3: Dx(0); pf_setup(wmul); pf(); pf(); pf(); Dx(1); Wt(0); Dx(2); Wt(1); Dx(3)
    def pf_wo(l):
        if opt.get("nopw"): return
        a(f"""
        s_cmp_lt_u32 s{sLW}, 2
        s_cbranch_scc1 L_pwB{l}
        buffer_load_dword v20, v{vPw}, {srd(sWoA)}, 0 offen
        s_branch L_pwD{l}
        L_pwB{l}:
        buffer_load_dword v20, v{vPw}, {srd(sWoB)}, 0 offen
        L_pwD{l}:
        """)
        order.append("pfw")
    head(D, 512)
    a(wo_setup); order.append("tag")
    if opt.get("seq", 0) == 1:
        Wt(2); D(4); Wt(3); D(5); pf_wo(0); Wt(4); D(6); issue_wo(0, 10); Wt(5); issue_wo(10, 20); Wt(6)
    elif opt.get("seq", 0) == 0:
        Wt(2); D(4); Wt(3); D(5); Wt(4); D(6); pf_wo(0); Wt(5)
        DEF = opt.get("defer", 2)
        if DEF < 4: issue_wo(0, 10)
        Wt(6)
        if DEF >= 2: a("s_barrier")
        if DEF == 4: issue_wo(0, 10)
        issue_wo(10, 20)
        if DEF == 1: a("s_barrier")
    else:
        Wt(2); D(4); Wt(3); D(5); Wt(4); D(6); pf_wo(0); Wt(5); issue_wo(0, 14); Wt(6); a("s_sleep 16"); issue_wo(14, 20)
    a("s_branch L_ld2")
    a.raw("L_ld_idle:")
    if PMA: pf_setup(512); pf(); pf(); pf()
    a(wo_setup)
    pf_wo(1)
    issue_wo(0, 20)
    a.raw("L_ld2:")
    issue_wo(20, 28)
    a(p2common)
    a("s_waitcnt vmcnt(28)" if opt.get("nowait", 0) else "s_waitcnt vmcnt(0)")
    get_tag("l")
    a(f"""
    s_cmp_lg_u32 s{sWAVE}, 7
    s_cbranch_scc1 L_pollok1
    """)
    poll("1", vPA, 9)
    stamp(2)
    a("s_branch L_phase2")

    a.raw("L_compute:")
    sCH, sRH = 96, 97
    sSQ, sSK, sSV, sSQh, sSKh, sFl = 36, 37, 38, 39, 40, 41
    def Acc(p, rt): return p*32 + rt*16
    def Fx(s, rt): return 96 + 20*s + 4*rt
    def Fw(s, p): return 96 + 20*s + 8 + 4*p
    vxa = [200, 201, 202, 203]; vwa = 204
    vQo, vVo = 205, 206
    slot0 = SLOT
    a(f"""
    s_waitcnt lgkmcnt(0)
    v_mov_b32 v1, 0
    {'' if opt.get('swap', 0) else TAGC}
    """)
    stamp(0)
    a(rest_setup)
    prefetch('a')
    a(f"""
    s_and_b32 s{sCH}, s{sWAVE}, 1
    s_lshr_b32 s{sRH}, s{sWAVE}, 1
    s_cmp_eq_u32 s{sLAM}, 7
    s_cbranch_scc1 L_cmp_idle
    v_and_b32 v2, 31, v{vL}
    v_lshrrev_b32 v3, 5, v{vL}
    v_bfe_u32 v4, v{vL}, 2, 2
    s_lshl_b32 s3, s{sLAM}, 1
    s_add_u32 s3, s3, s{sCH}
    s_lshl_b32 s34, s3, 11
    v_add_u32 v{vQo}, s34, v{vL16}
    v_bfe_u32 v6, v{vL}, 4, 1
    v_lshlrev_b32 v6, 2, v6
    v_and_b32 v7, 1, v4
    v_lshl_add_u32 v6, v7, 1, v6
    v_lshrrev_b32 v7, 1, v4
    v_add_u32 v6, v6, v7
    v_lshl_add_u32 v7, v6, 8, s34
    v_lshl_add_u32 v7, v3, 6, v7
    v_and_b32 v8, 3, v{vL}
    v_lshl_add_u32 v{vVo}, v8, 4, v7
    s_lshl_b32 s34, s{sRB}, 1
    s_add_u32 s34, s34, s{sRH}
    s_mul_i32 s{sSQ}, s34, 57344
    s_add_u32 s{sSQh}, s{sSQ}, 28672
    s_add_u32 s{sSK}, s{sSQ}, {KO}
    s_add_u32 s{sSKh}, s{sSQh}, {KO}
    s_add_u32 s{sSV}, s{sSQ}, {VO}
    s_add_u32 s15, s{sSQh}, {VO}
    s_lshl_b32 s34, s34, 4
    s_add_u32 s34, s34, s3
    s_lshl_b32 s34, s34, 7
    s_add_u32 s{sFl}, s34, {FL1}
    """)
    def qkv_stores(data):
        for p, lo, hi in ((1, sSK, sSKh), (2, None, None), (0, sSQ, sSQh)):
            for rt in range(2):
                for half in range(2):
                    d = data(p, rt, half)
                    if p == 2: a(f"buffer_store_dwordx4 {q4(d)}, v{vVo}, {srd(sWS)}, s{sSV} offen offset:{rt*2048 + half*128} sc1")
                    else: a(f"buffer_store_dwordx4 {q4(d)}, v{vQo}, {srd(sWS)}, s{hi if half else lo} offen offset:{rt*512} sc1")
    a(f"""
    global_load_dword v{vTAG}, v1, s[30:31] sc1
    s_lshl_b32 s3, s{sRH}, 6
    v_add_u32 v5, s3, v2
    v_lshlrev_b32 v5, 7, v5
    v_bfe_u32 v6, v2, 1, 3
    v_xor_b32 v6, v6, v3
    v_lshl_add_u32 v{vxa[0]}, v6, 4, v5
    v_add_u32 v{vxa[0]}, {slot0}, v{vxa[0]}
    v_xor_b32 v{vxa[1]}, 32, v{vxa[0]}
    v_xor_b32 v{vxa[2]}, 64, v{vxa[0]}
    v_xor_b32 v{vxa[3]}, 96, v{vxa[0]}
    v_lshl_add_u32 v6, v3, 3, v4
    v_lshlrev_b32 v6, 7, v6
    v_add_u32 v6, {slot0 + 16384}, v6
    v_bfe_u32 v7, v{vL}, 4, 1
    v_lshlrev_b32 v7, 5, v7
    v_and_b32 v8, 1, v{vL}
    v_lshl_or_b32 v7, v8, 4, v7
    v_bfe_u32 v8, v{vL}, 1, 1
    v_lshl_or_b32 v7, v8, 3, v7
    s_lshl_b32 s3, s{sCH}, 6
    v_or_b32 v7, s3, v7
    v_and_b32 v8, 2, v4
    v_lshlrev_b32 v8, 5, v8
    v_xor_b32 v7, v7, v8
    v_add_u32 v{vwa}, v6, v7
    """)
    def reads(s, ks):
        L = [f"ds_read_b128 {q4(Fx(s,rt))}, v{vxa[ks]} offset:{rt*4096}" for rt in range(2)]
        for p in (1, 2, 0):
            for u in range(2):
                L.append(f"ds_read_b64_tr_b16 {q2(Fw(s, p) + 2*u)}, v{vwa} offset:{p*8192 + ks*2048 + u*512}")
        return L
    def kstep(s, rd, extra=(), zero=False):
        M = []
        for p in (1, 2, 0):
            for rt in range(2):
                A, B = (Fx(s,rt), Fw(s,p)) if p == 2 else (Fw(s,p), Fx(s,rt))
                M.append(f"v_mfma_f32_32x32x16_bf16 {q16(Acc(p,rt))}, {q4(A)}, {q4(B)}, {'0' if zero else q16(Acc(p,rt))}")
        per = [3, 3, 2, 0, 0, 0]
        k = 0
        extra = list(extra)
        for i, m in enumerate(M):
            a(m)
            for _ in range(per[i]):
                if k < len(rd): a(rd[k]); k += 1
            if i >= 3:
                for _ in range(4):
                    if extra: a(extra.pop(0))
        for e in extra: a(e)
    sC, sD = 42, 43
    a("s_barrier")
    stamp(1)
    for r in reads(0, 0): a(r)
    a(f"s_mov_b32 s{sC}, 0")
    ex0 = [f"s_and_b32 s3, s{sC}, 3", f"s_cmp_eq_u32 s3, 2", f"s_mov_b32 s{sD}, {SLOT}",
           f"s_cselect_b32 s{sD}, {(-3*SLOT) & 0xffffffff}, s{sD}",
           f"v_add_u32 v{vxa[0]}, s{sD}, v{vxa[0]}", f"v_add_u32 v{vxa[1]}, s{sD}, v{vxa[1]}"]
    a("s_waitcnt lgkmcnt(0)")
    kstep(0, reads(1, 1), ex0, zero=True)
    a("s_branch L_gemm1")
    a.raw("L_gemm:")
    a("s_waitcnt lgkmcnt(0)")
    kstep(0, reads(1, 1), ex0)
    a.raw("L_gemm1:")
    a("s_waitcnt lgkmcnt(0)")
    kstep(1, reads(0, 2), [f"v_add_u32 v{vxa[2]}, s{sD}, v{vxa[2]}"])
    a("s_waitcnt lgkmcnt(0)")
    kstep(0, reads(1, 3), [f"v_add_u32 v{vxa[3]}, s{sD}, v{vxa[3]}", f"v_add_u32 v{vwa}, s{sD}, v{vwa}",
                           f"s_add_u32 s{sC}, s{sC}, 1", f"s_cmp_lt_u32 s{sC}, 6"])
    a("s_waitcnt lgkmcnt(0)")
    a("s_barrier")
    kstep(1, reads(0, 0))
    a("s_cbranch_scc1 L_gemm")
    def cvt(d, s0): a(f"v_cvt_pk_bf16_f32 v{d}, v{s0}, v{s0+1}")
    def mf(p, rt, ks):
        A, B = (Fx(ks,rt), Fw(ks,p)) if p == 2 else (Fw(ks,p), Fx(ks,rt))
        return f"v_mfma_f32_32x32x16_bf16 {q16(Acc(p,rt))}, {q4(A)}, {q4(B)}, {q16(Acc(p,rt))}"
    rd = []
    for ks in (1, 2, 3):
        r = reads(ks, ks); rd += r[0:4]
    for ks in (1, 2, 3): rd += reads(ks, ks)[6:8]
    for ks in (1, 2, 3): rd += reads(ks, ks)[4:6]
    a("s_waitcnt vmcnt(0) lgkmcnt(0)")
    k = 0
    for p in (1, 0, 2):
        for rt in range(2):
            a(mf(p, rt, 0))
            for _ in range(3): a(rd[k]); k += 1
    def epi(p):
        L = []
        for rt in range(2):
            for half in range(2):
                if p == 2:
                    d = 176 + (rt*2+half)*4; s0 = Acc(2, rt) + 4*half
                    L += [f"v_cvt_pk_bf16_f32 v{d}, v{s0}, v{s0+1}", f"v_cvt_pk_bf16_f32 v{d+1}, v{s0+2}, v{s0+3}",
                          f"v_cvt_pk_bf16_f32 v{d+2}, v{s0+8}, v{s0+9}", f"v_cvt_pk_bf16_f32 v{d+3}, v{s0+10}, v{s0+11}",
                          f"buffer_store_dwordx4 {q4(d)}, v{vVo}, {srd(sWS)}, s{15 if rt else sSV} offen offset:{half*128} sc1"]
                else:
                    d = Acc(p, rt) + 8*half
                    lo, hi = (sSK, sSKh) if p == 1 else (sSQ, sSQh)
                    L += [f"v_cvt_pk_bf16_f32 v{d+i}, v{d+2*i}, v{d+2*i+1}" for i in range(4)]
                    L += [f"buffer_store_dwordx4 {q4(d)}, v{vQo}, {srd(sWS)}, s{hi if rt else lo} offen offset:{half*1024} sc1"]
        return L
    for n, ks in enumerate((1, 2, 3)):
        a(f"s_waitcnt lgkmcnt({min(15, k - 4*(n+1))})")
        for rt in range(2):
            a(mf(1, rt, ks))
            if k < 24: a(rd[k]); k += 1
    pend = epi(1)
    for p, nxt, base in ((0, 0, 12), (2, None, 18)):
        for n, ks in enumerate((1, 2, 3)):
            a(f"s_waitcnt lgkmcnt({24 - base - 2*(n+1)})")
            for rt in range(2):
                a(mf(p, rt, ks))
                if n or rt:
                    for _ in range(4):
                        if pend: a(pend.pop(0))
        for x in pend: a(x)
        pend = epi(p)
    stamp(3)
    for x in pend: a(x)
    if opt.get("defer", 2) in (1, 2): a("s_barrier")
    stamp(2)
    a("v_mov_b32 v227, 0")
    a("s_waitcnt vmcnt(0)")
    get_tag("c")
    a(f"""
    s_mov_b64 exec, 1
    buffer_store_dword v{vTAG}, v227, {srd(sWS)}, s{sFl} offen sc1
    s_mov_b64 exec, -1
    """)
    stamp(4)
    if opt.get("defer", 2) >= 3: a("s_barrier")
    a("s_branch L_cmp2")
    a.raw("L_cmp_idle:")
    a(f"global_load_dword v{vTAG}, v1, s[30:31] sc1")
    a("s_waitcnt vmcnt(0)")
    get_tag("i")
    a.raw("L_cmp2:")
    a(p2common)
    a("s_branch L_phase2")
    a.raw("L_brB:")
    SLB = 43008
    SB0 = 34816
    a(MAPB)
    a(f"""
    s_cmp_lt_u32 s{sWAVE}, 4
    s_cbranch_scc1 L_cmpB
    """)
    vXh = 12
    sLh = 63
    a(f"""
    s_sub_u32 s{sLW}, s{sWAVE}, 4
    s_lshl_b32 s{sT0}, s{sRB}, 7
    s_lshl_b32 s{sT1}, s{sLW}, 5
    s_add_u32 s{sT0}, s{sT0}, s{sT1}
    v_add_u32 v4, s{sT0}, v1
    v_mul_u32_u24 v4, 896, v4
    v_xor_b32 v5, v2, v3
    v_lshl_add_u32 v{vXe}, v5, 4, v4
    v_xor_b32 v5, 4, v5
    v_lshl_add_u32 v{vXo}, v5, 4, v4
    v_add_u32 v{vXo}, 6144, v{vXo}
    s_lshl_b32 s{sLx}, s{sLW}, 12
    s_lshl_b32 s{sLw}, s{sLW}, 11
    s_lshl_b32 s{sLh}, s{sLW}, 9
    s_lshl_b32 s{sT1}, s{sLW}, 4
    v_add_u32 v4, s{sT1}, v1
    v_mul_u32_u24 v4, 2688, v4
    s_mul_i32 s{sT1}, s{sLAM}, 112
    v_add_u32 v4, s{sT1}, v4
    v_and_b32 v5, 1, v3
    v_lshlrev_b32 v5, 1, v5
    v_xor_b32 v5, v2, v5
    v_mov_b32 v7, {BIG}
    v_lshl_add_u32 v{vW0}, v5, 4, v4
    v_cmp_eq_u32 vcc, 7, v5
    v_xor_b32 v6, 4, v5
    v_cndmask_b32 v{vW0}, v{vW0}, v7, vcc
    v_lshl_add_u32 v{vW1}, v6, 4, v4
    v_cmp_eq_u32 vcc, 7, v6
    v_add_u32 v{vW1}, {8*2688-1024}, v{vW1}
    v_cndmask_b32 v{vW1}, v{vW1}, v7, vcc
    s_lshl_b32 s{sT0}, s{sRB}, 7
    s_lshl_b32 s{sT1}, s{sLW}, 2
    s_add_u32 s{sT0}, s{sT0}, s{sT1}
    s_sub_u32 s{sT0}, s{sT0}, 16
    v_add_u32 v4, s{sT0}, v1
    v_mul_i32_i24 v4, 896, v4
    s_lshl_b32 s{sT1}, s{sLW}, 1
    v_add_u32 v5, s{sT1}, v3
    v_and_b32 v5, 7, v5
    v_xor_b32 v5, v2, v5
    v_lshl_add_u32 v{vXh}, v5, 4, v4
    s_cmp_eq_u32 s{sRB}, 0
    s_cselect_b64 vcc, -1, 0
    v_cndmask_b32 v{vXh}, v{vXh}, v7, vcc
    s_mov_b32 s{sX+2}, {XB}
    s_mov_b32 s{sX+3}, 0x20000
    s_mov_b32 s{sW+2}, {WB}
    s_mov_b32 s{sW+3}, 0x20000
    s_waitcnt lgkmcnt(0)
    s_mov_b32 s{sX}, s22
    s_mov_b32 s{sX+1}, s23
    s_mov_b32 s{sW}, s24
    s_mov_b32 s{sW+1}, s25
    """)
    stamp(0)
    del order[:]
    def DB(c):
        slot = SB0 + ((c + 2) % 3) * SLB
        a(f"""
        s_add_u32 m0, s{sLx}, {slot + 2048}
        s_mov_b32 s{sT0}, {c*128}
        s_mov_b32 s{sT1}, {c*128 + 12288}
        buffer_load_dwordx4 v{vXe}, {srd(sX)}, s{sT0} offen lds
        buffer_load_dwordx4 v{vXo}, {srd(sX)}, s{sT0} offen offset:1024 lds
        buffer_load_dwordx4 v{vXe}, {srd(sX)}, s{sT1} offen offset:2048 lds
        buffer_load_dwordx4 v{vXo}, {srd(sX)}, s{sT1} offen offset:3072 lds
        """)
        for p in range(3):
            a(f"""
            s_add_u32 m0, s{sLw}, {slot + 18432 + p*8192}
            s_mov_b32 s{sT1}, {c*64*2688 + p*896}
            buffer_load_dwordx4 v{vW0}, {srd(sW)}, s{sT1} offen lds
            buffer_load_dwordx4 v{vW1}, {srd(sW)}, s{sT1} offen offset:1024 lds
            """)
        a(f"""
        s_add_u32 m0, s{sLh}, {slot}
        s_mov_b64 exec, 0xffffffff
        buffer_load_dwordx4 v{vXh}, {srd(sX)}, s{sT0} offen lds
        s_mov_b64 exec, -1
        """)
        order.extend([c] * 11)
    head(DB, 384)
    a(wo_setup); order.append("tag")
    Wt(2); DB(4); Wt(3); DB(5); Wt(4); DB(6); pf_wo(2); Wt(5); issue_wo(0, 10); Wt(6); issue_wo(10, 20)
    a("s_branch L_ld2")
    a.raw("L_cmpB:")
    sHH = 96
    def Qa(rt, ft): return ((rt-1)*2+ft)*4
    def Ka(rt, ft): return 32 + (rt*2+ft)*4
    def Va(rt, ft): return 72 + (rt*2+ft)*4
    def Gx(s, rt): return 112 + 44*s + 4*rt
    def Gw(s, p, ft): return 112 + 44*s + 20 + (p*2+ft)*4
    bxa = [200, 201]; bwa = [202, 203]
    vBS, vBP, vBP1 = 204, 208, 212
    sl0 = SB0 + 2 * SLB
    a(f"""
    s_and_b32 s{sHH}, s{sWAVE}, 1
    s_lshr_b32 s{sRH}, s{sWAVE}, 1
    v_and_b32 v2, 15, v{vL}
    s_lshl_b32 s3, s{sRH}, 6
    v_add_u32 v4, s3, v2
    v_lshlrev_b32 v4, 7, v4
    v_lshrrev_b32 v5, 1, v2
    v_xor_b32 v5, v5, v3
    v_lshl_add_u32 v{bxa[0]}, v5, 4, v4
    v_add_u32 v{bxa[0]}, {sl0}, v{bxa[0]}
    v_xor_b32 v{bxa[1]}, 64, v{bxa[0]}
    v_lshrrev_b32 v4, 2, v2
    v_and_b32 v5, 3, v{vL}
    v_lshl_add_u32 v6, v3, 3, v4
    v_lshlrev_b32 v6, 7, v6
    v_add_u32 v6, {sl0 + 18432}, v6
    v_and_b32 v7, 2, v4
    v_and_b32 v8, 1, v3
    v_lshl_or_b32 v7, v8, 2, v7
    v_lshlrev_b32 v7, 4, v7
    s_mul_i32 s3, s{sHH}, 56
    v_lshl_add_u32 v8, v5, 3, s3
    v_xor_b32 v9, v8, v7
    v_add_u32 v{bwa[0]}, v6, v9
    v_add_u32 v8, 32, v8
    v_cmp_eq_u32 vcc, 56, v8
    v_mov_b32 v9, 120
    v_cndmask_b32 v8, v8, v9, vcc
    v_xor_b32 v9, v8, v7
    v_add_u32 v{bwa[1]}, v6, v9
    v_cmp_eq_u32 vcc, 12, v2
    v_cndmask_b32 v216, 0, 1.0, vcc
    v_mov_b32 v217, v216
    v_mov_b32 v218, v216
    v_mov_b32 v219, v216
    s_lshl_b32 s34, s{sRB}, 1
    s_add_u32 s34, s34, s{sRH}
    s_lshl_b32 s37, s34, 6
    s_lshl_b32 s3, s{sLAM}, 1
    s_add_u32 s3, s3, s{sHH}
    s_add_u32 s3, s3, s37
    s_lshl_b32 s3, s3, 10
    s_add_u32 s36, s3, {OB}
    s_mov_b32 s37, s34
    v_mov_b32 v1, 0
    s_waitcnt lgkmcnt(0)
    {TAGC if opt.get('swap', 0) else ''}
    """)
    stamp(0)
    pc = [l for l in p2common.split("\n") if l.strip()]
    cut = next(k for k in range(len(pc)) if pc[k].strip().startswith("s_mul_i32 s3, s%d, 3" % sWAVE))
    bias = f"""
    v_mov_b32 v224, {NEG}
    v_and_b32 v220, 15, v{vL}
    v_lshrrev_b32 v221, 4, v{vL}
    v_lshlrev_b32 v221, 2, v221
    v_sub_u32 v220, v220, v221
    """ + "".join(f"""
    v_subrev_u32 v221, {i}, v220
    v_and_b32 v222, 0x80000001, v221
    v_cmp_eq_u32 vcc, 0, v222
    v_cndmask_b32 v{vBS+i}, v224, 0, vcc
    v_cmp_eq_u32 vcc, 0x80000000, v222
    v_cndmask_b32 v{vBP+i}, v224, 0, vcc
    """ for i in range(4)) + """
    s_cmp_eq_u32 s37, 0
    s_cselect_b64 vcc, -1, 0
    """ + "".join(f"v_cndmask_b32 v{vBP1+i}, v{vBP+i}, v224, vcc\n" for i in range(4))
    pieces = [rest_setup + f"v_mov_b32 v227, 0\nglobal_load_dword v{vTAG}, v227, s[30:31] sc1\n" + bias, "\n".join(pc[:cut]), "\n".join(pc[cut:])]
    def breads(s, ks):
        L = [f"ds_read_b128 {q4(Gx(s,rt))}, v{bxa[ks]} offset:{rt*2048}" for rt in (1, 2, 3, 4, 0)]
        for p in range(3):
            for ft in range(2):
                for u in range(2):
                    L.append(f"ds_read_b64_tr_b16 {q2(Gw(s,p,ft) + 2*u)}, v{bwa[ft]} offset:{p*8192 + ks*4096 + u*512}")
        return L
    def bstep(s, rd, zero=False):
        M = []
        C = lambda r, z='0': z if zero else q4(r)
        for rt in (1, 2, 3, 4, 0):
            for ft in range(2):
                if rt: M.append(f"v_mfma_f32_16x16x32_bf16 {q4(Qa(rt,ft))}, {q4(Gw(s,0,ft))}, {q4(Gx(s,rt))}, {C(Qa(rt,ft))}")
                M.append(f"v_mfma_f32_16x16x32_bf16 {q4(Ka(rt,ft))}, {q4(Gw(s,1,ft))}, {q4(Gx(s,rt))}, {C(Ka(rt,ft))}")
                M.append(f"v_mfma_f32_16x16x32_bf16 {q4(Va(rt,ft))}, {q4(Gx(s,rt))}, {q4(Gw(s,2,ft))}, {C(Va(rt,ft), q4(216) if ft else '0')}")
        for i, m in enumerate(M):
            a(m)
            if i < len(rd): a(rd[i])
    a("s_barrier")
    stamp(1)
    for r in breads(0, 0): a(r)
    a(f"s_mov_b32 s{sC}, 0")
    a("s_waitcnt lgkmcnt(0)")
    bstep(0, breads(1, 1), zero=True)
    a(pieces[0]); a(pieces[1])
    a(f"""
    s_mul_i32 s3, s{sC}, 86
    s_lshr_b32 s3, s3, 8
    s_mul_i32 s3, s3, 3
    s_cmp_eq_u32 s3, s{sC}
    s_mov_b32 s{sD}, {SLB}
    s_cselect_b32 s{sD}, {(-2*SLB) & 0xffffffff}, s{sD}
    v_add_u32 v{bxa[0]}, s{sD}, v{bxa[0]}
    v_add_u32 v{bxa[1]}, s{sD}, v{bxa[1]}
    v_add_u32 v{bwa[0]}, s{sD}, v{bwa[0]}
    v_add_u32 v{bwa[1]}, s{sD}, v{bwa[1]}
    s_cmp_eq_u32 s{sC}, 6
    s_waitcnt lgkmcnt(0)
    s_cbranch_scc1 L_nobarB0
    s_barrier
    L_nobarB0:
    """)
    bstep(1, breads(0, 0))
    a(pieces[2])
    a(f"s_mov_b32 s{sC}, 1")
    a.raw("L_gemmB:")
    a("s_waitcnt lgkmcnt(0)")
    bstep(0, breads(1, 1))
    a(f"""
    s_mul_i32 s3, s{sC}, 86
    s_lshr_b32 s3, s3, 8
    s_mul_i32 s3, s3, 3
    s_cmp_eq_u32 s3, s{sC}
    s_mov_b32 s{sD}, {SLB}
    s_cselect_b32 s{sD}, {(-2*SLB) & 0xffffffff}, s{sD}
    v_add_u32 v{bxa[0]}, s{sD}, v{bxa[0]}
    v_add_u32 v{bxa[1]}, s{sD}, v{bxa[1]}
    v_add_u32 v{bwa[0]}, s{sD}, v{bwa[0]}
    v_add_u32 v{bwa[1]}, s{sD}, v{bwa[1]}
    s_cmp_eq_u32 s{sC}, 6
    s_waitcnt lgkmcnt(0)
    s_cbranch_scc1 L_nobarB
    s_barrier
    L_nobarB:
    """)
    bstep(1, breads(0, 0))
    a(f"""
    s_add_u32 s{sC}, s{sC}, 1
    s_cmp_lt_u32 s{sC}, 7
    s_cbranch_scc1 L_gemmB
    """)
    stamp(3)
    def Qf(j): return 168 + 4*(j-1)
    def Kf(rt): return 128 + 4*rt
    def Vf(dt, rt): return 148 + 10*dt + 2*rt
    a("s_waitcnt vmcnt(0) lgkmcnt(0)")
    get_tag("b")
    for rt in (1, 2, 3, 4, 0):
        for ft in range(2):
            if rt:
                cvt(Qf(rt)+2*ft, Qa(rt,ft)); cvt(Qf(rt)+2*ft+1, Qa(rt,ft)+2)
            cvt(Kf(rt)+2*ft, Ka(rt,ft)); cvt(Kf(rt)+2*ft+1, Ka(rt,ft)+2)
            cvt(Vf(ft,rt), Va(rt,ft)); cvt(Vf(ft,rt)+1, Va(rt,ft)+2)
    stamp(4)
    a.raw("L_phase2:")
    def wo_reads(base):
        L = []
        for hq in range(4):
            for cidx in range(4):
                for u in range(2):
                    d = base + (hq*4 + cidx)*4 + 2*u
                    L.append(f"ds_read_b64_tr_b16 {q2(d)}, v{vWA + 4*u + ((cidx + 2*(hq&1)) & 3)} offset:{hq*3584}")
        return L
    def wo_mask(base):
        return [f"v_and_b32 v{base + f*4 + 2 + r}, v{vMG}, v{base + f*4 + 2 + r}" for f in range(16) for r in range(2)]
    WB_, OF_ = 128, 192
    QF = 124
    KS, VS = 72, 84
    QB_, KB_, VB_ = 8, 16, 28
    sBud = 14
    def qmask(r):
        for i in range(4): a(f"v_and_b32 v{r+i}, v{vQm + (i>>1)}, v{r+i}")
    a("s_barrier")
    stamp(11)
    for i in range(3):
        a(f"buffer_load_dwordx4 {q4(KS+4*i)}, v{vKq}, {srd(sWS)}, s{sK[i]} offen sc1")
    a(f"buffer_load_dwordx4 {q4(QF)}, v{vKq}, {srd(sWS)}, s{sQA} offen sc1")
    for i in range(3):
        a(f"buffer_load_dwordx4 {q4(VS+4*i)}, v{vV1 if i == 1 else vV0}, {srd(sWS)}, s{sV[i]} offen sc1")
    a(f"""
    s_lshr_b32 s3, s{sWAVE}, 2
    s_cmp_gt_u32 s{sBR}, s3
    s_cbranch_scc0 L_noB1
    """)
    def SB(j, t): return 8*(j-1) + 4*t
    for j in range(1, 5):
        bp = vBP1 if j == 1 else vBP
        a(f"v_mfma_f32_16x16x32_bf16 {q4(SB(j,0))}, {q4(Kf(j-1))}, {q4(Qf(j))}, {q4(bp)}")
        a(f"v_mfma_f32_16x16x32_bf16 {q4(SB(j,1))}, {q4(Kf(j))}, {q4(Qf(j))}, {q4(vBS)}")
    M = lambda j: 32 + (j-1)
    T = lambda j: 36 + (j-1)
    for j in range(1, 5):
        s = SB(j, 0)
        a(f"v_max3_f32 v{M(j)}, v{s}, v{s+1}, v{s+2}")
        a(f"v_max3_f32 v{T(j)}, v{s+3}, v{s+4}, v{s+5}")
        a(f"v_max3_f32 v{M(j)}, v{M(j)}, v{s+6}, v{s+7}")
        a(f"v_max_f32 v{M(j)}, v{M(j)}, v{T(j)}")
    for sw in ("v_permlane32_swap_b32", "v_permlane16_swap_b32"):
        for j in range(1, 5): a(f"v_mov_b32 v{T(j)}, v{M(j)}")
        for j in range(1, 5): a(f"{sw} v{M(j)}, v{T(j)}")
        for j in range(1, 5): a(f"v_max_f32 v{M(j)}, v{M(j)}, v{T(j)}")
    for j in range(1, 5): a(f"v_mul_f32 v{M(j)}, v{vC}, v{M(j)}")
    for j in range(1, 5):
        for i in range(8): a(f"v_fma_f32 v{SB(j,0)+i}, v{SB(j,0)+i}, v{vC}, -v{M(j)}")
    for j in range(1, 5):
        for i in range(8): a(f"v_exp_f32 v{SB(j,0)+i}, v{SB(j,0)+i}")
    P = lambda j: 40 + 4*(j-1)
    for j in range(1, 5):
        for i in range(4): cvt(P(j)+i, SB(j,0)+2*i)
    O = lambda j, dt: 8*(j-1) + 4*dt
    for j in range(1, 5):
        for dt in (1, 0):
            a(f"v_mfma_f32_16x16x32_bf16 {q4(O(j,dt))}, {q4(Vf(dt,j-1))}, {q4(P(j))}, 0")
    st = [normalize(O(j,0), O(j,1), 56+2*(j-1), 57+2*(j-1), 100+4*(j-1)) for j in range(1, 5)]
    for k in range(len(st[0])):
        for j in range(4):
            for x in st[j][k]: a(x)
    a.raw("L_noB1:")
    for r in wo_reads(WB_): a(r)
    a(f"""
    s_mov_b32 s{sBud}, {POLL_MAX}
    v_lshlrev_b32 v8, 2, v{vG}
    v_sub_u32 v8, v8, v{vR15}
    s_bitcmp1_b32 s{sWAVE}, 0
    s_cselect_b64 s[34:35], -1, 0
    """)
    for i in range(4):
        a(f"""
        v_add_u32 v9, {i}, v8
        v_cmp_lt_i32 vcc, 0, v9
        v_cndmask_b32 v10, v{vNEG}, 0, vcc
        v_cndmask_b32 v11, 0, v{vNEG}, vcc
        v_cndmask_b32 v{0+i}, v10, v{vNEG}, s[34:35]
        v_cndmask_b32 v{4+i}, 0, v10, s[34:35]
        v_cndmask_b32 v{64+i}, v11, 0, s[34:35]
        v_cndmask_b32 v{68+i}, v{vNEG}, v11, s[34:35]
        """)
    for i in range(8): a(f"v_add_u32 v{vWA+i}, {L_WOA}, v{vWA+i}")
    a("s_waitcnt lgkmcnt(0)")
    for x in wo_mask(WB_): a(x)
    a(f"""
    s_cmp_ge_u32 s{sARB}, 2
    s_cbranch_scc1 L_nofix
    s_waitcnt vmcnt(4)
    v_not_b32 v9, v{vQm}
    v_not_b32 v10, v{vQm+1}
    v_and_b32 v9, 0xff7f, v9
    v_and_b32 v10, 0xff7f, v10
    """)
    for i in range(3):
        qmask(KS+4*i)
        a(f"""
        s_cmp_eq_u32 s{sK[i]}, {BIG}
        s_cbranch_scc0 L_fx{i}
        v_or_b32 v{KS+4*i}, v9, v{KS+4*i}
        v_or_b32 v{KS+4*i+2}, v10, v{KS+4*i+2}
        L_fx{i}:
        """)
    a.raw("L_nofix:")
    for i in range(3):
        a(f"s_waitcnt vmcnt({6-i})")
        if i == 0: stamp(5)
        a(f"ds_write_b128 v{vKw}, {q4(KS+4*i)} offset:{1024*i}")
    for i in range(3):
        a(f"s_waitcnt vmcnt({2-i})")
        for r in range(4): a(f"v_or_b32 v{VS+4*i+r}, v{vOn1 if i == 1 else vOn0}, v{VS+4*i+r}")
        a(f"ds_write_b128 v{vKw}, {q4(VS+4*i)} offset:{24576+1024*i}")
    a(f"""
    s_lshr_b32 s3, s{sWAVE}, 2
    s_cmp_gt_u32 s{sBR}, s3
    s_cbranch_scc0 L_noB2
    """)
    for j in range(1, 5):
        a(f"buffer_store_dwordx4 {q4(100+4*(j-1))}, v{vOo}, {srd(sWS)}, s36 offen sc1")
        if j < 4: a("s_add_u32 s36, s36, 16384")
    a.raw("L_noB2:")
    stamp(6)
    qmask(QF)
    a(f"""
    s_cmp_ge_u32 s{sARB}, 2
    s_cbranch_scc1 L_nofixq
    v_not_b32 v9, v{vQm}
    v_not_b32 v10, v{vQm+1}
    v_and_b32 v9, 0x3f80, v9
    v_or_b32 v{QF}, v9, v{QF}
    v_and_b32 v10, 0x3f80, v10
    v_or_b32 v{QF+2}, v10, v{QF+2}
    L_nofixq:
    s_waitcnt lgkmcnt(0)
    s_barrier
    """)
    stamp(12)
    KBUF = 72; NKB = 6
    def kread(t): return f"ds_read_b128 {q4(KBUF + 4*(t % NKB))}, v{vKa} offset:{t*1024}"
    for t in range(NKB - 1): a(kread(t))
    vM, vT = 120, 121
    def mx(t):
        r = 4*t
        if t == 0:
            a(f"v_max_f32 v{vM}, v0, v1"); a(f"v_max_f32 v{vT}, v2, v3")
        else:
            a(f"v_max3_f32 v{vM}, v{vM}, v{r}, v{r+1}"); a(f"v_max3_f32 v{vT}, v{vT}, v{r+2}, v{r+3}")
    LAG = 4
    for t in range(18):
        if t + NKB - 1 < 18: a(kread(t + NKB - 1))
        outstanding = min(18, t + NKB) - (t + 1)
        a(f"s_waitcnt lgkmcnt({outstanding})")
        c = q4(4*t) if t in (0, 1, 16, 17) else "0"
        a(f"v_mfma_f32_16x16x32_bf16 {q4(4*t)}, {q4(KBUF + 4*(t % NKB))}, {q4(QF)}, {c}")
        if t >= LAG: mx(t - LAG)
    VBUF = [96 + 4*i for i in range(6)]
    NVB = len(VBUF)
    WA_ = 0
    ACCB = [64, 68, 72, 76, 80, 84, 88, 92]
    ACCA = [96, 100, 104, 108, 112, 116, 120, 124]
    sNext = 27
    lq = []
    def lds(ins, tag): a(ins); lq.append(tag)
    def lwait(tag):
        last = max(i for i, t in enumerate(lq) if t == tag)
        a(f"s_waitcnt lgkmcnt({min(15, len(lq) - 1 - last)})")
    def vread(n):
        lds(f"ds_read_b128 {q4(VBUF[n % NVB])}, v{vKa} offset:{24576 + (n>>1)*2048 + (n&1)*1024}", ("v", n))
    for n in range(NVB): vread(n)
    for t in range(18 - LAG, 18): mx(t)
    a(f"v_max_f32 v{vM}, v{vM}, v{vT}")
    for sw in ("v_permlane32_swap_b32", "v_permlane16_swap_b32"):
        a(f"v_mov_b32 v{vT}, v{vM}")
        a(f"{sw} v{vM}, v{vT}")
        a(f"v_max_f32 v{vM}, v{vM}, v{vT}")
    a(f"v_mul_f32 v{vM}, v{vC}, v{vM}")
    stamp(7)
    def o_load(f, s0):
        hq, tt = f >> 1, f & 1
        return f"buffer_load_dwordx4 {q4(OF_ + f*4)}, v{vOo}, {srd(sWS)}, s{s0 + tt} offen offset:{hq*1024} sc1"
    def frag(lbl, f, wbase, acc, wait, after):
        hq, tt = f >> 1, f & 1
        r = OF_ + f*4
        a(f"""
        s_cmp_lg_u32 s{sNext}, {f}
        s_cbranch_scc1 L_sk{lbl}{f}
        {wait}
        v_cmp_ne_u32 vcc, v{r+3}, v{vTAG}
        s_lshr_b32 s3, vcc_hi, 16
        s_cbranch_scc1 L_sk{lbl}{f}
        """)
        for cidx in range(4):
            d = acc[tt*4+cidx]
            a(f"v_mfma_f32_16x16x32_bf16 {q4(d)}, {q4(wbase + (hq*4+cidx)*4)}, {q4(r)}, {'0' if f < 2 else q4(d)}")
        a(f"s_add_u32 s{sNext}, s{sNext}, 1")
        if after is not None: a(o_load(f, after))
        a.raw(f"L_sk{lbl}{f}:")
    OACC = 224
    war = wo_reads(WA_); wam = wo_mask(WA_)
    LU, FU = opt.get("lu", 4), opt.get("fu", 5)
    a(f"s_mov_b32 s{sNext}, 0")
    for u in range(9):
        b = 8*u
        for i in range(8): a(f"v_fma_f32 v{b+i}, v{b+i}, v{vC}, -v{vM}")
        if LU <= u < LU + 4:
            for f in (2*(u-LU), 2*(u-LU)+1): a(o_load(f, sOB))
        for i in range(8): a(f"v_exp_f32 v{b+i}, v{b+i}")
        if opt.get('inpv', 0) and FU <= u < FU + 4:
            for f in range(2*(u-FU), 2*(u-FU)+2): frag("P", f, WB_, ACCB, f"s_waitcnt vmcnt({7-f})", None)
        for i in range(4): a(f"v_cvt_pk_bf16_f32 v{b+i}, v{b+2*i}, v{b+2*i+1}")
        lwait(("v", 2*u+1))
        for dt in range(2):
            c = "0" if u == 0 else q4(OACC + 4*dt)
            a(f"v_mfma_f32_16x16x32_bf16 {q4(OACC+4*dt)}, {q4(VBUF[(2*u+dt) % NVB])}, {q4(b)}, {c}")
        for n in (NVB + 2*u, NVB + 1 + 2*u):
            if n < 18: vread(n)
    for x in war: a(x)
    for grp in normalize(OACC, OACC+4, 232, 234, 236):
        for x in grp: a(x)
    a(f"buffer_store_dwordx4 {q4(236)}, v{vOo}, {srd(sWS)}, s33 offen sc1")
    stamp(13)
    a(f"""
    s_cmp_eq_u32 s{sCB}, 7
    s_cbranch_scc1 L_fin
    """)
    vXW, vXR, vOut = 224, 228, 230
    a(f"""
    s_lshl_b32 s3, s{sKQ}, 14
    s_lshl_b32 s35, s{sRP}, 13
    s_add_u32 s35, s35, s3
    v_lshlrev_b32 v231, 8, v{vR15}
    v_add_u32 v231, s35, v231
    v_xor_b32 v232, v{vG}, v{vR15}
    """)
    for cidx in range(4):
        a(f"""
        s_add_u32 s3, s{sKQ}, {cidx}
        s_and_b32 s3, s3, 3
        s_lshl_b32 s3, s3, 2
        v_xor_b32 v234, s3, v232
        v_lshl_add_u32 v{vXW+cidx}, v234, 4, v231
        """)
    a(f"""
    v_lshrrev_b32 v231, 3, v{vL}
    s_lshl_b32 s3, s{sWAVE}, 3
    v_add_u32 v231, s3, v231
    v_and_b32 v232, 7, v{vL}
    v_lshlrev_b32 v234, 1, v232
    v_and_b32 v235, 15, v231
    v_xor_b32 v234, v234, v235
    v_lshlrev_b32 v234, 4, v234
    v_lshl_add_u32 v{vXR}, v231, 8, v234
    v_xor_b32 v{vXR+1}, 16, v{vXR}
    s_lshl_b32 s3, s{sRB64}, 6
    v_add_u32 v231, s3, v231
    v_mul_u32_u24 v231, 1792, v231
    v_lshl_add_u32 v231, v232, 4, v231
    s_lshl_b32 s3, s{sCB}, 7
    v_add_u32 v{vOut}, s3, v231
    """)
    def finish(lbl, wbase, acc, s0, after):
        a(f"""
        s_cmp_eq_u32 s{sNext}, 8
        s_cbranch_scc1 L_done{lbl}
        L_again{lbl}:
        """)
        for f in range(8):
            a(f"s_cmp_gt_u32 s{sNext}, {f}")
            a(f"s_cbranch_scc1 L_rl{lbl}{f}")
            a(o_load(f, s0))
            a.raw(f"L_rl{lbl}{f}:")
        a("s_waitcnt vmcnt(0)")
        a.raw(f"L_first{lbl}:")
        for f in range(8): frag(lbl, f, wbase, acc, "", after)
        a(f"""
        s_cmp_eq_u32 s{sBud}, 0
        s_cbranch_scc1 L_done{lbl}
        s_sub_u32 s{sBud}, s{sBud}, 1
        s_cmp_lg_u32 s{sNext}, 8
        s_cbranch_scc1 L_again{lbl}
        {"s_waitcnt vmcnt(0)" if after is not None else ""}
        L_done{lbl}:
        """)
    def exch_write(acc):
        for tt in range(2):
            for cidx in range(4):
                a(f"ds_write_b128 v{vXW+cidx}, {q4(acc[tt*4+cidx])} offset:{tt*4096}")
        a("s_waitcnt lgkmcnt(0)")
        a("s_barrier")
    def exch_final(RB_, outoff):
        for k in range(4):
            for h in range(2):
                a(f"ds_read_b128 {q4(RB_ + (k*2+h)*4)}, v{vXR+h} offset:{k*16384}")
        a("s_waitcnt lgkmcnt(4)")
        for i in range(8): a(f"v_add_f32 v{RB_+i}, v{RB_+i}, v{RB_+8+i}")
        a("s_waitcnt lgkmcnt(0)")
        for i in range(8): a(f"v_add_f32 v{RB_+16+i}, v{RB_+16+i}, v{RB_+24+i}")
        for i in range(8): a(f"v_add_f32 v{RB_+i}, v{RB_+i}, v{RB_+16+i}")
        for i in range(4): a(f"v_cvt_pk_bf16_f32 v{RB_+8+i}, v{RB_+2*i}, v{RB_+2*i+1}")
        a(f"s_mov_b32 s3, {outoff}")
        a(f"buffer_store_dwordx4 {q4(RB_+8)}, v{vOut}, {srd(sOut)}, s3 offen")
    if not opt.get('inpv', 0):
        for f in range(8): frag("R", f, WB_, ACCB, f"s_waitcnt vmcnt({8-f})", None)
    finish("B", WB_, ACCB, sOB, None)
    stamp(8)
    for f in range(8): a(o_load(f, sOA))
    a(f"s_mov_b32 s{sNext}, 0")
    a("s_waitcnt lgkmcnt(0)")
    for x in wam: a(x)
    a("s_barrier")
    exch_write(ACCB)
    if opt.get("rechk", 1):
        a("s_waitcnt vmcnt(0)")
        for f in range(8):
            a(f"""
            v_cmp_ne_u32 vcc, v{OF_+f*4+3}, v{vTAG}
            s_lshr_b32 s3, vcc_hi, 16
            s_cbranch_scc0 L_ok{f}
            {o_load(f, sOA)}
            L_ok{f}:
            """)
    exch_final(128, 896)
    for i in range(4): a(f"v_add_u32 v{vXW+i}, 65536, v{vXW+i}")
    for i in range(2): a(f"v_add_u32 v{vXR+i}, 65536, v{vXR+i}")
    stamp(14)
    for f in range(8): frag("Q", f, WA_, ACCA, "s_waitcnt vmcnt(1)" if opt.get("rechk", 1) else f"s_waitcnt vmcnt({8-f})", None)
    finish("A", WA_, ACCA, sOA, None)
    stamp(9)
    exch_write(ACCA)
    exch_final(160, 0)
    a.raw("L_fin:")
    if stamps:
        stamp(15)
        a(f"""
        s_sub_u32 s84, {POLL_MAX}, s{sBud}
        s_mul_i32 s84, s84, 100
        s_add_u32 s84, s84, s64
        s_lshl_b32 s3, s2, 3
        s_add_u32 s3, s3, s{sWAVE}
        s_lshl_b32 s3, s3, 6
        s_add_u32 s3, s3, {STAMP}
        v_mov_b32 v1, 0
        s_mov_b64 exec, 1
        """)
        if opt.get("dbgst"):
            ids = [1, 2, 3, 4, 5, 6, 7, 8, 9, 11, 12, 13, 14, 15]
            a("s_not_b32 s3, s64")
            a("v_mov_b32 v2, s3")
            a("global_atomic_umax v1, v2, s[30:31] offset:4")
            for k, i in enumerate(ids):
                a(f"s_sub_u32 s3, s{64+2*i}, s64")
                a("s_cmp_lt_u32 s3, 100000")
                a(f"s_cselect_b32 s3, s{64+2*i}, 0")
                a("v_mov_b32 v2, s3")
                a(f"global_atomic_umax v1, v2, s[30:31] offset:{8+4*k}")
            a("s_endpgm")
        for i in range(16):
            a(f"v_mov_b32 v2, s{64+2*i}")
            a(f"buffer_store_dword v2, v1, {srd(sWS)}, s3 offen offset:{4*i}")
    a.raw("L_end:")
    a("s_endpgm")
    bad = a.check_branches()
    for b in bad: print("BRANCH HAZARD", b, file=sys.stderr)
    assert not bad
    out = HEADER + f"""; @launch grid=(256,1,1) block=(512,1,1) lds=163840
.amdgcn_target "amdgcn-amd-amdhsa--gfx950"
.text
.globl {NAME}_kernel
.p2align 8
.type {NAME}_kernel,@function
""" + a.text() + f""".fill 1280, 4, 0xBF800000
s_endpgm
.section .rodata,"a"
.p2align 6
.amdhsa_kernel {NAME}_kernel
  .amdhsa_next_free_vgpr 256
  .amdhsa_next_free_sgpr 102
  .amdhsa_accum_offset 256
  .amdhsa_group_segment_fixed_size 0
  .amdhsa_kernarg_size 72
  .amdhsa_user_sgpr_count 2
  .amdhsa_user_sgpr_kernarg_segment_ptr 1
  .amdhsa_system_sgpr_workgroup_id_x 1
.end_amdhsa_kernel
"""
    return out

if __name__ == "__main__":
    stamps = int(sys.argv[1]); path = sys.argv[2]
    opt = dict((kv.split("=")[0], int(kv.split("=")[1])) for kv in sys.argv[3:])
    open(path, "w").write(gen(stamps, opt))
```

```python
import sys, struct, math
from asmlib import Asm

NAME = "concat_heads__sliding_block__sliding_local_dilated__prompt"
HEADER = open("cdna_kernels/%s.s.ref" % NAME).read().split("; Override launch")[0]
def f2u(x): return struct.unpack("<I", struct.pack("<f", x))[0]

XB, WB, WOB_BYTES, OUTB = 1835008, 1204224, 401408, 3670016
MB2 = 0x200000
QO, KO, VO = 0, MB2, 2*MB2
BRS = 3*MB2
OA, OB = 6*MB2, 7*MB2
FL1 = 8*MB2
STAMP = 8*MB2 + 0x100000
WSB = 9*MB2
BIG = 0x40000000
NEG = f2u(-1e30)
CSC = f2u((28 ** -0.5) * math.log2(math.e))
SLOT = 40960
L_WOB, L_WOA, L_KV = 0, 57344, 114688
POLL_MAX = 40000

sWAVE, sBR, sLAM, sRB, sAH, sARB, sRB64, sCB, sTAG = 4, 5, 6, 7, 8, 9, 10, 11, 12
sX, sW, sWoA, sWoB, sWS, sOut = 36, 40, 44, 48, 52, 56
def srd(b): return f"s[{b}:{b+3}]"
def q4(r): return f"v[{r}:{r+3}]"
def q2(r): return f"v[{r}:{r+1}]"
def q16(r): return f"v[{r}:{r+15}]"
vL, vL16, vTAG = 255, 254, 253

def gen(stamps=False, opt=None):
    opt = opt or {}
    a = Asm()
    def stamp(i):
        if stamps:
            a(f"s_memrealtime s[{64+2*i}:{65+2*i}]")
            a("s_waitcnt lgkmcnt(0)")
    def mk_srd(d, p, n):
        return f"s_mov_b32 s{d}, s{p}\ns_mov_b32 s{d+1}, s{p+1}\ns_mov_b32 s{d+2}, {n}\ns_mov_b32 s{d+3}, 0x20000\n"
    MAP = f"""
    s_lshr_b32 s{sLAM}, s14, 2
    s_and_b32 s15, s13, 3
    s_lshl_b32 s15, s15, 2
    s_and_b32 s3, s14, 3
    s_add_u32 s{sRB}, s15, s3
    """ if opt.get("map", 0) else f"""
    s_and_b32 s15, s13, 1
    s_lshl_b32 s15, s15, 2
    s_lshr_b32 s3, s14, 3
    s_add_u32 s{sLAM}, s15, s3
    s_and_b32 s15, s13, 2
    s_lshl_b32 s15, s15, 2
    s_and_b32 s3, s14, 7
    s_add_u32 s{sRB}, s15, s3
    """
    TAGC = f"""
    s_or_b32 s3, s2, s{sWAVE}
    s_cmp_lg_u32 s3, 0
    s_cbranch_scc1 L_notag
    s_memrealtime s[34:35]
    s_waitcnt lgkmcnt(0)
    s_and_b32 s35, s34, 0x1fff
    s_lshl_b32 s35, s35, 1
    s_or_b32 s35, s35, 1
    s_bfe_u32 s3, s34, 0xf000d
    s_lshl_b32 s3, s3, 15
    s_or_b32 s35, s35, s3
    s_lshl_b32 s34, s34, 3
    s_and_b32 s34, s34, 0x80000000
    s_or_b32 s34, s34, s35
    v_mov_b32 v4, s34
    v_mov_b32 v5, 0
    s_mov_b64 exec, 1
    global_atomic_cmpswap v1, v[4:5], s[30:31] sc1
    s_mov_b64 exec, -1
    L_notag:
    """
    MAPB = f"""
    s_and_b32 s15, s13, 1
    s_lshl_b32 s15, s15, 2
    s_and_b32 s3, s14, 3
    s_add_u32 s{sLAM}, s15, s3
    s_and_b32 s15, s13, 2
    s_lshl_b32 s15, s15, 2
    s_lshr_b32 s3, s14, 2
    s_add_u32 s{sRB}, s15, s3
    """
    a.raw(f"{NAME}_kernel:")
    a(f"""
    s_cmp_ge_u32 s2, 256
    s_cbranch_scc1 L_end
    s_load_dwordx16 s[16:31], s[0:1], 0
    s_load_dwordx2 s[32:33], s[0:1], 64
    v_lshrrev_b32 v1, 6, v0
    v_and_b32 v{vL}, 63, v0
    v_readfirstlane_b32 s{sWAVE}, v1
    s_and_b32 s13, s2, 7
    s_lshr_b32 s14, s2, 3
    s_lshr_b32 s{sBR}, s13, 2
    s_xor_b32 s{sBR}, s{sBR}, {opt.get('swap', 0)}
    {MAP}
    v_lshlrev_b32 v{vL16}, 4, v{vL}
    v_lshrrev_b32 v1, 3, v{vL}
    v_and_b32 v2, 7, v{vL}
    v_lshrrev_b32 v3, 4, v{vL}
    s_cmp_lg_u32 s{sBR}, 0
    s_cbranch_scc1 L_brB
    s_cmp_lt_u32 s{sWAVE}, 4
    s_cbranch_scc1 L_compute
    """)
    rest_setup = f"""
    s_lshl_b32 s{sAH}, s13, 1
    s_and_b32 s3, s14, 1
    s_add_u32 s{sAH}, s{sAH}, s3
    s_lshr_b32 s{sARB}, s14, 1
    s_lshl_b32 s{sRB64}, s13, 2
    s_lshr_b32 s3, s14, 3
    s_add_u32 s{sRB64}, s{sRB64}, s3
    s_and_b32 s{sCB}, s14, 7
    """ + mk_srd(sWoA, 20, WOB_BYTES) + mk_srd(sWoB, 26, WOB_BYTES) + mk_srd(sWS, 32, WSB) + mk_srd(sOut, 28, OUTB)
    def prefetch(l):
        if not opt.get("pf", 1): return
        a(f"""
        s_cmp_lg_u32 s{sWAVE}, 1
        s_cbranch_scc1 L_notouch{l}
        v_min_u32 v4, 8, v{vL}
        v_lshlrev_b32 v4, 21, v4
        v_add_u32 v4, 0x1ff780, v4
        buffer_load_dword v217, v4, {srd(sWS)}, 0 offen sc1
        v_and_b32 v4, 1, v{vL}
        v_lshlrev_b32 v4, 21, v4
        buffer_load_dword v218, v4, {srd(sOut)}, 0 offen
        L_notouch{l}:
        s_and_b32 s3, s14, 15
        s_lshl_b32 s34, s{sWAVE}, 4
        s_or_b32 s3, s3, s34
        s_cmp_lg_u32 s3, 0x2f
        s_cbranch_scc1 L_nocode{l}
        s_getpc_b64 s[34:35]
        L_pc{l}:
        s_sub_u32 s34, s34, L_pc{l}-{NAME}_kernel
        s_subb_u32 s35, s35, 0
        v_lshlrev_b32 v4, 7, v{vL}
        global_load_dword v217, v4, s[34:35]
        v_add_u32 v4, 8192, v4
        global_load_dword v218, v4, s[34:35]
        v_add_u32 v4, 8192, v4
        global_load_dword v219, v4, s[34:35]
        L_nocode{l}:
        """)
    def get_tag(lbl):
        a(f"""
        s_mov_b32 s35, {POLL_MAX}
        L_tag{lbl}:
        v_readfirstlane_b32 s{sTAG}, v{vTAG}
        s_cmp_lg_u32 s{sTAG}, 0
        s_cbranch_scc1 L_tagok{lbl}
        v_mov_b32 v227, 0
        global_load_dword v{vTAG}, v227, s[30:31] sc1
        s_sub_u32 s35, s35, 1
        s_waitcnt vmcnt(0)
        s_cmp_lg_u32 s35, 0
        s_cbranch_scc1 L_tag{lbl}
        L_tagok{lbl}:
        """)
    def poll(lbl, vaddr, vd):
        a(f"""
        s_mov_b32 s35, {POLL_MAX}
        L_poll{lbl}:
        buffer_load_dword v{vd}, v{vaddr}, {srd(sWS)}, s15 offen sc1
        s_sub_u32 s35, s35, 1
        s_waitcnt vmcnt(0)
        v_cmp_ne_u32 vcc, v{vd}, v{vTAG}
        s_cmp_eq_u32 s35, 0
        s_cbranch_scc1 L_pollok{lbl}
        s_cbranch_vccz L_pollok{lbl}
        s_branch L_poll{lbl}
        L_pollok{lbl}:
        """)
    sRP, sKQ, sT, sU = 60, 61, 62, 63
    vR15, vG, vWA, vMG, vV0, vC = 240, 241, 242, 250, 251, 252
    vNEG, vKa, vKw = 237, 239, 238
    vKq, vOo, vVa, vVb, vOne = 232, 233, 234, 235, 236
    vQm, vOn0, vOn1, vV1 = 228, 230, 231, 226
    sHB, sHQ, sP = 98, 100, 99
    sK = [16, 17, 18, 19, 20, 21]; sV = [22, 23, 24, 25, 26, 27]; sQA = 32
    sOB, sOA = 96, 28
    t0, t1, t2, t3, t4 = 220, 221, 222, 223, 224
    vPA = 225
    FLV = 64*16*128
    p2common = f"""
    s_and_b32 s{sRP}, s{sWAVE}, 1
    s_lshr_b32 s{sKQ}, s{sWAVE}, 1
    v_and_b32 v{vR15}, 15, v{vL}
    v_lshrrev_b32 v{vG}, 4, v{vL}
    v_cmp_gt_u32 vcc, 48, v{vL}
    v_cndmask_b32 v{vMG}, 0, -1, vcc
    v_lshrrev_b32 v{t0}, 2, v{vR15}
    v_lshl_add_u32 v{t1}, v{vG}, 2, v{t0}
    v_lshlrev_b32 v{t1}, 7, v{t1}
    s_mul_i32 s3, s{sKQ}, 14336
    v_add_u32 v{t1}, s3, v{t1}
    v_and_b32 v{t2}, 2, v{t0}
    v_and_b32 v{t3}, 1, v{vG}
    v_lshl_or_b32 v{t2}, v{t3}, 2, v{t2}
    v_lshlrev_b32 v{t2}, 4, v{t2}
    v_and_b32 v{t3}, 3, v{vL}
    v_lshlrev_b32 v{t4}, 3, v{t3}
    v_xor_b32 v{t2}, v{t2}, v{t4}
    v_add_u32 v{t1}, v{t1}, v{t2}
    v_and_b32 v{t2}, 2048, v{vMG}
    """ + "".join(f"""
    s_add_u32 s3, s{sKQ}, {c}
    s_and_b32 s3, s3, 3
    s_lshl_b32 s3, s3, 5
    v_xor_b32 v{vWA+c}, s3, v{t1}
    v_add_u32 v{vWA+4+c}, v{vWA+c}, v{t2}
    """ for c in range(4)) + f"""
    v_mov_b32 v{t4}, {BIG}
    v_lshlrev_b32 v{vKq}, 9, v{vG}
    v_lshl_add_u32 v{vKq}, v{vR15}, 4, v{vKq}
    v_lshlrev_b32 v{vOo}, 6, v{vR15}
    v_lshl_add_u32 v{vOo}, v{vG}, 4, v{vOo}
    v_lshlrev_b32 v{vVa}, 8, v{t0}
    v_lshl_add_u32 v{vVa}, v{vG}, 6, v{vVa}
    v_lshl_add_u32 v{vVa}, v{t3}, 4, v{vVa}
    v_add_u32 v{vVb}, 1024, v{vVa}
    v_cmp_gt_u32 vcc, 12, v{vR15}
    v_cndmask_b32 v{vVb}, v{t4}, v{vVb}, vcc
    v_cmp_eq_u32 vcc, 12, v{vR15}
    v_mov_b32 v{t4}, 0x3f803f80
    v_cndmask_b32 v{vOne}, 0, v{t4}, vcc
    v_mov_b32 v{vC}, {CSC}
    v_mov_b32 v{vNEG}, {NEG}
    s_and_b32 s3, s{sWAVE}, 6
    s_lshl_b32 s3, s3, 10
    s_add_u32 s3, s3, {L_KV}
    v_add_u32 v{vKa}, s3, v{vL16}
    s_mul_i32 s3, s{sAH}, 7
    s_lshr_b32 s{sHQ}, s3, 1
    s_lshl_b32 s{sHQ}, s{sHQ}, 9
    s_lshl_b32 s{sHB}, s3, 8
    v_cmp_lt_u32 vcc, 15, v{vL}
    v_cndmask_b32 v{t0}, 0, -1, vcc
    s_bitcmp1_b32 s{sAH}, 0
    s_cselect_b64 vcc, -1, 0
    v_cndmask_b32 v{vQm}, -1, v{t0}, vcc
    v_cndmask_b32 v{vQm+1}, v{vMG}, -1, vcc
    s_mul_i32 s3, s{sWAVE}, 3
    s_lshl_b32 s{sT}, s{sARB}, 3
    s_sub_u32 s{sT}, s{sT}, 16
    s_add_u32 s{sT}, s{sT}, s3
    s_lshl_b32 s3, s3, 10
    s_add_u32 s3, s3, {L_KV}
    v_add_u32 v{vKw}, s3, v{vL16}
    v_subrev_u32 v{t0}, 1024, v{vVb}
    s_bitcmp1_b32 s{sWAVE}, 0
    s_cselect_b64 vcc, -1, 0
    v_cndmask_b32 v{vV0}, v{vVa}, v{t0}, vcc
    v_cndmask_b32 v{vV1}, v{t0}, v{vVa}, vcc
    v_cndmask_b32 v{vOn0}, 0, v{vOne}, vcc
    v_cndmask_b32 v{vOn1}, v{vOne}, 0, vcc
    """ + "".join(f"""
    s_ashr_i32 s34, s{sT}, 1
    s_mul_i32 s34, s34, 28672
    s_and_b32 s35, s{sT}, 1
    s_lshl_b32 s3, s35, 10
    s_add_u32 s3, s3, s34
    s_add_u32 s3, s3, s{sHB}
    s_add_u32 s3, s3, {VO}
    s_lshl_b32 s35, s35, 8
    s_add_u32 s35, s35, s34
    s_add_u32 s35, s35, s{sHQ}
    s_add_u32 s35, s35, {KO}
    s_cmp_lt_i32 s{sT}, 0
    s_cselect_b32 s{sV[i]}, {BIG}, s3
    s_cselect_b32 s{sK[i]}, {BIG}, s35
    s_add_u32 s{sT}, s{sT}, 1
    """ for i in range(3)) + f"""
    s_lshl_b32 s3, s{sARB}, 3
    s_add_u32 s3, s3, s{sWAVE}
    s_lshr_b32 s34, s3, 1
    s_mul_i32 s34, s34, 28672
    s_and_b32 s35, s3, 1
    s_lshl_b32 s35, s35, 8
    s_add_u32 s35, s35, s34
    s_add_u32 s{sQA}, s35, s{sHQ}
    s_lshl_b32 s3, s3, 4
    s_add_u32 s3, s3, s{sAH}
    s_lshl_b32 s3, s3, 10
    s_add_u32 s33, s3, {OA}
    s_mul_i32 s3, s{sAH}, 7
    s_lshr_b32 s34, s3, 3
    s_add_u32 s3, s3, 6
    s_lshr_b32 s35, s3, 3
    s_sub_u32 s35, s35, s34
    v_and_b32 v{t0}, 1, v{vL}
    v_mul_u32_u24 v{t0}, s35, v{t0}
    v_add_u32 v{t0}, s34, v{t0}
    v_min_u32 v{t1}, 11, v{vL}
    v_lshrrev_b32 v{t1}, 1, v{t1}
    s_lshl_b32 s3, s{sARB}, 1
    s_sub_u32 s3, s3, 4
    v_add_u32 v{t1}, s3, v{t1}
    v_max_i32 v{t1}, 0, v{t1}
    v_lshl_add_u32 v{t1}, v{t1}, 4, v{t0}
    v_lshlrev_b32 v{vPA}, 7, v{t1}
    s_lshl_b32 s3, s{sRB64}, 2
    s_lshl_b32 s35, s{sRP}, 1
    s_add_u32 s3, s3, s35
    s_lshl_b32 s3, s3, 4
    s_lshl_b32 s35, s{sKQ}, 2
    s_add_u32 s3, s3, s35
    s_lshl_b32 s3, s3, 10
    s_add_u32 s{sOB}, s3, {OB}
    s_add_u32 s{sOB+1}, s{sOB}, 16384
    s_add_u32 s{sOA}, s3, {OA}
    s_add_u32 s{sOA+1}, s{sOA}, 16384
    s_mov_b32 s15, {FL1}
    """
    def normalize(O0, O1, ta, tb, dst):
        return [
            [f"v_mov_b32 v{ta}, v{O1}", f"v_mov_b32 v{tb}, v{O1}"],
            [f"v_permlane32_swap_b32 v{ta}, v{tb}"],
            [f"v_mov_b32 v{ta}, v{tb}"],
            [f"v_permlane16_swap_b32 v{ta}, v{tb}"],
            [f"v_rcp_f32 v{tb}, v{tb}"],
            [f"v_mul_f32 v{O0+i}, v{O0+i}, v{tb}" for i in range(4)] + [f"v_mul_f32 v{O1+i}, v{O1+i}, v{tb}" for i in range(4)],
            [f"v_cvt_pk_bf16_f32 v{dst}, v{O0}, v{O0+1}", f"v_cvt_pk_bf16_f32 v{dst+1}, v{O0+2}, v{O0+3}",
             f"v_cvt_pk_bf16_f32 v{dst+2}, v{O1}, v{O1+1}", f"v_cvt_pk_bf16_f32 v{dst+3}, v{O1+2}, v{O1+3}"],
            [f"v_bfi_b32 v{dst+3}, v{vMG}, v{dst+3}, v{vTAG}"],
        ]
    vXe, vXo, vW0, vW1, vWo, vPw = 10, 11, 13, 14, 15, 17
    sLW, sLx, sLw, sT0, sT1 = 96, 97, 101, 34, 35
    sLwo, sL1k = 14, 15
    a(f"""
    s_sub_u32 s{sLW}, s{sWAVE}, 4
    s_lshl_b32 s{sT0}, s{sRB}, 7
    s_lshl_b32 s{sT1}, s{sLW}, 5
    s_add_u32 s{sT0}, s{sT0}, s{sT1}
    v_add_u32 v4, s{sT0}, v1
    v_mul_u32_u24 v4, 896, v4
    v_xor_b32 v5, v2, v3
    v_lshl_add_u32 v{vXe}, v5, 4, v4
    v_xor_b32 v5, 4, v5
    v_lshl_add_u32 v{vXo}, v5, 4, v4
    v_add_u32 v{vXo}, 6144, v{vXo}
    s_lshl_b32 s{sLx}, s{sLW}, 12
    s_lshl_b32 s{sLw}, s{sLW}, 11
    s_lshl_b32 s{sT1}, s{sLW}, 4
    v_add_u32 v4, s{sT1}, v1
    v_mul_u32_u24 v4, 2688, v4
    s_lshl_b32 s{sT1}, s{sLAM}, 7
    v_add_u32 v4, s{sT1}, v4
    v_and_b32 v5, 1, v3
    v_lshlrev_b32 v5, 2, v5
    v_xor_b32 v5, v2, v5
    v_lshl_add_u32 v{vW0}, v5, 4, v4
    v_add_u32 v{vW1}, {8*2688-1024}, v{vW0}
    s_mov_b32 s{sX+2}, {XB}
    s_mov_b32 s{sX+3}, 0x20000
    s_mov_b32 s{sW+2}, {WB}
    s_mov_b32 s{sW+3}, 0x20000
    s_waitcnt lgkmcnt(0)
    s_mov_b32 s{sX}, s16
    s_mov_b32 s{sX+1}, s17
    s_mov_b32 s{sW}, s18
    s_mov_b32 s{sW+1}, s19
    """)
    stamp(0)
    a(f"""
    s_cmp_eq_u32 s{sLAM}, 7
    s_cbranch_scc1 L_ld_idle
    """)
    order = []
    def D(c):
        slot = ((c + 1) % 4) * SLOT
        a(f"""
        s_add_u32 m0, s{sLx}, {slot}
        s_mov_b32 s{sT0}, {c*128}
        s_mov_b32 s{sT1}, {c*128 + 12288}
        buffer_load_dwordx4 v{vXe}, {srd(sX)}, s{sT0} offen lds
        buffer_load_dwordx4 v{vXo}, {srd(sX)}, s{sT0} offen offset:1024 lds
        buffer_load_dwordx4 v{vXe}, {srd(sX)}, s{sT1} offen offset:2048 lds
        buffer_load_dwordx4 v{vXo}, {srd(sX)}, s{sT1} offen offset:3072 lds
        """)
        for p in (1, 2, 0):
            a(f"""
            s_add_u32 m0, s{sLw}, {slot + 16384 + p*8192}
            s_mov_b32 s{sT1}, {c*64*2688 + p*896}
            buffer_load_dwordx4 v{vW0}, {srd(sW)}, s{sT1} offen lds
            buffer_load_dwordx4 v{vW1}, {srd(sW)}, s{sT1} offen offset:1024 lds
            """)
        order.extend([c] * 10)
    def Wt(c):
        last = max(i for i, o in enumerate(order) if o == c)
        a(f"s_waitcnt vmcnt({len(order) - 1 - last})")
        if c == 0: stamp(1)
        a("s_barrier")
    wo_setup = rest_setup + f"""
    v_and_b32 v5, 6, v1
    v_xor_b32 v5, v2, v5
    v_mul_u32_u24 v4, 896, v1
    s_lshl_b32 s{sT1}, s{sCB}, 7
    v_add_u32 v4, s{sT1}, v4
    v_lshl_add_u32 v{vWo}, v5, 4, v4
    s_cmp_eq_u32 s{sCB}, 7
    s_cselect_b64 vcc, -1, 0
    v_mov_b32 v7, {BIG}
    v_cndmask_b32 v{vWo}, v{vWo}, v7, vcc
    v_mov_b32 v1, 0
    s_mul_i32 s3, s14, 98
    s_and_b32 s{sT1}, s{sLW}, 1
    s_mul_i32 s{sT1}, s{sT1}, 49
    s_add_u32 s3, s3, s{sT1}
    v_min_u32 v4, 48, v{vL}
    v_add_u32 v4, s3, v4
    v_lshlrev_b32 v{vPw}, 7, v4
    s_mul_i32 s{sLwo}, s{sLW}, 7168
    s_lshl_b32 s{sL1k}, s{sLW}, 10
    global_load_dword v{vTAG}, v1, s[30:31] sc1
    """
    def issue_wo(i0, i1):
        for i in range(i0, i1):
            br = i >= 14
            a(f"""
            s_add_u32 m0, s{sL1k}, {4096*i}
            s_add_u32 s{sT1}, s{sLwo}, {(4*i - 56*br)*7168}
            buffer_load_dwordx4 v{vWo}, {srd(sWoA if br else sWoB)}, s{sT1} offen lds
            """)
            order.append("wo")
    vPf = 16
    sPS, sPO = 60, 61
    PFN = " nt" if opt.get("pnt", 0) else ""
    def pf_setup(wmul):
        a(f"""
        s_and_b32 s{sT0}, s13, 2
        s_lshl_b32 s{sT0}, s{sT0}, 9
        s_lshl_b32 s{sT1}, s14, 5
        s_add_u32 s{sT0}, s{sT0}, s{sT1}
        v_min_u32 v4, 31, v{vL}
        v_add_u32 v4, s{sT0}, v4
        v_mul_u32_u24 v{vPf}, 896, v4
        v_min_u32 v4, 23, v{vL}
        v_cmp_le_u32 vcc, 12, v4
        v_cndmask_b32 v5, 0, 1, vcc
        v_mul_u32_u24 v6, 12, v5
        v_sub_u32 v6, v4, v6
        s_lshl_b32 s{sT0}, s14, 1
        v_add_u32 v5, s{sT0}, v5
        v_mul_u32_u24 v5, 2688, v5
        v_lshrrev_b32 v4, 2, v6
        v_mul_u32_u24 v4, 896, v4
        v_add_u32 v5, v5, v4
        v_and_b32 v6, 3, v6
        v_lshl_add_u32 v5, v6, 7, v5
        s_and_b32 s{sT0}, s13, 1
        s_mul_i32 s{sT0}, s{sT0}, {wmul}
        v_add_u32 v5, s{sT0}, v5
        s_bitcmp1_b32 s{sLW}, 0
        s_cselect_b64 vcc, -1, 0
        s_mov_b32 s{sPS}, 128
        s_cselect_b32 s{sPS}, 172032, s{sPS}
        s_cselect_b32 s44, s{sW}, s{sX}
        s_cselect_b32 s45, s{sW+1}, s{sX+1}
        s_cselect_b32 s46, s{sW+2}, s{sX+2}
        s_mov_b32 s47, 0x20000
        v_cndmask_b32 v{vPf}, v{vPf}, v5, vcc
        s_lshr_b32 s{sPO}, s{sLW}, 1
        s_add_u32 s{sPO}, s{sPO}, 1
        s_mul_i32 s{sPO}, s{sPO}, s{sPS}
        s_lshl_b32 s{sPS}, s{sPS}, 1
        """)
    def pf():
        a(f"""
        buffer_load_dword v20, v{vPf}, s[44:47], s{sPO} offen{PFN}
        s_add_u32 s{sPO}, s{sPO}, s{sPS}
        """)
        order.append("pf")
    PMA, PMB = opt.get("pma", 0), opt.get("pmb", 2)
    def head(Dx, wmul):
        PM = PMA if wmul == 512 else PMB
        if PM == 0: Dx(0); Dx(1); Wt(0); Dx(2); Wt(1); Dx(3)
        elif PM == 1: Dx(0); pf_setup(wmul); pf(); Dx(1); Wt(0); Dx(2); pf(); pf(); Wt(1); Dx(3)
        elif PM == 2: Dx(0); pf_setup(wmul); pf(); Dx(1); Wt(0); pf(); Dx(2); Wt(1); pf(); Dx(3)
        elif PM == 3: Dx(0); pf_setup(wmul); pf(); pf(); pf(); Dx(1); Wt(0); Dx(2); Wt(1); Dx(3)
    def pf_wo(l):
        if opt.get("nopw"): return
        a(f"""
        s_cmp_lt_u32 s{sLW}, 2
        s_cbranch_scc1 L_pwB{l}
        buffer_load_dword v20, v{vPw}, {srd(sWoA)}, 0 offen
        s_branch L_pwD{l}
        L_pwB{l}:
        buffer_load_dword v20, v{vPw}, {srd(sWoB)}, 0 offen
        L_pwD{l}:
        """)
        order.append("pfw")
    head(D, 512)
    a(wo_setup); order.append("tag")
    if opt.get("seq", 0) == 1:
        Wt(2); D(4); Wt(3); D(5); pf_wo(0); Wt(4); D(6); issue_wo(0, 10); Wt(5); issue_wo(10, 20); Wt(6)
    elif opt.get("seq", 0) == 0:
        Wt(2); D(4); Wt(3); D(5); Wt(4); D(6); pf_wo(0); Wt(5)
        DEF = opt.get("defer", 3)
        if DEF < 4: issue_wo(0, 10)
        Wt(6)
        if DEF >= 2: a("s_barrier")
        if DEF == 4: issue_wo(0, 10)
        issue_wo(10, 20)
        if DEF == 1: a("s_barrier")
    else:
        Wt(2); D(4); Wt(3); D(5); Wt(4); D(6); pf_wo(0); Wt(5); issue_wo(0, 14); Wt(6); a("s_sleep 16"); issue_wo(14, 20)
    a("s_branch L_ld2")
    a.raw("L_ld_idle:")
    if PMA: pf_setup(512); pf(); pf(); pf()
    a(wo_setup)
    pf_wo(1)
    issue_wo(0, 20)
    a.raw("L_ld2:")
    issue_wo(20, 28)
    a(p2common)
    a("s_waitcnt vmcnt(28)" if opt.get("nowait", 0) else "s_waitcnt vmcnt(0)")
    get_tag("l")
    a(f"""
    s_cmp_lg_u32 s{sWAVE}, 7
    s_cbranch_scc1 L_pollok1
    """)
    poll("1", vPA, 9)
    stamp(2)
    a("s_branch L_phase2")

    a.raw("L_compute:")
    sCH, sRH = 96, 97
    sSQ, sSK, sSV, sSQh, sSKh, sFl = 36, 37, 38, 39, 40, 41
    def Acc(p, rt): return p*32 + rt*16
    def Fx(s, rt): return 96 + 20*s + 4*rt
    def Fw(s, p): return 96 + 20*s + 8 + 4*p
    vxa = [200, 201, 202, 203]; vwa = 204
    vQo, vVo = 205, 206
    slot0 = SLOT
    a(f"""
    s_waitcnt lgkmcnt(0)
    v_mov_b32 v1, 0
    {'' if opt.get('swap', 0) else TAGC}
    """)
    stamp(0)
    a(rest_setup)
    prefetch('a')
    a(f"""
    s_and_b32 s{sCH}, s{sWAVE}, 1
    s_lshr_b32 s{sRH}, s{sWAVE}, 1
    s_cmp_eq_u32 s{sLAM}, 7
    s_cbranch_scc1 L_cmp_idle
    v_and_b32 v2, 31, v{vL}
    v_lshrrev_b32 v3, 5, v{vL}
    v_bfe_u32 v4, v{vL}, 2, 2
    s_lshl_b32 s3, s{sLAM}, 1
    s_add_u32 s3, s3, s{sCH}
    s_lshl_b32 s34, s3, 11
    v_add_u32 v{vQo}, s34, v{vL16}
    v_bfe_u32 v6, v{vL}, 4, 1
    v_lshlrev_b32 v6, 2, v6
    v_and_b32 v7, 1, v4
    v_lshl_add_u32 v6, v7, 1, v6
    v_lshrrev_b32 v7, 1, v4
    v_add_u32 v6, v6, v7
    v_lshl_add_u32 v7, v6, 8, s34
    v_lshl_add_u32 v7, v3, 6, v7
    v_and_b32 v8, 3, v{vL}
    v_lshl_add_u32 v{vVo}, v8, 4, v7
    s_lshl_b32 s34, s{sRB}, 1
    s_add_u32 s34, s34, s{sRH}
    s_mul_i32 s{sSQ}, s34, 57344
    s_add_u32 s{sSQh}, s{sSQ}, 28672
    s_add_u32 s{sSK}, s{sSQ}, {KO}
    s_add_u32 s{sSKh}, s{sSQh}, {KO}
    s_add_u32 s{sSV}, s{sSQ}, {VO}
    s_add_u32 s15, s{sSQh}, {VO}
    s_lshl_b32 s34, s34, 4
    s_add_u32 s34, s34, s3
    s_lshl_b32 s34, s34, 7
    s_add_u32 s{sFl}, s34, {FL1}
    """)
    def qkv_stores(data):
        for p, lo, hi in ((1, sSK, sSKh), (2, None, None), (0, sSQ, sSQh)):
            for rt in range(2):
                for half in range(2):
                    d = data(p, rt, half)
                    if p == 2: a(f"buffer_store_dwordx4 {q4(d)}, v{vVo}, {srd(sWS)}, s{sSV} offen offset:{rt*2048 + half*128} sc1")
                    else: a(f"buffer_store_dwordx4 {q4(d)}, v{vQo}, {srd(sWS)}, s{hi if half else lo} offen offset:{rt*512} sc1")
    a(f"""
    global_load_dword v{vTAG}, v1, s[30:31] sc1
    s_lshl_b32 s3, s{sRH}, 6
    v_add_u32 v5, s3, v2
    v_lshlrev_b32 v5, 7, v5
    v_bfe_u32 v6, v2, 1, 3
    v_xor_b32 v6, v6, v3
    v_lshl_add_u32 v{vxa[0]}, v6, 4, v5
    v_add_u32 v{vxa[0]}, {slot0}, v{vxa[0]}
    v_xor_b32 v{vxa[1]}, 32, v{vxa[0]}
    v_xor_b32 v{vxa[2]}, 64, v{vxa[0]}
    v_xor_b32 v{vxa[3]}, 96, v{vxa[0]}
    v_lshl_add_u32 v6, v3, 3, v4
    v_lshlrev_b32 v6, 7, v6
    v_add_u32 v6, {slot0 + 16384}, v6
    v_bfe_u32 v7, v{vL}, 4, 1
    v_lshlrev_b32 v7, 5, v7
    v_and_b32 v8, 1, v{vL}
    v_lshl_or_b32 v7, v8, 4, v7
    v_bfe_u32 v8, v{vL}, 1, 1
    v_lshl_or_b32 v7, v8, 3, v7
    s_lshl_b32 s3, s{sCH}, 6
    v_or_b32 v7, s3, v7
    v_and_b32 v8, 2, v4
    v_lshlrev_b32 v8, 5, v8
    v_xor_b32 v7, v7, v8
    v_add_u32 v{vwa}, v6, v7
    """)
    def reads(s, ks):
        L = [f"ds_read_b128 {q4(Fx(s,rt))}, v{vxa[ks]} offset:{rt*4096}" for rt in range(2)]
        for p in (1, 2, 0):
            for u in range(2):
                L.append(f"ds_read_b64_tr_b16 {q2(Fw(s, p) + 2*u)}, v{vwa} offset:{p*8192 + ks*2048 + u*512}")
        return L
    def kstep(s, rd, extra=(), zero=False):
        M = []
        for p in (1, 2, 0):
            for rt in range(2):
                A, B = (Fx(s,rt), Fw(s,p)) if p == 2 else (Fw(s,p), Fx(s,rt))
                M.append(f"v_mfma_f32_32x32x16_bf16 {q16(Acc(p,rt))}, {q4(A)}, {q4(B)}, {'0' if zero else q16(Acc(p,rt))}")
        per = [3, 3, 2, 0, 0, 0]
        k = 0
        extra = list(extra)
        for i, m in enumerate(M):
            a(m)
            for _ in range(per[i]):
                if k < len(rd): a(rd[k]); k += 1
            if i >= 3:
                for _ in range(4):
                    if extra: a(extra.pop(0))
        for e in extra: a(e)
    sC, sD = 42, 43
    a("s_barrier")
    stamp(1)
    for r in reads(0, 0): a(r)
    a(f"s_mov_b32 s{sC}, 0")
    ex0 = [f"s_and_b32 s3, s{sC}, 3", f"s_cmp_eq_u32 s3, 2", f"s_mov_b32 s{sD}, {SLOT}",
           f"s_cselect_b32 s{sD}, {(-3*SLOT) & 0xffffffff}, s{sD}",
           f"v_add_u32 v{vxa[0]}, s{sD}, v{vxa[0]}", f"v_add_u32 v{vxa[1]}, s{sD}, v{vxa[1]}"]
    a("s_waitcnt lgkmcnt(0)")
    kstep(0, reads(1, 1), ex0, zero=True)
    a("s_branch L_gemm1")
    a.raw("L_gemm:")
    a("s_waitcnt lgkmcnt(0)")
    kstep(0, reads(1, 1), ex0)
    a.raw("L_gemm1:")
    a("s_waitcnt lgkmcnt(0)")
    kstep(1, reads(0, 2), [f"v_add_u32 v{vxa[2]}, s{sD}, v{vxa[2]}"])
    a("s_waitcnt lgkmcnt(0)")
    kstep(0, reads(1, 3), [f"v_add_u32 v{vxa[3]}, s{sD}, v{vxa[3]}", f"v_add_u32 v{vwa}, s{sD}, v{vwa}",
                           f"s_add_u32 s{sC}, s{sC}, 1", f"s_cmp_lt_u32 s{sC}, 6"])
    a("s_waitcnt lgkmcnt(0)")
    a("s_barrier")
    kstep(1, reads(0, 0))
    a("s_cbranch_scc1 L_gemm")
    def cvt(d, s0): a(f"v_cvt_pk_bf16_f32 v{d}, v{s0}, v{s0+1}")
    def mf(p, rt, ks):
        A, B = (Fx(ks,rt), Fw(ks,p)) if p == 2 else (Fw(ks,p), Fx(ks,rt))
        return f"v_mfma_f32_32x32x16_bf16 {q16(Acc(p,rt))}, {q4(A)}, {q4(B)}, {q16(Acc(p,rt))}"
    rd = []
    for ks in (1, 2, 3):
        r = reads(ks, ks); rd += r[0:4]
    for ks in (1, 2, 3): rd += reads(ks, ks)[6:8]
    for ks in (1, 2, 3): rd += reads(ks, ks)[4:6]
    a("s_waitcnt vmcnt(0) lgkmcnt(0)")
    k = 0
    for p in (1, 0, 2):
        for rt in range(2):
            a(mf(p, rt, 0))
            for _ in range(3): a(rd[k]); k += 1
    def epi(p):
        L = []
        for rt in range(2):
            for half in range(2):
                if p == 2:
                    d = 176 + (rt*2+half)*4; s0 = Acc(2, rt) + 4*half
                    L += [f"v_cvt_pk_bf16_f32 v{d}, v{s0}, v{s0+1}", f"v_cvt_pk_bf16_f32 v{d+1}, v{s0+2}, v{s0+3}",
                          f"v_cvt_pk_bf16_f32 v{d+2}, v{s0+8}, v{s0+9}", f"v_cvt_pk_bf16_f32 v{d+3}, v{s0+10}, v{s0+11}",
                          f"buffer_store_dwordx4 {q4(d)}, v{vVo}, {srd(sWS)}, s{15 if rt else sSV} offen offset:{half*128} sc1"]
                else:
                    d = Acc(p, rt) + 8*half
                    lo, hi = (sSK, sSKh) if p == 1 else (sSQ, sSQh)
                    L += [f"v_cvt_pk_bf16_f32 v{d+i}, v{d+2*i}, v{d+2*i+1}" for i in range(4)]
                    L += [f"buffer_store_dwordx4 {q4(d)}, v{vQo}, {srd(sWS)}, s{hi if rt else lo} offen offset:{half*1024} sc1"]
        return L
    for n, ks in enumerate((1, 2, 3)):
        a(f"s_waitcnt lgkmcnt({min(15, k - 4*(n+1))})")
        for rt in range(2):
            a(mf(1, rt, ks))
            if k < 24: a(rd[k]); k += 1
    pend = epi(1)
    for p, nxt, base in ((0, 0, 12), (2, None, 18)):
        for n, ks in enumerate((1, 2, 3)):
            a(f"s_waitcnt lgkmcnt({24 - base - 2*(n+1)})")
            for rt in range(2):
                a(mf(p, rt, ks))
                if n or rt:
                    for _ in range(4):
                        if pend: a(pend.pop(0))
        for x in pend: a(x)
        pend = epi(p)
    stamp(3)
    for x in pend: a(x)
    if opt.get("defer", 3) in (1, 2): a("s_barrier")
    stamp(2)
    a("v_mov_b32 v227, 0")
    a("s_waitcnt vmcnt(0)")
    get_tag("c")
    a(f"""
    s_mov_b64 exec, 1
    buffer_store_dword v{vTAG}, v227, {srd(sWS)}, s{sFl} offen sc1
    s_mov_b64 exec, -1
    """)
    stamp(4)
    if opt.get("defer", 3) >= 3: a("s_barrier")
    a("s_branch L_cmp2")
    a.raw("L_cmp_idle:")
    a(f"global_load_dword v{vTAG}, v1, s[30:31] sc1")
    a("s_waitcnt vmcnt(0)")
    get_tag("i")
    a.raw("L_cmp2:")
    a(p2common)
    a("s_branch L_phase2")
    a.raw("L_brB:")
    SLB = 43008
    SB0 = 34816
    a(MAPB)
    a(f"""
    s_cmp_lt_u32 s{sWAVE}, 4
    s_cbranch_scc1 L_cmpB
    """)
    vXh = 12
    sLh = 63
    a(f"""
    s_sub_u32 s{sLW}, s{sWAVE}, 4
    s_lshl_b32 s{sT0}, s{sRB}, 7
    s_lshl_b32 s{sT1}, s{sLW}, 5
    s_add_u32 s{sT0}, s{sT0}, s{sT1}
    v_add_u32 v4, s{sT0}, v1
    v_mul_u32_u24 v4, 896, v4
    v_xor_b32 v5, v2, v3
    v_lshl_add_u32 v{vXe}, v5, 4, v4
    v_xor_b32 v5, 4, v5
    v_lshl_add_u32 v{vXo}, v5, 4, v4
    v_add_u32 v{vXo}, 6144, v{vXo}
    s_lshl_b32 s{sLx}, s{sLW}, 12
    s_lshl_b32 s{sLw}, s{sLW}, 11
    s_lshl_b32 s{sLh}, s{sLW}, 9
    s_lshl_b32 s{sT1}, s{sLW}, 4
    v_add_u32 v4, s{sT1}, v1
    v_mul_u32_u24 v4, 2688, v4
    s_mul_i32 s{sT1}, s{sLAM}, 112
    v_add_u32 v4, s{sT1}, v4
    v_and_b32 v5, 1, v3
    v_lshlrev_b32 v5, 1, v5
    v_xor_b32 v5, v2, v5
    v_mov_b32 v7, {BIG}
    v_lshl_add_u32 v{vW0}, v5, 4, v4
    v_cmp_eq_u32 vcc, 7, v5
    v_xor_b32 v6, 4, v5
    v_cndmask_b32 v{vW0}, v{vW0}, v7, vcc
    v_lshl_add_u32 v{vW1}, v6, 4, v4
    v_cmp_eq_u32 vcc, 7, v6
    v_add_u32 v{vW1}, {8*2688-1024}, v{vW1}
    v_cndmask_b32 v{vW1}, v{vW1}, v7, vcc
    s_lshl_b32 s{sT0}, s{sRB}, 7
    s_lshl_b32 s{sT1}, s{sLW}, 2
    s_add_u32 s{sT0}, s{sT0}, s{sT1}
    s_sub_u32 s{sT0}, s{sT0}, 16
    v_add_u32 v4, s{sT0}, v1
    v_mul_i32_i24 v4, 896, v4
    s_lshl_b32 s{sT1}, s{sLW}, 1
    v_add_u32 v5, s{sT1}, v3
    v_and_b32 v5, 7, v5
    v_xor_b32 v5, v2, v5
    v_lshl_add_u32 v{vXh}, v5, 4, v4
    s_cmp_eq_u32 s{sRB}, 0
    s_cselect_b64 vcc, -1, 0
    v_cndmask_b32 v{vXh}, v{vXh}, v7, vcc
    s_mov_b32 s{sX+2}, {XB}
    s_mov_b32 s{sX+3}, 0x20000
    s_mov_b32 s{sW+2}, {WB}
    s_mov_b32 s{sW+3}, 0x20000
    s_waitcnt lgkmcnt(0)
    s_mov_b32 s{sX}, s22
    s_mov_b32 s{sX+1}, s23
    s_mov_b32 s{sW}, s24
    s_mov_b32 s{sW+1}, s25
    """)
    stamp(0)
    del order[:]
    def DB(c):
        slot = SB0 + ((c + 2) % 3) * SLB
        a(f"""
        s_add_u32 m0, s{sLx}, {slot + 2048}
        s_mov_b32 s{sT0}, {c*128}
        s_mov_b32 s{sT1}, {c*128 + 12288}
        buffer_load_dwordx4 v{vXe}, {srd(sX)}, s{sT0} offen lds
        buffer_load_dwordx4 v{vXo}, {srd(sX)}, s{sT0} offen offset:1024 lds
        buffer_load_dwordx4 v{vXe}, {srd(sX)}, s{sT1} offen offset:2048 lds
        buffer_load_dwordx4 v{vXo}, {srd(sX)}, s{sT1} offen offset:3072 lds
        """)
        for p in range(3):
            a(f"""
            s_add_u32 m0, s{sLw}, {slot + 18432 + p*8192}
            s_mov_b32 s{sT1}, {c*64*2688 + p*896}
            buffer_load_dwordx4 v{vW0}, {srd(sW)}, s{sT1} offen lds
            buffer_load_dwordx4 v{vW1}, {srd(sW)}, s{sT1} offen offset:1024 lds
            """)
        a(f"""
        s_add_u32 m0, s{sLh}, {slot}
        s_mov_b64 exec, 0xffffffff
        buffer_load_dwordx4 v{vXh}, {srd(sX)}, s{sT0} offen lds
        s_mov_b64 exec, -1
        """)
        order.extend([c] * 11)
    head(DB, 384)
    a(wo_setup); order.append("tag")
    Wt(2); DB(4); Wt(3); DB(5); Wt(4); DB(6); pf_wo(2); Wt(5); issue_wo(0, 10); Wt(6); issue_wo(10, 20)
    a("s_branch L_ld2")
    a.raw("L_cmpB:")
    sHH = 96
    def Qa(rt, ft): return ((rt-1)*2+ft)*4
    def Ka(rt, ft): return 32 + (rt*2+ft)*4
    def Va(rt, ft): return 72 + (rt*2+ft)*4
    def Gx(s, rt): return 112 + 44*s + 4*rt
    def Gw(s, p, ft): return 112 + 44*s + 20 + (p*2+ft)*4
    bxa = [200, 201]; bwa = [202, 203]
    vBS, vBP, vBP1 = 204, 208, 212
    sl0 = SB0 + 2 * SLB
    a(f"""
    s_and_b32 s{sHH}, s{sWAVE}, 1
    s_lshr_b32 s{sRH}, s{sWAVE}, 1
    v_and_b32 v2, 15, v{vL}
    s_lshl_b32 s3, s{sRH}, 6
    v_add_u32 v4, s3, v2
    v_lshlrev_b32 v4, 7, v4
    v_lshrrev_b32 v5, 1, v2
    v_xor_b32 v5, v5, v3
    v_lshl_add_u32 v{bxa[0]}, v5, 4, v4
    v_add_u32 v{bxa[0]}, {sl0}, v{bxa[0]}
    v_xor_b32 v{bxa[1]}, 64, v{bxa[0]}
    v_lshrrev_b32 v4, 2, v2
    v_and_b32 v5, 3, v{vL}
    v_lshl_add_u32 v6, v3, 3, v4
    v_lshlrev_b32 v6, 7, v6
    v_add_u32 v6, {sl0 + 18432}, v6
    v_and_b32 v7, 2, v4
    v_and_b32 v8, 1, v3
    v_lshl_or_b32 v7, v8, 2, v7
    v_lshlrev_b32 v7, 4, v7
    s_mul_i32 s3, s{sHH}, 56
    v_lshl_add_u32 v8, v5, 3, s3
    v_xor_b32 v9, v8, v7
    v_add_u32 v{bwa[0]}, v6, v9
    v_add_u32 v8, 32, v8
    v_cmp_eq_u32 vcc, 56, v8
    v_mov_b32 v9, 120
    v_cndmask_b32 v8, v8, v9, vcc
    v_xor_b32 v9, v8, v7
    v_add_u32 v{bwa[1]}, v6, v9
    v_cmp_eq_u32 vcc, 12, v2
    v_cndmask_b32 v216, 0, 1.0, vcc
    v_mov_b32 v217, v216
    v_mov_b32 v218, v216
    v_mov_b32 v219, v216
    s_lshl_b32 s34, s{sRB}, 1
    s_add_u32 s34, s34, s{sRH}
    s_lshl_b32 s37, s34, 6
    s_lshl_b32 s3, s{sLAM}, 1
    s_add_u32 s3, s3, s{sHH}
    s_add_u32 s3, s3, s37
    s_lshl_b32 s3, s3, 10
    s_add_u32 s36, s3, {OB}
    s_mov_b32 s37, s34
    v_mov_b32 v1, 0
    s_waitcnt lgkmcnt(0)
    {TAGC if opt.get('swap', 0) else ''}
    """)
    stamp(0)
    pc = [l for l in p2common.split("\n") if l.strip()]
    cut = next(k for k in range(len(pc)) if pc[k].strip().startswith("s_mul_i32 s3, s%d, 3" % sWAVE))
    bias = f"""
    v_mov_b32 v224, {NEG}
    v_and_b32 v220, 15, v{vL}
    v_lshrrev_b32 v221, 4, v{vL}
    v_lshlrev_b32 v221, 2, v221
    v_sub_u32 v220, v220, v221
    """ + "".join(f"""
    v_subrev_u32 v221, {i}, v220
    v_and_b32 v222, 0x80000001, v221
    v_cmp_eq_u32 vcc, 0, v222
    v_cndmask_b32 v{vBS+i}, v224, 0, vcc
    v_cmp_eq_u32 vcc, 0x80000000, v222
    v_cndmask_b32 v{vBP+i}, v224, 0, vcc
    """ for i in range(4)) + """
    s_cmp_eq_u32 s37, 0
    s_cselect_b64 vcc, -1, 0
    """ + "".join(f"v_cndmask_b32 v{vBP1+i}, v{vBP+i}, v224, vcc\n" for i in range(4))
    pieces = [rest_setup + f"v_mov_b32 v227, 0\nglobal_load_dword v{vTAG}, v227, s[30:31] sc1\n" + bias, "\n".join(pc[:cut]), "\n".join(pc[cut:])]
    def breads(s, ks):
        L = [f"ds_read_b128 {q4(Gx(s,rt))}, v{bxa[ks]} offset:{rt*2048}" for rt in (1, 2, 3, 4, 0)]
        for p in range(3):
            for ft in range(2):
                for u in range(2):
                    L.append(f"ds_read_b64_tr_b16 {q2(Gw(s,p,ft) + 2*u)}, v{bwa[ft]} offset:{p*8192 + ks*4096 + u*512}")
        return L
    def bstep(s, rd, zero=False):
        M = []
        C = lambda r, z='0': z if zero else q4(r)
        for rt in (1, 2, 3, 4, 0):
            for ft in range(2):
                if rt: M.append(f"v_mfma_f32_16x16x32_bf16 {q4(Qa(rt,ft))}, {q4(Gw(s,0,ft))}, {q4(Gx(s,rt))}, {C(Qa(rt,ft))}")
                M.append(f"v_mfma_f32_16x16x32_bf16 {q4(Ka(rt,ft))}, {q4(Gw(s,1,ft))}, {q4(Gx(s,rt))}, {C(Ka(rt,ft))}")
                M.append(f"v_mfma_f32_16x16x32_bf16 {q4(Va(rt,ft))}, {q4(Gx(s,rt))}, {q4(Gw(s,2,ft))}, {C(Va(rt,ft), q4(216) if ft else '0')}")
        for i, m in enumerate(M):
            a(m)
            if i < len(rd): a(rd[i])
    a("s_barrier")
    stamp(1)
    for r in breads(0, 0): a(r)
    a(f"s_mov_b32 s{sC}, 0")
    a("s_waitcnt lgkmcnt(0)")
    bstep(0, breads(1, 1), zero=True)
    a(pieces[0]); a(pieces[1])
    a(f"""
    s_mul_i32 s3, s{sC}, 86
    s_lshr_b32 s3, s3, 8
    s_mul_i32 s3, s3, 3
    s_cmp_eq_u32 s3, s{sC}
    s_mov_b32 s{sD}, {SLB}
    s_cselect_b32 s{sD}, {(-2*SLB) & 0xffffffff}, s{sD}
    v_add_u32 v{bxa[0]}, s{sD}, v{bxa[0]}
    v_add_u32 v{bxa[1]}, s{sD}, v{bxa[1]}
    v_add_u32 v{bwa[0]}, s{sD}, v{bwa[0]}
    v_add_u32 v{bwa[1]}, s{sD}, v{bwa[1]}
    s_cmp_eq_u32 s{sC}, 6
    s_waitcnt lgkmcnt(0)
    s_cbranch_scc1 L_nobarB0
    s_barrier
    L_nobarB0:
    """)
    bstep(1, breads(0, 0))
    a(pieces[2])
    a(f"s_mov_b32 s{sC}, 1")
    a.raw("L_gemmB:")
    a("s_waitcnt lgkmcnt(0)")
    bstep(0, breads(1, 1))
    a(f"""
    s_mul_i32 s3, s{sC}, 86
    s_lshr_b32 s3, s3, 8
    s_mul_i32 s3, s3, 3
    s_cmp_eq_u32 s3, s{sC}
    s_mov_b32 s{sD}, {SLB}
    s_cselect_b32 s{sD}, {(-2*SLB) & 0xffffffff}, s{sD}
    v_add_u32 v{bxa[0]}, s{sD}, v{bxa[0]}
    v_add_u32 v{bxa[1]}, s{sD}, v{bxa[1]}
    v_add_u32 v{bwa[0]}, s{sD}, v{bwa[0]}
    v_add_u32 v{bwa[1]}, s{sD}, v{bwa[1]}
    s_cmp_eq_u32 s{sC}, 6
    s_waitcnt lgkmcnt(0)
    s_cbranch_scc1 L_nobarB
    s_barrier
    L_nobarB:
    """)
    bstep(1, breads(0, 0))
    a(f"""
    s_add_u32 s{sC}, s{sC}, 1
    s_cmp_lt_u32 s{sC}, 7
    s_cbranch_scc1 L_gemmB
    """)
    stamp(3)
    def Qf(j): return 168 + 4*(j-1)
    def Kf(rt): return 128 + 4*rt
    def Vf(dt, rt): return 148 + 10*dt + 2*rt
    a("s_waitcnt vmcnt(0) lgkmcnt(0)")
    get_tag("b")
    for rt in (1, 2, 3, 4, 0):
        for ft in range(2):
            if rt:
                cvt(Qf(rt)+2*ft, Qa(rt,ft)); cvt(Qf(rt)+2*ft+1, Qa(rt,ft)+2)
            cvt(Kf(rt)+2*ft, Ka(rt,ft)); cvt(Kf(rt)+2*ft+1, Ka(rt,ft)+2)
            cvt(Vf(ft,rt), Va(rt,ft)); cvt(Vf(ft,rt)+1, Va(rt,ft)+2)
    stamp(4)
    a.raw("L_phase2:")
    def wo_reads(base):
        L = []
        for hq in range(4):
            for cidx in range(4):
                for u in range(2):
                    d = base + (hq*4 + cidx)*4 + 2*u
                    L.append(f"ds_read_b64_tr_b16 {q2(d)}, v{vWA + 4*u + ((cidx + 2*(hq&1)) & 3)} offset:{hq*3584}")
        return L
    def wo_mask(base):
        return [f"v_and_b32 v{base + f*4 + 2 + r}, v{vMG}, v{base + f*4 + 2 + r}" for f in range(16) for r in range(2)]
    WB_, OF_ = 128, 192
    QF = 124
    KS, VS = 72, 84
    QB_, KB_, VB_ = 8, 16, 28
    sBud = 14
    def qmask(r):
        for i in range(4): a(f"v_and_b32 v{r+i}, v{vQm + (i>>1)}, v{r+i}")
    a("s_barrier")
    stamp(11)
    for i in range(3):
        a(f"buffer_load_dwordx4 {q4(KS+4*i)}, v{vKq}, {srd(sWS)}, s{sK[i]} offen sc1")
    a(f"buffer_load_dwordx4 {q4(QF)}, v{vKq}, {srd(sWS)}, s{sQA} offen sc1")
    for i in range(3):
        a(f"buffer_load_dwordx4 {q4(VS+4*i)}, v{vV1 if i == 1 else vV0}, {srd(sWS)}, s{sV[i]} offen sc1")
    a(f"""
    s_lshr_b32 s3, s{sWAVE}, 2
    s_cmp_gt_u32 s{sBR}, s3
    s_cbranch_scc0 L_noB1
    """)
    def SB(j, t): return 8*(j-1) + 4*t
    for j in range(1, 5):
        bp = vBP1 if j == 1 else vBP
        a(f"v_mfma_f32_16x16x32_bf16 {q4(SB(j,0))}, {q4(Kf(j-1))}, {q4(Qf(j))}, {q4(bp)}")
        a(f"v_mfma_f32_16x16x32_bf16 {q4(SB(j,1))}, {q4(Kf(j))}, {q4(Qf(j))}, {q4(vBS)}")
    M = lambda j: 32 + (j-1)
    T = lambda j: 36 + (j-1)
    for j in range(1, 5):
        s = SB(j, 0)
        a(f"v_max3_f32 v{M(j)}, v{s}, v{s+1}, v{s+2}")
        a(f"v_max3_f32 v{T(j)}, v{s+3}, v{s+4}, v{s+5}")
        a(f"v_max3_f32 v{M(j)}, v{M(j)}, v{s+6}, v{s+7}")
        a(f"v_max_f32 v{M(j)}, v{M(j)}, v{T(j)}")
    for sw in ("v_permlane32_swap_b32", "v_permlane16_swap_b32"):
        for j in range(1, 5): a(f"v_mov_b32 v{T(j)}, v{M(j)}")
        for j in range(1, 5): a(f"{sw} v{M(j)}, v{T(j)}")
        for j in range(1, 5): a(f"v_max_f32 v{M(j)}, v{M(j)}, v{T(j)}")
    for j in range(1, 5): a(f"v_mul_f32 v{M(j)}, v{vC}, v{M(j)}")
    for j in range(1, 5):
        for i in range(8): a(f"v_fma_f32 v{SB(j,0)+i}, v{SB(j,0)+i}, v{vC}, -v{M(j)}")
    for j in range(1, 5):
        for i in range(8): a(f"v_exp_f32 v{SB(j,0)+i}, v{SB(j,0)+i}")
    P = lambda j: 40 + 4*(j-1)
    for j in range(1, 5):
        for i in range(4): cvt(P(j)+i, SB(j,0)+2*i)
    O = lambda j, dt: 8*(j-1) + 4*dt
    for j in range(1, 5):
        for dt in (1, 0):
            a(f"v_mfma_f32_16x16x32_bf16 {q4(O(j,dt))}, {q4(Vf(dt,j-1))}, {q4(P(j))}, 0")
    st = [normalize(O(j,0), O(j,1), 56+2*(j-1), 57+2*(j-1), 100+4*(j-1)) for j in range(1, 5)]
    for k in range(len(st[0])):
        for j in range(4):
            for x in st[j][k]: a(x)
    a.raw("L_noB1:")
    for r in wo_reads(WB_): a(r)
    a(f"""
    s_mov_b32 s{sBud}, {POLL_MAX}
    v_lshlrev_b32 v8, 2, v{vG}
    v_sub_u32 v8, v8, v{vR15}
    s_bitcmp1_b32 s{sWAVE}, 0
    s_cselect_b64 s[34:35], -1, 0
    """)
    for i in range(4):
        a(f"""
        v_add_u32 v9, {i}, v8
        v_cmp_lt_i32 vcc, 0, v9
        v_cndmask_b32 v10, v{vNEG}, 0, vcc
        v_cndmask_b32 v11, 0, v{vNEG}, vcc
        v_cndmask_b32 v{0+i}, v10, v{vNEG}, s[34:35]
        v_cndmask_b32 v{4+i}, 0, v10, s[34:35]
        v_cndmask_b32 v{64+i}, v11, 0, s[34:35]
        v_cndmask_b32 v{68+i}, v{vNEG}, v11, s[34:35]
        """)
    for i in range(8): a(f"v_add_u32 v{vWA+i}, {L_WOA}, v{vWA+i}")
    a("s_waitcnt lgkmcnt(0)")
    for x in wo_mask(WB_): a(x)
    a(f"""
    s_cmp_ge_u32 s{sARB}, 2
    s_cbranch_scc1 L_nofix
    s_waitcnt vmcnt(4)
    v_not_b32 v9, v{vQm}
    v_not_b32 v10, v{vQm+1}
    v_and_b32 v9, 0xff7f, v9
    v_and_b32 v10, 0xff7f, v10
    """)
    for i in range(3):
        qmask(KS+4*i)
        a(f"""
        s_cmp_eq_u32 s{sK[i]}, {BIG}
        s_cbranch_scc0 L_fx{i}
        v_or_b32 v{KS+4*i}, v9, v{KS+4*i}
        v_or_b32 v{KS+4*i+2}, v10, v{KS+4*i+2}
        L_fx{i}:
        """)
    a.raw("L_nofix:")
    for i in range(3):
        a(f"s_waitcnt vmcnt({6-i})")
        if i == 0: stamp(5)
        a(f"ds_write_b128 v{vKw}, {q4(KS+4*i)} offset:{1024*i}")
    for i in range(3):
        a(f"s_waitcnt vmcnt({2-i})")
        for r in range(4): a(f"v_or_b32 v{VS+4*i+r}, v{vOn1 if i == 1 else vOn0}, v{VS+4*i+r}")
        a(f"ds_write_b128 v{vKw}, {q4(VS+4*i)} offset:{24576+1024*i}")
    a(f"""
    s_lshr_b32 s3, s{sWAVE}, 2
    s_cmp_gt_u32 s{sBR}, s3
    s_cbranch_scc0 L_noB2
    """)
    for j in range(1, 5):
        a(f"buffer_store_dwordx4 {q4(100+4*(j-1))}, v{vOo}, {srd(sWS)}, s36 offen sc1")
        if j < 4: a("s_add_u32 s36, s36, 16384")
    a.raw("L_noB2:")
    stamp(6)
    qmask(QF)
    a(f"""
    s_cmp_ge_u32 s{sARB}, 2
    s_cbranch_scc1 L_nofixq
    v_not_b32 v9, v{vQm}
    v_not_b32 v10, v{vQm+1}
    v_and_b32 v9, 0x3f80, v9
    v_or_b32 v{QF}, v9, v{QF}
    v_and_b32 v10, 0x3f80, v10
    v_or_b32 v{QF+2}, v10, v{QF+2}
    L_nofixq:
    s_waitcnt lgkmcnt(0)
    s_barrier
    """)
    stamp(12)
    KBUF = 72; NKB = 6
    def kread(t): return f"ds_read_b128 {q4(KBUF + 4*(t % NKB))}, v{vKa} offset:{t*1024}"
    for t in range(NKB - 1): a(kread(t))
    vM, vT = 120, 121
    def mx(t):
        r = 4*t
        if t == 0:
            a(f"v_max_f32 v{vM}, v0, v1"); a(f"v_max_f32 v{vT}, v2, v3")
        else:
            a(f"v_max3_f32 v{vM}, v{vM}, v{r}, v{r+1}"); a(f"v_max3_f32 v{vT}, v{vT}, v{r+2}, v{r+3}")
    LAG = 4
    for t in range(18):
        if t + NKB - 1 < 18: a(kread(t + NKB - 1))
        outstanding = min(18, t + NKB) - (t + 1)
        a(f"s_waitcnt lgkmcnt({outstanding})")
        c = q4(4*t) if t in (0, 1, 16, 17) else "0"
        a(f"v_mfma_f32_16x16x32_bf16 {q4(4*t)}, {q4(KBUF + 4*(t % NKB))}, {q4(QF)}, {c}")
        if t >= LAG: mx(t - LAG)
    VBUF = [96 + 4*i for i in range(6)]
    NVB = len(VBUF)
    WA_ = 0
    ACCB = [64, 68, 72, 76, 80, 84, 88, 92]
    ACCA = [96, 100, 104, 108, 112, 116, 120, 124]
    sNext = 27
    lq = []
    def lds(ins, tag): a(ins); lq.append(tag)
    def lwait(tag):
        last = max(i for i, t in enumerate(lq) if t == tag)
        a(f"s_waitcnt lgkmcnt({min(15, len(lq) - 1 - last)})")
    def vread(n):
        lds(f"ds_read_b128 {q4(VBUF[n % NVB])}, v{vKa} offset:{24576 + (n>>1)*2048 + (n&1)*1024}", ("v", n))
    for n in range(NVB): vread(n)
    for t in range(18 - LAG, 18): mx(t)
    a(f"v_max_f32 v{vM}, v{vM}, v{vT}")
    for sw in ("v_permlane32_swap_b32", "v_permlane16_swap_b32"):
        a(f"v_mov_b32 v{vT}, v{vM}")
        a(f"{sw} v{vM}, v{vT}")
        a(f"v_max_f32 v{vM}, v{vM}, v{vT}")
    a(f"v_mul_f32 v{vM}, v{vC}, v{vM}")
    stamp(7)
    def o_load(f, s0):
        hq, tt = f >> 1, f & 1
        return f"buffer_load_dwordx4 {q4(OF_ + f*4)}, v{vOo}, {srd(sWS)}, s{s0 + tt} offen offset:{hq*1024} sc1"
    def frag(lbl, f, wbase, acc, wait, after):
        hq, tt = f >> 1, f & 1
        r = OF_ + f*4
        a(f"""
        s_cmp_lg_u32 s{sNext}, {f}
        s_cbranch_scc1 L_sk{lbl}{f}
        {wait}
        v_cmp_ne_u32 vcc, v{r+3}, v{vTAG}
        s_lshr_b32 s3, vcc_hi, 16
        s_cbranch_scc1 L_sk{lbl}{f}
        """)
        for cidx in range(4):
            d = acc[tt*4+cidx]
            a(f"v_mfma_f32_16x16x32_bf16 {q4(d)}, {q4(wbase + (hq*4+cidx)*4)}, {q4(r)}, {'0' if f < 2 else q4(d)}")
        a(f"s_add_u32 s{sNext}, s{sNext}, 1")
        if after is not None: a(o_load(f, after))
        a.raw(f"L_sk{lbl}{f}:")
    OACC = 224
    war = wo_reads(WA_); wam = wo_mask(WA_)
    LU, FU = opt.get("lu", 4), opt.get("fu", 5)
    a(f"s_mov_b32 s{sNext}, 0")
    for u in range(9):
        b = 8*u
        for i in range(8): a(f"v_fma_f32 v{b+i}, v{b+i}, v{vC}, -v{vM}")
        if LU <= u < LU + 4:
            for f in (2*(u-LU), 2*(u-LU)+1): a(o_load(f, sOB))
        for i in range(8): a(f"v_exp_f32 v{b+i}, v{b+i}")
        if opt.get('inpv', 0) and FU <= u < FU + 4:
            for f in range(2*(u-FU), 2*(u-FU)+2): frag("P", f, WB_, ACCB, f"s_waitcnt vmcnt({7-f})", None)
        for i in range(4): a(f"v_cvt_pk_bf16_f32 v{b+i}, v{b+2*i}, v{b+2*i+1}")
        lwait(("v", 2*u+1))
        for dt in range(2):
            c = "0" if u == 0 else q4(OACC + 4*dt)
            a(f"v_mfma_f32_16x16x32_bf16 {q4(OACC+4*dt)}, {q4(VBUF[(2*u+dt) % NVB])}, {q4(b)}, {c}")
        for n in (NVB + 2*u, NVB + 1 + 2*u):
            if n < 18: vread(n)
    for x in war: a(x)
    for grp in normalize(OACC, OACC+4, 232, 234, 236):
        for x in grp: a(x)
    a(f"buffer_store_dwordx4 {q4(236)}, v{vOo}, {srd(sWS)}, s33 offen sc1")
    stamp(13)
    a(f"""
    s_cmp_eq_u32 s{sCB}, 7
    s_cbranch_scc1 L_fin
    """)
    vXW, vXR, vOut = 224, 228, 230
    a(f"""
    s_lshl_b32 s3, s{sKQ}, 14
    s_lshl_b32 s35, s{sRP}, 13
    s_add_u32 s35, s35, s3
    v_lshlrev_b32 v231, 8, v{vR15}
    v_add_u32 v231, s35, v231
    v_xor_b32 v232, v{vG}, v{vR15}
    """)
    for cidx in range(4):
        a(f"""
        s_add_u32 s3, s{sKQ}, {cidx}
        s_and_b32 s3, s3, 3
        s_lshl_b32 s3, s3, 2
        v_xor_b32 v234, s3, v232
        v_lshl_add_u32 v{vXW+cidx}, v234, 4, v231
        """)
    a(f"""
    v_lshrrev_b32 v231, 3, v{vL}
    s_lshl_b32 s3, s{sWAVE}, 3
    v_add_u32 v231, s3, v231
    v_and_b32 v232, 7, v{vL}
    v_lshlrev_b32 v234, 1, v232
    v_and_b32 v235, 15, v231
    v_xor_b32 v234, v234, v235
    v_lshlrev_b32 v234, 4, v234
    v_lshl_add_u32 v{vXR}, v231, 8, v234
    v_xor_b32 v{vXR+1}, 16, v{vXR}
    s_lshl_b32 s3, s{sRB64}, 6
    v_add_u32 v231, s3, v231
    v_mul_u32_u24 v231, 1792, v231
    v_lshl_add_u32 v231, v232, 4, v231
    s_lshl_b32 s3, s{sCB}, 7
    v_add_u32 v{vOut}, s3, v231
    """)
    def finish(lbl, wbase, acc, s0, after):
        a(f"""
        s_cmp_eq_u32 s{sNext}, 8
        s_cbranch_scc1 L_done{lbl}
        L_again{lbl}:
        """)
        for f in range(8):
            a(f"s_cmp_gt_u32 s{sNext}, {f}")
            a(f"s_cbranch_scc1 L_rl{lbl}{f}")
            a(o_load(f, s0))
            a.raw(f"L_rl{lbl}{f}:")
        a("s_waitcnt vmcnt(0)")
        a.raw(f"L_first{lbl}:")
        for f in range(8): frag(lbl, f, wbase, acc, "", after)
        a(f"""
        s_cmp_eq_u32 s{sBud}, 0
        s_cbranch_scc1 L_done{lbl}
        s_sub_u32 s{sBud}, s{sBud}, 1
        s_cmp_lg_u32 s{sNext}, 8
        s_cbranch_scc1 L_again{lbl}
        {"s_waitcnt vmcnt(0)" if after is not None else ""}
        L_done{lbl}:
        """)
    def exch_write(acc):
        for tt in range(2):
            for cidx in range(4):
                a(f"ds_write_b128 v{vXW+cidx}, {q4(acc[tt*4+cidx])} offset:{tt*4096}")
        a("s_waitcnt lgkmcnt(0)")
        a("s_barrier")
    def exch_final(RB_, outoff):
        for k in range(4):
            for h in range(2):
                a(f"ds_read_b128 {q4(RB_ + (k*2+h)*4)}, v{vXR+h} offset:{k*16384}")
        a("s_waitcnt lgkmcnt(4)")
        for i in range(8): a(f"v_add_f32 v{RB_+i}, v{RB_+i}, v{RB_+8+i}")
        a("s_waitcnt lgkmcnt(0)")
        for i in range(8): a(f"v_add_f32 v{RB_+16+i}, v{RB_+16+i}, v{RB_+24+i}")
        for i in range(8): a(f"v_add_f32 v{RB_+i}, v{RB_+i}, v{RB_+16+i}")
        for i in range(4): a(f"v_cvt_pk_bf16_f32 v{RB_+8+i}, v{RB_+2*i}, v{RB_+2*i+1}")
        a(f"s_mov_b32 s3, {outoff}")
        a(f"buffer_store_dwordx4 {q4(RB_+8)}, v{vOut}, {srd(sOut)}, s3 offen")
    if not opt.get('inpv', 0):
        for f in range(8): frag("R", f, WB_, ACCB, f"s_waitcnt vmcnt({8-f})", None)
    finish("B", WB_, ACCB, sOB, None)
    stamp(8)
    for f in range(8): a(o_load(f, sOA))
    a(f"s_mov_b32 s{sNext}, 0")
    a("s_waitcnt lgkmcnt(0)")
    for x in wam: a(x)
    a("s_barrier")
    exch_write(ACCB)
    if opt.get("rechk", 1):
        a("s_waitcnt vmcnt(0)")
        for f in range(8):
            a(f"""
            v_cmp_ne_u32 vcc, v{OF_+f*4+3}, v{vTAG}
            s_lshr_b32 s3, vcc_hi, 16
            s_cbranch_scc0 L_ok{f}
            {o_load(f, sOA)}
            L_ok{f}:
            """)
    exch_final(128, 896)
    for i in range(4): a(f"v_add_u32 v{vXW+i}, 65536, v{vXW+i}")
    for i in range(2): a(f"v_add_u32 v{vXR+i}, 65536, v{vXR+i}")
    stamp(14)
    for f in range(8): frag("Q", f, WA_, ACCA, "s_waitcnt vmcnt(1)" if opt.get("rechk", 1) else f"s_waitcnt vmcnt({8-f})", None)
    finish("A", WA_, ACCA, sOA, None)
    stamp(9)
    exch_write(ACCA)
    exch_final(160, 0)
    a.raw("L_fin:")
    if stamps:
        stamp(15)
        a(f"""
        s_sub_u32 s84, {POLL_MAX}, s{sBud}
        s_mul_i32 s84, s84, 100
        s_add_u32 s84, s84, s64
        s_lshl_b32 s3, s2, 3
        s_add_u32 s3, s3, s{sWAVE}
        s_lshl_b32 s3, s3, 6
        s_add_u32 s3, s3, {STAMP}
        v_mov_b32 v1, 0
        s_mov_b64 exec, 1
        """)
        if opt.get("dbgst"):
            ids = [1, 2, 3, 4, 5, 6, 7, 8, 9, 11, 12, 13, 14, 15]
            a("s_not_b32 s3, s64")
            a("v_mov_b32 v2, s3")
            a("global_atomic_umax v1, v2, s[30:31] offset:4")
            for k, i in enumerate(ids):
                a(f"s_sub_u32 s3, s{64+2*i}, s64")
                a("s_cmp_lt_u32 s3, 100000")
                a(f"s_cselect_b32 s3, s{64+2*i}, 0")
                a("v_mov_b32 v2, s3")
                a(f"global_atomic_umax v1, v2, s[30:31] offset:{8+4*k}")
            a("s_endpgm")
        for i in range(16):
            a(f"v_mov_b32 v2, s{64+2*i}")
            a(f"buffer_store_dword v2, v1, {srd(sWS)}, s3 offen offset:{4*i}")
    a.raw("L_end:")
    a("s_endpgm")
    bad = a.check_branches()
    for b in bad: print("BRANCH HAZARD", b, file=sys.stderr)
    assert not bad
    out = HEADER + f"""; @launch grid=(256,1,1) block=(512,1,1) lds=163840
.amdgcn_target "amdgcn-amd-amdhsa--gfx950"
.text
.globl {NAME}_kernel
.p2align 8
.type {NAME}_kernel,@function
""" + a.text() + f""".fill 1280, 4, 0xBF800000
s_endpgm
.section .rodata,"a"
.p2align 6
.amdhsa_kernel {NAME}_kernel
  .amdhsa_next_free_vgpr 256
  .amdhsa_next_free_sgpr 102
  .amdhsa_accum_offset 256
  .amdhsa_group_segment_fixed_size 0
  .amdhsa_kernarg_size 72
  .amdhsa_user_sgpr_count 2
  .amdhsa_user_sgpr_kernarg_segment_ptr 1
  .amdhsa_system_sgpr_workgroup_id_x 1
.end_amdhsa_kernel
"""
    return out

if __name__ == "__main__":
    stamps = int(sys.argv[1]); path = sys.argv[2]
    opt = dict((kv.split("=")[0], int(kv.split("=")[1])) for kv in sys.argv[3:])
    open(path, "w").write(gen(stamps, opt))
```

```python
import sys, struct, math
from asmlib import Asm

NAME = "concat_heads__sliding_block__sliding_local_dilated__prompt"
HEADER = open("cdna_kernels/%s.s.ref" % NAME).read().split("; Override launch")[0]
def f2u(x): return struct.unpack("<I", struct.pack("<f", x))[0]

XB, WB, WOB_BYTES, OUTB = 1835008, 1204224, 401408, 3670016
MB2 = 0x200000
QO, KO, VO = 0, MB2, 2*MB2
BRS = 3*MB2
OA, OB = 6*MB2, 7*MB2
FL1 = 8*MB2
STAMP = 8*MB2 + 0x100000
WSB = 9*MB2
BIG = 0x40000000
NEG = f2u(-1e30)
CSC = f2u((28 ** -0.5) * math.log2(math.e))
SLOT = 40960
L_WOB, L_WOA, L_KV = 0, 57344, 114688
POLL_MAX = 40000

sWAVE, sBR, sLAM, sRB, sAH, sARB, sRB64, sCB, sTAG = 4, 5, 6, 7, 8, 9, 10, 11, 12
sX, sW, sWoA, sWoB, sWS, sOut = 36, 40, 44, 48, 52, 56
def srd(b): return f"s[{b}:{b+3}]"
def q4(r): return f"v[{r}:{r+3}]"
def q2(r): return f"v[{r}:{r+1}]"
def q16(r): return f"v[{r}:{r+15}]"
vL, vL16, vTAG = 255, 254, 253

def gen(stamps=False, opt=None):
    opt = opt or {}
    a = Asm()
    def stamp(i):
        if stamps:
            a(f"s_memrealtime s[{64+2*i}:{65+2*i}]")
            a("s_waitcnt lgkmcnt(0)")
    def mk_srd(d, p, n):
        return f"s_mov_b32 s{d}, s{p}\ns_mov_b32 s{d+1}, s{p+1}\ns_mov_b32 s{d+2}, {n}\ns_mov_b32 s{d+3}, 0x20000\n"
    MAP = f"""
    s_lshr_b32 s{sLAM}, s14, 2
    s_and_b32 s15, s13, 3
    s_lshl_b32 s15, s15, 2
    s_and_b32 s3, s14, 3
    s_add_u32 s{sRB}, s15, s3
    """ if opt.get("map", 0) else f"""
    s_and_b32 s15, s13, 1
    s_lshl_b32 s15, s15, 2
    s_lshr_b32 s3, s14, 3
    s_add_u32 s{sLAM}, s15, s3
    s_and_b32 s15, s13, 2
    s_lshl_b32 s15, s15, 2
    s_and_b32 s3, s14, 7
    s_add_u32 s{sRB}, s15, s3
    """
    TAGC = f"""
    s_or_b32 s3, s2, s{sWAVE}
    s_cmp_lg_u32 s3, 0
    s_cbranch_scc1 L_notag
    s_memrealtime s[34:35]
    s_waitcnt lgkmcnt(0)
    s_and_b32 s35, s34, 0x1fff
    s_lshl_b32 s35, s35, 1
    s_or_b32 s35, s35, 1
    s_bfe_u32 s3, s34, 0xf000d
    s_lshl_b32 s3, s3, 15
    s_or_b32 s35, s35, s3
    s_lshl_b32 s34, s34, 3
    s_and_b32 s34, s34, 0x80000000
    s_or_b32 s34, s34, s35
    v_mov_b32 v4, s34
    v_mov_b32 v5, 0
    s_mov_b64 exec, 1
    global_atomic_cmpswap v1, v[4:5], s[30:31] sc1
    s_mov_b64 exec, -1
    L_notag:
    """
    MAPB = f"""
    s_and_b32 s15, s13, 1
    s_lshl_b32 s15, s15, 2
    s_and_b32 s3, s14, 3
    s_add_u32 s{sLAM}, s15, s3
    s_and_b32 s15, s13, 2
    s_lshl_b32 s15, s15, 2
    s_lshr_b32 s3, s14, 2
    s_add_u32 s{sRB}, s15, s3
    """
    a.raw(f"{NAME}_kernel:")
    a(f"""
    s_cmp_ge_u32 s2, 256
    s_cbranch_scc1 L_end
    s_load_dwordx16 s[16:31], s[0:1], 0
    s_load_dwordx2 s[32:33], s[0:1], 64
    v_lshrrev_b32 v1, 6, v0
    v_and_b32 v{vL}, 63, v0
    v_readfirstlane_b32 s{sWAVE}, v1
    s_and_b32 s13, s2, 7
    s_lshr_b32 s14, s2, 3
    s_lshr_b32 s{sBR}, s13, 2
    s_xor_b32 s{sBR}, s{sBR}, {opt.get('swap', 0)}
    {MAP}
    v_lshlrev_b32 v{vL16}, 4, v{vL}
    v_lshrrev_b32 v1, 3, v{vL}
    v_and_b32 v2, 7, v{vL}
    v_lshrrev_b32 v3, 4, v{vL}
    s_cmp_lg_u32 s{sBR}, 0
    s_cbranch_scc1 L_brB
    s_cmp_lt_u32 s{sWAVE}, 4
    s_cbranch_scc1 L_compute
    """)
    rest_setup = f"""
    s_lshl_b32 s{sAH}, s13, 1
    s_and_b32 s3, s14, 1
    s_add_u32 s{sAH}, s{sAH}, s3
    s_lshr_b32 s{sARB}, s14, 1
    s_lshl_b32 s{sRB64}, s13, 2
    s_lshr_b32 s3, s14, 3
    s_add_u32 s{sRB64}, s{sRB64}, s3
    s_and_b32 s{sCB}, s14, 7
    """ + mk_srd(sWoA, 20, WOB_BYTES) + mk_srd(sWoB, 26, WOB_BYTES) + mk_srd(sWS, 32, WSB) + mk_srd(sOut, 28, OUTB)
    def prefetch(l):
        if not opt.get("pf", 1): return
        a(f"""
        s_cmp_lg_u32 s{sWAVE}, 1
        s_cbranch_scc1 L_notouch{l}
        v_min_u32 v4, 8, v{vL}
        v_lshlrev_b32 v4, 21, v4
        v_add_u32 v4, 0x1ff780, v4
        buffer_load_dword v217, v4, {srd(sWS)}, 0 offen sc1
        v_and_b32 v4, 1, v{vL}
        v_lshlrev_b32 v4, 21, v4
        buffer_load_dword v218, v4, {srd(sOut)}, 0 offen
        L_notouch{l}:
        s_and_b32 s3, s14, 15
        s_lshl_b32 s34, s{sWAVE}, 4
        s_or_b32 s3, s3, s34
        s_cmp_lg_u32 s3, 0x2f
        s_cbranch_scc1 L_nocode{l}
        s_getpc_b64 s[34:35]
        L_pc{l}:
        s_sub_u32 s34, s34, L_pc{l}-{NAME}_kernel
        s_subb_u32 s35, s35, 0
        v_lshlrev_b32 v4, 7, v{vL}
        global_load_dword v217, v4, s[34:35]
        v_add_u32 v4, 8192, v4
        global_load_dword v218, v4, s[34:35]
        v_add_u32 v4, 8192, v4
        global_load_dword v219, v4, s[34:35]
        L_nocode{l}:
        """)
    def get_tag(lbl):
        a(f"""
        s_mov_b32 s35, {POLL_MAX}
        L_tag{lbl}:
        v_readfirstlane_b32 s{sTAG}, v{vTAG}
        s_cmp_lg_u32 s{sTAG}, 0
        s_cbranch_scc1 L_tagok{lbl}
        v_mov_b32 v227, 0
        global_load_dword v{vTAG}, v227, s[30:31] sc1
        s_sub_u32 s35, s35, 1
        s_waitcnt vmcnt(0)
        s_cmp_lg_u32 s35, 0
        s_cbranch_scc1 L_tag{lbl}
        L_tagok{lbl}:
        """)
    def poll(lbl, vaddr, vd):
        a(f"""
        s_mov_b32 s35, {POLL_MAX}
        L_poll{lbl}:
        buffer_load_dword v{vd}, v{vaddr}, {srd(sWS)}, s15 offen sc1
        s_sub_u32 s35, s35, 1
        s_waitcnt vmcnt(0)
        v_cmp_ne_u32 vcc, v{vd}, v{vTAG}
        s_cmp_eq_u32 s35, 0
        s_cbranch_scc1 L_pollok{lbl}
        s_cbranch_vccz L_pollok{lbl}
        s_branch L_poll{lbl}
        L_pollok{lbl}:
        """)
    sRP, sKQ, sT, sU = 60, 61, 62, 63
    vR15, vG, vWA, vMG, vV0, vC = 240, 241, 242, 250, 251, 252
    vNEG, vKa, vKw = 237, 239, 238
    vKq, vOo, vVa, vVb, vOne = 232, 233, 234, 235, 236
    vQm, vOn0, vOn1, vV1 = 228, 230, 231, 226
    sHB, sHQ, sP = 98, 100, 99
    sK = [16, 17, 18, 19, 20, 21]; sV = [22, 23, 24, 25, 26, 27]; sQA = 32
    sOB, sOA = 96, 28
    t0, t1, t2, t3, t4 = 220, 221, 222, 223, 224
    vPA = 225
    FLV = 64*16*128
    p2common = f"""
    s_and_b32 s{sRP}, s{sWAVE}, 1
    s_lshr_b32 s{sKQ}, s{sWAVE}, 1
    v_and_b32 v{vR15}, 15, v{vL}
    v_lshrrev_b32 v{vG}, 4, v{vL}
    v_cmp_gt_u32 vcc, 48, v{vL}
    v_cndmask_b32 v{vMG}, 0, -1, vcc
    v_lshrrev_b32 v{t0}, 2, v{vR15}
    v_lshl_add_u32 v{t1}, v{vG}, 2, v{t0}
    v_lshlrev_b32 v{t1}, 7, v{t1}
    s_mul_i32 s3, s{sKQ}, 14336
    v_add_u32 v{t1}, s3, v{t1}
    v_and_b32 v{t2}, 2, v{t0}
    v_and_b32 v{t3}, 1, v{vG}
    v_lshl_or_b32 v{t2}, v{t3}, 2, v{t2}
    v_lshlrev_b32 v{t2}, 4, v{t2}
    v_and_b32 v{t3}, 3, v{vL}
    v_lshlrev_b32 v{t4}, 3, v{t3}
    v_xor_b32 v{t2}, v{t2}, v{t4}
    v_add_u32 v{t1}, v{t1}, v{t2}
    v_and_b32 v{t2}, 2048, v{vMG}
    """ + "".join(f"""
    s_add_u32 s3, s{sKQ}, {c}
    s_and_b32 s3, s3, 3
    s_lshl_b32 s3, s3, 5
    v_xor_b32 v{vWA+c}, s3, v{t1}
    v_add_u32 v{vWA+4+c}, v{vWA+c}, v{t2}
    """ for c in range(4)) + f"""
    v_mov_b32 v{t4}, {BIG}
    v_lshlrev_b32 v{vKq}, 9, v{vG}
    v_lshl_add_u32 v{vKq}, v{vR15}, 4, v{vKq}
    v_lshlrev_b32 v{vOo}, 6, v{vR15}
    v_lshl_add_u32 v{vOo}, v{vG}, 4, v{vOo}
    v_lshlrev_b32 v{vVa}, 8, v{t0}
    v_lshl_add_u32 v{vVa}, v{vG}, 6, v{vVa}
    v_lshl_add_u32 v{vVa}, v{t3}, 4, v{vVa}
    v_add_u32 v{vVb}, 1024, v{vVa}
    v_cmp_gt_u32 vcc, 12, v{vR15}
    v_cndmask_b32 v{vVb}, v{t4}, v{vVb}, vcc
    v_cmp_eq_u32 vcc, 12, v{vR15}
    v_mov_b32 v{t4}, 0x3f803f80
    v_cndmask_b32 v{vOne}, 0, v{t4}, vcc
    v_mov_b32 v{vC}, {CSC}
    v_mov_b32 v{vNEG}, {NEG}
    s_and_b32 s3, s{sWAVE}, 6
    s_lshl_b32 s3, s3, 10
    s_add_u32 s3, s3, {L_KV}
    v_add_u32 v{vKa}, s3, v{vL16}
    s_mul_i32 s3, s{sAH}, 7
    s_lshr_b32 s{sHQ}, s3, 1
    s_lshl_b32 s{sHQ}, s{sHQ}, 9
    s_lshl_b32 s{sHB}, s3, 8
    v_cmp_lt_u32 vcc, 15, v{vL}
    v_cndmask_b32 v{t0}, 0, -1, vcc
    s_bitcmp1_b32 s{sAH}, 0
    s_cselect_b64 vcc, -1, 0
    v_cndmask_b32 v{vQm}, -1, v{t0}, vcc
    v_cndmask_b32 v{vQm+1}, v{vMG}, -1, vcc
    s_mul_i32 s3, s{sWAVE}, 3
    s_lshl_b32 s{sT}, s{sARB}, 3
    s_sub_u32 s{sT}, s{sT}, 16
    s_add_u32 s{sT}, s{sT}, s3
    s_lshl_b32 s3, s3, 10
    s_add_u32 s3, s3, {L_KV}
    v_add_u32 v{vKw}, s3, v{vL16}
    v_subrev_u32 v{t0}, 1024, v{vVb}
    s_bitcmp1_b32 s{sWAVE}, 0
    s_cselect_b64 vcc, -1, 0
    v_cndmask_b32 v{vV0}, v{vVa}, v{t0}, vcc
    v_cndmask_b32 v{vV1}, v{t0}, v{vVa}, vcc
    v_cndmask_b32 v{vOn0}, 0, v{vOne}, vcc
    v_cndmask_b32 v{vOn1}, v{vOne}, 0, vcc
    """ + "".join(f"""
    s_ashr_i32 s34, s{sT}, 1
    s_mul_i32 s34, s34, 28672
    s_and_b32 s35, s{sT}, 1
    s_lshl_b32 s3, s35, 10
    s_add_u32 s3, s3, s34
    s_add_u32 s3, s3, s{sHB}
    s_add_u32 s3, s3, {VO}
    s_lshl_b32 s35, s35, 8
    s_add_u32 s35, s35, s34
    s_add_u32 s35, s35, s{sHQ}
    s_add_u32 s35, s35, {KO}
    s_cmp_lt_i32 s{sT}, 0
    s_cselect_b32 s{sV[i]}, {BIG}, s3
    s_cselect_b32 s{sK[i]}, {BIG}, s35
    s_add_u32 s{sT}, s{sT}, 1
    """ for i in range(3)) + f"""
    s_lshl_b32 s3, s{sARB}, 3
    s_add_u32 s3, s3, s{sWAVE}
    s_lshr_b32 s34, s3, 1
    s_mul_i32 s34, s34, 28672
    s_and_b32 s35, s3, 1
    s_lshl_b32 s35, s35, 8
    s_add_u32 s35, s35, s34
    s_add_u32 s{sQA}, s35, s{sHQ}
    s_lshl_b32 s3, s3, 4
    s_add_u32 s3, s3, s{sAH}
    s_lshl_b32 s3, s3, 10
    s_add_u32 s33, s3, {OA}
    s_mul_i32 s3, s{sAH}, 7
    s_lshr_b32 s34, s3, 3
    s_add_u32 s3, s3, 6
    s_lshr_b32 s35, s3, 3
    s_sub_u32 s35, s35, s34
    v_and_b32 v{t0}, 1, v{vL}
    v_mul_u32_u24 v{t0}, s35, v{t0}
    v_add_u32 v{t0}, s34, v{t0}
    v_min_u32 v{t1}, 11, v{vL}
    v_lshrrev_b32 v{t1}, 1, v{t1}
    s_lshl_b32 s3, s{sARB}, 1
    s_sub_u32 s3, s3, 4
    v_add_u32 v{t1}, s3, v{t1}
    v_max_i32 v{t1}, 0, v{t1}
    v_lshl_add_u32 v{t1}, v{t1}, 4, v{t0}
    v_lshlrev_b32 v{vPA}, 7, v{t1}
    s_lshl_b32 s3, s{sRB64}, 2
    s_lshl_b32 s35, s{sRP}, 1
    s_add_u32 s3, s3, s35
    s_lshl_b32 s3, s3, 4
    s_lshl_b32 s35, s{sKQ}, 2
    s_add_u32 s3, s3, s35
    s_lshl_b32 s3, s3, 10
    s_add_u32 s{sOB}, s3, {OB}
    s_add_u32 s{sOB+1}, s{sOB}, 16384
    s_add_u32 s{sOA}, s3, {OA}
    s_add_u32 s{sOA+1}, s{sOA}, 16384
    s_mov_b32 s15, {FL1}
    """
    def normalize(O0, O1, ta, tb, dst):
        return [
            [f"v_mov_b32 v{ta}, v{O1}", f"v_mov_b32 v{tb}, v{O1}"],
            [f"v_permlane32_swap_b32 v{ta}, v{tb}"],
            [f"v_mov_b32 v{ta}, v{tb}"],
            [f"v_permlane16_swap_b32 v{ta}, v{tb}"],
            [f"v_rcp_f32 v{tb}, v{tb}"],
            [f"v_mul_f32 v{O0+i}, v{O0+i}, v{tb}" for i in range(4)] + [f"v_mul_f32 v{O1+i}, v{O1+i}, v{tb}" for i in range(4)],
            [f"v_cvt_pk_bf16_f32 v{dst}, v{O0}, v{O0+1}", f"v_cvt_pk_bf16_f32 v{dst+1}, v{O0+2}, v{O0+3}",
             f"v_cvt_pk_bf16_f32 v{dst+2}, v{O1}, v{O1+1}", f"v_cvt_pk_bf16_f32 v{dst+3}, v{O1+2}, v{O1+3}"],
            [f"v_bfi_b32 v{dst+3}, v{vMG}, v{dst+3}, v{vTAG}"],
        ]
    vXe, vXo, vW0, vW1, vWo, vPw = 10, 11, 13, 14, 15, 17
    sLW, sLx, sLw, sT0, sT1 = 96, 97, 101, 34, 35
    sLwo, sL1k = 14, 15
    a(f"""
    s_sub_u32 s{sLW}, s{sWAVE}, 4
    s_lshl_b32 s{sT0}, s{sRB}, 7
    s_lshl_b32 s{sT1}, s{sLW}, 5
    s_add_u32 s{sT0}, s{sT0}, s{sT1}
    v_add_u32 v4, s{sT0}, v1
    v_mul_u32_u24 v4, 896, v4
    v_xor_b32 v5, v2, v3
    v_lshl_add_u32 v{vXe}, v5, 4, v4
    v_xor_b32 v5, 4, v5
    v_lshl_add_u32 v{vXo}, v5, 4, v4
    v_add_u32 v{vXo}, 6144, v{vXo}
    s_lshl_b32 s{sLx}, s{sLW}, 12
    s_lshl_b32 s{sLw}, s{sLW}, 11
    s_lshl_b32 s{sT1}, s{sLW}, 4
    v_add_u32 v4, s{sT1}, v1
    v_mul_u32_u24 v4, 2688, v4
    s_lshl_b32 s{sT1}, s{sLAM}, 7
    v_add_u32 v4, s{sT1}, v4
    v_and_b32 v5, 1, v3
    v_lshlrev_b32 v5, 2, v5
    v_xor_b32 v5, v2, v5
    v_lshl_add_u32 v{vW0}, v5, 4, v4
    v_add_u32 v{vW1}, {8*2688-1024}, v{vW0}
    s_mov_b32 s{sX+2}, {XB}
    s_mov_b32 s{sX+3}, 0x20000
    s_mov_b32 s{sW+2}, {WB}
    s_mov_b32 s{sW+3}, 0x20000
    s_waitcnt lgkmcnt(0)
    s_mov_b32 s{sX}, s16
    s_mov_b32 s{sX+1}, s17
    s_mov_b32 s{sW}, s18
    s_mov_b32 s{sW+1}, s19
    """)
    stamp(0)
    a(f"""
    s_cmp_eq_u32 s{sLAM}, 7
    s_cbranch_scc1 L_ld_idle
    """)
    order = []
    def D(c):
        slot = ((c + 1) % 4) * SLOT
        a(f"""
        s_add_u32 m0, s{sLx}, {slot}
        s_mov_b32 s{sT0}, {c*128}
        s_mov_b32 s{sT1}, {c*128 + 12288}
        buffer_load_dwordx4 v{vXe}, {srd(sX)}, s{sT0} offen lds
        buffer_load_dwordx4 v{vXo}, {srd(sX)}, s{sT0} offen offset:1024 lds
        buffer_load_dwordx4 v{vXe}, {srd(sX)}, s{sT1} offen offset:2048 lds
        buffer_load_dwordx4 v{vXo}, {srd(sX)}, s{sT1} offen offset:3072 lds
        """)
        for p in (1, 2, 0):
            a(f"""
            s_add_u32 m0, s{sLw}, {slot + 16384 + p*8192}
            s_mov_b32 s{sT1}, {c*64*2688 + p*896}
            buffer_load_dwordx4 v{vW0}, {srd(sW)}, s{sT1} offen lds
            buffer_load_dwordx4 v{vW1}, {srd(sW)}, s{sT1} offen offset:1024 lds
            """)
        order.extend([c] * 10)
    def Wt(c):
        last = max(i for i, o in enumerate(order) if o == c)
        a(f"s_waitcnt vmcnt({len(order) - 1 - last})")
        if c == 0: stamp(1)
        a("s_barrier")
    wo_setup = rest_setup + f"""
    v_and_b32 v5, 6, v1
    v_xor_b32 v5, v2, v5
    v_mul_u32_u24 v4, 896, v1
    s_lshl_b32 s{sT1}, s{sCB}, 7
    v_add_u32 v4, s{sT1}, v4
    v_lshl_add_u32 v{vWo}, v5, 4, v4
    s_cmp_eq_u32 s{sCB}, 7
    s_cselect_b64 vcc, -1, 0
    v_mov_b32 v7, {BIG}
    v_cndmask_b32 v{vWo}, v{vWo}, v7, vcc
    v_mov_b32 v1, 0
    s_mul_i32 s3, s14, 98
    s_and_b32 s{sT1}, s{sLW}, 1
    s_mul_i32 s{sT1}, s{sT1}, 49
    s_add_u32 s3, s3, s{sT1}
    v_min_u32 v4, 48, v{vL}
    v_add_u32 v4, s3, v4
    v_lshlrev_b32 v{vPw}, 7, v4
    s_mul_i32 s{sLwo}, s{sLW}, 7168
    s_lshl_b32 s{sL1k}, s{sLW}, 10
    global_load_dword v{vTAG}, v1, s[30:31] sc1
    """
    def issue_wo(i0, i1):
        for i in range(i0, i1):
            br = i >= 14
            a(f"""
            s_add_u32 m0, s{sL1k}, {4096*i}
            s_add_u32 s{sT1}, s{sLwo}, {(4*i - 56*br)*7168}
            buffer_load_dwordx4 v{vWo}, {srd(sWoA if br else sWoB)}, s{sT1} offen lds
            """)
            order.append("wo")
    vPf = 16
    sPS, sPO = 60, 61
    PFN = " nt" if opt.get("pnt", 0) else ""
    def pf_setup(wmul):
        a(f"""
        s_and_b32 s{sT0}, s13, 2
        s_lshl_b32 s{sT0}, s{sT0}, 9
        s_lshl_b32 s{sT1}, s14, 5
        s_add_u32 s{sT0}, s{sT0}, s{sT1}
        v_min_u32 v4, 31, v{vL}
        v_add_u32 v4, s{sT0}, v4
        v_mul_u32_u24 v{vPf}, 896, v4
        v_min_u32 v4, 23, v{vL}
        v_cmp_le_u32 vcc, 12, v4
        v_cndmask_b32 v5, 0, 1, vcc
        v_mul_u32_u24 v6, 12, v5
        v_sub_u32 v6, v4, v6
        s_lshl_b32 s{sT0}, s14, 1
        v_add_u32 v5, s{sT0}, v5
        v_mul_u32_u24 v5, 2688, v5
        v_lshrrev_b32 v4, 2, v6
        v_mul_u32_u24 v4, 896, v4
        v_add_u32 v5, v5, v4
        v_and_b32 v6, 3, v6
        v_lshl_add_u32 v5, v6, 7, v5
        s_and_b32 s{sT0}, s13, 1
        s_mul_i32 s{sT0}, s{sT0}, {wmul}
        v_add_u32 v5, s{sT0}, v5
        s_bitcmp1_b32 s{sLW}, 0
        s_cselect_b64 vcc, -1, 0
        s_mov_b32 s{sPS}, 128
        s_cselect_b32 s{sPS}, 172032, s{sPS}
        s_cselect_b32 s44, s{sW}, s{sX}
        s_cselect_b32 s45, s{sW+1}, s{sX+1}
        s_cselect_b32 s46, s{sW+2}, s{sX+2}
        s_mov_b32 s47, 0x20000
        v_cndmask_b32 v{vPf}, v{vPf}, v5, vcc
        s_lshr_b32 s{sPO}, s{sLW}, 1
        s_add_u32 s{sPO}, s{sPO}, 1
        s_mul_i32 s{sPO}, s{sPO}, s{sPS}
        s_lshl_b32 s{sPS}, s{sPS}, 1
        """)
    def pf():
        a(f"""
        buffer_load_dword v20, v{vPf}, s[44:47], s{sPO} offen{PFN}
        s_add_u32 s{sPO}, s{sPO}, s{sPS}
        """)
        order.append("pf")
    PMA, PMB = opt.get("pma", 0), opt.get("pmb", 2)
    def head(Dx, wmul):
        PM = PMA if wmul == 512 else PMB
        if PM == 0: Dx(0); Dx(1); Wt(0); Dx(2); Wt(1); Dx(3)
        elif PM == 1: Dx(0); pf_setup(wmul); pf(); Dx(1); Wt(0); Dx(2); pf(); pf(); Wt(1); Dx(3)
        elif PM == 2: Dx(0); pf_setup(wmul); pf(); Dx(1); Wt(0); pf(); Dx(2); Wt(1); pf(); Dx(3)
        elif PM == 3: Dx(0); pf_setup(wmul); pf(); pf(); pf(); Dx(1); Wt(0); Dx(2); Wt(1); Dx(3)
    def pf_wo(l):
        if opt.get("nopw"): return
        a(f"""
        s_cmp_lt_u32 s{sLW}, 2
        s_cbranch_scc1 L_pwB{l}
        buffer_load_dword v20, v{vPw}, {srd(sWoA)}, 0 offen
        s_branch L_pwD{l}
        L_pwB{l}:
        buffer_load_dword v20, v{vPw}, {srd(sWoB)}, 0 offen
        L_pwD{l}:
        """)
        order.append("pfw")
    head(D, 512)
    a(wo_setup); order.append("tag")
    if opt.get("seq", 0) == 1:
        Wt(2); D(4); Wt(3); D(5); pf_wo(0); Wt(4); D(6); issue_wo(0, 10); Wt(5); issue_wo(10, 20); Wt(6)
    elif opt.get("seq", 0) == 0:
        Wt(2); D(4); Wt(3); D(5); Wt(4); D(6); pf_wo(0); Wt(5)
        DEF = opt.get("defer", 3)
        if DEF < 4: issue_wo(0, 10)
        Wt(6)
        if DEF >= 2: a("s_barrier")
        if DEF == 4: issue_wo(0, 10)
        issue_wo(10, 20)
        if DEF == 1: a("s_barrier")
    else:
        Wt(2); D(4); Wt(3); D(5); Wt(4); D(6); pf_wo(0); Wt(5); issue_wo(0, 14); Wt(6); a("s_sleep 16"); issue_wo(14, 20)
    a("s_branch L_ld2")
    a.raw("L_ld_idle:")
    if PMA: pf_setup(512); pf(); pf(); pf()
    a(wo_setup)
    pf_wo(1)
    issue_wo(0, 20)
    a.raw("L_ld2:")
    issue_wo(20, 28)
    a(p2common)
    a("s_waitcnt vmcnt(28)" if opt.get("nowait", 0) else "s_waitcnt vmcnt(0)")
    get_tag("l")
    a(f"""
    s_cmp_lg_u32 s{sWAVE}, 7
    s_cbranch_scc1 L_pollok1
    """)
    poll("1", vPA, 9)
    stamp(2)
    a("s_branch L_phase2")

    a.raw("L_compute:")
    sCH, sRH = 96, 97
    sSQ, sSK, sSV, sSQh, sSKh, sFl = 36, 37, 38, 39, 40, 41
    def Acc(p, rt): return p*32 + rt*16
    def Fx(s, rt): return 96 + 20*s + 4*rt
    def Fw(s, p): return 96 + 20*s + 8 + 4*p
    vxa = [200, 201, 202, 203]; vwa = 204
    vQo, vVo = 205, 206
    slot0 = SLOT
    a(f"""
    s_waitcnt lgkmcnt(0)
    v_mov_b32 v1, 0
    {'' if opt.get('swap', 0) else TAGC}
    """)
    stamp(0)
    a(rest_setup)
    prefetch('a')
    a(f"""
    s_and_b32 s{sCH}, s{sWAVE}, 1
    s_lshr_b32 s{sRH}, s{sWAVE}, 1
    s_cmp_eq_u32 s{sLAM}, 7
    s_cbranch_scc1 L_cmp_idle
    v_and_b32 v2, 31, v{vL}
    v_lshrrev_b32 v3, 5, v{vL}
    v_bfe_u32 v4, v{vL}, 2, 2
    s_lshl_b32 s3, s{sLAM}, 1
    s_add_u32 s3, s3, s{sCH}
    s_lshl_b32 s34, s3, 11
    v_add_u32 v{vQo}, s34, v{vL16}
    v_bfe_u32 v6, v{vL}, 4, 1
    v_lshlrev_b32 v6, 2, v6
    v_and_b32 v7, 1, v4
    v_lshl_add_u32 v6, v7, 1, v6
    v_lshrrev_b32 v7, 1, v4
    v_add_u32 v6, v6, v7
    v_lshl_add_u32 v7, v6, 8, s34
    v_lshl_add_u32 v7, v3, 6, v7
    v_and_b32 v8, 3, v{vL}
    v_lshl_add_u32 v{vVo}, v8, 4, v7
    s_lshl_b32 s34, s{sRB}, 1
    s_add_u32 s34, s34, s{sRH}
    s_mul_i32 s{sSQ}, s34, 57344
    s_add_u32 s{sSQh}, s{sSQ}, 28672
    s_add_u32 s{sSK}, s{sSQ}, {KO}
    s_add_u32 s{sSKh}, s{sSQh}, {KO}
    s_add_u32 s{sSV}, s{sSQ}, {VO}
    s_add_u32 s15, s{sSQh}, {VO}
    s_lshl_b32 s34, s34, 4
    s_add_u32 s34, s34, s3
    s_lshl_b32 s34, s34, 7
    s_add_u32 s{sFl}, s34, {FL1}
    """)
    def qkv_stores(data):
        for p, lo, hi in ((1, sSK, sSKh), (2, None, None), (0, sSQ, sSQh)):
            for rt in range(2):
                for half in range(2):
                    d = data(p, rt, half)
                    if p == 2: a(f"buffer_store_dwordx4 {q4(d)}, v{vVo}, {srd(sWS)}, s{sSV} offen offset:{rt*2048 + half*128} sc1")
                    else: a(f"buffer_store_dwordx4 {q4(d)}, v{vQo}, {srd(sWS)}, s{hi if half else lo} offen offset:{rt*512} sc1")
    a(f"""
    global_load_dword v{vTAG}, v1, s[30:31] sc1
    s_lshl_b32 s3, s{sRH}, 6
    v_add_u32 v5, s3, v2
    v_lshlrev_b32 v5, 7, v5
    v_bfe_u32 v6, v2, 1, 3
    v_xor_b32 v6, v6, v3
    v_lshl_add_u32 v{vxa[0]}, v6, 4, v5
    v_add_u32 v{vxa[0]}, {slot0}, v{vxa[0]}
    v_xor_b32 v{vxa[1]}, 32, v{vxa[0]}
    v_xor_b32 v{vxa[2]}, 64, v{vxa[0]}
    v_xor_b32 v{vxa[3]}, 96, v{vxa[0]}
    v_lshl_add_u32 v6, v3, 3, v4
    v_lshlrev_b32 v6, 7, v6
    v_add_u32 v6, {slot0 + 16384}, v6
    v_bfe_u32 v7, v{vL}, 4, 1
    v_lshlrev_b32 v7, 5, v7
    v_and_b32 v8, 1, v{vL}
    v_lshl_or_b32 v7, v8, 4, v7
    v_bfe_u32 v8, v{vL}, 1, 1
    v_lshl_or_b32 v7, v8, 3, v7
    s_lshl_b32 s3, s{sCH}, 6
    v_or_b32 v7, s3, v7
    v_and_b32 v8, 2, v4
    v_lshlrev_b32 v8, 5, v8
    v_xor_b32 v7, v7, v8
    v_add_u32 v{vwa}, v6, v7
    """)
    def reads(s, ks):
        L = [f"ds_read_b128 {q4(Fx(s,rt))}, v{vxa[ks]} offset:{rt*4096}" for rt in range(2)]
        for p in (1, 2, 0):
            for u in range(2):
                L.append(f"ds_read_b64_tr_b16 {q2(Fw(s, p) + 2*u)}, v{vwa} offset:{p*8192 + ks*2048 + u*512}")
        return L
    def kstep(s, rd, extra=(), zero=False):
        M = []
        for p in (1, 2, 0):
            for rt in range(2):
                A, B = (Fx(s,rt), Fw(s,p)) if p == 2 else (Fw(s,p), Fx(s,rt))
                M.append(f"v_mfma_f32_32x32x16_bf16 {q16(Acc(p,rt))}, {q4(A)}, {q4(B)}, {'0' if zero else q16(Acc(p,rt))}")
        per = [3, 3, 2, 0, 0, 0]
        k = 0
        extra = list(extra)
        for i, m in enumerate(M):
            a(m)
            for _ in range(per[i]):
                if k < len(rd): a(rd[k]); k += 1
            if i >= 3:
                for _ in range(4):
                    if extra: a(extra.pop(0))
        for e in extra: a(e)
    sC, sD = 42, 43
    a("s_barrier")
    stamp(1)
    for r in reads(0, 0): a(r)
    a(f"s_mov_b32 s{sC}, 0")
    ex0 = [f"s_and_b32 s3, s{sC}, 3", f"s_cmp_eq_u32 s3, 2", f"s_mov_b32 s{sD}, {SLOT}",
           f"s_cselect_b32 s{sD}, {(-3*SLOT) & 0xffffffff}, s{sD}",
           f"v_add_u32 v{vxa[0]}, s{sD}, v{vxa[0]}", f"v_add_u32 v{vxa[1]}, s{sD}, v{vxa[1]}"]
    a("s_waitcnt lgkmcnt(0)")
    kstep(0, reads(1, 1), ex0, zero=True)
    a("s_branch L_gemm1")
    a.raw("L_gemm:")
    a("s_waitcnt lgkmcnt(0)")
    kstep(0, reads(1, 1), ex0)
    a.raw("L_gemm1:")
    a("s_waitcnt lgkmcnt(0)")
    kstep(1, reads(0, 2), [f"v_add_u32 v{vxa[2]}, s{sD}, v{vxa[2]}"])
    a("s_waitcnt lgkmcnt(0)")
    kstep(0, reads(1, 3), [f"v_add_u32 v{vxa[3]}, s{sD}, v{vxa[3]}", f"v_add_u32 v{vwa}, s{sD}, v{vwa}",
                           f"s_add_u32 s{sC}, s{sC}, 1", f"s_cmp_lt_u32 s{sC}, 6"])
    a("s_waitcnt lgkmcnt(0)")
    a("s_barrier")
    kstep(1, reads(0, 0))
    a("s_cbranch_scc1 L_gemm")
    def cvt(d, s0): a(f"v_cvt_pk_bf16_f32 v{d}, v{s0}, v{s0+1}")
    def mf(p, rt, ks):
        A, B = (Fx(ks,rt), Fw(ks,p)) if p == 2 else (Fw(ks,p), Fx(ks,rt))
        return f"v_mfma_f32_32x32x16_bf16 {q16(Acc(p,rt))}, {q4(A)}, {q4(B)}, {q16(Acc(p,rt))}"
    rd = []
    for ks in (1, 2, 3):
        r = reads(ks, ks); rd += r[0:4]
    for ks in (1, 2, 3): rd += reads(ks, ks)[6:8]
    for ks in (1, 2, 3): rd += reads(ks, ks)[4:6]
    a("s_waitcnt vmcnt(0) lgkmcnt(0)")
    k = 0
    for p in (1, 0, 2):
        for rt in range(2):
            a(mf(p, rt, 0))
            for _ in range(3): a(rd[k]); k += 1
    def epi(p):
        L = []
        for rt in range(2):
            for half in range(2):
                if p == 2:
                    d = 176 + (rt*2+half)*4; s0 = Acc(2, rt) + 4*half
                    L += [f"v_cvt_pk_bf16_f32 v{d}, v{s0}, v{s0+1}", f"v_cvt_pk_bf16_f32 v{d+1}, v{s0+2}, v{s0+3}",
                          f"v_cvt_pk_bf16_f32 v{d+2}, v{s0+8}, v{s0+9}", f"v_cvt_pk_bf16_f32 v{d+3}, v{s0+10}, v{s0+11}",
                          f"buffer_store_dwordx4 {q4(d)}, v{vVo}, {srd(sWS)}, s{15 if rt else sSV} offen offset:{half*128} sc1"]
                else:
                    d = Acc(p, rt) + 8*half
                    lo, hi = (sSK, sSKh) if p == 1 else (sSQ, sSQh)
                    L += [f"v_cvt_pk_bf16_f32 v{d+i}, v{d+2*i}, v{d+2*i+1}" for i in range(4)]
                    L += [f"buffer_store_dwordx4 {q4(d)}, v{vQo}, {srd(sWS)}, s{hi if rt else lo} offen offset:{half*1024} sc1"]
        return L
    for n, ks in enumerate((1, 2, 3)):
        a(f"s_waitcnt lgkmcnt({min(15, k - 4*(n+1))})")
        for rt in range(2):
            a(mf(1, rt, ks))
            if k < 24: a(rd[k]); k += 1
    pend = epi(1)
    for p, nxt, base in ((0, 0, 12), (2, None, 18)):
        for n, ks in enumerate((1, 2, 3)):
            a(f"s_waitcnt lgkmcnt({24 - base - 2*(n+1)})")
            for rt in range(2):
                a(mf(p, rt, ks))
                if n or rt:
                    for _ in range(4):
                        if pend: a(pend.pop(0))
        for x in pend: a(x)
        pend = epi(p)
    stamp(3)
    for x in pend: a(x)
    if opt.get("defer", 3) in (1, 2): a("s_barrier")
    stamp(2)
    a("v_mov_b32 v227, 0")
    a("s_waitcnt vmcnt(0)")
    get_tag("c")
    a(f"""
    s_mov_b64 exec, 1
    buffer_store_dword v{vTAG}, v227, {srd(sWS)}, s{sFl} offen sc1
    s_mov_b64 exec, -1
    """)
    stamp(4)
    if opt.get("defer", 3) >= 3: a("s_barrier")
    a("s_branch L_cmp2")
    a.raw("L_cmp_idle:")
    a(f"global_load_dword v{vTAG}, v1, s[30:31] sc1")
    a("s_waitcnt vmcnt(0)")
    get_tag("i")
    a.raw("L_cmp2:")
    a(p2common)
    a("s_branch L_phase2")
    a.raw("L_brB:")
    SLB = 43008
    SB0 = 34816
    a(MAPB)
    a(f"""
    s_cmp_lt_u32 s{sWAVE}, 4
    s_cbranch_scc1 L_cmpB
    """)
    vXh = 12
    sLh = 63
    a(f"""
    s_sub_u32 s{sLW}, s{sWAVE}, 4
    s_lshl_b32 s{sT0}, s{sRB}, 7
    s_lshl_b32 s{sT1}, s{sLW}, 5
    s_add_u32 s{sT0}, s{sT0}, s{sT1}
    v_add_u32 v4, s{sT0}, v1
    v_mul_u32_u24 v4, 896, v4
    v_xor_b32 v5, v2, v3
    v_lshl_add_u32 v{vXe}, v5, 4, v4
    v_xor_b32 v5, 4, v5
    v_lshl_add_u32 v{vXo}, v5, 4, v4
    v_add_u32 v{vXo}, 6144, v{vXo}
    s_lshl_b32 s{sLx}, s{sLW}, 12
    s_lshl_b32 s{sLw}, s{sLW}, 11
    s_lshl_b32 s{sLh}, s{sLW}, 9
    s_lshl_b32 s{sT1}, s{sLW}, 4
    v_add_u32 v4, s{sT1}, v1
    v_mul_u32_u24 v4, 2688, v4
    s_mul_i32 s{sT1}, s{sLAM}, 112
    v_add_u32 v4, s{sT1}, v4
    v_and_b32 v5, 1, v3
    v_lshlrev_b32 v5, 1, v5
    v_xor_b32 v5, v2, v5
    v_mov_b32 v7, {BIG}
    v_lshl_add_u32 v{vW0}, v5, 4, v4
    v_cmp_eq_u32 vcc, 7, v5
    v_xor_b32 v6, 4, v5
    v_cndmask_b32 v{vW0}, v{vW0}, v7, vcc
    v_lshl_add_u32 v{vW1}, v6, 4, v4
    v_cmp_eq_u32 vcc, 7, v6
    v_add_u32 v{vW1}, {8*2688-1024}, v{vW1}
    v_cndmask_b32 v{vW1}, v{vW1}, v7, vcc
    s_lshl_b32 s{sT0}, s{sRB}, 7
    s_lshl_b32 s{sT1}, s{sLW}, 2
    s_add_u32 s{sT0}, s{sT0}, s{sT1}
    s_sub_u32 s{sT0}, s{sT0}, 16
    v_add_u32 v4, s{sT0}, v1
    v_mul_i32_i24 v4, 896, v4
    s_lshl_b32 s{sT1}, s{sLW}, 1
    v_add_u32 v5, s{sT1}, v3
    v_and_b32 v5, 7, v5
    v_xor_b32 v5, v2, v5
    v_lshl_add_u32 v{vXh}, v5, 4, v4
    s_cmp_eq_u32 s{sRB}, 0
    s_cselect_b64 vcc, -1, 0
    v_cndmask_b32 v{vXh}, v{vXh}, v7, vcc
    s_mov_b32 s{sX+2}, {XB}
    s_mov_b32 s{sX+3}, 0x20000
    s_mov_b32 s{sW+2}, {WB}
    s_mov_b32 s{sW+3}, 0x20000
    s_waitcnt lgkmcnt(0)
    s_mov_b32 s{sX}, s22
    s_mov_b32 s{sX+1}, s23
    s_mov_b32 s{sW}, s24
    s_mov_b32 s{sW+1}, s25
    """)
    stamp(0)
    del order[:]
    def DB(c):
        slot = SB0 + ((c + 2) % 3) * SLB
        a(f"""
        s_add_u32 m0, s{sLx}, {slot + 2048}
        s_mov_b32 s{sT0}, {c*128}
        s_mov_b32 s{sT1}, {c*128 + 12288}
        buffer_load_dwordx4 v{vXe}, {srd(sX)}, s{sT0} offen lds
        buffer_load_dwordx4 v{vXo}, {srd(sX)}, s{sT0} offen offset:1024 lds
        buffer_load_dwordx4 v{vXe}, {srd(sX)}, s{sT1} offen offset:2048 lds
        buffer_load_dwordx4 v{vXo}, {srd(sX)}, s{sT1} offen offset:3072 lds
        """)
        for p in range(3):
            a(f"""
            s_add_u32 m0, s{sLw}, {slot + 18432 + p*8192}
            s_mov_b32 s{sT1}, {c*64*2688 + p*896}
            buffer_load_dwordx4 v{vW0}, {srd(sW)}, s{sT1} offen lds
            buffer_load_dwordx4 v{vW1}, {srd(sW)}, s{sT1} offen offset:1024 lds
            """)
        a(f"""
        s_add_u32 m0, s{sLh}, {slot}
        s_mov_b64 exec, 0xffffffff
        buffer_load_dwordx4 v{vXh}, {srd(sX)}, s{sT0} offen lds
        s_mov_b64 exec, -1
        """)
        order.extend([c] * 11)
    head(DB, 384)
    a(wo_setup); order.append("tag")
    Wt(2); DB(4); Wt(3); DB(5); Wt(4); DB(6); pf_wo(2); Wt(5); issue_wo(0, 10); Wt(6); issue_wo(10, 20)
    a("s_branch L_ld2")
    a.raw("L_cmpB:")
    sHH = 96
    def Qa(rt, ft): return ((rt-1)*2+ft)*4
    def Ka(rt, ft): return 32 + (rt*2+ft)*4
    def Va(rt, ft): return 72 + (rt*2+ft)*4
    def Gx(s, rt): return 112 + 44*s + 4*rt
    def Gw(s, p, ft): return 112 + 44*s + 20 + (p*2+ft)*4
    bxa = [200, 201]; bwa = [202, 203]
    vBS, vBP, vBP1 = 204, 208, 212
    sl0 = SB0 + 2 * SLB
    a(f"""
    s_and_b32 s{sHH}, s{sWAVE}, 1
    s_lshr_b32 s{sRH}, s{sWAVE}, 1
    v_and_b32 v2, 15, v{vL}
    s_lshl_b32 s3, s{sRH}, 6
    v_add_u32 v4, s3, v2
    v_lshlrev_b32 v4, 7, v4
    v_lshrrev_b32 v5, 1, v2
    v_xor_b32 v5, v5, v3
    v_lshl_add_u32 v{bxa[0]}, v5, 4, v4
    v_add_u32 v{bxa[0]}, {sl0}, v{bxa[0]}
    v_xor_b32 v{bxa[1]}, 64, v{bxa[0]}
    v_lshrrev_b32 v4, 2, v2
    v_and_b32 v5, 3, v{vL}
    v_lshl_add_u32 v6, v3, 3, v4
    v_lshlrev_b32 v6, 7, v6
    v_add_u32 v6, {sl0 + 18432}, v6
    v_and_b32 v7, 2, v4
    v_and_b32 v8, 1, v3
    v_lshl_or_b32 v7, v8, 2, v7
    v_lshlrev_b32 v7, 4, v7
    s_mul_i32 s3, s{sHH}, 56
    v_lshl_add_u32 v8, v5, 3, s3
    v_xor_b32 v9, v8, v7
    v_add_u32 v{bwa[0]}, v6, v9
    v_add_u32 v8, 32, v8
    v_cmp_eq_u32 vcc, 56, v8
    v_mov_b32 v9, 120
    v_cndmask_b32 v8, v8, v9, vcc
    v_xor_b32 v9, v8, v7
    v_add_u32 v{bwa[1]}, v6, v9
    v_cmp_eq_u32 vcc, 12, v2
    v_cndmask_b32 v216, 0, 1.0, vcc
    v_mov_b32 v217, v216
    v_mov_b32 v218, v216
    v_mov_b32 v219, v216
    s_lshl_b32 s34, s{sRB}, 1
    s_add_u32 s34, s34, s{sRH}
    s_lshl_b32 s37, s34, 6
    s_lshl_b32 s3, s{sLAM}, 1
    s_add_u32 s3, s3, s{sHH}
    s_add_u32 s3, s3, s37
    s_lshl_b32 s3, s3, 10
    s_add_u32 s36, s3, {OB}
    s_mov_b32 s37, s34
    v_mov_b32 v1, 0
    s_waitcnt lgkmcnt(0)
    {TAGC if opt.get('swap', 0) else ''}
    """)
    stamp(0)
    pc = [l for l in p2common.split("\n") if l.strip()]
    cut = next(k for k in range(len(pc)) if pc[k].strip().startswith("s_mul_i32 s3, s%d, 3" % sWAVE))
    bias = f"""
    v_mov_b32 v224, {NEG}
    v_and_b32 v220, 15, v{vL}
    v_lshrrev_b32 v221, 4, v{vL}
    v_lshlrev_b32 v221, 2, v221
    v_sub_u32 v220, v220, v221
    """ + "".join(f"""
    v_subrev_u32 v221, {i}, v220
    v_and_b32 v222, 0x80000001, v221
    v_cmp_eq_u32 vcc, 0, v222
    v_cndmask_b32 v{vBS+i}, v224, 0, vcc
    v_cmp_eq_u32 vcc, 0x80000000, v222
    v_cndmask_b32 v{vBP+i}, v224, 0, vcc
    """ for i in range(4)) + """
    s_cmp_eq_u32 s37, 0
    s_cselect_b64 vcc, -1, 0
    """ + "".join(f"v_cndmask_b32 v{vBP1+i}, v{vBP+i}, v224, vcc\n" for i in range(4))
    pieces = [rest_setup + f"v_mov_b32 v227, 0\nglobal_load_dword v{vTAG}, v227, s[30:31] sc1\n" + bias, "\n".join(pc[:cut]), "\n".join(pc[cut:])]
    def breads(s, ks):
        L = [f"ds_read_b128 {q4(Gx(s,rt))}, v{bxa[ks]} offset:{rt*2048}" for rt in (1, 2, 3, 4, 0)]
        for p in range(3):
            for ft in range(2):
                for u in range(2):
                    L.append(f"ds_read_b64_tr_b16 {q2(Gw(s,p,ft) + 2*u)}, v{bwa[ft]} offset:{p*8192 + ks*4096 + u*512}")
        return L
    def bstep(s, rd, zero=False):
        M = []
        C = lambda r, z='0': z if zero else q4(r)
        for rt in (1, 2, 3, 4, 0):
            for ft in range(2):
                if rt: M.append(f"v_mfma_f32_16x16x32_bf16 {q4(Qa(rt,ft))}, {q4(Gw(s,0,ft))}, {q4(Gx(s,rt))}, {C(Qa(rt,ft))}")
                M.append(f"v_mfma_f32_16x16x32_bf16 {q4(Ka(rt,ft))}, {q4(Gw(s,1,ft))}, {q4(Gx(s,rt))}, {C(Ka(rt,ft))}")
                M.append(f"v_mfma_f32_16x16x32_bf16 {q4(Va(rt,ft))}, {q4(Gx(s,rt))}, {q4(Gw(s,2,ft))}, {C(Va(rt,ft), q4(216) if ft else '0')}")
        for i, m in enumerate(M):
            a(m)
            if i < len(rd): a(rd[i])
    a("s_barrier")
    stamp(1)
    for r in breads(0, 0): a(r)
    a(f"s_mov_b32 s{sC}, 0")
    a("s_waitcnt lgkmcnt(0)")
    bstep(0, breads(1, 1), zero=True)
    a(pieces[0]); a(pieces[1])
    a(f"""
    s_mul_i32 s3, s{sC}, 86
    s_lshr_b32 s3, s3, 8
    s_mul_i32 s3, s3, 3
    s_cmp_eq_u32 s3, s{sC}
    s_mov_b32 s{sD}, {SLB}
    s_cselect_b32 s{sD}, {(-2*SLB) & 0xffffffff}, s{sD}
    v_add_u32 v{bxa[0]}, s{sD}, v{bxa[0]}
    v_add_u32 v{bxa[1]}, s{sD}, v{bxa[1]}
    v_add_u32 v{bwa[0]}, s{sD}, v{bwa[0]}
    v_add_u32 v{bwa[1]}, s{sD}, v{bwa[1]}
    s_cmp_eq_u32 s{sC}, 6
    s_waitcnt lgkmcnt(0)
    s_cbranch_scc1 L_nobarB0
    s_barrier
    L_nobarB0:
    """)
    bstep(1, breads(0, 0))
    a(pieces[2])
    a(f"s_mov_b32 s{sC}, 1")
    a.raw("L_gemmB:")
    a("s_waitcnt lgkmcnt(0)")
    bstep(0, breads(1, 1))
    a(f"""
    s_mul_i32 s3, s{sC}, 86
    s_lshr_b32 s3, s3, 8
    s_mul_i32 s3, s3, 3
    s_cmp_eq_u32 s3, s{sC}
    s_mov_b32 s{sD}, {SLB}
    s_cselect_b32 s{sD}, {(-2*SLB) & 0xffffffff}, s{sD}
    v_add_u32 v{bxa[0]}, s{sD}, v{bxa[0]}
    v_add_u32 v{bxa[1]}, s{sD}, v{bxa[1]}
    v_add_u32 v{bwa[0]}, s{sD}, v{bwa[0]}
    v_add_u32 v{bwa[1]}, s{sD}, v{bwa[1]}
    s_cmp_eq_u32 s{sC}, 6
    s_waitcnt lgkmcnt(0)
    s_cbranch_scc1 L_nobarB
    s_barrier
    L_nobarB:
    """)
    bstep(1, breads(0, 0))
    a(f"""
    s_add_u32 s{sC}, s{sC}, 1
    s_cmp_lt_u32 s{sC}, 7
    s_cbranch_scc1 L_gemmB
    """)
    stamp(3)
    def Qf(j): return 168 + 4*(j-1)
    def Kf(rt): return 128 + 4*rt
    def Vf(dt, rt): return 148 + 10*dt + 2*rt
    a("s_waitcnt vmcnt(0) lgkmcnt(0)")
    get_tag("b")
    for rt in (1, 2, 3, 4, 0):
        for ft in range(2):
            if rt:
                cvt(Qf(rt)+2*ft, Qa(rt,ft)); cvt(Qf(rt)+2*ft+1, Qa(rt,ft)+2)
            cvt(Kf(rt)+2*ft, Ka(rt,ft)); cvt(Kf(rt)+2*ft+1, Ka(rt,ft)+2)
            cvt(Vf(ft,rt), Va(rt,ft)); cvt(Vf(ft,rt)+1, Va(rt,ft)+2)
    stamp(4)
    a.raw("L_phase2:")
    def wo_reads(base):
        L = []
        for hq in range(4):
            for cidx in range(4):
                for u in range(2):
                    d = base + (hq*4 + cidx)*4 + 2*u
                    L.append(f"ds_read_b64_tr_b16 {q2(d)}, v{vWA + 4*u + ((cidx + 2*(hq&1)) & 3)} offset:{hq*3584}")
        return L
    def wo_mask(base):
        return [f"v_and_b32 v{base + f*4 + 2 + r}, v{vMG}, v{base + f*4 + 2 + r}" for f in range(16) for r in range(2)]
    WB_, OF_ = 128, 192
    QF = 124
    KS, VS = 72, 84
    QB_, KB_, VB_ = 8, 16, 28
    sBud = 14
    def qmask(r):
        for i in range(4): a(f"v_and_b32 v{r+i}, v{vQm + (i>>1)}, v{r+i}")
    a("s_barrier")
    stamp(11)
    for i in range(3):
        a(f"buffer_load_dwordx4 {q4(KS+4*i)}, v{vKq}, {srd(sWS)}, s{sK[i]} offen sc1")
    a(f"buffer_load_dwordx4 {q4(QF)}, v{vKq}, {srd(sWS)}, s{sQA} offen sc1")
    for i in range(3):
        a(f"buffer_load_dwordx4 {q4(VS+4*i)}, v{vV1 if i == 1 else vV0}, {srd(sWS)}, s{sV[i]} offen sc1")
    a(f"""
    s_lshr_b32 s3, s{sWAVE}, 2
    s_cmp_gt_u32 s{sBR}, s3
    s_cbranch_scc0 L_noB1
    """)
    def SB(j, t): return 8*(j-1) + 4*t
    for j in range(1, 5):
        bp = vBP1 if j == 1 else vBP
        a(f"v_mfma_f32_16x16x32_bf16 {q4(SB(j,0))}, {q4(Kf(j-1))}, {q4(Qf(j))}, {q4(bp)}")
        a(f"v_mfma_f32_16x16x32_bf16 {q4(SB(j,1))}, {q4(Kf(j))}, {q4(Qf(j))}, {q4(vBS)}")
    M = lambda j: 32 + (j-1)
    T = lambda j: 36 + (j-1)
    for j in range(1, 5):
        s = SB(j, 0)
        a(f"v_max3_f32 v{M(j)}, v{s}, v{s+1}, v{s+2}")
        a(f"v_max3_f32 v{T(j)}, v{s+3}, v{s+4}, v{s+5}")
        a(f"v_max3_f32 v{M(j)}, v{M(j)}, v{s+6}, v{s+7}")
        a(f"v_max_f32 v{M(j)}, v{M(j)}, v{T(j)}")
    for sw in ("v_permlane32_swap_b32", "v_permlane16_swap_b32"):
        for j in range(1, 5): a(f"v_mov_b32 v{T(j)}, v{M(j)}")
        for j in range(1, 5): a(f"{sw} v{M(j)}, v{T(j)}")
        for j in range(1, 5): a(f"v_max_f32 v{M(j)}, v{M(j)}, v{T(j)}")
    for j in range(1, 5): a(f"v_mul_f32 v{M(j)}, v{vC}, v{M(j)}")
    for j in range(1, 5):
        for i in range(8): a(f"v_fma_f32 v{SB(j,0)+i}, v{SB(j,0)+i}, v{vC}, -v{M(j)}")
    for j in range(1, 5):
        for i in range(8): a(f"v_exp_f32 v{SB(j,0)+i}, v{SB(j,0)+i}")
    P = lambda j: 40 + 4*(j-1)
    for j in range(1, 5):
        for i in range(4): cvt(P(j)+i, SB(j,0)+2*i)
    O = lambda j, dt: 8*(j-1) + 4*dt
    for j in range(1, 5):
        for dt in (1, 0):
            a(f"v_mfma_f32_16x16x32_bf16 {q4(O(j,dt))}, {q4(Vf(dt,j-1))}, {q4(P(j))}, 0")
    st = [normalize(O(j,0), O(j,1), 56+2*(j-1), 57+2*(j-1), 100+4*(j-1)) for j in range(1, 5)]
    for k in range(len(st[0])):
        for j in range(4):
            for x in st[j][k]: a(x)
    a.raw("L_noB1:")
    for r in wo_reads(WB_): a(r)
    a(f"""
    s_mov_b32 s{sBud}, {POLL_MAX}
    v_lshlrev_b32 v8, 2, v{vG}
    v_sub_u32 v8, v8, v{vR15}
    s_bitcmp1_b32 s{sWAVE}, 0
    s_cselect_b64 s[34:35], -1, 0
    """)
    for i in range(4):
        a(f"""
        v_add_u32 v9, {i}, v8
        v_cmp_lt_i32 vcc, 0, v9
        v_cndmask_b32 v10, v{vNEG}, 0, vcc
        v_cndmask_b32 v11, 0, v{vNEG}, vcc
        v_cndmask_b32 v{0+i}, v10, v{vNEG}, s[34:35]
        v_cndmask_b32 v{4+i}, 0, v10, s[34:35]
        v_cndmask_b32 v{64+i}, v11, 0, s[34:35]
        v_cndmask_b32 v{68+i}, v{vNEG}, v11, s[34:35]
        """)
    for i in range(8): a(f"v_add_u32 v{vWA+i}, {L_WOA}, v{vWA+i}")
    a("s_waitcnt lgkmcnt(0)")
    for x in wo_mask(WB_): a(x)
    a(f"""
    s_cmp_ge_u32 s{sARB}, 2
    s_cbranch_scc1 L_nofix
    s_waitcnt vmcnt(4)
    v_not_b32 v9, v{vQm}
    v_not_b32 v10, v{vQm+1}
    v_and_b32 v9, 0xff7f, v9
    v_and_b32 v10, 0xff7f, v10
    """)
    for i in range(3):
        qmask(KS+4*i)
        a(f"""
        s_cmp_eq_u32 s{sK[i]}, {BIG}
        s_cbranch_scc0 L_fx{i}
        v_or_b32 v{KS+4*i}, v9, v{KS+4*i}
        v_or_b32 v{KS+4*i+2}, v10, v{KS+4*i+2}
        L_fx{i}:
        """)
    a.raw("L_nofix:")
    for i in range(3):
        a(f"s_waitcnt vmcnt({6-i})")
        if i == 0: stamp(5)
        a(f"ds_write_b128 v{vKw}, {q4(KS+4*i)} offset:{1024*i}")
    for i in range(3):
        a(f"s_waitcnt vmcnt({2-i})")
        for r in range(4): a(f"v_or_b32 v{VS+4*i+r}, v{vOn1 if i == 1 else vOn0}, v{VS+4*i+r}")
        a(f"ds_write_b128 v{vKw}, {q4(VS+4*i)} offset:{24576+1024*i}")
    a(f"""
    s_lshr_b32 s3, s{sWAVE}, 2
    s_cmp_gt_u32 s{sBR}, s3
    s_cbranch_scc0 L_noB2
    """)
    for j in range(1, 5):
        a(f"buffer_store_dwordx4 {q4(100+4*(j-1))}, v{vOo}, {srd(sWS)}, s36 offen sc1")
        if j < 4: a("s_add_u32 s36, s36, 16384")
    a.raw("L_noB2:")
    stamp(6)
    qmask(QF)
    a(f"""
    s_cmp_ge_u32 s{sARB}, 2
    s_cbranch_scc1 L_nofixq
    v_not_b32 v9, v{vQm}
    v_not_b32 v10, v{vQm+1}
    v_and_b32 v9, 0x3f80, v9
    v_or_b32 v{QF}, v9, v{QF}
    v_and_b32 v10, 0x3f80, v10
    v_or_b32 v{QF+2}, v10, v{QF+2}
    L_nofixq:
    s_waitcnt lgkmcnt(0)
    s_barrier
    """)
    stamp(12)
    KBUF = 72; NKB = 6
    def kread(t): return f"ds_read_b128 {q4(KBUF + 4*(t % NKB))}, v{vKa} offset:{t*1024}"
    for t in range(NKB - 1): a(kread(t))
    vM, vT = 120, 121
    def mx(t):
        r = 4*t
        if t == 0:
            a(f"v_max_f32 v{vM}, v0, v1"); a(f"v_max_f32 v{vT}, v2, v3")
        else:
            a(f"v_max3_f32 v{vM}, v{vM}, v{r}, v{r+1}"); a(f"v_max3_f32 v{vT}, v{vT}, v{r+2}, v{r+3}")
    LAG = 4
    for t in range(18):
        if t + NKB - 1 < 18: a(kread(t + NKB - 1))
        outstanding = min(18, t + NKB) - (t + 1)
        a(f"s_waitcnt lgkmcnt({outstanding})")
        c = q4(4*t) if t in (0, 1, 16, 17) else "0"
        a(f"v_mfma_f32_16x16x32_bf16 {q4(4*t)}, {q4(KBUF + 4*(t % NKB))}, {q4(QF)}, {c}")
        if t >= LAG: mx(t - LAG)
    VBUF = [96 + 4*i for i in range(6)]
    NVB = len(VBUF)
    WA_ = 0
    ACCB = [64, 68, 72, 76, 80, 84, 88, 92]
    ACCA = [96, 100, 104, 108, 112, 116, 120, 124]
    sNext = 27
    lq = []
    def lds(ins, tag): a(ins); lq.append(tag)
    def lwait(tag):
        last = max(i for i, t in enumerate(lq) if t == tag)
        a(f"s_waitcnt lgkmcnt({min(15, len(lq) - 1 - last)})")
    def vread(n):
        lds(f"ds_read_b128 {q4(VBUF[n % NVB])}, v{vKa} offset:{24576 + (n>>1)*2048 + (n&1)*1024}", ("v", n))
    for n in range(NVB): vread(n)
    for t in range(18 - LAG, 18): mx(t)
    a(f"v_max_f32 v{vM}, v{vM}, v{vT}")
    for sw in ("v_permlane32_swap_b32", "v_permlane16_swap_b32"):
        a(f"v_mov_b32 v{vT}, v{vM}")
        a(f"{sw} v{vM}, v{vT}")
        a(f"v_max_f32 v{vM}, v{vM}, v{vT}")
    a(f"v_mul_f32 v{vM}, v{vC}, v{vM}")
    stamp(7)
    def o_load(f, s0):
        hq, tt = f >> 1, f & 1
        return f"buffer_load_dwordx4 {q4(OF_ + f*4)}, v{vOo}, {srd(sWS)}, s{s0 + tt} offen offset:{hq*1024} sc1"
    def frag(lbl, f, wbase, acc, wait, after):
        hq, tt = f >> 1, f & 1
        r = OF_ + f*4
        a(f"""
        s_cmp_lg_u32 s{sNext}, {f}
        s_cbranch_scc1 L_sk{lbl}{f}
        {wait}
        v_cmp_ne_u32 vcc, v{r+3}, v{vTAG}
        s_lshr_b32 s3, vcc_hi, 16
        s_cbranch_scc1 L_sk{lbl}{f}
        """)
        for cidx in range(4):
            d = acc[tt*4+cidx]
            a(f"v_mfma_f32_16x16x32_bf16 {q4(d)}, {q4(wbase + (hq*4+cidx)*4)}, {q4(r)}, {'0' if f < 2 else q4(d)}")
        a(f"s_add_u32 s{sNext}, s{sNext}, 1")
        if after is not None: a(o_load(f, after))
        a.raw(f"L_sk{lbl}{f}:")
    OACC = 224
    war = wo_reads(WA_); wam = wo_mask(WA_)
    LU, FU = opt.get("lu", 4), opt.get("fu", 5)
    a(f"s_mov_b32 s{sNext}, 0")
    for u in range(9):
        b = 8*u
        for i in range(8): a(f"v_fma_f32 v{b+i}, v{b+i}, v{vC}, -v{vM}")
        if LU <= u < LU + 4:
            for f in (2*(u-LU), 2*(u-LU)+1): a(o_load(f, sOB))
        for i in range(8): a(f"v_exp_f32 v{b+i}, v{b+i}")
        if opt.get('inpv', 0) and FU <= u < FU + 4:
            for f in range(2*(u-FU), 2*(u-FU)+2): frag("P", f, WB_, ACCB, f"s_waitcnt vmcnt({7-f})", None)
        for i in range(4): a(f"v_cvt_pk_bf16_f32 v{b+i}, v{b+2*i}, v{b+2*i+1}")
        lwait(("v", 2*u+1))
        for dt in range(2):
            c = "0" if u == 0 else q4(OACC + 4*dt)
            a(f"v_mfma_f32_16x16x32_bf16 {q4(OACC+4*dt)}, {q4(VBUF[(2*u+dt) % NVB])}, {q4(b)}, {c}")
        for n in (NVB + 2*u, NVB + 1 + 2*u):
            if n < 18: vread(n)
    for x in war: a(x)
    for grp in normalize(OACC, OACC+4, 232, 234, 236):
        for x in grp: a(x)
    a(f"buffer_store_dwordx4 {q4(236)}, v{vOo}, {srd(sWS)}, s33 offen sc1")
    stamp(13)
    a(f"""
    s_cmp_eq_u32 s{sCB}, 7
    s_cbranch_scc1 L_fin
    """)
    vXW, vXR, vOut = 224, 228, 230
    a(f"""
    s_lshl_b32 s3, s{sKQ}, 14
    s_lshl_b32 s35, s{sRP}, 13
    s_add_u32 s35, s35, s3
    v_lshlrev_b32 v231, 8, v{vR15}
    v_add_u32 v231, s35, v231
    v_xor_b32 v232, v{vG}, v{vR15}
    """)
    for cidx in range(4):
        a(f"""
        s_add_u32 s3, s{sKQ}, {cidx}
        s_and_b32 s3, s3, 3
        s_lshl_b32 s3, s3, 2
        v_xor_b32 v234, s3, v232
        v_lshl_add_u32 v{vXW+cidx}, v234, 4, v231
        """)
    a(f"""
    v_lshrrev_b32 v231, 3, v{vL}
    s_lshl_b32 s3, s{sWAVE}, 3
    v_add_u32 v231, s3, v231
    v_and_b32 v232, 7, v{vL}
    v_lshlrev_b32 v234, 1, v232
    v_and_b32 v235, 15, v231
    v_xor_b32 v234, v234, v235
    v_lshlrev_b32 v234, 4, v234
    v_lshl_add_u32 v{vXR}, v231, 8, v234
    v_xor_b32 v{vXR+1}, 16, v{vXR}
    s_lshl_b32 s3, s{sRB64}, 6
    v_add_u32 v231, s3, v231
    v_mul_u32_u24 v231, 1792, v231
    v_lshl_add_u32 v231, v232, 4, v231
    s_lshl_b32 s3, s{sCB}, 7
    v_add_u32 v{vOut}, s3, v231
    """)
    def finish(lbl, wbase, acc, s0, after):
        a(f"""
        s_cmp_eq_u32 s{sNext}, 8
        s_cbranch_scc1 L_done{lbl}
        L_again{lbl}:
        """)
        for f in range(8):
            a(f"s_cmp_gt_u32 s{sNext}, {f}")
            a(f"s_cbranch_scc1 L_rl{lbl}{f}")
            a(o_load(f, s0))
            a.raw(f"L_rl{lbl}{f}:")
        a("s_waitcnt vmcnt(0)")
        a.raw(f"L_first{lbl}:")
        for f in range(8): frag(lbl, f, wbase, acc, "", after)
        a(f"""
        s_cmp_eq_u32 s{sBud}, 0
        s_cbranch_scc1 L_done{lbl}
        s_sub_u32 s{sBud}, s{sBud}, 1
        s_cmp_lg_u32 s{sNext}, 8
        s_cbranch_scc1 L_again{lbl}
        {"s_waitcnt vmcnt(0)" if after is not None else ""}
        L_done{lbl}:
        """)
    def exch_write(acc):
        for tt in range(2):
            for cidx in range(4):
                a(f"ds_write_b128 v{vXW+cidx}, {q4(acc[tt*4+cidx])} offset:{tt*4096}")
        a("s_waitcnt lgkmcnt(0)")
        a("s_barrier")
    def exch_final(RB_, outoff):
        for k in range(4):
            for h in range(2):
                a(f"ds_read_b128 {q4(RB_ + (k*2+h)*4)}, v{vXR+h} offset:{k*16384}")
        a("s_waitcnt lgkmcnt(4)")
        for i in range(8): a(f"v_add_f32 v{RB_+i}, v{RB_+i}, v{RB_+8+i}")
        a("s_waitcnt lgkmcnt(0)")
        for i in range(8): a(f"v_add_f32 v{RB_+16+i}, v{RB_+16+i}, v{RB_+24+i}")
        for i in range(8): a(f"v_add_f32 v{RB_+i}, v{RB_+i}, v{RB_+16+i}")
        for i in range(4): a(f"v_cvt_pk_bf16_f32 v{RB_+8+i}, v{RB_+2*i}, v{RB_+2*i+1}")
        a(f"s_mov_b32 s3, {outoff}")
        a(f"buffer_store_dwordx4 {q4(RB_+8)}, v{vOut}, {srd(sOut)}, s3 offen")
    if not opt.get('inpv', 0):
        for f in range(8): frag("R", f, WB_, ACCB, f"s_waitcnt vmcnt({8-f})", None)
    finish("B", WB_, ACCB, sOB, None)
    stamp(8)
    for f in range(8): a(o_load(f, sOA))
    a(f"s_mov_b32 s{sNext}, 0")
    a("s_waitcnt lgkmcnt(0)")
    for x in wam: a(x)
    a("s_barrier")
    exch_write(ACCB)
    if opt.get("rechk", 1):
        a("s_waitcnt vmcnt(0)")
        for f in range(8):
            a(f"""
            v_cmp_ne_u32 vcc, v{OF_+f*4+3}, v{vTAG}
            s_lshr_b32 s3, vcc_hi, 16
            s_cbranch_scc0 L_ok{f}
            {o_load(f, sOA)}
            L_ok{f}:
            """)
    exch_final(128, 896)
    for i in range(4): a(f"v_add_u32 v{vXW+i}, 65536, v{vXW+i}")
    for i in range(2): a(f"v_add_u32 v{vXR+i}, 65536, v{vXR+i}")
    stamp(14)
    for f in range(8): frag("Q", f, WA_, ACCA, "s_waitcnt vmcnt(1)" if opt.get("rechk", 1) else f"s_waitcnt vmcnt({8-f})", None)
    finish("A", WA_, ACCA, sOA, None)
    stamp(9)
    exch_write(ACCA)
    exch_final(160, 0)
    a.raw("L_fin:")
    if stamps:
        stamp(15)
        if "probe" in opt:
            X = opt["probe"]
            a(f"""
            v_readfirstlane_b32 s12, v{vTAG}
            s_bfe_u32 s3, s12, 0xd0001
            s_bfe_u32 s34, s12, 0xf000f
            s_lshl_b32 s34, s34, 13
            s_or_b32 s3, s3, s34
            s_lshr_b32 s34, s12, 31
            s_lshl_b32 s34, s34, 28
            s_or_b32 s3, s3, s34
            s_sub_u32 s34, s{64+2*X}, s3
            s_add_u32 s34, s34, 200
            s_and_b32 s34, s34, 0x1fffffff
            s_cmp_lt_u32 s34, 5000
            s_cselect_b32 s34, s34, 0
            s_add_u32 s34, s34, 3000
            s_mov_b32 s35, 100000
            L_pw:
            s_memrealtime s[16:17]
            s_waitcnt lgkmcnt(0)
            s_sub_u32 s16, s16, s3
            s_and_b32 s16, s16, 0x1fffffff
            s_sub_u32 s35, s35, 1
            s_cmp_eq_u32 s35, 0
            s_cbranch_scc1 L_end
            s_cmp_lt_u32 s16, s34
            s_cbranch_scc1 L_pw
            s_endpgm
            """)
        a(f"""
        s_sub_u32 s84, {POLL_MAX}, s{sBud}
        s_mul_i32 s84, s84, 100
        s_add_u32 s84, s84, s64
        s_lshl_b32 s3, s2, 3
        s_add_u32 s3, s3, s{sWAVE}
        s_lshl_b32 s3, s3, 6
        s_add_u32 s3, s3, {STAMP}
        v_mov_b32 v1, 0
        s_mov_b64 exec, 1
        """)
        if opt.get("dbgst"):
            ids = [1, 2, 3, 4, 5, 6, 7, 8, 9, 11, 12, 13, 14, 15]
            a("s_not_b32 s3, s64")
            a("v_mov_b32 v2, s3")
            a("global_atomic_umax v1, v2, s[30:31] offset:4")
            for k, i in enumerate(ids):
                a(f"s_sub_u32 s3, s{64+2*i}, s64")
                a("s_cmp_lt_u32 s3, 100000")
                a(f"s_cselect_b32 s3, s{64+2*i}, 0")
                a("v_mov_b32 v2, s3")
                a(f"global_atomic_umax v1, v2, s[30:31] offset:{8+4*k}")
            a("s_endpgm")
        for i in range(16):
            a(f"v_mov_b32 v2, s{64+2*i}")
            a(f"buffer_store_dword v2, v1, {srd(sWS)}, s3 offen offset:{4*i}")
    a.raw("L_end:")
    a("s_endpgm")
    bad = a.check_branches()
    for b in bad: print("BRANCH HAZARD", b, file=sys.stderr)
    assert not bad
    out = HEADER + f"""; @launch grid=(256,1,1) block=(512,1,1) lds=163840
.amdgcn_target "amdgcn-amd-amdhsa--gfx950"
.text
.globl {NAME}_kernel
.p2align 8
.type {NAME}_kernel,@function
""" + a.text() + f""".fill 1280, 4, 0xBF800000
s_endpgm
.section .rodata,"a"
.p2align 6
.amdhsa_kernel {NAME}_kernel
  .amdhsa_next_free_vgpr 256
  .amdhsa_next_free_sgpr 102
  .amdhsa_accum_offset 256
  .amdhsa_group_segment_fixed_size 0
  .amdhsa_kernarg_size 72
  .amdhsa_user_sgpr_count 2
  .amdhsa_user_sgpr_kernarg_segment_ptr 1
  .amdhsa_system_sgpr_workgroup_id_x 1
.end_amdhsa_kernel
"""
    return out

if __name__ == "__main__":
    stamps = int(sys.argv[1]); path = sys.argv[2]
    opt = dict((kv.split("=")[0], int(kv.split("=")[1])) for kv in sys.argv[3:])
    open(path, "w").write(gen(stamps, opt))
```

```python
import sys, struct, math
from asmlib import Asm

NAME = "concat_heads__sliding_block__sliding_local_dilated__prompt"
HEADER = open("cdna_kernels/%s.s.ref" % NAME).read().split("; Override launch")[0]
def f2u(x): return struct.unpack("<I", struct.pack("<f", x))[0]

XB, WB, WOB_BYTES, OUTB = 1835008, 1204224, 401408, 3670016
MB2 = 0x200000
QO, KO, VO = 0, MB2, 2*MB2
BRS = 3*MB2
OA, OB = 6*MB2, 7*MB2
FL1 = 8*MB2
STAMP = 8*MB2 + 0x100000
WSB = 9*MB2
BIG = 0x40000000
NEG = f2u(-1e30)
CSC = f2u((28 ** -0.5) * math.log2(math.e))
SLOT = 40960
L_WOB, L_WOA, L_KV = 0, 57344, 114688
POLL_MAX = 40000

sWAVE, sBR, sLAM, sRB, sAH, sARB, sRB64, sCB, sTAG = 4, 5, 6, 7, 8, 9, 10, 11, 12
sX, sW, sWoA, sWoB, sWS, sOut = 36, 40, 44, 48, 52, 56
def srd(b): return f"s[{b}:{b+3}]"
def q4(r): return f"v[{r}:{r+3}]"
def q2(r): return f"v[{r}:{r+1}]"
def q16(r): return f"v[{r}:{r+15}]"
vL, vL16, vTAG = 255, 254, 253

def gen(stamps=False, opt=None):
    opt = opt or {}
    a = Asm()
    def stamp(i):
        if stamps:
            a(f"s_memrealtime s[{64+2*i}:{65+2*i}]")
            a("s_waitcnt lgkmcnt(0)")
    def mk_srd(d, p, n):
        return f"s_mov_b32 s{d}, s{p}\ns_mov_b32 s{d+1}, s{p+1}\ns_mov_b32 s{d+2}, {n}\ns_mov_b32 s{d+3}, 0x20000\n"
    MAP = f"""
    s_lshr_b32 s{sLAM}, s14, 2
    s_and_b32 s15, s13, 3
    s_lshl_b32 s15, s15, 2
    s_and_b32 s3, s14, 3
    s_add_u32 s{sRB}, s15, s3
    """ if opt.get("map", 0) else f"""
    s_and_b32 s15, s13, 1
    s_lshl_b32 s15, s15, 2
    s_lshr_b32 s3, s14, 3
    s_add_u32 s{sLAM}, s15, s3
    s_and_b32 s15, s13, 2
    s_lshl_b32 s15, s15, 2
    s_and_b32 s3, s14, 7
    s_add_u32 s{sRB}, s15, s3
    """
    TAGC = f"""
    s_or_b32 s3, s2, s{sWAVE}
    s_cmp_lg_u32 s3, 0
    s_cbranch_scc1 L_notag
    s_memrealtime s[34:35]
    s_waitcnt lgkmcnt(0)
    s_and_b32 s35, s34, 0x1fff
    s_lshl_b32 s35, s35, 1
    s_or_b32 s35, s35, 1
    s_bfe_u32 s3, s34, 0xf000d
    s_lshl_b32 s3, s3, 15
    s_or_b32 s35, s35, s3
    s_lshl_b32 s34, s34, 3
    s_and_b32 s34, s34, 0x80000000
    s_or_b32 s34, s34, s35
    v_mov_b32 v4, s34
    v_mov_b32 v5, 0
    s_mov_b64 exec, 1
    global_atomic_cmpswap v1, v[4:5], s[30:31] sc1
    s_mov_b64 exec, -1
    L_notag:
    """
    MAPB = f"""
    s_and_b32 s15, s13, 1
    s_lshl_b32 s15, s15, 2
    s_and_b32 s3, s14, 3
    s_add_u32 s{sLAM}, s15, s3
    s_and_b32 s15, s13, 2
    s_lshl_b32 s15, s15, 2
    s_lshr_b32 s3, s14, 2
    s_add_u32 s{sRB}, s15, s3
    """
    a.raw(f"{NAME}_kernel:")
    a(f"""
    s_cmp_ge_u32 s2, 256
    s_cbranch_scc1 L_end
    s_load_dwordx16 s[16:31], s[0:1], 0
    s_load_dwordx2 s[32:33], s[0:1], 64
    v_lshrrev_b32 v1, 6, v0
    v_and_b32 v{vL}, 63, v0
    v_readfirstlane_b32 s{sWAVE}, v1
    s_and_b32 s13, s2, 7
    s_lshr_b32 s14, s2, 3
    s_lshr_b32 s{sBR}, s13, 2
    s_xor_b32 s{sBR}, s{sBR}, {opt.get('swap', 0)}
    {MAP}
    v_lshlrev_b32 v{vL16}, 4, v{vL}
    v_lshrrev_b32 v1, 3, v{vL}
    v_and_b32 v2, 7, v{vL}
    v_lshrrev_b32 v3, 4, v{vL}
    s_cmp_lg_u32 s{sBR}, 0
    s_cbranch_scc1 L_brB
    s_cmp_lt_u32 s{sWAVE}, 4
    s_cbranch_scc1 L_compute
    """)
    rest_setup = f"""
    s_lshl_b32 s{sAH}, s13, 1
    s_and_b32 s3, s14, 1
    s_add_u32 s{sAH}, s{sAH}, s3
    s_lshr_b32 s{sARB}, s14, 1
    s_lshl_b32 s{sRB64}, s13, 2
    s_lshr_b32 s3, s14, 3
    s_add_u32 s{sRB64}, s{sRB64}, s3
    s_and_b32 s{sCB}, s14, 7
    """ + mk_srd(sWoA, 20, WOB_BYTES) + mk_srd(sWoB, 26, WOB_BYTES) + mk_srd(sWS, 32, WSB) + mk_srd(sOut, 28, OUTB)
    def prefetch(l):
        if not opt.get("pf", 1): return
        a(f"""
        s_cmp_lg_u32 s{sWAVE}, 1
        s_cbranch_scc1 L_notouch{l}
        v_min_u32 v4, 8, v{vL}
        v_lshlrev_b32 v4, 21, v4
        v_add_u32 v4, 0x1ff780, v4
        buffer_load_dword v217, v4, {srd(sWS)}, 0 offen sc1
        v_and_b32 v4, 1, v{vL}
        v_lshlrev_b32 v4, 21, v4
        buffer_load_dword v218, v4, {srd(sOut)}, 0 offen
        L_notouch{l}:
        s_and_b32 s3, s14, 15
        s_lshl_b32 s34, s{sWAVE}, 4
        s_or_b32 s3, s3, s34
        s_cmp_lg_u32 s3, 0x2f
        s_cbranch_scc1 L_nocode{l}
        s_getpc_b64 s[34:35]
        L_pc{l}:
        s_sub_u32 s34, s34, L_pc{l}-{NAME}_kernel
        s_subb_u32 s35, s35, 0
        v_lshlrev_b32 v4, 7, v{vL}
        global_load_dword v217, v4, s[34:35]
        v_add_u32 v4, 8192, v4
        global_load_dword v218, v4, s[34:35]
        v_add_u32 v4, 8192, v4
        global_load_dword v219, v4, s[34:35]
        L_nocode{l}:
        """)
    def get_tag(lbl):
        a(f"""
        s_mov_b32 s35, {POLL_MAX}
        L_tag{lbl}:
        v_readfirstlane_b32 s{sTAG}, v{vTAG}
        s_cmp_lg_u32 s{sTAG}, 0
        s_cbranch_scc1 L_tagok{lbl}
        v_mov_b32 v227, 0
        global_load_dword v{vTAG}, v227, s[30:31] sc1
        s_sub_u32 s35, s35, 1
        s_waitcnt vmcnt(0)
        s_cmp_lg_u32 s35, 0
        s_cbranch_scc1 L_tag{lbl}
        L_tagok{lbl}:
        """)
    def poll(lbl, vaddr, vd):
        a(f"""
        s_mov_b32 s35, {POLL_MAX}
        L_poll{lbl}:
        buffer_load_dword v{vd}, v{vaddr}, {srd(sWS)}, s15 offen sc1
        s_sub_u32 s35, s35, 1
        s_waitcnt vmcnt(0)
        v_cmp_ne_u32 vcc, v{vd}, v{vTAG}
        s_cmp_eq_u32 s35, 0
        s_cbranch_scc1 L_pollok{lbl}
        s_cbranch_vccz L_pollok{lbl}
        s_branch L_poll{lbl}
        L_pollok{lbl}:
        """)
    sRP, sKQ, sT, sU = 60, 61, 62, 63
    vR15, vG, vWA, vMG, vV0, vC = 240, 241, 242, 250, 251, 252
    vNEG, vKa, vKw = 237, 239, 238
    vKq, vOo, vVa, vVb, vOne = 232, 233, 234, 235, 236
    vQm, vOn0, vOn1, vV1 = 228, 230, 231, 226
    sHB, sHQ, sP = 98, 100, 99
    sK = [16, 17, 18, 19, 20, 21]; sV = [22, 23, 24, 25, 26, 27]; sQA = 32
    sOB, sOA = 96, 28
    t0, t1, t2, t3, t4 = 220, 221, 222, 223, 224
    vPA = 225
    FLV = 64*16*128
    p2common = f"""
    s_and_b32 s{sRP}, s{sWAVE}, 1
    s_lshr_b32 s{sKQ}, s{sWAVE}, 1
    v_and_b32 v{vR15}, 15, v{vL}
    v_lshrrev_b32 v{vG}, 4, v{vL}
    v_cmp_gt_u32 vcc, 48, v{vL}
    v_cndmask_b32 v{vMG}, 0, -1, vcc
    v_lshrrev_b32 v{t0}, 2, v{vR15}
    v_lshl_add_u32 v{t1}, v{vG}, 2, v{t0}
    v_lshlrev_b32 v{t1}, 7, v{t1}
    s_mul_i32 s3, s{sKQ}, 14336
    v_add_u32 v{t1}, s3, v{t1}
    v_and_b32 v{t2}, 2, v{t0}
    v_and_b32 v{t3}, 1, v{vG}
    v_lshl_or_b32 v{t2}, v{t3}, 2, v{t2}
    v_lshlrev_b32 v{t2}, 4, v{t2}
    v_and_b32 v{t3}, 3, v{vL}
    v_lshlrev_b32 v{t4}, 3, v{t3}
    v_xor_b32 v{t2}, v{t2}, v{t4}
    v_add_u32 v{t1}, v{t1}, v{t2}
    v_and_b32 v{t2}, 2048, v{vMG}
    """ + "".join(f"""
    s_add_u32 s3, s{sKQ}, {c}
    s_and_b32 s3, s3, 3
    s_lshl_b32 s3, s3, 5
    v_xor_b32 v{vWA+c}, s3, v{t1}
    v_add_u32 v{vWA+4+c}, v{vWA+c}, v{t2}
    """ for c in range(4)) + f"""
    v_mov_b32 v{t4}, {BIG}
    v_lshlrev_b32 v{vKq}, 9, v{vG}
    v_lshl_add_u32 v{vKq}, v{vR15}, 4, v{vKq}
    v_lshlrev_b32 v{vOo}, 6, v{vR15}
    v_lshl_add_u32 v{vOo}, v{vG}, 4, v{vOo}
    v_lshlrev_b32 v{vVa}, 8, v{t0}
    v_lshl_add_u32 v{vVa}, v{vG}, 6, v{vVa}
    v_lshl_add_u32 v{vVa}, v{t3}, 4, v{vVa}
    v_add_u32 v{vVb}, 1024, v{vVa}
    v_cmp_gt_u32 vcc, 12, v{vR15}
    v_cndmask_b32 v{vVb}, v{t4}, v{vVb}, vcc
    v_cmp_eq_u32 vcc, 12, v{vR15}
    v_mov_b32 v{t4}, 0x3f803f80
    v_cndmask_b32 v{vOne}, 0, v{t4}, vcc
    v_mov_b32 v{vC}, {CSC}
    v_mov_b32 v{vNEG}, {NEG}
    s_and_b32 s3, s{sWAVE}, 6
    s_lshl_b32 s3, s3, 10
    s_add_u32 s3, s3, {L_KV}
    v_add_u32 v{vKa}, s3, v{vL16}
    s_mul_i32 s3, s{sAH}, 7
    s_lshr_b32 s{sHQ}, s3, 1
    s_lshl_b32 s{sHQ}, s{sHQ}, 9
    s_lshl_b32 s{sHB}, s3, 8
    v_cmp_lt_u32 vcc, 15, v{vL}
    v_cndmask_b32 v{t0}, 0, -1, vcc
    s_bitcmp1_b32 s{sAH}, 0
    s_cselect_b64 vcc, -1, 0
    v_cndmask_b32 v{vQm}, -1, v{t0}, vcc
    v_cndmask_b32 v{vQm+1}, v{vMG}, -1, vcc
    s_mul_i32 s3, s{sWAVE}, 3
    s_lshl_b32 s{sT}, s{sARB}, 3
    s_sub_u32 s{sT}, s{sT}, 16
    s_add_u32 s{sT}, s{sT}, s3
    s_lshl_b32 s3, s3, 10
    s_add_u32 s3, s3, {L_KV}
    v_add_u32 v{vKw}, s3, v{vL16}
    v_subrev_u32 v{t0}, 1024, v{vVb}
    s_bitcmp1_b32 s{sWAVE}, 0
    s_cselect_b64 vcc, -1, 0
    v_cndmask_b32 v{vV0}, v{vVa}, v{t0}, vcc
    v_cndmask_b32 v{vV1}, v{t0}, v{vVa}, vcc
    v_cndmask_b32 v{vOn0}, 0, v{vOne}, vcc
    v_cndmask_b32 v{vOn1}, v{vOne}, 0, vcc
    """ + "".join(f"""
    s_ashr_i32 s34, s{sT}, 1
    s_mul_i32 s34, s34, 28672
    s_and_b32 s35, s{sT}, 1
    s_lshl_b32 s3, s35, 10
    s_add_u32 s3, s3, s34
    s_add_u32 s3, s3, s{sHB}
    s_add_u32 s3, s3, {VO}
    s_lshl_b32 s35, s35, 8
    s_add_u32 s35, s35, s34
    s_add_u32 s35, s35, s{sHQ}
    s_add_u32 s35, s35, {KO}
    s_cmp_lt_i32 s{sT}, 0
    s_cselect_b32 s{sV[i]}, {BIG}, s3
    s_cselect_b32 s{sK[i]}, {BIG}, s35
    s_add_u32 s{sT}, s{sT}, 1
    """ for i in range(3)) + f"""
    s_lshl_b32 s3, s{sARB}, 3
    s_add_u32 s3, s3, s{sWAVE}
    s_lshr_b32 s34, s3, 1
    s_mul_i32 s34, s34, 28672
    s_and_b32 s35, s3, 1
    s_lshl_b32 s35, s35, 8
    s_add_u32 s35, s35, s34
    s_add_u32 s{sQA}, s35, s{sHQ}
    s_lshl_b32 s3, s3, 4
    s_add_u32 s3, s3, s{sAH}
    s_lshl_b32 s3, s3, 10
    s_add_u32 s33, s3, {OA}
    s_mul_i32 s3, s{sAH}, 7
    s_lshr_b32 s34, s3, 3
    s_add_u32 s3, s3, 6
    s_lshr_b32 s35, s3, 3
    s_sub_u32 s35, s35, s34
    v_and_b32 v{t0}, 1, v{vL}
    v_mul_u32_u24 v{t0}, s35, v{t0}
    v_add_u32 v{t0}, s34, v{t0}
    v_min_u32 v{t1}, 11, v{vL}
    v_lshrrev_b32 v{t1}, 1, v{t1}
    s_lshl_b32 s3, s{sARB}, 1
    s_sub_u32 s3, s3, 4
    v_add_u32 v{t1}, s3, v{t1}
    v_max_i32 v{t1}, 0, v{t1}
    v_lshl_add_u32 v{t1}, v{t1}, 4, v{t0}
    v_lshlrev_b32 v{vPA}, 7, v{t1}
    s_lshl_b32 s3, s{sRB64}, 2
    s_lshl_b32 s35, s{sRP}, 1
    s_add_u32 s3, s3, s35
    s_lshl_b32 s3, s3, 4
    s_lshl_b32 s35, s{sKQ}, 2
    s_add_u32 s3, s3, s35
    s_lshl_b32 s3, s3, 10
    s_add_u32 s{sOB}, s3, {OB}
    s_add_u32 s{sOB+1}, s{sOB}, 16384
    s_add_u32 s{sOA}, s3, {OA}
    s_add_u32 s{sOA+1}, s{sOA}, 16384
    s_mov_b32 s15, {FL1}
    """
    def normalize(O0, O1, ta, tb, dst):
        return [
            [f"v_mov_b32 v{ta}, v{O1}", f"v_mov_b32 v{tb}, v{O1}"],
            [f"v_permlane32_swap_b32 v{ta}, v{tb}"],
            [f"v_mov_b32 v{ta}, v{tb}"],
            [f"v_permlane16_swap_b32 v{ta}, v{tb}"],
            [f"v_rcp_f32 v{tb}, v{tb}"],
            [f"v_mul_f32 v{O0+i}, v{O0+i}, v{tb}" for i in range(4)] + [f"v_mul_f32 v{O1+i}, v{O1+i}, v{tb}" for i in range(4)],
            [f"v_cvt_pk_bf16_f32 v{dst}, v{O0}, v{O0+1}", f"v_cvt_pk_bf16_f32 v{dst+1}, v{O0+2}, v{O0+3}",
             f"v_cvt_pk_bf16_f32 v{dst+2}, v{O1}, v{O1+1}", f"v_cvt_pk_bf16_f32 v{dst+3}, v{O1+2}, v{O1+3}"],
            [f"v_bfi_b32 v{dst+3}, v{vMG}, v{dst+3}, v{vTAG}"],
        ]
    vXe, vXo, vW0, vW1, vWo, vPw = 10, 11, 13, 14, 15, 17
    sLW, sLx, sLw, sT0, sT1 = 96, 97, 101, 34, 35
    sLwo, sL1k = 14, 15
    a(f"""
    s_sub_u32 s{sLW}, s{sWAVE}, 4
    s_lshl_b32 s{sT0}, s{sRB}, 7
    s_lshl_b32 s{sT1}, s{sLW}, 5
    s_add_u32 s{sT0}, s{sT0}, s{sT1}
    v_add_u32 v4, s{sT0}, v1
    v_mul_u32_u24 v4, 896, v4
    v_xor_b32 v5, v2, v3
    v_lshl_add_u32 v{vXe}, v5, 4, v4
    v_xor_b32 v5, 4, v5
    v_lshl_add_u32 v{vXo}, v5, 4, v4
    v_add_u32 v{vXo}, 6144, v{vXo}
    s_lshl_b32 s{sLx}, s{sLW}, 12
    s_lshl_b32 s{sLw}, s{sLW}, 11
    s_lshl_b32 s{sT1}, s{sLW}, 4
    v_add_u32 v4, s{sT1}, v1
    v_mul_u32_u24 v4, 2688, v4
    s_lshl_b32 s{sT1}, s{sLAM}, 7
    v_add_u32 v4, s{sT1}, v4
    v_and_b32 v5, 1, v3
    v_lshlrev_b32 v5, 2, v5
    v_xor_b32 v5, v2, v5
    v_lshl_add_u32 v{vW0}, v5, 4, v4
    v_add_u32 v{vW1}, {8*2688-1024}, v{vW0}
    s_mov_b32 s{sX+2}, {XB}
    s_mov_b32 s{sX+3}, 0x20000
    s_mov_b32 s{sW+2}, {WB}
    s_mov_b32 s{sW+3}, 0x20000
    s_waitcnt lgkmcnt(0)
    s_mov_b32 s{sX}, s16
    s_mov_b32 s{sX+1}, s17
    s_mov_b32 s{sW}, s18
    s_mov_b32 s{sW+1}, s19
    """)
    stamp(0)
    a(f"""
    s_cmp_eq_u32 s{sLAM}, 7
    s_cbranch_scc1 L_ld_idle
    """)
    order = []
    def D(c):
        slot = ((c + 1) % 4) * SLOT
        a(f"""
        s_add_u32 m0, s{sLx}, {slot}
        s_mov_b32 s{sT0}, {c*128}
        s_mov_b32 s{sT1}, {c*128 + 12288}
        buffer_load_dwordx4 v{vXe}, {srd(sX)}, s{sT0} offen lds
        buffer_load_dwordx4 v{vXo}, {srd(sX)}, s{sT0} offen offset:1024 lds
        buffer_load_dwordx4 v{vXe}, {srd(sX)}, s{sT1} offen offset:2048 lds
        buffer_load_dwordx4 v{vXo}, {srd(sX)}, s{sT1} offen offset:3072 lds
        """)
        for p in (1, 2, 0):
            a(f"""
            s_add_u32 m0, s{sLw}, {slot + 16384 + p*8192}
            s_mov_b32 s{sT1}, {c*64*2688 + p*896}
            buffer_load_dwordx4 v{vW0}, {srd(sW)}, s{sT1} offen lds
            buffer_load_dwordx4 v{vW1}, {srd(sW)}, s{sT1} offen offset:1024 lds
            """)
        order.extend([c] * 10)
    def Wt(c):
        last = max(i for i, o in enumerate(order) if o == c)
        a(f"s_waitcnt vmcnt({len(order) - 1 - last})")
        if c == 0: stamp(1)
        a("s_barrier")
    wo_setup = rest_setup + f"""
    v_and_b32 v5, 6, v1
    v_xor_b32 v5, v2, v5
    v_mul_u32_u24 v4, 896, v1
    s_lshl_b32 s{sT1}, s{sCB}, 7
    v_add_u32 v4, s{sT1}, v4
    v_lshl_add_u32 v{vWo}, v5, 4, v4
    s_cmp_eq_u32 s{sCB}, 7
    s_cselect_b64 vcc, -1, 0
    v_mov_b32 v7, {BIG}
    v_cndmask_b32 v{vWo}, v{vWo}, v7, vcc
    v_mov_b32 v1, 0
    s_mul_i32 s3, s14, 98
    s_and_b32 s{sT1}, s{sLW}, 1
    s_mul_i32 s{sT1}, s{sT1}, 49
    s_add_u32 s3, s3, s{sT1}
    v_min_u32 v4, 48, v{vL}
    v_add_u32 v4, s3, v4
    v_lshlrev_b32 v{vPw}, 7, v4
    s_mul_i32 s{sLwo}, s{sLW}, 7168
    s_lshl_b32 s{sL1k}, s{sLW}, 10
    global_load_dword v{vTAG}, v1, s[30:31] sc1
    """
    def issue_wo(i0, i1):
        for i in range(i0, i1):
            br = i >= 14
            a(f"""
            s_add_u32 m0, s{sL1k}, {4096*i}
            s_add_u32 s{sT1}, s{sLwo}, {(4*i - 56*br)*7168}
            buffer_load_dwordx4 v{vWo}, {srd(sWoA if br else sWoB)}, s{sT1} offen lds
            """)
            order.append("wo")
    vPf = 16
    sPS, sPO = 60, 61
    PFN = " nt" if opt.get("pnt", 0) else ""
    def pf_setup(wmul):
        a(f"""
        s_and_b32 s{sT0}, s13, 2
        s_lshl_b32 s{sT0}, s{sT0}, 9
        s_lshl_b32 s{sT1}, s14, 5
        s_add_u32 s{sT0}, s{sT0}, s{sT1}
        v_min_u32 v4, 31, v{vL}
        v_add_u32 v4, s{sT0}, v4
        v_mul_u32_u24 v{vPf}, 896, v4
        v_min_u32 v4, 23, v{vL}
        v_cmp_le_u32 vcc, 12, v4
        v_cndmask_b32 v5, 0, 1, vcc
        v_mul_u32_u24 v6, 12, v5
        v_sub_u32 v6, v4, v6
        s_lshl_b32 s{sT0}, s14, 1
        v_add_u32 v5, s{sT0}, v5
        v_mul_u32_u24 v5, 2688, v5
        v_lshrrev_b32 v4, 2, v6
        v_mul_u32_u24 v4, 896, v4
        v_add_u32 v5, v5, v4
        v_and_b32 v6, 3, v6
        v_lshl_add_u32 v5, v6, 7, v5
        s_and_b32 s{sT0}, s13, 1
        s_mul_i32 s{sT0}, s{sT0}, {wmul}
        v_add_u32 v5, s{sT0}, v5
        s_bitcmp1_b32 s{sLW}, 0
        s_cselect_b64 vcc, -1, 0
        s_mov_b32 s{sPS}, 128
        s_cselect_b32 s{sPS}, 172032, s{sPS}
        s_cselect_b32 s44, s{sW}, s{sX}
        s_cselect_b32 s45, s{sW+1}, s{sX+1}
        s_cselect_b32 s46, s{sW+2}, s{sX+2}
        s_mov_b32 s47, 0x20000
        v_cndmask_b32 v{vPf}, v{vPf}, v5, vcc
        s_lshr_b32 s{sPO}, s{sLW}, 1
        s_add_u32 s{sPO}, s{sPO}, 1
        s_mul_i32 s{sPO}, s{sPO}, s{sPS}
        s_lshl_b32 s{sPS}, s{sPS}, 1
        """)
    def pf():
        a(f"""
        buffer_load_dword v20, v{vPf}, s[44:47], s{sPO} offen{PFN}
        s_add_u32 s{sPO}, s{sPO}, s{sPS}
        """)
        order.append("pf")
    PMA, PMB = opt.get("pma", 0), opt.get("pmb", 2)
    def head(Dx, wmul):
        PM = PMA if wmul == 512 else PMB
        if PM == 0: Dx(0); Dx(1); Wt(0); Dx(2); Wt(1); Dx(3)
        elif PM == 1: Dx(0); pf_setup(wmul); pf(); Dx(1); Wt(0); Dx(2); pf(); pf(); Wt(1); Dx(3)
        elif PM == 2: Dx(0); pf_setup(wmul); pf(); Dx(1); Wt(0); pf(); Dx(2); Wt(1); pf(); Dx(3)
        elif PM == 3: Dx(0); pf_setup(wmul); pf(); pf(); pf(); Dx(1); Wt(0); Dx(2); Wt(1); Dx(3)
    def pf_wo(l):
        if opt.get("nopw"): return
        a(f"""
        s_cmp_lt_u32 s{sLW}, 2
        s_cbranch_scc1 L_pwB{l}
        buffer_load_dword v20, v{vPw}, {srd(sWoA)}, 0 offen
        s_branch L_pwD{l}
        L_pwB{l}:
        buffer_load_dword v20, v{vPw}, {srd(sWoB)}, 0 offen
        L_pwD{l}:
        """)
        order.append("pfw")
    head(D, 512)
    a(wo_setup); order.append("tag")
    if opt.get("seq", 0) == 1:
        Wt(2); D(4); Wt(3); D(5); pf_wo(0); Wt(4); D(6); issue_wo(0, 10); Wt(5); issue_wo(10, 20); Wt(6)
    elif opt.get("seq", 0) == 0:
        Wt(2); D(4); Wt(3); D(5); Wt(4); D(6); pf_wo(0); Wt(5)
        DEF = opt.get("defer", 3)
        if DEF < 4: issue_wo(0, 10)
        Wt(6)
        if DEF >= 2: a("s_barrier")
        if DEF == 4: issue_wo(0, 10)
        issue_wo(10, 20)
        if DEF == 1: a("s_barrier")
    else:
        Wt(2); D(4); Wt(3); D(5); Wt(4); D(6); pf_wo(0); Wt(5); issue_wo(0, 14); Wt(6); a("s_sleep 16"); issue_wo(14, 20)
    a("s_branch L_ld2")
    a.raw("L_ld_idle:")
    if PMA: pf_setup(512); pf(); pf(); pf()
    a(wo_setup)
    pf_wo(1)
    issue_wo(0, 20)
    a.raw("L_ld2:")
    issue_wo(20, 28)
    a(p2common)
    a("s_waitcnt vmcnt(28)" if opt.get("nowait", 0) else "s_waitcnt vmcnt(0)")
    get_tag("l")
    if not opt.get("lp"):
        a(f"""
        s_cmp_lg_u32 s{sWAVE}, 7
        s_cbranch_scc1 L_pollok1
        """)
        poll("1", vPA, 9)
    stamp(2)
    a("s_branch L_phase2")

    a.raw("L_compute:")
    sCH, sRH = 96, 97
    sSQ, sSK, sSV, sSQh, sSKh, sFl = 36, 37, 38, 39, 40, 41
    def Acc(p, rt): return p*32 + rt*16
    def Fx(s, rt): return 96 + 20*s + 4*rt
    def Fw(s, p): return 96 + 20*s + 8 + 4*p
    vxa = [200, 201, 202, 203]; vwa = 204
    vQo, vVo = 205, 206
    slot0 = SLOT
    a(f"""
    s_waitcnt lgkmcnt(0)
    v_mov_b32 v1, 0
    {'' if opt.get('swap', 0) else TAGC}
    """)
    stamp(0)
    a(rest_setup)
    prefetch('a')
    a(f"""
    s_and_b32 s{sCH}, s{sWAVE}, 1
    s_lshr_b32 s{sRH}, s{sWAVE}, 1
    s_cmp_eq_u32 s{sLAM}, 7
    s_cbranch_scc1 L_cmp_idle
    v_and_b32 v2, 31, v{vL}
    v_lshrrev_b32 v3, 5, v{vL}
    v_bfe_u32 v4, v{vL}, 2, 2
    s_lshl_b32 s3, s{sLAM}, 1
    s_add_u32 s3, s3, s{sCH}
    s_lshl_b32 s34, s3, 11
    v_add_u32 v{vQo}, s34, v{vL16}
    v_bfe_u32 v6, v{vL}, 4, 1
    v_lshlrev_b32 v6, 2, v6
    v_and_b32 v7, 1, v4
    v_lshl_add_u32 v6, v7, 1, v6
    v_lshrrev_b32 v7, 1, v4
    v_add_u32 v6, v6, v7
    v_lshl_add_u32 v7, v6, 8, s34
    v_lshl_add_u32 v7, v3, 6, v7
    v_and_b32 v8, 3, v{vL}
    v_lshl_add_u32 v{vVo}, v8, 4, v7
    s_lshl_b32 s34, s{sRB}, 1
    s_add_u32 s34, s34, s{sRH}
    s_mul_i32 s{sSQ}, s34, 57344
    s_add_u32 s{sSQh}, s{sSQ}, 28672
    s_add_u32 s{sSK}, s{sSQ}, {KO}
    s_add_u32 s{sSKh}, s{sSQh}, {KO}
    s_add_u32 s{sSV}, s{sSQ}, {VO}
    s_add_u32 s15, s{sSQh}, {VO}
    s_lshl_b32 s34, s34, 4
    s_add_u32 s34, s34, s3
    s_lshl_b32 s34, s34, 7
    s_add_u32 s{sFl}, s34, {FL1}
    """)
    def qkv_stores(data):
        for p, lo, hi in ((1, sSK, sSKh), (2, None, None), (0, sSQ, sSQh)):
            for rt in range(2):
                for half in range(2):
                    d = data(p, rt, half)
                    if p == 2: a(f"buffer_store_dwordx4 {q4(d)}, v{vVo}, {srd(sWS)}, s{sSV} offen offset:{rt*2048 + half*128} sc1")
                    else: a(f"buffer_store_dwordx4 {q4(d)}, v{vQo}, {srd(sWS)}, s{hi if half else lo} offen offset:{rt*512} sc1")
    a(f"""
    global_load_dword v{vTAG}, v1, s[30:31] sc1
    s_lshl_b32 s3, s{sRH}, 6
    v_add_u32 v5, s3, v2
    v_lshlrev_b32 v5, 7, v5
    v_bfe_u32 v6, v2, 1, 3
    v_xor_b32 v6, v6, v3
    v_lshl_add_u32 v{vxa[0]}, v6, 4, v5
    v_add_u32 v{vxa[0]}, {slot0}, v{vxa[0]}
    v_xor_b32 v{vxa[1]}, 32, v{vxa[0]}
    v_xor_b32 v{vxa[2]}, 64, v{vxa[0]}
    v_xor_b32 v{vxa[3]}, 96, v{vxa[0]}
    v_lshl_add_u32 v6, v3, 3, v4
    v_lshlrev_b32 v6, 7, v6
    v_add_u32 v6, {slot0 + 16384}, v6
    v_bfe_u32 v7, v{vL}, 4, 1
    v_lshlrev_b32 v7, 5, v7
    v_and_b32 v8, 1, v{vL}
    v_lshl_or_b32 v7, v8, 4, v7
    v_bfe_u32 v8, v{vL}, 1, 1
    v_lshl_or_b32 v7, v8, 3, v7
    s_lshl_b32 s3, s{sCH}, 6
    v_or_b32 v7, s3, v7
    v_and_b32 v8, 2, v4
    v_lshlrev_b32 v8, 5, v8
    v_xor_b32 v7, v7, v8
    v_add_u32 v{vwa}, v6, v7
    """)
    def reads(s, ks):
        L = [f"ds_read_b128 {q4(Fx(s,rt))}, v{vxa[ks]} offset:{rt*4096}" for rt in range(2)]
        for p in (1, 2, 0):
            for u in range(2):
                L.append(f"ds_read_b64_tr_b16 {q2(Fw(s, p) + 2*u)}, v{vwa} offset:{p*8192 + ks*2048 + u*512}")
        return L
    def kstep(s, rd, extra=(), zero=False):
        M = []
        for p in (1, 2, 0):
            for rt in range(2):
                A, B = (Fx(s,rt), Fw(s,p)) if p == 2 else (Fw(s,p), Fx(s,rt))
                M.append(f"v_mfma_f32_32x32x16_bf16 {q16(Acc(p,rt))}, {q4(A)}, {q4(B)}, {'0' if zero else q16(Acc(p,rt))}")
        per = [3, 3, 2, 0, 0, 0]
        k = 0
        extra = list(extra)
        for i, m in enumerate(M):
            a(m)
            for _ in range(per[i]):
                if k < len(rd): a(rd[k]); k += 1
            if i >= 3:
                for _ in range(4):
                    if extra: a(extra.pop(0))
        for e in extra: a(e)
    sC, sD = 42, 43
    a("s_barrier")
    stamp(1)
    for r in reads(0, 0): a(r)
    a(f"s_mov_b32 s{sC}, 0")
    ex0 = [f"s_and_b32 s3, s{sC}, 3", f"s_cmp_eq_u32 s3, 2", f"s_mov_b32 s{sD}, {SLOT}",
           f"s_cselect_b32 s{sD}, {(-3*SLOT) & 0xffffffff}, s{sD}",
           f"v_add_u32 v{vxa[0]}, s{sD}, v{vxa[0]}", f"v_add_u32 v{vxa[1]}, s{sD}, v{vxa[1]}"]
    a("s_waitcnt lgkmcnt(0)")
    kstep(0, reads(1, 1), ex0, zero=True)
    a("s_branch L_gemm1")
    a.raw("L_gemm:")
    a("s_waitcnt lgkmcnt(0)")
    kstep(0, reads(1, 1), ex0)
    a.raw("L_gemm1:")
    a("s_waitcnt lgkmcnt(0)")
    kstep(1, reads(0, 2), [f"v_add_u32 v{vxa[2]}, s{sD}, v{vxa[2]}"])
    a("s_waitcnt lgkmcnt(0)")
    kstep(0, reads(1, 3), [f"v_add_u32 v{vxa[3]}, s{sD}, v{vxa[3]}", f"v_add_u32 v{vwa}, s{sD}, v{vwa}",
                           f"s_add_u32 s{sC}, s{sC}, 1", f"s_cmp_lt_u32 s{sC}, 6"])
    a("s_waitcnt lgkmcnt(0)")
    a("s_barrier")
    kstep(1, reads(0, 0))
    a("s_cbranch_scc1 L_gemm")
    def cvt(d, s0): a(f"v_cvt_pk_bf16_f32 v{d}, v{s0}, v{s0+1}")
    def mf(p, rt, ks):
        A, B = (Fx(ks,rt), Fw(ks,p)) if p == 2 else (Fw(ks,p), Fx(ks,rt))
        return f"v_mfma_f32_32x32x16_bf16 {q16(Acc(p,rt))}, {q4(A)}, {q4(B)}, {q16(Acc(p,rt))}"
    rd = []
    for ks in (1, 2, 3):
        r = reads(ks, ks); rd += r[0:4]
    for ks in (1, 2, 3): rd += reads(ks, ks)[6:8]
    for ks in (1, 2, 3): rd += reads(ks, ks)[4:6]
    a("s_waitcnt vmcnt(0) lgkmcnt(0)")
    k = 0
    for p in (1, 0, 2):
        for rt in range(2):
            a(mf(p, rt, 0))
            for _ in range(3): a(rd[k]); k += 1
    def epi(p):
        L = []
        for rt in range(2):
            for half in range(2):
                if p == 2:
                    d = 176 + (rt*2+half)*4; s0 = Acc(2, rt) + 4*half
                    L += [f"v_cvt_pk_bf16_f32 v{d}, v{s0}, v{s0+1}", f"v_cvt_pk_bf16_f32 v{d+1}, v{s0+2}, v{s0+3}",
                          f"v_cvt_pk_bf16_f32 v{d+2}, v{s0+8}, v{s0+9}", f"v_cvt_pk_bf16_f32 v{d+3}, v{s0+10}, v{s0+11}",
                          f"buffer_store_dwordx4 {q4(d)}, v{vVo}, {srd(sWS)}, s{15 if rt else sSV} offen offset:{half*128} sc1"]
                else:
                    d = Acc(p, rt) + 8*half
                    lo, hi = (sSK, sSKh) if p == 1 else (sSQ, sSQh)
                    L += [f"v_cvt_pk_bf16_f32 v{d+i}, v{d+2*i}, v{d+2*i+1}" for i in range(4)]
                    L += [f"buffer_store_dwordx4 {q4(d)}, v{vQo}, {srd(sWS)}, s{hi if rt else lo} offen offset:{half*1024} sc1"]
        return L
    for n, ks in enumerate((1, 2, 3)):
        a(f"s_waitcnt lgkmcnt({min(15, k - 4*(n+1))})")
        for rt in range(2):
            a(mf(1, rt, ks))
            if k < 24: a(rd[k]); k += 1
    pend = epi(1)
    for p, nxt, base in ((0, 0, 12), (2, None, 18)):
        for n, ks in enumerate((1, 2, 3)):
            a(f"s_waitcnt lgkmcnt({24 - base - 2*(n+1)})")
            for rt in range(2):
                a(mf(p, rt, ks))
                if n or rt:
                    for _ in range(4):
                        if pend: a(pend.pop(0))
        for x in pend: a(x)
        pend = epi(p)
    stamp(3)
    for x in pend: a(x)
    if opt.get("defer", 3) in (1, 2): a("s_barrier")
    stamp(2)
    a("v_mov_b32 v227, 0")
    a("s_waitcnt vmcnt(0)")
    get_tag("c")
    a(f"""
    s_mov_b64 exec, 1
    buffer_store_dword v{vTAG}, v227, {srd(sWS)}, s{sFl} offen sc1
    s_mov_b64 exec, -1
    """)
    stamp(4)
    if opt.get("defer", 3) >= 3: a("s_barrier")
    a("s_branch L_cmp2")
    a.raw("L_cmp_idle:")
    a(f"global_load_dword v{vTAG}, v1, s[30:31] sc1")
    a("s_waitcnt vmcnt(0)")
    get_tag("i")
    a.raw("L_cmp2:")
    a(p2common)
    a("s_branch L_phase2")
    a.raw("L_brB:")
    SLB = 43008
    SB0 = 34816
    a(MAPB)
    a(f"""
    s_cmp_lt_u32 s{sWAVE}, 4
    s_cbranch_scc1 L_cmpB
    """)
    vXh = 12
    sLh = 63
    a(f"""
    s_sub_u32 s{sLW}, s{sWAVE}, 4
    s_lshl_b32 s{sT0}, s{sRB}, 7
    s_lshl_b32 s{sT1}, s{sLW}, 5
    s_add_u32 s{sT0}, s{sT0}, s{sT1}
    v_add_u32 v4, s{sT0}, v1
    v_mul_u32_u24 v4, 896, v4
    v_xor_b32 v5, v2, v3
    v_lshl_add_u32 v{vXe}, v5, 4, v4
    v_xor_b32 v5, 4, v5
    v_lshl_add_u32 v{vXo}, v5, 4, v4
    v_add_u32 v{vXo}, 6144, v{vXo}
    s_lshl_b32 s{sLx}, s{sLW}, 12
    s_lshl_b32 s{sLw}, s{sLW}, 11
    s_lshl_b32 s{sLh}, s{sLW}, 9
    s_lshl_b32 s{sT1}, s{sLW}, 4
    v_add_u32 v4, s{sT1}, v1
    v_mul_u32_u24 v4, 2688, v4
    s_mul_i32 s{sT1}, s{sLAM}, 112
    v_add_u32 v4, s{sT1}, v4
    v_and_b32 v5, 1, v3
    v_lshlrev_b32 v5, 1, v5
    v_xor_b32 v5, v2, v5
    v_mov_b32 v7, {BIG}
    v_lshl_add_u32 v{vW0}, v5, 4, v4
    v_cmp_eq_u32 vcc, 7, v5
    v_xor_b32 v6, 4, v5
    v_cndmask_b32 v{vW0}, v{vW0}, v7, vcc
    v_lshl_add_u32 v{vW1}, v6, 4, v4
    v_cmp_eq_u32 vcc, 7, v6
    v_add_u32 v{vW1}, {8*2688-1024}, v{vW1}
    v_cndmask_b32 v{vW1}, v{vW1}, v7, vcc
    s_lshl_b32 s{sT0}, s{sRB}, 7
    s_lshl_b32 s{sT1}, s{sLW}, 2
    s_add_u32 s{sT0}, s{sT0}, s{sT1}
    s_sub_u32 s{sT0}, s{sT0}, 16
    v_add_u32 v4, s{sT0}, v1
    v_mul_i32_i24 v4, 896, v4
    s_lshl_b32 s{sT1}, s{sLW}, 1
    v_add_u32 v5, s{sT1}, v3
    v_and_b32 v5, 7, v5
    v_xor_b32 v5, v2, v5
    v_lshl_add_u32 v{vXh}, v5, 4, v4
    s_cmp_eq_u32 s{sRB}, 0
    s_cselect_b64 vcc, -1, 0
    v_cndmask_b32 v{vXh}, v{vXh}, v7, vcc
    s_mov_b32 s{sX+2}, {XB}
    s_mov_b32 s{sX+3}, 0x20000
    s_mov_b32 s{sW+2}, {WB}
    s_mov_b32 s{sW+3}, 0x20000
    s_waitcnt lgkmcnt(0)
    s_mov_b32 s{sX}, s22
    s_mov_b32 s{sX+1}, s23
    s_mov_b32 s{sW}, s24
    s_mov_b32 s{sW+1}, s25
    """)
    stamp(0)
    del order[:]
    def DB(c):
        slot = SB0 + ((c + 2) % 3) * SLB
        a(f"""
        s_add_u32 m0, s{sLx}, {slot + 2048}
        s_mov_b32 s{sT0}, {c*128}
        s_mov_b32 s{sT1}, {c*128 + 12288}
        buffer_load_dwordx4 v{vXe}, {srd(sX)}, s{sT0} offen lds
        buffer_load_dwordx4 v{vXo}, {srd(sX)}, s{sT0} offen offset:1024 lds
        buffer_load_dwordx4 v{vXe}, {srd(sX)}, s{sT1} offen offset:2048 lds
        buffer_load_dwordx4 v{vXo}, {srd(sX)}, s{sT1} offen offset:3072 lds
        """)
        for p in range(3):
            a(f"""
            s_add_u32 m0, s{sLw}, {slot + 18432 + p*8192}
            s_mov_b32 s{sT1}, {c*64*2688 + p*896}
            buffer_load_dwordx4 v{vW0}, {srd(sW)}, s{sT1} offen lds
            buffer_load_dwordx4 v{vW1}, {srd(sW)}, s{sT1} offen offset:1024 lds
            """)
        a(f"""
        s_add_u32 m0, s{sLh}, {slot}
        s_mov_b64 exec, 0xffffffff
        buffer_load_dwordx4 v{vXh}, {srd(sX)}, s{sT0} offen lds
        s_mov_b64 exec, -1
        """)
        order.extend([c] * 11)
    head(DB, 384)
    a(wo_setup); order.append("tag")
    Wt(2); DB(4); Wt(3); DB(5); Wt(4); DB(6); pf_wo(2); Wt(5); issue_wo(0, 10); Wt(6); issue_wo(10, 20)
    a("s_branch L_ld2")
    a.raw("L_cmpB:")
    sHH = 96
    def Qa(rt, ft): return ((rt-1)*2+ft)*4
    def Ka(rt, ft): return 32 + (rt*2+ft)*4
    def Va(rt, ft): return 72 + (rt*2+ft)*4
    def Gx(s, rt): return 112 + 44*s + 4*rt
    def Gw(s, p, ft): return 112 + 44*s + 20 + (p*2+ft)*4
    bxa = [200, 201]; bwa = [202, 203]
    vBS, vBP, vBP1 = 204, 208, 212
    sl0 = SB0 + 2 * SLB
    a(f"""
    s_and_b32 s{sHH}, s{sWAVE}, 1
    s_lshr_b32 s{sRH}, s{sWAVE}, 1
    v_and_b32 v2, 15, v{vL}
    s_lshl_b32 s3, s{sRH}, 6
    v_add_u32 v4, s3, v2
    v_lshlrev_b32 v4, 7, v4
    v_lshrrev_b32 v5, 1, v2
    v_xor_b32 v5, v5, v3
    v_lshl_add_u32 v{bxa[0]}, v5, 4, v4
    v_add_u32 v{bxa[0]}, {sl0}, v{bxa[0]}
    v_xor_b32 v{bxa[1]}, 64, v{bxa[0]}
    v_lshrrev_b32 v4, 2, v2
    v_and_b32 v5, 3, v{vL}
    v_lshl_add_u32 v6, v3, 3, v4
    v_lshlrev_b32 v6, 7, v6
    v_add_u32 v6, {sl0 + 18432}, v6
    v_and_b32 v7, 2, v4
    v_and_b32 v8, 1, v3
    v_lshl_or_b32 v7, v8, 2, v7
    v_lshlrev_b32 v7, 4, v7
    s_mul_i32 s3, s{sHH}, 56
    v_lshl_add_u32 v8, v5, 3, s3
    v_xor_b32 v9, v8, v7
    v_add_u32 v{bwa[0]}, v6, v9
    v_add_u32 v8, 32, v8
    v_cmp_eq_u32 vcc, 56, v8
    v_mov_b32 v9, 120
    v_cndmask_b32 v8, v8, v9, vcc
    v_xor_b32 v9, v8, v7
    v_add_u32 v{bwa[1]}, v6, v9
    v_cmp_eq_u32 vcc, 12, v2
    v_cndmask_b32 v216, 0, 1.0, vcc
    v_mov_b32 v217, v216
    v_mov_b32 v218, v216
    v_mov_b32 v219, v216
    s_lshl_b32 s34, s{sRB}, 1
    s_add_u32 s34, s34, s{sRH}
    s_lshl_b32 s37, s34, 6
    s_lshl_b32 s3, s{sLAM}, 1
    s_add_u32 s3, s3, s{sHH}
    s_add_u32 s3, s3, s37
    s_lshl_b32 s3, s3, 10
    s_add_u32 s36, s3, {OB}
    s_mov_b32 s37, s34
    v_mov_b32 v1, 0
    s_waitcnt lgkmcnt(0)
    {TAGC if opt.get('swap', 0) else ''}
    """)
    stamp(0)
    pc = [l for l in p2common.split("\n") if l.strip()]
    cut = next(k for k in range(len(pc)) if pc[k].strip().startswith("s_mul_i32 s3, s%d, 3" % sWAVE))
    bias = f"""
    v_mov_b32 v224, {NEG}
    v_and_b32 v220, 15, v{vL}
    v_lshrrev_b32 v221, 4, v{vL}
    v_lshlrev_b32 v221, 2, v221
    v_sub_u32 v220, v220, v221
    """ + "".join(f"""
    v_subrev_u32 v221, {i}, v220
    v_and_b32 v222, 0x80000001, v221
    v_cmp_eq_u32 vcc, 0, v222
    v_cndmask_b32 v{vBS+i}, v224, 0, vcc
    v_cmp_eq_u32 vcc, 0x80000000, v222
    v_cndmask_b32 v{vBP+i}, v224, 0, vcc
    """ for i in range(4)) + """
    s_cmp_eq_u32 s37, 0
    s_cselect_b64 vcc, -1, 0
    """ + "".join(f"v_cndmask_b32 v{vBP1+i}, v{vBP+i}, v224, vcc\n" for i in range(4))
    pieces = [rest_setup + f"v_mov_b32 v227, 0\nglobal_load_dword v{vTAG}, v227, s[30:31] sc1\n" + bias, "\n".join(pc[:cut]), "\n".join(pc[cut:])]
    def breads(s, ks):
        L = [f"ds_read_b128 {q4(Gx(s,rt))}, v{bxa[ks]} offset:{rt*2048}" for rt in (1, 2, 3, 4, 0)]
        for p in range(3):
            for ft in range(2):
                for u in range(2):
                    L.append(f"ds_read_b64_tr_b16 {q2(Gw(s,p,ft) + 2*u)}, v{bwa[ft]} offset:{p*8192 + ks*4096 + u*512}")
        return L
    def bstep(s, rd, zero=False):
        M = []
        C = lambda r, z='0': z if zero else q4(r)
        for rt in (1, 2, 3, 4, 0):
            for ft in range(2):
                if rt: M.append(f"v_mfma_f32_16x16x32_bf16 {q4(Qa(rt,ft))}, {q4(Gw(s,0,ft))}, {q4(Gx(s,rt))}, {C(Qa(rt,ft))}")
                M.append(f"v_mfma_f32_16x16x32_bf16 {q4(Ka(rt,ft))}, {q4(Gw(s,1,ft))}, {q4(Gx(s,rt))}, {C(Ka(rt,ft))}")
                M.append(f"v_mfma_f32_16x16x32_bf16 {q4(Va(rt,ft))}, {q4(Gx(s,rt))}, {q4(Gw(s,2,ft))}, {C(Va(rt,ft), q4(216) if ft else '0')}")
        for i, m in enumerate(M):
            a(m)
            if i < len(rd): a(rd[i])
    a("s_barrier")
    stamp(1)
    for r in breads(0, 0): a(r)
    a(f"s_mov_b32 s{sC}, 0")
    a("s_waitcnt lgkmcnt(0)")
    bstep(0, breads(1, 1), zero=True)
    a(pieces[0]); a(pieces[1])
    a(f"""
    s_mul_i32 s3, s{sC}, 86
    s_lshr_b32 s3, s3, 8
    s_mul_i32 s3, s3, 3
    s_cmp_eq_u32 s3, s{sC}
    s_mov_b32 s{sD}, {SLB}
    s_cselect_b32 s{sD}, {(-2*SLB) & 0xffffffff}, s{sD}
    v_add_u32 v{bxa[0]}, s{sD}, v{bxa[0]}
    v_add_u32 v{bxa[1]}, s{sD}, v{bxa[1]}
    v_add_u32 v{bwa[0]}, s{sD}, v{bwa[0]}
    v_add_u32 v{bwa[1]}, s{sD}, v{bwa[1]}
    s_cmp_eq_u32 s{sC}, 6
    s_waitcnt lgkmcnt(0)
    s_cbranch_scc1 L_nobarB0
    s_barrier
    L_nobarB0:
    """)
    bstep(1, breads(0, 0))
    a(pieces[2])
    a(f"s_mov_b32 s{sC}, 1")
    a.raw("L_gemmB:")
    a("s_waitcnt lgkmcnt(0)")
    bstep(0, breads(1, 1))
    a(f"""
    s_mul_i32 s3, s{sC}, 86
    s_lshr_b32 s3, s3, 8
    s_mul_i32 s3, s3, 3
    s_cmp_eq_u32 s3, s{sC}
    s_mov_b32 s{sD}, {SLB}
    s_cselect_b32 s{sD}, {(-2*SLB) & 0xffffffff}, s{sD}
    v_add_u32 v{bxa[0]}, s{sD}, v{bxa[0]}
    v_add_u32 v{bxa[1]}, s{sD}, v{bxa[1]}
    v_add_u32 v{bwa[0]}, s{sD}, v{bwa[0]}
    v_add_u32 v{bwa[1]}, s{sD}, v{bwa[1]}
    s_cmp_eq_u32 s{sC}, 6
    s_waitcnt lgkmcnt(0)
    s_cbranch_scc1 L_nobarB
    s_barrier
    L_nobarB:
    """)
    bstep(1, breads(0, 0))
    a(f"""
    s_add_u32 s{sC}, s{sC}, 1
    s_cmp_lt_u32 s{sC}, 7
    s_cbranch_scc1 L_gemmB
    """)
    stamp(3)
    def Qf(j): return 168 + 4*(j-1)
    def Kf(rt): return 128 + 4*rt
    def Vf(dt, rt): return 148 + 10*dt + 2*rt
    a("s_waitcnt vmcnt(0) lgkmcnt(0)")
    get_tag("b")
    for rt in (1, 2, 3, 4, 0):
        for ft in range(2):
            if rt:
                cvt(Qf(rt)+2*ft, Qa(rt,ft)); cvt(Qf(rt)+2*ft+1, Qa(rt,ft)+2)
            cvt(Kf(rt)+2*ft, Ka(rt,ft)); cvt(Kf(rt)+2*ft+1, Ka(rt,ft)+2)
            cvt(Vf(ft,rt), Va(rt,ft)); cvt(Vf(ft,rt)+1, Va(rt,ft)+2)
    stamp(4)
    a.raw("L_phase2:")
    def wo_reads(base):
        L = []
        for hq in range(4):
            for cidx in range(4):
                for u in range(2):
                    d = base + (hq*4 + cidx)*4 + 2*u
                    L.append(f"ds_read_b64_tr_b16 {q2(d)}, v{vWA + 4*u + ((cidx + 2*(hq&1)) & 3)} offset:{hq*3584}")
        return L
    def wo_mask(base):
        return [f"v_and_b32 v{base + f*4 + 2 + r}, v{vMG}, v{base + f*4 + 2 + r}" for f in range(16) for r in range(2)]
    WB_, OF_ = 128, 192
    QF = 124
    KS, VS = 72, 84
    QB_, KB_, VB_ = 8, 16, 28
    sBud = 14
    def qmask(r):
        for i in range(4): a(f"v_and_b32 v{r+i}, v{vQm + (i>>1)}, v{r+i}")
    if opt.get("lp"):
        a("s_barrier")
        a(f"""
        s_cmp_lg_u32 s{sWAVE}, 7
        s_cbranch_scc1 L_pollok1
        """)
        poll("1", vPA, 9)
    a("s_barrier")
    stamp(11)
    for i in range(3):
        a(f"buffer_load_dwordx4 {q4(KS+4*i)}, v{vKq}, {srd(sWS)}, s{sK[i]} offen sc1")
    a(f"buffer_load_dwordx4 {q4(QF)}, v{vKq}, {srd(sWS)}, s{sQA} offen sc1")
    for i in range(3):
        a(f"buffer_load_dwordx4 {q4(VS+4*i)}, v{vV1 if i == 1 else vV0}, {srd(sWS)}, s{sV[i]} offen sc1")
    a(f"""
    s_lshr_b32 s3, s{sWAVE}, 2
    s_cmp_gt_u32 s{sBR}, s3
    s_cbranch_scc0 L_noB1
    """)
    def SB(j, t): return 8*(j-1) + 4*t
    for j in range(1, 5):
        bp = vBP1 if j == 1 else vBP
        a(f"v_mfma_f32_16x16x32_bf16 {q4(SB(j,0))}, {q4(Kf(j-1))}, {q4(Qf(j))}, {q4(bp)}")
        a(f"v_mfma_f32_16x16x32_bf16 {q4(SB(j,1))}, {q4(Kf(j))}, {q4(Qf(j))}, {q4(vBS)}")
    M = lambda j: 32 + (j-1)
    T = lambda j: 36 + (j-1)
    for j in range(1, 5):
        s = SB(j, 0)
        a(f"v_max3_f32 v{M(j)}, v{s}, v{s+1}, v{s+2}")
        a(f"v_max3_f32 v{T(j)}, v{s+3}, v{s+4}, v{s+5}")
        a(f"v_max3_f32 v{M(j)}, v{M(j)}, v{s+6}, v{s+7}")
        a(f"v_max_f32 v{M(j)}, v{M(j)}, v{T(j)}")
    for sw in ("v_permlane32_swap_b32", "v_permlane16_swap_b32"):
        for j in range(1, 5): a(f"v_mov_b32 v{T(j)}, v{M(j)}")
        for j in range(1, 5): a(f"{sw} v{M(j)}, v{T(j)}")
        for j in range(1, 5): a(f"v_max_f32 v{M(j)}, v{M(j)}, v{T(j)}")
    for j in range(1, 5): a(f"v_mul_f32 v{M(j)}, v{vC}, v{M(j)}")
    for j in range(1, 5):
        for i in range(8): a(f"v_fma_f32 v{SB(j,0)+i}, v{SB(j,0)+i}, v{vC}, -v{M(j)}")
    for j in range(1, 5):
        for i in range(8): a(f"v_exp_f32 v{SB(j,0)+i}, v{SB(j,0)+i}")
    P = lambda j: 40 + 4*(j-1)
    for j in range(1, 5):
        for i in range(4): cvt(P(j)+i, SB(j,0)+2*i)
    O = lambda j, dt: 8*(j-1) + 4*dt
    for j in range(1, 5):
        for dt in (1, 0):
            a(f"v_mfma_f32_16x16x32_bf16 {q4(O(j,dt))}, {q4(Vf(dt,j-1))}, {q4(P(j))}, 0")
    st = [normalize(O(j,0), O(j,1), 56+2*(j-1), 57+2*(j-1), 100+4*(j-1)) for j in range(1, 5)]
    for k in range(len(st[0])):
        for j in range(4):
            for x in st[j][k]: a(x)
    a.raw("L_noB1:")
    for r in wo_reads(WB_): a(r)
    a(f"""
    s_mov_b32 s{sBud}, {POLL_MAX}
    v_lshlrev_b32 v8, 2, v{vG}
    v_sub_u32 v8, v8, v{vR15}
    s_bitcmp1_b32 s{sWAVE}, 0
    s_cselect_b64 s[34:35], -1, 0
    """)
    for i in range(4):
        a(f"""
        v_add_u32 v9, {i}, v8
        v_cmp_lt_i32 vcc, 0, v9
        v_cndmask_b32 v10, v{vNEG}, 0, vcc
        v_cndmask_b32 v11, 0, v{vNEG}, vcc
        v_cndmask_b32 v{0+i}, v10, v{vNEG}, s[34:35]
        v_cndmask_b32 v{4+i}, 0, v10, s[34:35]
        v_cndmask_b32 v{64+i}, v11, 0, s[34:35]
        v_cndmask_b32 v{68+i}, v{vNEG}, v11, s[34:35]
        """)
    for i in range(8): a(f"v_add_u32 v{vWA+i}, {L_WOA}, v{vWA+i}")
    a("s_waitcnt lgkmcnt(0)")
    for x in wo_mask(WB_): a(x)
    a(f"""
    s_cmp_ge_u32 s{sARB}, 2
    s_cbranch_scc1 L_nofix
    s_waitcnt vmcnt(4)
    v_not_b32 v9, v{vQm}
    v_not_b32 v10, v{vQm+1}
    v_and_b32 v9, 0xff7f, v9
    v_and_b32 v10, 0xff7f, v10
    """)
    for i in range(3):
        qmask(KS+4*i)
        a(f"""
        s_cmp_eq_u32 s{sK[i]}, {BIG}
        s_cbranch_scc0 L_fx{i}
        v_or_b32 v{KS+4*i}, v9, v{KS+4*i}
        v_or_b32 v{KS+4*i+2}, v10, v{KS+4*i+2}
        L_fx{i}:
        """)
    a.raw("L_nofix:")
    for i in range(3):
        a(f"s_waitcnt vmcnt({6-i})")
        if i == 0: stamp(5)
        a(f"ds_write_b128 v{vKw}, {q4(KS+4*i)} offset:{1024*i}")
    for i in range(3):
        a(f"s_waitcnt vmcnt({2-i})")
        for r in range(4): a(f"v_or_b32 v{VS+4*i+r}, v{vOn1 if i == 1 else vOn0}, v{VS+4*i+r}")
        a(f"ds_write_b128 v{vKw}, {q4(VS+4*i)} offset:{24576+1024*i}")
    a(f"""
    s_lshr_b32 s3, s{sWAVE}, 2
    s_cmp_gt_u32 s{sBR}, s3
    s_cbranch_scc0 L_noB2
    """)
    for j in range(1, 5):
        a(f"buffer_store_dwordx4 {q4(100+4*(j-1))}, v{vOo}, {srd(sWS)}, s36 offen sc1")
        if j < 4: a("s_add_u32 s36, s36, 16384")
    a.raw("L_noB2:")
    stamp(6)
    qmask(QF)
    a(f"""
    s_cmp_ge_u32 s{sARB}, 2
    s_cbranch_scc1 L_nofixq
    v_not_b32 v9, v{vQm}
    v_not_b32 v10, v{vQm+1}
    v_and_b32 v9, 0x3f80, v9
    v_or_b32 v{QF}, v9, v{QF}
    v_and_b32 v10, 0x3f80, v10
    v_or_b32 v{QF+2}, v10, v{QF+2}
    L_nofixq:
    s_waitcnt lgkmcnt(0)
    s_barrier
    """)
    stamp(12)
    KBUF = 72; NKB = 6
    def kread(t): return f"ds_read_b128 {q4(KBUF + 4*(t % NKB))}, v{vKa} offset:{t*1024}"
    for t in range(NKB - 1): a(kread(t))
    vM, vT = 120, 121
    def mx(t):
        r = 4*t
        if t == 0:
            a(f"v_max_f32 v{vM}, v0, v1"); a(f"v_max_f32 v{vT}, v2, v3")
        else:
            a(f"v_max3_f32 v{vM}, v{vM}, v{r}, v{r+1}"); a(f"v_max3_f32 v{vT}, v{vT}, v{r+2}, v{r+3}")
    LAG = 4
    for t in range(18):
        if t + NKB - 1 < 18: a(kread(t + NKB - 1))
        outstanding = min(18, t + NKB) - (t + 1)
        a(f"s_waitcnt lgkmcnt({outstanding})")
        c = q4(4*t) if t in (0, 1, 16, 17) else "0"
        a(f"v_mfma_f32_16x16x32_bf16 {q4(4*t)}, {q4(KBUF + 4*(t % NKB))}, {q4(QF)}, {c}")
        if t >= LAG: mx(t - LAG)
    VBUF = [96 + 4*i for i in range(6)]
    NVB = len(VBUF)
    WA_ = 0
    ACCB = [64, 68, 72, 76, 80, 84, 88, 92]
    ACCA = [96, 100, 104, 108, 112, 116, 120, 124]
    sNext = 27
    lq = []
    def lds(ins, tag): a(ins); lq.append(tag)
    def lwait(tag):
        last = max(i for i, t in enumerate(lq) if t == tag)
        a(f"s_waitcnt lgkmcnt({min(15, len(lq) - 1 - last)})")
    def vread(n):
        lds(f"ds_read_b128 {q4(VBUF[n % NVB])}, v{vKa} offset:{24576 + (n>>1)*2048 + (n&1)*1024}", ("v", n))
    for n in range(NVB): vread(n)
    for t in range(18 - LAG, 18): mx(t)
    a(f"v_max_f32 v{vM}, v{vM}, v{vT}")
    for sw in ("v_permlane32_swap_b32", "v_permlane16_swap_b32"):
        a(f"v_mov_b32 v{vT}, v{vM}")
        a(f"{sw} v{vM}, v{vT}")
        a(f"v_max_f32 v{vM}, v{vM}, v{vT}")
    a(f"v_mul_f32 v{vM}, v{vC}, v{vM}")
    stamp(7)
    def o_load(f, s0):
        hq, tt = f >> 1, f & 1
        return f"buffer_load_dwordx4 {q4(OF_ + f*4)}, v{vOo}, {srd(sWS)}, s{s0 + tt} offen offset:{hq*1024} sc1"
    def frag(lbl, f, wbase, acc, wait, after):
        hq, tt = f >> 1, f & 1
        r = OF_ + f*4
        a(f"""
        s_cmp_lg_u32 s{sNext}, {f}
        s_cbranch_scc1 L_sk{lbl}{f}
        {wait}
        v_cmp_ne_u32 vcc, v{r+3}, v{vTAG}
        s_lshr_b32 s3, vcc_hi, 16
        s_cbranch_scc1 L_sk{lbl}{f}
        """)
        for cidx in range(4):
            d = acc[tt*4+cidx]
            a(f"v_mfma_f32_16x16x32_bf16 {q4(d)}, {q4(wbase + (hq*4+cidx)*4)}, {q4(r)}, {'0' if f < 2 else q4(d)}")
        a(f"s_add_u32 s{sNext}, s{sNext}, 1")
        if after is not None: a(o_load(f, after))
        a.raw(f"L_sk{lbl}{f}:")
    OACC = 224
    war = wo_reads(WA_); wam = wo_mask(WA_)
    LU, FU = opt.get("lu", 4), opt.get("fu", 5)
    a(f"s_mov_b32 s{sNext}, 0")
    for u in range(9):
        b = 8*u
        for i in range(8): a(f"v_fma_f32 v{b+i}, v{b+i}, v{vC}, -v{vM}")
        if LU <= u < LU + 4:
            for f in (2*(u-LU), 2*(u-LU)+1): a(o_load(f, sOB))
        for i in range(8): a(f"v_exp_f32 v{b+i}, v{b+i}")
        if opt.get('inpv', 0) and FU <= u < FU + 4:
            for f in range(2*(u-FU), 2*(u-FU)+2): frag("P", f, WB_, ACCB, f"s_waitcnt vmcnt({7-f})", None)
        for i in range(4): a(f"v_cvt_pk_bf16_f32 v{b+i}, v{b+2*i}, v{b+2*i+1}")
        lwait(("v", 2*u+1))
        for dt in range(2):
            c = "0" if u == 0 else q4(OACC + 4*dt)
            a(f"v_mfma_f32_16x16x32_bf16 {q4(OACC+4*dt)}, {q4(VBUF[(2*u+dt) % NVB])}, {q4(b)}, {c}")
        for n in (NVB + 2*u, NVB + 1 + 2*u):
            if n < 18: vread(n)
    for x in war: a(x)
    for grp in normalize(OACC, OACC+4, 232, 234, 236):
        for x in grp: a(x)
    a(f"buffer_store_dwordx4 {q4(236)}, v{vOo}, {srd(sWS)}, s33 offen sc1")
    stamp(13)
    a(f"""
    s_cmp_eq_u32 s{sCB}, 7
    s_cbranch_scc1 L_fin
    """)
    vXW, vXR, vOut = 224, 228, 230
    a(f"""
    s_lshl_b32 s3, s{sKQ}, 14
    s_lshl_b32 s35, s{sRP}, 13
    s_add_u32 s35, s35, s3
    v_lshlrev_b32 v231, 8, v{vR15}
    v_add_u32 v231, s35, v231
    v_xor_b32 v232, v{vG}, v{vR15}
    """)
    for cidx in range(4):
        a(f"""
        s_add_u32 s3, s{sKQ}, {cidx}
        s_and_b32 s3, s3, 3
        s_lshl_b32 s3, s3, 2
        v_xor_b32 v234, s3, v232
        v_lshl_add_u32 v{vXW+cidx}, v234, 4, v231
        """)
    a(f"""
    v_lshrrev_b32 v231, 3, v{vL}
    s_lshl_b32 s3, s{sWAVE}, 3
    v_add_u32 v231, s3, v231
    v_and_b32 v232, 7, v{vL}
    v_lshlrev_b32 v234, 1, v232
    v_and_b32 v235, 15, v231
    v_xor_b32 v234, v234, v235
    v_lshlrev_b32 v234, 4, v234
    v_lshl_add_u32 v{vXR}, v231, 8, v234
    v_xor_b32 v{vXR+1}, 16, v{vXR}
    s_lshl_b32 s3, s{sRB64}, 6
    v_add_u32 v231, s3, v231
    v_mul_u32_u24 v231, 1792, v231
    v_lshl_add_u32 v231, v232, 4, v231
    s_lshl_b32 s3, s{sCB}, 7
    v_add_u32 v{vOut}, s3, v231
    """)
    def finish(lbl, wbase, acc, s0, after):
        a(f"""
        s_cmp_eq_u32 s{sNext}, 8
        s_cbranch_scc1 L_done{lbl}
        L_again{lbl}:
        """)
        for f in range(8):
            a(f"s_cmp_gt_u32 s{sNext}, {f}")
            a(f"s_cbranch_scc1 L_rl{lbl}{f}")
            a(o_load(f, s0))
            a.raw(f"L_rl{lbl}{f}:")
        a("s_waitcnt vmcnt(0)")
        a.raw(f"L_first{lbl}:")
        for f in range(8): frag(lbl, f, wbase, acc, "", after)
        a(f"""
        s_cmp_eq_u32 s{sBud}, 0
        s_cbranch_scc1 L_done{lbl}
        s_sub_u32 s{sBud}, s{sBud}, 1
        s_cmp_lg_u32 s{sNext}, 8
        s_cbranch_scc1 L_again{lbl}
        {"s_waitcnt vmcnt(0)" if after is not None else ""}
        L_done{lbl}:
        """)
    def exch_write(acc):
        for tt in range(2):
            for cidx in range(4):
                a(f"ds_write_b128 v{vXW+cidx}, {q4(acc[tt*4+cidx])} offset:{tt*4096}")
        a("s_waitcnt lgkmcnt(0)")
        a("s_barrier")
    def exch_final(RB_, outoff):
        for k in range(4):
            for h in range(2):
                a(f"ds_read_b128 {q4(RB_ + (k*2+h)*4)}, v{vXR+h} offset:{k*16384}")
        a("s_waitcnt lgkmcnt(4)")
        for i in range(8): a(f"v_add_f32 v{RB_+i}, v{RB_+i}, v{RB_+8+i}")
        a("s_waitcnt lgkmcnt(0)")
        for i in range(8): a(f"v_add_f32 v{RB_+16+i}, v{RB_+16+i}, v{RB_+24+i}")
        for i in range(8): a(f"v_add_f32 v{RB_+i}, v{RB_+i}, v{RB_+16+i}")
        for i in range(4): a(f"v_cvt_pk_bf16_f32 v{RB_+8+i}, v{RB_+2*i}, v{RB_+2*i+1}")
        a(f"s_mov_b32 s3, {outoff}")
        a(f"buffer_store_dwordx4 {q4(RB_+8)}, v{vOut}, {srd(sOut)}, s3 offen")
    if not opt.get('inpv', 0):
        for f in range(8): frag("R", f, WB_, ACCB, f"s_waitcnt vmcnt({8-f})", None)
    finish("B", WB_, ACCB, sOB, None)
    stamp(8)
    AL = opt.get("al", 0)
    def aloads(k):
        if AL == k:
            for f in range(8): a(o_load(f, sOA))
    aloads(0)
    a(f"s_mov_b32 s{sNext}, 0")
    a("s_waitcnt lgkmcnt(0)")
    for x in wam: a(x)
    a("s_barrier")
    aloads(1)
    exch_write(ACCB)
    aloads(2)
    if opt.get("rechk", 1) and AL == 0:
        a("s_waitcnt vmcnt(0)")
        for f in range(8):
            a(f"""
            v_cmp_ne_u32 vcc, v{OF_+f*4+3}, v{vTAG}
            s_lshr_b32 s3, vcc_hi, 16
            s_cbranch_scc0 L_ok{f}
            {o_load(f, sOA)}
            L_ok{f}:
            """)
    exch_final(128, 896)
    aloads(3)
    for i in range(4): a(f"v_add_u32 v{vXW+i}, 65536, v{vXW+i}")
    for i in range(2): a(f"v_add_u32 v{vXR+i}, 65536, v{vXR+i}")
    stamp(14)
    for f in range(8): frag("Q", f, WA_, ACCA, "s_waitcnt vmcnt(1)" if (opt.get("rechk", 1) and AL == 0) else f"s_waitcnt vmcnt({(7 if AL == 3 else 8)-f})", None)
    finish("A", WA_, ACCA, sOA, None)
    stamp(9)
    exch_write(ACCA)
    exch_final(160, 0)
    a.raw("L_fin:")
    if stamps:
        stamp(15)
        if "probe" in opt:
            X = opt["probe"]
            a(f"""
            v_readfirstlane_b32 s12, v{vTAG}
            s_bfe_u32 s3, s12, 0xd0001
            s_bfe_u32 s34, s12, 0xf000f
            s_lshl_b32 s34, s34, 13
            s_or_b32 s3, s3, s34
            s_lshr_b32 s34, s12, 31
            s_lshl_b32 s34, s34, 28
            s_or_b32 s3, s3, s34
            s_sub_u32 s34, s{64+2*X}, s3
            s_add_u32 s34, s34, 200
            s_and_b32 s34, s34, 0x1fffffff
            s_cmp_lt_u32 s34, 5000
            s_cselect_b32 s34, s34, 0
            s_add_u32 s34, s34, 3000
            s_mov_b32 s35, 100000
            L_pw:
            s_memrealtime s[16:17]
            s_waitcnt lgkmcnt(0)
            s_sub_u32 s16, s16, s3
            s_and_b32 s16, s16, 0x1fffffff
            s_sub_u32 s35, s35, 1
            s_cmp_eq_u32 s35, 0
            s_cbranch_scc1 L_end
            s_cmp_lt_u32 s16, s34
            s_cbranch_scc1 L_pw
            s_endpgm
            """)
        a(f"""
        s_sub_u32 s84, {POLL_MAX}, s{sBud}
        s_mul_i32 s84, s84, 100
        s_add_u32 s84, s84, s64
        s_lshl_b32 s3, s2, 3
        s_add_u32 s3, s3, s{sWAVE}
        s_lshl_b32 s3, s3, 6
        s_add_u32 s3, s3, {STAMP}
        v_mov_b32 v1, 0
        s_mov_b64 exec, 1
        """)
        if opt.get("dbgst"):
            ids = [1, 2, 3, 4, 5, 6, 7, 8, 9, 11, 12, 13, 14, 15]
            a("s_not_b32 s3, s64")
            a("v_mov_b32 v2, s3")
            a("global_atomic_umax v1, v2, s[30:31] offset:4")
            for k, i in enumerate(ids):
                a(f"s_sub_u32 s3, s{64+2*i}, s64")
                a("s_cmp_lt_u32 s3, 100000")
                a(f"s_cselect_b32 s3, s{64+2*i}, 0")
                a("v_mov_b32 v2, s3")
                a(f"global_atomic_umax v1, v2, s[30:31] offset:{8+4*k}")
            a("s_endpgm")
        for i in range(16):
            a(f"v_mov_b32 v2, s{64+2*i}")
            a(f"buffer_store_dword v2, v1, {srd(sWS)}, s3 offen offset:{4*i}")
    a.raw("L_end:")
    a("s_endpgm")
    bad = a.check_branches()
    for b in bad: print("BRANCH HAZARD", b, file=sys.stderr)
    assert not bad
    out = HEADER + f"""; @launch grid=(256,1,1) block=(512,1,1) lds=163840
.amdgcn_target "amdgcn-amd-amdhsa--gfx950"
.text
.globl {NAME}_kernel
.p2align 8
.type {NAME}_kernel,@function
""" + a.text() + f""".fill 1280, 4, 0xBF800000
s_endpgm
.section .rodata,"a"
.p2align 6
.amdhsa_kernel {NAME}_kernel
  .amdhsa_next_free_vgpr 256
  .amdhsa_next_free_sgpr 102
  .amdhsa_accum_offset 256
  .amdhsa_group_segment_fixed_size 0
  .amdhsa_kernarg_size 72
  .amdhsa_user_sgpr_count 2
  .amdhsa_user_sgpr_kernarg_segment_ptr 1
  .amdhsa_system_sgpr_workgroup_id_x 1
.end_amdhsa_kernel
"""
    return out

if __name__ == "__main__":
    stamps = int(sys.argv[1]); path = sys.argv[2]
    opt = dict((kv.split("=")[0], int(kv.split("=")[1])) for kv in sys.argv[3:])
    open(path, "w").write(gen(stamps, opt))
```

```python
import sys, struct, math
from asmlib import Asm

NAME = "concat_heads__sliding_block__sliding_local_dilated__prompt"
HEADER = open("cdna_kernels/%s.s.ref" % NAME).read().split("; Override launch")[0]
def f2u(x): return struct.unpack("<I", struct.pack("<f", x))[0]

XB, WB, WOB_BYTES, OUTB = 1835008, 1204224, 401408, 3670016
MB2 = 0x200000
QO, KO, VO = 0, MB2, 2*MB2
BRS = 3*MB2
OA, OB = 6*MB2, 7*MB2
FL1 = 8*MB2
STAMP = 8*MB2 + 0x100000
WSB = 9*MB2
BIG = 0x40000000
NEG = f2u(-1e30)
CSC = f2u((28 ** -0.5) * math.log2(math.e))
SLOT = 40960
L_WOB, L_WOA, L_KV = 0, 57344, 114688
POLL_MAX = 40000

sWAVE, sBR, sLAM, sRB, sAH, sARB, sRB64, sCB, sTAG = 4, 5, 6, 7, 8, 9, 10, 11, 12
sX, sW, sWoA, sWoB, sWS, sOut = 36, 40, 44, 48, 52, 56
def srd(b): return f"s[{b}:{b+3}]"
def q4(r): return f"v[{r}:{r+3}]"
def q2(r): return f"v[{r}:{r+1}]"
def q16(r): return f"v[{r}:{r+15}]"
vL, vL16, vTAG = 255, 254, 253

def gen(stamps=False, opt=None):
    opt = opt or {}
    a = Asm()
    def stamp(i):
        if stamps:
            a(f"s_memrealtime s[{64+2*i}:{65+2*i}]")
            a("s_waitcnt lgkmcnt(0)")
    def mk_srd(d, p, n):
        return f"s_mov_b32 s{d}, s{p}\ns_mov_b32 s{d+1}, s{p+1}\ns_mov_b32 s{d+2}, {n}\ns_mov_b32 s{d+3}, 0x20000\n"
    MAP = f"""
    s_lshr_b32 s{sLAM}, s14, 2
    s_and_b32 s15, s13, 3
    s_lshl_b32 s15, s15, 2
    s_and_b32 s3, s14, 3
    s_add_u32 s{sRB}, s15, s3
    """ if opt.get("map", 0) else f"""
    s_and_b32 s15, s13, 1
    s_lshl_b32 s15, s15, 2
    s_lshr_b32 s3, s14, 3
    s_add_u32 s{sLAM}, s15, s3
    s_and_b32 s15, s13, 2
    s_lshl_b32 s15, s15, 2
    s_and_b32 s3, s14, 7
    s_add_u32 s{sRB}, s15, s3
    """
    TAGC = f"""
    s_or_b32 s3, s2, s{sWAVE}
    s_cmp_lg_u32 s3, 0
    s_cbranch_scc1 L_notag
    s_memrealtime s[34:35]
    s_waitcnt lgkmcnt(0)
    s_and_b32 s35, s34, 0x1fff
    s_lshl_b32 s35, s35, 1
    s_or_b32 s35, s35, 1
    s_bfe_u32 s3, s34, 0xf000d
    s_lshl_b32 s3, s3, 15
    s_or_b32 s35, s35, s3
    s_lshl_b32 s34, s34, 3
    s_and_b32 s34, s34, 0x80000000
    s_or_b32 s34, s34, s35
    v_mov_b32 v4, s34
    v_mov_b32 v5, 0
    s_mov_b64 exec, 1
    global_atomic_cmpswap v1, v[4:5], s[30:31] sc1
    s_mov_b64 exec, -1
    L_notag:
    """
    MAPB = f"""
    s_and_b32 s15, s13, 1
    s_lshl_b32 s15, s15, 2
    s_and_b32 s3, s14, 3
    s_add_u32 s{sLAM}, s15, s3
    s_and_b32 s15, s13, 2
    s_lshl_b32 s15, s15, 2
    s_lshr_b32 s3, s14, 2
    s_add_u32 s{sRB}, s15, s3
    """
    a.raw(f"{NAME}_kernel:")
    a(f"""
    s_cmp_ge_u32 s2, 256
    s_cbranch_scc1 L_end
    s_load_dwordx16 s[16:31], s[0:1], 0
    s_load_dwordx2 s[32:33], s[0:1], 64
    v_lshrrev_b32 v1, 6, v0
    v_and_b32 v{vL}, 63, v0
    v_readfirstlane_b32 s{sWAVE}, v1
    s_and_b32 s13, s2, 7
    s_lshr_b32 s14, s2, 3
    s_lshr_b32 s{sBR}, s13, 2
    s_xor_b32 s{sBR}, s{sBR}, {opt.get('swap', 1)}
    {MAP}
    v_lshlrev_b32 v{vL16}, 4, v{vL}
    v_lshrrev_b32 v1, 3, v{vL}
    v_and_b32 v2, 7, v{vL}
    v_lshrrev_b32 v3, 4, v{vL}
    s_cmp_lg_u32 s{sBR}, 0
    s_cbranch_scc1 L_brB
    s_cmp_lt_u32 s{sWAVE}, 4
    s_cbranch_scc1 L_compute
    """)
    rest_setup = f"""
    s_lshl_b32 s{sAH}, s13, 1
    s_and_b32 s3, s14, 1
    s_add_u32 s{sAH}, s{sAH}, s3
    s_lshr_b32 s{sARB}, s14, 1
    s_lshl_b32 s{sRB64}, s13, 2
    s_lshr_b32 s3, s14, 3
    s_add_u32 s{sRB64}, s{sRB64}, s3
    s_and_b32 s{sCB}, s14, 7
    """ + mk_srd(sWoA, 20, WOB_BYTES) + mk_srd(sWoB, 26, WOB_BYTES) + mk_srd(sWS, 32, WSB) + mk_srd(sOut, 28, OUTB)
    def prefetch(l):
        if not opt.get("pf", 1): return
        a(f"""
        s_cmp_lg_u32 s{sWAVE}, 1
        s_cbranch_scc1 L_notouch{l}
        v_min_u32 v4, 8, v{vL}
        v_lshlrev_b32 v4, 21, v4
        v_add_u32 v4, 0x1ff780, v4
        buffer_load_dword v217, v4, {srd(sWS)}, 0 offen sc1
        v_and_b32 v4, 1, v{vL}
        v_lshlrev_b32 v4, 21, v4
        buffer_load_dword v218, v4, {srd(sOut)}, 0 offen
        L_notouch{l}:
        s_and_b32 s3, s14, 15
        s_lshl_b32 s34, s{sWAVE}, 4
        s_or_b32 s3, s3, s34
        s_cmp_lg_u32 s3, 0x2f
        s_cbranch_scc1 L_nocode{l}
        s_getpc_b64 s[34:35]
        L_pc{l}:
        s_sub_u32 s34, s34, L_pc{l}-{NAME}_kernel
        s_subb_u32 s35, s35, 0
        v_lshlrev_b32 v4, 7, v{vL}
        global_load_dword v217, v4, s[34:35]
        v_add_u32 v4, 8192, v4
        global_load_dword v218, v4, s[34:35]
        v_add_u32 v4, 8192, v4
        global_load_dword v219, v4, s[34:35]
        L_nocode{l}:
        """)
    def get_tag(lbl):
        a(f"""
        s_mov_b32 s35, {POLL_MAX}
        L_tag{lbl}:
        v_readfirstlane_b32 s{sTAG}, v{vTAG}
        s_cmp_lg_u32 s{sTAG}, 0
        s_cbranch_scc1 L_tagok{lbl}
        v_mov_b32 v227, 0
        global_load_dword v{vTAG}, v227, s[30:31] sc1
        s_sub_u32 s35, s35, 1
        s_waitcnt vmcnt(0)
        s_cmp_lg_u32 s35, 0
        s_cbranch_scc1 L_tag{lbl}
        L_tagok{lbl}:
        """)
    def poll(lbl, vaddr, vd):
        a(f"""
        s_mov_b32 s35, {POLL_MAX}
        L_poll{lbl}:
        buffer_load_dword v{vd}, v{vaddr}, {srd(sWS)}, s15 offen sc1
        s_sub_u32 s35, s35, 1
        s_waitcnt vmcnt(0)
        v_cmp_ne_u32 vcc, v{vd}, v{vTAG}
        s_cmp_eq_u32 s35, 0
        s_cbranch_scc1 L_pollok{lbl}
        s_cbranch_vccz L_pollok{lbl}
        s_branch L_poll{lbl}
        L_pollok{lbl}:
        """)
    sRP, sKQ, sT, sU = 60, 61, 62, 63
    vR15, vG, vWA, vMG, vV0, vC = 240, 241, 242, 250, 251, 252
    vNEG, vKa, vKw = 237, 239, 238
    vKq, vOo, vVa, vVb, vOne = 232, 233, 234, 235, 236
    vQm, vOn0, vOn1, vV1 = 228, 230, 231, 226
    sHB, sHQ, sP = 98, 100, 99
    sK = [16, 17, 18, 19, 20, 21]; sV = [22, 23, 24, 25, 26, 27]; sQA = 32
    sOB, sOA = 96, 28
    t0, t1, t2, t3, t4 = 220, 221, 222, 223, 224
    vPA = 225
    FLV = 64*16*128
    p2common = f"""
    s_and_b32 s{sRP}, s{sWAVE}, 1
    s_lshr_b32 s{sKQ}, s{sWAVE}, 1
    v_and_b32 v{vR15}, 15, v{vL}
    v_lshrrev_b32 v{vG}, 4, v{vL}
    v_cmp_gt_u32 vcc, 48, v{vL}
    v_cndmask_b32 v{vMG}, 0, -1, vcc
    v_lshrrev_b32 v{t0}, 2, v{vR15}
    v_lshl_add_u32 v{t1}, v{vG}, 2, v{t0}
    v_lshlrev_b32 v{t1}, 7, v{t1}
    s_mul_i32 s3, s{sKQ}, 14336
    v_add_u32 v{t1}, s3, v{t1}
    v_and_b32 v{t2}, 2, v{t0}
    v_and_b32 v{t3}, 1, v{vG}
    v_lshl_or_b32 v{t2}, v{t3}, 2, v{t2}
    v_lshlrev_b32 v{t2}, 4, v{t2}
    v_and_b32 v{t3}, 3, v{vL}
    v_lshlrev_b32 v{t4}, 3, v{t3}
    v_xor_b32 v{t2}, v{t2}, v{t4}
    v_add_u32 v{t1}, v{t1}, v{t2}
    v_and_b32 v{t2}, 2048, v{vMG}
    """ + "".join(f"""
    s_add_u32 s3, s{sKQ}, {c}
    s_and_b32 s3, s3, 3
    s_lshl_b32 s3, s3, 5
    v_xor_b32 v{vWA+c}, s3, v{t1}
    v_add_u32 v{vWA+4+c}, v{vWA+c}, v{t2}
    """ for c in range(4)) + f"""
    v_mov_b32 v{t4}, {BIG}
    v_lshlrev_b32 v{vKq}, 9, v{vG}
    v_lshl_add_u32 v{vKq}, v{vR15}, 4, v{vKq}
    v_lshlrev_b32 v{vOo}, 6, v{vR15}
    v_lshl_add_u32 v{vOo}, v{vG}, 4, v{vOo}
    v_lshlrev_b32 v{vVa}, 8, v{t0}
    v_lshl_add_u32 v{vVa}, v{vG}, 6, v{vVa}
    v_lshl_add_u32 v{vVa}, v{t3}, 4, v{vVa}
    v_add_u32 v{vVb}, 1024, v{vVa}
    v_cmp_gt_u32 vcc, 12, v{vR15}
    v_cndmask_b32 v{vVb}, v{t4}, v{vVb}, vcc
    v_cmp_eq_u32 vcc, 12, v{vR15}
    v_mov_b32 v{t4}, 0x3f803f80
    v_cndmask_b32 v{vOne}, 0, v{t4}, vcc
    v_mov_b32 v{vC}, {CSC}
    v_mov_b32 v{vNEG}, {NEG}
    s_and_b32 s3, s{sWAVE}, 6
    s_lshl_b32 s3, s3, 10
    s_add_u32 s3, s3, {L_KV}
    v_add_u32 v{vKa}, s3, v{vL16}
    s_mul_i32 s3, s{sAH}, 7
    s_lshr_b32 s{sHQ}, s3, 1
    s_lshl_b32 s{sHQ}, s{sHQ}, 9
    s_lshl_b32 s{sHB}, s3, 8
    v_cmp_lt_u32 vcc, 15, v{vL}
    v_cndmask_b32 v{t0}, 0, -1, vcc
    s_bitcmp1_b32 s{sAH}, 0
    s_cselect_b64 vcc, -1, 0
    v_cndmask_b32 v{vQm}, -1, v{t0}, vcc
    v_cndmask_b32 v{vQm+1}, v{vMG}, -1, vcc
    s_mul_i32 s3, s{sWAVE}, 3
    s_lshl_b32 s{sT}, s{sARB}, 3
    s_sub_u32 s{sT}, s{sT}, 16
    s_add_u32 s{sT}, s{sT}, s3
    s_lshl_b32 s3, s3, 10
    s_add_u32 s3, s3, {L_KV}
    v_add_u32 v{vKw}, s3, v{vL16}
    v_subrev_u32 v{t0}, 1024, v{vVb}
    s_bitcmp1_b32 s{sWAVE}, 0
    s_cselect_b64 vcc, -1, 0
    v_cndmask_b32 v{vV0}, v{vVa}, v{t0}, vcc
    v_cndmask_b32 v{vV1}, v{t0}, v{vVa}, vcc
    v_cndmask_b32 v{vOn0}, 0, v{vOne}, vcc
    v_cndmask_b32 v{vOn1}, v{vOne}, 0, vcc
    """ + "".join(f"""
    s_ashr_i32 s34, s{sT}, 1
    s_mul_i32 s34, s34, 28672
    s_and_b32 s35, s{sT}, 1
    s_lshl_b32 s3, s35, 10
    s_add_u32 s3, s3, s34
    s_add_u32 s3, s3, s{sHB}
    s_add_u32 s3, s3, {VO}
    s_lshl_b32 s35, s35, 8
    s_add_u32 s35, s35, s34
    s_add_u32 s35, s35, s{sHQ}
    s_add_u32 s35, s35, {KO}
    s_cmp_lt_i32 s{sT}, 0
    s_cselect_b32 s{sV[i]}, {BIG}, s3
    s_cselect_b32 s{sK[i]}, {BIG}, s35
    s_add_u32 s{sT}, s{sT}, 1
    """ for i in range(3)) + f"""
    s_lshl_b32 s3, s{sARB}, 3
    s_add_u32 s3, s3, s{sWAVE}
    s_lshr_b32 s34, s3, 1
    s_mul_i32 s34, s34, 28672
    s_and_b32 s35, s3, 1
    s_lshl_b32 s35, s35, 8
    s_add_u32 s35, s35, s34
    s_add_u32 s{sQA}, s35, s{sHQ}
    s_lshl_b32 s3, s3, 4
    s_add_u32 s3, s3, s{sAH}
    s_lshl_b32 s3, s3, 10
    s_add_u32 s33, s3, {OA}
    s_mul_i32 s3, s{sAH}, 7
    s_lshr_b32 s34, s3, 3
    s_add_u32 s3, s3, 6
    s_lshr_b32 s35, s3, 3
    s_sub_u32 s35, s35, s34
    v_and_b32 v{t0}, 1, v{vL}
    v_mul_u32_u24 v{t0}, s35, v{t0}
    v_add_u32 v{t0}, s34, v{t0}
    v_min_u32 v{t1}, 11, v{vL}
    v_lshrrev_b32 v{t1}, 1, v{t1}
    s_lshl_b32 s3, s{sARB}, 1
    s_sub_u32 s3, s3, 4
    v_add_u32 v{t1}, s3, v{t1}
    v_max_i32 v{t1}, 0, v{t1}
    v_lshl_add_u32 v{t1}, v{t1}, 4, v{t0}
    v_lshlrev_b32 v{vPA}, 7, v{t1}
    s_lshl_b32 s3, s{sRB64}, 2
    s_lshl_b32 s35, s{sRP}, 1
    s_add_u32 s3, s3, s35
    s_lshl_b32 s3, s3, 4
    s_lshl_b32 s35, s{sKQ}, 2
    s_add_u32 s3, s3, s35
    s_lshl_b32 s3, s3, 10
    s_add_u32 s{sOB}, s3, {OB}
    s_add_u32 s{sOB+1}, s{sOB}, 16384
    s_add_u32 s{sOA}, s3, {OA}
    s_add_u32 s{sOA+1}, s{sOA}, 16384
    s_mov_b32 s15, {FL1}
    """
    def normalize(O0, O1, ta, tb, dst):
        return [
            [f"v_mov_b32 v{ta}, v{O1}", f"v_mov_b32 v{tb}, v{O1}"],
            [f"v_permlane32_swap_b32 v{ta}, v{tb}"],
            [f"v_mov_b32 v{ta}, v{tb}"],
            [f"v_permlane16_swap_b32 v{ta}, v{tb}"],
            [f"v_rcp_f32 v{tb}, v{tb}"],
            [f"v_mul_f32 v{O0+i}, v{O0+i}, v{tb}" for i in range(4)] + [f"v_mul_f32 v{O1+i}, v{O1+i}, v{tb}" for i in range(4)],
            [f"v_cvt_pk_bf16_f32 v{dst}, v{O0}, v{O0+1}", f"v_cvt_pk_bf16_f32 v{dst+1}, v{O0+2}, v{O0+3}",
             f"v_cvt_pk_bf16_f32 v{dst+2}, v{O1}, v{O1+1}", f"v_cvt_pk_bf16_f32 v{dst+3}, v{O1+2}, v{O1+3}"],
            [f"v_bfi_b32 v{dst+3}, v{vMG}, v{dst+3}, v{vTAG}"],
        ]
    vXe, vXo, vW0, vW1, vWo, vPw = 10, 11, 13, 14, 15, 17
    sLW, sLx, sLw, sT0, sT1 = 96, 97, 101, 34, 35
    sLwo, sL1k = 14, 15
    a(f"""
    s_sub_u32 s{sLW}, s{sWAVE}, 4
    s_lshl_b32 s{sT0}, s{sRB}, 7
    s_lshl_b32 s{sT1}, s{sLW}, 5
    s_add_u32 s{sT0}, s{sT0}, s{sT1}
    v_add_u32 v4, s{sT0}, v1
    v_mul_u32_u24 v4, 896, v4
    v_xor_b32 v5, v2, v3
    v_lshl_add_u32 v{vXe}, v5, 4, v4
    v_xor_b32 v5, 4, v5
    v_lshl_add_u32 v{vXo}, v5, 4, v4
    v_add_u32 v{vXo}, 6144, v{vXo}
    s_lshl_b32 s{sLx}, s{sLW}, 12
    s_lshl_b32 s{sLw}, s{sLW}, 11
    s_lshl_b32 s{sT1}, s{sLW}, 4
    v_add_u32 v4, s{sT1}, v1
    v_mul_u32_u24 v4, 2688, v4
    s_lshl_b32 s{sT1}, s{sLAM}, 7
    v_add_u32 v4, s{sT1}, v4
    v_and_b32 v5, 1, v3
    v_lshlrev_b32 v5, 2, v5
    v_xor_b32 v5, v2, v5
    v_lshl_add_u32 v{vW0}, v5, 4, v4
    v_add_u32 v{vW1}, {8*2688-1024}, v{vW0}
    s_mov_b32 s{sX+2}, {XB}
    s_mov_b32 s{sX+3}, 0x20000
    s_mov_b32 s{sW+2}, {WB}
    s_mov_b32 s{sW+3}, 0x20000
    s_waitcnt lgkmcnt(0)
    s_mov_b32 s{sX}, s16
    s_mov_b32 s{sX+1}, s17
    s_mov_b32 s{sW}, s18
    s_mov_b32 s{sW+1}, s19
    """)
    stamp(0)
    a(f"""
    s_cmp_eq_u32 s{sLAM}, 7
    s_cbranch_scc1 L_ld_idle
    """)
    order = []
    def D(c):
        slot = ((c + 1) % 4) * SLOT
        a(f"""
        s_add_u32 m0, s{sLx}, {slot}
        s_mov_b32 s{sT0}, {c*128}
        s_mov_b32 s{sT1}, {c*128 + 12288}
        buffer_load_dwordx4 v{vXe}, {srd(sX)}, s{sT0} offen lds
        buffer_load_dwordx4 v{vXo}, {srd(sX)}, s{sT0} offen offset:1024 lds
        buffer_load_dwordx4 v{vXe}, {srd(sX)}, s{sT1} offen offset:2048 lds
        buffer_load_dwordx4 v{vXo}, {srd(sX)}, s{sT1} offen offset:3072 lds
        """)
        for p in (1, 2, 0):
            a(f"""
            s_add_u32 m0, s{sLw}, {slot + 16384 + p*8192}
            s_mov_b32 s{sT1}, {c*64*2688 + p*896}
            buffer_load_dwordx4 v{vW0}, {srd(sW)}, s{sT1} offen lds
            buffer_load_dwordx4 v{vW1}, {srd(sW)}, s{sT1} offen offset:1024 lds
            """)
        order.extend([c] * 10)
    def Wt(c):
        last = max(i for i, o in enumerate(order) if o == c)
        a(f"s_waitcnt vmcnt({len(order) - 1 - last})")
        if c == 0: stamp(1)
        a("s_barrier")
    wo_setup = rest_setup + f"""
    v_and_b32 v5, 6, v1
    v_xor_b32 v5, v2, v5
    v_mul_u32_u24 v4, 896, v1
    s_lshl_b32 s{sT1}, s{sCB}, 7
    v_add_u32 v4, s{sT1}, v4
    v_lshl_add_u32 v{vWo}, v5, 4, v4
    s_cmp_eq_u32 s{sCB}, 7
    s_cselect_b64 vcc, -1, 0
    v_mov_b32 v7, {BIG}
    v_cndmask_b32 v{vWo}, v{vWo}, v7, vcc
    v_mov_b32 v1, 0
    s_mul_i32 s3, s14, 98
    s_and_b32 s{sT1}, s{sLW}, 1
    s_mul_i32 s{sT1}, s{sT1}, 49
    s_add_u32 s3, s3, s{sT1}
    v_min_u32 v4, 48, v{vL}
    v_add_u32 v4, s3, v4
    v_lshlrev_b32 v{vPw}, 7, v4
    s_mul_i32 s{sLwo}, s{sLW}, 7168
    s_lshl_b32 s{sL1k}, s{sLW}, 10
    global_load_dword v{vTAG}, v1, s[30:31] sc1
    """
    def issue_wo(i0, i1):
        for i in range(i0, i1):
            br = i >= 14
            a(f"""
            s_add_u32 m0, s{sL1k}, {4096*i}
            s_add_u32 s{sT1}, s{sLwo}, {(4*i - 56*br)*7168}
            buffer_load_dwordx4 v{vWo}, {srd(sWoA if br else sWoB)}, s{sT1} offen lds
            """)
            order.append("wo")
    vPf = 16
    sPS, sPO = 60, 61
    PFN = " nt" if opt.get("pnt", 0) else ""
    def pf_setup(wmul):
        a(f"""
        s_and_b32 s{sT0}, s13, 2
        s_lshl_b32 s{sT0}, s{sT0}, 9
        s_lshl_b32 s{sT1}, s14, 5
        s_add_u32 s{sT0}, s{sT0}, s{sT1}
        v_min_u32 v4, 31, v{vL}
        v_add_u32 v4, s{sT0}, v4
        v_mul_u32_u24 v{vPf}, 896, v4
        v_min_u32 v4, 23, v{vL}
        v_cmp_le_u32 vcc, 12, v4
        v_cndmask_b32 v5, 0, 1, vcc
        v_mul_u32_u24 v6, 12, v5
        v_sub_u32 v6, v4, v6
        s_lshl_b32 s{sT0}, s14, 1
        v_add_u32 v5, s{sT0}, v5
        v_mul_u32_u24 v5, 2688, v5
        v_lshrrev_b32 v4, 2, v6
        v_mul_u32_u24 v4, 896, v4
        v_add_u32 v5, v5, v4
        v_and_b32 v6, 3, v6
        v_lshl_add_u32 v5, v6, 7, v5
        s_and_b32 s{sT0}, s13, 1
        s_mul_i32 s{sT0}, s{sT0}, {wmul}
        v_add_u32 v5, s{sT0}, v5
        s_bitcmp1_b32 s{sLW}, 0
        s_cselect_b64 vcc, -1, 0
        s_mov_b32 s{sPS}, 128
        s_cselect_b32 s{sPS}, 172032, s{sPS}
        s_cselect_b32 s44, s{sW}, s{sX}
        s_cselect_b32 s45, s{sW+1}, s{sX+1}
        s_cselect_b32 s46, s{sW+2}, s{sX+2}
        s_mov_b32 s47, 0x20000
        v_cndmask_b32 v{vPf}, v{vPf}, v5, vcc
        s_lshr_b32 s{sPO}, s{sLW}, 1
        s_add_u32 s{sPO}, s{sPO}, 1
        s_mul_i32 s{sPO}, s{sPO}, s{sPS}
        s_lshl_b32 s{sPS}, s{sPS}, 1
        """)
    def pf():
        a(f"""
        buffer_load_dword v20, v{vPf}, s[44:47], s{sPO} offen{PFN}
        s_add_u32 s{sPO}, s{sPO}, s{sPS}
        """)
        order.append("pf")
    PMA, PMB = opt.get("pma", 1), opt.get("pmb", 2)
    def head(Dx, wmul):
        PM = PMA if wmul == 512 else PMB
        if PM == 0: Dx(0); Dx(1); Wt(0); Dx(2); Wt(1); Dx(3)
        elif PM == 1: Dx(0); pf_setup(wmul); pf(); Dx(1); Wt(0); Dx(2); pf(); pf(); Wt(1); Dx(3)
        elif PM == 2: Dx(0); pf_setup(wmul); pf(); Dx(1); Wt(0); pf(); Dx(2); Wt(1); pf(); Dx(3)
        elif PM == 3: Dx(0); pf_setup(wmul); pf(); pf(); pf(); Dx(1); Wt(0); Dx(2); Wt(1); Dx(3)
    def pf_wo(l):
        if opt.get("nopw"): return
        a(f"""
        s_cmp_lt_u32 s{sLW}, 2
        s_cbranch_scc1 L_pwB{l}
        buffer_load_dword v20, v{vPw}, {srd(sWoA)}, 0 offen
        s_branch L_pwD{l}
        L_pwB{l}:
        buffer_load_dword v20, v{vPw}, {srd(sWoB)}, 0 offen
        L_pwD{l}:
        """)
        order.append("pfw")
    head(D, 512)
    a(wo_setup); order.append("tag")
    if opt.get("seq", 0) == 1:
        Wt(2); D(4); Wt(3); D(5); pf_wo(0); Wt(4); D(6); issue_wo(0, 10); Wt(5); issue_wo(10, 20); Wt(6)
    elif opt.get("seq", 0) == 0:
        Wt(2); D(4); Wt(3); D(5); Wt(4); D(6); pf_wo(0); Wt(5)
        DEF = opt.get("defer", 2)
        if DEF < 4: issue_wo(0, 10)
        Wt(6)
        if DEF >= 2: a("s_barrier")
        if DEF == 4: issue_wo(0, 10)
        issue_wo(10, 20)
        if DEF == 1: a("s_barrier")
    else:
        Wt(2); D(4); Wt(3); D(5); Wt(4); D(6); pf_wo(0); Wt(5); issue_wo(0, 14); Wt(6); a("s_sleep 16"); issue_wo(14, 20)
    a("s_branch L_ld2")
    a.raw("L_ld_idle:")
    if PMA: pf_setup(512); pf(); pf(); pf()
    a(wo_setup)
    pf_wo(1)
    issue_wo(0, 20)
    a.raw("L_ld2:")
    issue_wo(20, 28)
    a(p2common)
    a("s_waitcnt vmcnt(28)" if opt.get("nowait", 0) else "s_waitcnt vmcnt(0)")
    get_tag("l")
    if not opt.get("lp"):
        a(f"""
        s_cmp_lg_u32 s{sWAVE}, 7
        s_cbranch_scc1 L_pollok1
        """)
        poll("1", vPA, 9)
    stamp(2)
    a("s_branch L_phase2")

    a.raw("L_compute:")
    sCH, sRH = 96, 97
    sSQ, sSK, sSV, sSQh, sSKh, sFl = 36, 37, 38, 39, 40, 41
    def Acc(p, rt): return p*32 + rt*16
    def Fx(s, rt): return 96 + 20*s + 4*rt
    def Fw(s, p): return 96 + 20*s + 8 + 4*p
    vxa = [200, 201, 202, 203]; vwa = 204
    vQo, vVo = 205, 206
    slot0 = SLOT
    a(f"""
    s_waitcnt lgkmcnt(0)
    v_mov_b32 v1, 0
    {'' if opt.get('swap', 1) else TAGC}
    """)
    stamp(0)
    a(rest_setup)
    prefetch('a')
    a(f"""
    s_and_b32 s{sCH}, s{sWAVE}, 1
    s_lshr_b32 s{sRH}, s{sWAVE}, 1
    s_cmp_eq_u32 s{sLAM}, 7
    s_cbranch_scc1 L_cmp_idle
    v_and_b32 v2, 31, v{vL}
    v_lshrrev_b32 v3, 5, v{vL}
    v_bfe_u32 v4, v{vL}, 2, 2
    s_lshl_b32 s3, s{sLAM}, 1
    s_add_u32 s3, s3, s{sCH}
    s_lshl_b32 s34, s3, 11
    v_add_u32 v{vQo}, s34, v{vL16}
    v_bfe_u32 v6, v{vL}, 4, 1
    v_lshlrev_b32 v6, 2, v6
    v_and_b32 v7, 1, v4
    v_lshl_add_u32 v6, v7, 1, v6
    v_lshrrev_b32 v7, 1, v4
    v_add_u32 v6, v6, v7
    v_lshl_add_u32 v7, v6, 8, s34
    v_lshl_add_u32 v7, v3, 6, v7
    v_and_b32 v8, 3, v{vL}
    v_lshl_add_u32 v{vVo}, v8, 4, v7
    s_lshl_b32 s34, s{sRB}, 1
    s_add_u32 s34, s34, s{sRH}
    s_mul_i32 s{sSQ}, s34, 57344
    s_add_u32 s{sSQh}, s{sSQ}, 28672
    s_add_u32 s{sSK}, s{sSQ}, {KO}
    s_add_u32 s{sSKh}, s{sSQh}, {KO}
    s_add_u32 s{sSV}, s{sSQ}, {VO}
    s_add_u32 s15, s{sSQh}, {VO}
    s_lshl_b32 s34, s34, 4
    s_add_u32 s34, s34, s3
    s_lshl_b32 s34, s34, 7
    s_add_u32 s{sFl}, s34, {FL1}
    """)
    def qkv_stores(data):
        for p, lo, hi in ((1, sSK, sSKh), (2, None, None), (0, sSQ, sSQh)):
            for rt in range(2):
                for half in range(2):
                    d = data(p, rt, half)
                    if p == 2: a(f"buffer_store_dwordx4 {q4(d)}, v{vVo}, {srd(sWS)}, s{sSV} offen offset:{rt*2048 + half*128} sc1")
                    else: a(f"buffer_store_dwordx4 {q4(d)}, v{vQo}, {srd(sWS)}, s{hi if half else lo} offen offset:{rt*512} sc1")
    a(f"""
    global_load_dword v{vTAG}, v1, s[30:31] sc1
    s_lshl_b32 s3, s{sRH}, 6
    v_add_u32 v5, s3, v2
    v_lshlrev_b32 v5, 7, v5
    v_bfe_u32 v6, v2, 1, 3
    v_xor_b32 v6, v6, v3
    v_lshl_add_u32 v{vxa[0]}, v6, 4, v5
    v_add_u32 v{vxa[0]}, {slot0}, v{vxa[0]}
    v_xor_b32 v{vxa[1]}, 32, v{vxa[0]}
    v_xor_b32 v{vxa[2]}, 64, v{vxa[0]}
    v_xor_b32 v{vxa[3]}, 96, v{vxa[0]}
    v_lshl_add_u32 v6, v3, 3, v4
    v_lshlrev_b32 v6, 7, v6
    v_add_u32 v6, {slot0 + 16384}, v6
    v_bfe_u32 v7, v{vL}, 4, 1
    v_lshlrev_b32 v7, 5, v7
    v_and_b32 v8, 1, v{vL}
    v_lshl_or_b32 v7, v8, 4, v7
    v_bfe_u32 v8, v{vL}, 1, 1
    v_lshl_or_b32 v7, v8, 3, v7
    s_lshl_b32 s3, s{sCH}, 6
    v_or_b32 v7, s3, v7
    v_and_b32 v8, 2, v4
    v_lshlrev_b32 v8, 5, v8
    v_xor_b32 v7, v7, v8
    v_add_u32 v{vwa}, v6, v7
    """)
    def reads(s, ks):
        L = [f"ds_read_b128 {q4(Fx(s,rt))}, v{vxa[ks]} offset:{rt*4096}" for rt in range(2)]
        for p in (1, 2, 0):
            for u in range(2):
                L.append(f"ds_read_b64_tr_b16 {q2(Fw(s, p) + 2*u)}, v{vwa} offset:{p*8192 + ks*2048 + u*512}")
        return L
    def kstep(s, rd, extra=(), zero=False):
        M = []
        for p in (1, 2, 0):
            for rt in range(2):
                A, B = (Fx(s,rt), Fw(s,p)) if p == 2 else (Fw(s,p), Fx(s,rt))
                M.append(f"v_mfma_f32_32x32x16_bf16 {q16(Acc(p,rt))}, {q4(A)}, {q4(B)}, {'0' if zero else q16(Acc(p,rt))}")
        per = [3, 3, 2, 0, 0, 0]
        k = 0
        extra = list(extra)
        for i, m in enumerate(M):
            a(m)
            for _ in range(per[i]):
                if k < len(rd): a(rd[k]); k += 1
            if i >= 3:
                for _ in range(4):
                    if extra: a(extra.pop(0))
        for e in extra: a(e)
    sC, sD = 42, 43
    a("s_barrier")
    stamp(1)
    for r in reads(0, 0): a(r)
    a(f"s_mov_b32 s{sC}, 0")
    ex0 = [f"s_and_b32 s3, s{sC}, 3", f"s_cmp_eq_u32 s3, 2", f"s_mov_b32 s{sD}, {SLOT}",
           f"s_cselect_b32 s{sD}, {(-3*SLOT) & 0xffffffff}, s{sD}",
           f"v_add_u32 v{vxa[0]}, s{sD}, v{vxa[0]}", f"v_add_u32 v{vxa[1]}, s{sD}, v{vxa[1]}"]
    a("s_waitcnt lgkmcnt(0)")
    kstep(0, reads(1, 1), ex0, zero=True)
    a("s_branch L_gemm1")
    a.raw("L_gemm:")
    a("s_waitcnt lgkmcnt(0)")
    kstep(0, reads(1, 1), ex0)
    a.raw("L_gemm1:")
    a("s_waitcnt lgkmcnt(0)")
    kstep(1, reads(0, 2), [f"v_add_u32 v{vxa[2]}, s{sD}, v{vxa[2]}"])
    a("s_waitcnt lgkmcnt(0)")
    kstep(0, reads(1, 3), [f"v_add_u32 v{vxa[3]}, s{sD}, v{vxa[3]}", f"v_add_u32 v{vwa}, s{sD}, v{vwa}",
                           f"s_add_u32 s{sC}, s{sC}, 1", f"s_cmp_lt_u32 s{sC}, 6"])
    a("s_waitcnt lgkmcnt(0)")
    a("s_barrier")
    kstep(1, reads(0, 0))
    a("s_cbranch_scc1 L_gemm")
    def cvt(d, s0): a(f"v_cvt_pk_bf16_f32 v{d}, v{s0}, v{s0+1}")
    def mf(p, rt, ks):
        A, B = (Fx(ks,rt), Fw(ks,p)) if p == 2 else (Fw(ks,p), Fx(ks,rt))
        return f"v_mfma_f32_32x32x16_bf16 {q16(Acc(p,rt))}, {q4(A)}, {q4(B)}, {q16(Acc(p,rt))}"
    rd = []
    for ks in (1, 2, 3):
        r = reads(ks, ks); rd += r[0:4]
    for ks in (1, 2, 3): rd += reads(ks, ks)[6:8]
    for ks in (1, 2, 3): rd += reads(ks, ks)[4:6]
    a("s_waitcnt vmcnt(0) lgkmcnt(0)")
    k = 0
    for p in (1, 0, 2):
        for rt in range(2):
            a(mf(p, rt, 0))
            for _ in range(3): a(rd[k]); k += 1
    def epi(p):
        L = []
        for rt in range(2):
            for half in range(2):
                if p == 2:
                    d = 176 + (rt*2+half)*4; s0 = Acc(2, rt) + 4*half
                    L += [f"v_cvt_pk_bf16_f32 v{d}, v{s0}, v{s0+1}", f"v_cvt_pk_bf16_f32 v{d+1}, v{s0+2}, v{s0+3}",
                          f"v_cvt_pk_bf16_f32 v{d+2}, v{s0+8}, v{s0+9}", f"v_cvt_pk_bf16_f32 v{d+3}, v{s0+10}, v{s0+11}",
                          f"buffer_store_dwordx4 {q4(d)}, v{vVo}, {srd(sWS)}, s{15 if rt else sSV} offen offset:{half*128} sc1"]
                else:
                    d = Acc(p, rt) + 8*half
                    lo, hi = (sSK, sSKh) if p == 1 else (sSQ, sSQh)
                    L += [f"v_cvt_pk_bf16_f32 v{d+i}, v{d+2*i}, v{d+2*i+1}" for i in range(4)]
                    L += [f"buffer_store_dwordx4 {q4(d)}, v{vQo}, {srd(sWS)}, s{hi if rt else lo} offen offset:{half*1024} sc1"]
        return L
    for n, ks in enumerate((1, 2, 3)):
        a(f"s_waitcnt lgkmcnt({min(15, k - 4*(n+1))})")
        for rt in range(2):
            a(mf(1, rt, ks))
            if k < 24: a(rd[k]); k += 1
    pend = epi(1)
    for p, nxt, base in ((0, 0, 12), (2, None, 18)):
        for n, ks in enumerate((1, 2, 3)):
            a(f"s_waitcnt lgkmcnt({24 - base - 2*(n+1)})")
            for rt in range(2):
                a(mf(p, rt, ks))
                if n or rt:
                    for _ in range(4):
                        if pend: a(pend.pop(0))
        for x in pend: a(x)
        pend = epi(p)
    stamp(3)
    for x in pend: a(x)
    if opt.get("defer", 2) in (1, 2): a("s_barrier")
    stamp(2)
    a("v_mov_b32 v227, 0")
    a("s_waitcnt vmcnt(0)")
    get_tag("c")
    a(f"""
    s_mov_b64 exec, 1
    buffer_store_dword v{vTAG}, v227, {srd(sWS)}, s{sFl} offen sc1
    s_mov_b64 exec, -1
    """)
    stamp(4)
    if opt.get("defer", 2) >= 3: a("s_barrier")
    a("s_branch L_cmp2")
    a.raw("L_cmp_idle:")
    a(f"global_load_dword v{vTAG}, v1, s[30:31] sc1")
    a("s_waitcnt vmcnt(0)")
    get_tag("i")
    a.raw("L_cmp2:")
    a(p2common)
    a("s_branch L_phase2")
    a.raw("L_brB:")
    SLB = 43008
    SB0 = 34816
    a(MAPB)
    a(f"""
    s_cmp_lt_u32 s{sWAVE}, 4
    s_cbranch_scc1 L_cmpB
    """)
    vXh = 12
    sLh = 63
    a(f"""
    s_sub_u32 s{sLW}, s{sWAVE}, 4
    s_lshl_b32 s{sT0}, s{sRB}, 7
    s_lshl_b32 s{sT1}, s{sLW}, 5
    s_add_u32 s{sT0}, s{sT0}, s{sT1}
    v_add_u32 v4, s{sT0}, v1
    v_mul_u32_u24 v4, 896, v4
    v_xor_b32 v5, v2, v3
    v_lshl_add_u32 v{vXe}, v5, 4, v4
    v_xor_b32 v5, 4, v5
    v_lshl_add_u32 v{vXo}, v5, 4, v4
    v_add_u32 v{vXo}, 6144, v{vXo}
    s_lshl_b32 s{sLx}, s{sLW}, 12
    s_lshl_b32 s{sLw}, s{sLW}, 11
    s_lshl_b32 s{sLh}, s{sLW}, 9
    s_lshl_b32 s{sT1}, s{sLW}, 4
    v_add_u32 v4, s{sT1}, v1
    v_mul_u32_u24 v4, 2688, v4
    s_mul_i32 s{sT1}, s{sLAM}, 112
    v_add_u32 v4, s{sT1}, v4
    v_and_b32 v5, 1, v3
    v_lshlrev_b32 v5, 1, v5
    v_xor_b32 v5, v2, v5
    v_mov_b32 v7, {BIG}
    v_lshl_add_u32 v{vW0}, v5, 4, v4
    v_cmp_eq_u32 vcc, 7, v5
    v_xor_b32 v6, 4, v5
    v_cndmask_b32 v{vW0}, v{vW0}, v7, vcc
    v_lshl_add_u32 v{vW1}, v6, 4, v4
    v_cmp_eq_u32 vcc, 7, v6
    v_add_u32 v{vW1}, {8*2688-1024}, v{vW1}
    v_cndmask_b32 v{vW1}, v{vW1}, v7, vcc
    s_lshl_b32 s{sT0}, s{sRB}, 7
    s_lshl_b32 s{sT1}, s{sLW}, 2
    s_add_u32 s{sT0}, s{sT0}, s{sT1}
    s_sub_u32 s{sT0}, s{sT0}, 16
    v_add_u32 v4, s{sT0}, v1
    v_mul_i32_i24 v4, 896, v4
    s_lshl_b32 s{sT1}, s{sLW}, 1
    v_add_u32 v5, s{sT1}, v3
    v_and_b32 v5, 7, v5
    v_xor_b32 v5, v2, v5
    v_lshl_add_u32 v{vXh}, v5, 4, v4
    s_cmp_eq_u32 s{sRB}, 0
    s_cselect_b64 vcc, -1, 0
    v_cndmask_b32 v{vXh}, v{vXh}, v7, vcc
    s_mov_b32 s{sX+2}, {XB}
    s_mov_b32 s{sX+3}, 0x20000
    s_mov_b32 s{sW+2}, {WB}
    s_mov_b32 s{sW+3}, 0x20000
    s_waitcnt lgkmcnt(0)
    s_mov_b32 s{sX}, s22
    s_mov_b32 s{sX+1}, s23
    s_mov_b32 s{sW}, s24
    s_mov_b32 s{sW+1}, s25
    """)
    stamp(0)
    del order[:]
    def DB(c):
        slot = SB0 + ((c + 2) % 3) * SLB
        a(f"""
        s_add_u32 m0, s{sLx}, {slot + 2048}
        s_mov_b32 s{sT0}, {c*128}
        s_mov_b32 s{sT1}, {c*128 + 12288}
        buffer_load_dwordx4 v{vXe}, {srd(sX)}, s{sT0} offen lds
        buffer_load_dwordx4 v{vXo}, {srd(sX)}, s{sT0} offen offset:1024 lds
        buffer_load_dwordx4 v{vXe}, {srd(sX)}, s{sT1} offen offset:2048 lds
        buffer_load_dwordx4 v{vXo}, {srd(sX)}, s{sT1} offen offset:3072 lds
        """)
        for p in range(3):
            a(f"""
            s_add_u32 m0, s{sLw}, {slot + 18432 + p*8192}
            s_mov_b32 s{sT1}, {c*64*2688 + p*896}
            buffer_load_dwordx4 v{vW0}, {srd(sW)}, s{sT1} offen lds
            buffer_load_dwordx4 v{vW1}, {srd(sW)}, s{sT1} offen offset:1024 lds
            """)
        a(f"""
        s_add_u32 m0, s{sLh}, {slot}
        s_mov_b64 exec, 0xffffffff
        buffer_load_dwordx4 v{vXh}, {srd(sX)}, s{sT0} offen lds
        s_mov_b64 exec, -1
        """)
        order.extend([c] * 11)
    head(DB, 384)
    a(wo_setup); order.append("tag")
    Wt(2); DB(4); Wt(3); DB(5); Wt(4); DB(6); pf_wo(2); Wt(5); issue_wo(0, 10); Wt(6); issue_wo(10, 20)
    a("s_branch L_ld2")
    a.raw("L_cmpB:")
    sHH = 96
    def Qa(rt, ft): return ((rt-1)*2+ft)*4
    def Ka(rt, ft): return 32 + (rt*2+ft)*4
    def Va(rt, ft): return 72 + (rt*2+ft)*4
    def Gx(s, rt): return 112 + 44*s + 4*rt
    def Gw(s, p, ft): return 112 + 44*s + 20 + (p*2+ft)*4
    bxa = [200, 201]; bwa = [202, 203]
    vBS, vBP, vBP1 = 204, 208, 212
    sl0 = SB0 + 2 * SLB
    a(f"""
    s_and_b32 s{sHH}, s{sWAVE}, 1
    s_lshr_b32 s{sRH}, s{sWAVE}, 1
    v_and_b32 v2, 15, v{vL}
    s_lshl_b32 s3, s{sRH}, 6
    v_add_u32 v4, s3, v2
    v_lshlrev_b32 v4, 7, v4
    v_lshrrev_b32 v5, 1, v2
    v_xor_b32 v5, v5, v3
    v_lshl_add_u32 v{bxa[0]}, v5, 4, v4
    v_add_u32 v{bxa[0]}, {sl0}, v{bxa[0]}
    v_xor_b32 v{bxa[1]}, 64, v{bxa[0]}
    v_lshrrev_b32 v4, 2, v2
    v_and_b32 v5, 3, v{vL}
    v_lshl_add_u32 v6, v3, 3, v4
    v_lshlrev_b32 v6, 7, v6
    v_add_u32 v6, {sl0 + 18432}, v6
    v_and_b32 v7, 2, v4
    v_and_b32 v8, 1, v3
    v_lshl_or_b32 v7, v8, 2, v7
    v_lshlrev_b32 v7, 4, v7
    s_mul_i32 s3, s{sHH}, 56
    v_lshl_add_u32 v8, v5, 3, s3
    v_xor_b32 v9, v8, v7
    v_add_u32 v{bwa[0]}, v6, v9
    v_add_u32 v8, 32, v8
    v_cmp_eq_u32 vcc, 56, v8
    v_mov_b32 v9, 120
    v_cndmask_b32 v8, v8, v9, vcc
    v_xor_b32 v9, v8, v7
    v_add_u32 v{bwa[1]}, v6, v9
    v_cmp_eq_u32 vcc, 12, v2
    v_cndmask_b32 v216, 0, 1.0, vcc
    v_mov_b32 v217, v216
    v_mov_b32 v218, v216
    v_mov_b32 v219, v216
    s_lshl_b32 s34, s{sRB}, 1
    s_add_u32 s34, s34, s{sRH}
    s_lshl_b32 s37, s34, 6
    s_lshl_b32 s3, s{sLAM}, 1
    s_add_u32 s3, s3, s{sHH}
    s_add_u32 s3, s3, s37
    s_lshl_b32 s3, s3, 10
    s_add_u32 s36, s3, {OB}
    s_mov_b32 s37, s34
    v_mov_b32 v1, 0
    s_waitcnt lgkmcnt(0)
    {TAGC if opt.get('swap', 1) else ''}
    """)
    stamp(0)
    pc = [l for l in p2common.split("\n") if l.strip()]
    cut = next(k for k in range(len(pc)) if pc[k].strip().startswith("s_mul_i32 s3, s%d, 3" % sWAVE))
    bias = f"""
    v_mov_b32 v224, {NEG}
    v_and_b32 v220, 15, v{vL}
    v_lshrrev_b32 v221, 4, v{vL}
    v_lshlrev_b32 v221, 2, v221
    v_sub_u32 v220, v220, v221
    """ + "".join(f"""
    v_subrev_u32 v221, {i}, v220
    v_and_b32 v222, 0x80000001, v221
    v_cmp_eq_u32 vcc, 0, v222
    v_cndmask_b32 v{vBS+i}, v224, 0, vcc
    v_cmp_eq_u32 vcc, 0x80000000, v222
    v_cndmask_b32 v{vBP+i}, v224, 0, vcc
    """ for i in range(4)) + """
    s_cmp_eq_u32 s37, 0
    s_cselect_b64 vcc, -1, 0
    """ + "".join(f"v_cndmask_b32 v{vBP1+i}, v{vBP+i}, v224, vcc\n" for i in range(4))
    pieces = [rest_setup + f"v_mov_b32 v227, 0\nglobal_load_dword v{vTAG}, v227, s[30:31] sc1\n" + bias, "\n".join(pc[:cut]), "\n".join(pc[cut:])]
    def breads(s, ks):
        L = [f"ds_read_b128 {q4(Gx(s,rt))}, v{bxa[ks]} offset:{rt*2048}" for rt in (1, 2, 3, 4, 0)]
        for p in range(3):
            for ft in range(2):
                for u in range(2):
                    L.append(f"ds_read_b64_tr_b16 {q2(Gw(s,p,ft) + 2*u)}, v{bwa[ft]} offset:{p*8192 + ks*4096 + u*512}")
        return L
    def bstep(s, rd, zero=False):
        M = []
        C = lambda r, z='0': z if zero else q4(r)
        for rt in (1, 2, 3, 4, 0):
            for ft in range(2):
                if rt: M.append(f"v_mfma_f32_16x16x32_bf16 {q4(Qa(rt,ft))}, {q4(Gw(s,0,ft))}, {q4(Gx(s,rt))}, {C(Qa(rt,ft))}")
                M.append(f"v_mfma_f32_16x16x32_bf16 {q4(Ka(rt,ft))}, {q4(Gw(s,1,ft))}, {q4(Gx(s,rt))}, {C(Ka(rt,ft))}")
                M.append(f"v_mfma_f32_16x16x32_bf16 {q4(Va(rt,ft))}, {q4(Gx(s,rt))}, {q4(Gw(s,2,ft))}, {C(Va(rt,ft), q4(216) if ft else '0')}")
        for i, m in enumerate(M):
            a(m)
            if i < len(rd): a(rd[i])
    a("s_barrier")
    stamp(1)
    for r in breads(0, 0): a(r)
    a(f"s_mov_b32 s{sC}, 0")
    a("s_waitcnt lgkmcnt(0)")
    bstep(0, breads(1, 1), zero=True)
    a(pieces[0]); a(pieces[1])
    a(f"""
    s_mul_i32 s3, s{sC}, 86
    s_lshr_b32 s3, s3, 8
    s_mul_i32 s3, s3, 3
    s_cmp_eq_u32 s3, s{sC}
    s_mov_b32 s{sD}, {SLB}
    s_cselect_b32 s{sD}, {(-2*SLB) & 0xffffffff}, s{sD}
    v_add_u32 v{bxa[0]}, s{sD}, v{bxa[0]}
    v_add_u32 v{bxa[1]}, s{sD}, v{bxa[1]}
    v_add_u32 v{bwa[0]}, s{sD}, v{bwa[0]}
    v_add_u32 v{bwa[1]}, s{sD}, v{bwa[1]}
    s_cmp_eq_u32 s{sC}, 6
    s_waitcnt lgkmcnt(0)
    s_cbranch_scc1 L_nobarB0
    s_barrier
    L_nobarB0:
    """)
    bstep(1, breads(0, 0))
    a(pieces[2])
    a(f"s_mov_b32 s{sC}, 1")
    a.raw("L_gemmB:")
    a("s_waitcnt lgkmcnt(0)")
    bstep(0, breads(1, 1))
    a(f"""
    s_mul_i32 s3, s{sC}, 86
    s_lshr_b32 s3, s3, 8
    s_mul_i32 s3, s3, 3
    s_cmp_eq_u32 s3, s{sC}
    s_mov_b32 s{sD}, {SLB}
    s_cselect_b32 s{sD}, {(-2*SLB) & 0xffffffff}, s{sD}
    v_add_u32 v{bxa[0]}, s{sD}, v{bxa[0]}
    v_add_u32 v{bxa[1]}, s{sD}, v{bxa[1]}
    v_add_u32 v{bwa[0]}, s{sD}, v{bwa[0]}
    v_add_u32 v{bwa[1]}, s{sD}, v{bwa[1]}
    s_cmp_eq_u32 s{sC}, 6
    s_waitcnt lgkmcnt(0)
    s_cbranch_scc1 L_nobarB
    s_barrier
    L_nobarB:
    """)
    bstep(1, breads(0, 0))
    a(f"""
    s_add_u32 s{sC}, s{sC}, 1
    s_cmp_lt_u32 s{sC}, 7
    s_cbranch_scc1 L_gemmB
    """)
    stamp(3)
    def Qf(j): return 168 + 4*(j-1)
    def Kf(rt): return 128 + 4*rt
    def Vf(dt, rt): return 148 + 10*dt + 2*rt
    a("s_waitcnt vmcnt(0) lgkmcnt(0)")
    get_tag("b")
    for rt in (1, 2, 3, 4, 0):
        for ft in range(2):
            if rt:
                cvt(Qf(rt)+2*ft, Qa(rt,ft)); cvt(Qf(rt)+2*ft+1, Qa(rt,ft)+2)
            cvt(Kf(rt)+2*ft, Ka(rt,ft)); cvt(Kf(rt)+2*ft+1, Ka(rt,ft)+2)
            cvt(Vf(ft,rt), Va(rt,ft)); cvt(Vf(ft,rt)+1, Va(rt,ft)+2)
    stamp(4)
    a.raw("L_phase2:")
    def wo_reads(base):
        L = []
        for hq in range(4):
            for cidx in range(4):
                for u in range(2):
                    d = base + (hq*4 + cidx)*4 + 2*u
                    L.append(f"ds_read_b64_tr_b16 {q2(d)}, v{vWA + 4*u + ((cidx + 2*(hq&1)) & 3)} offset:{hq*3584}")
        return L
    def wo_mask(base):
        return [f"v_and_b32 v{base + f*4 + 2 + r}, v{vMG}, v{base + f*4 + 2 + r}" for f in range(16) for r in range(2)]
    WB_, OF_ = 128, 192
    QF = 124
    KS, VS = 72, 84
    QB_, KB_, VB_ = 8, 16, 28
    sBud = 14
    def qmask(r):
        for i in range(4): a(f"v_and_b32 v{r+i}, v{vQm + (i>>1)}, v{r+i}")
    if opt.get("lp"):
        a("s_barrier")
        a(f"""
        s_cmp_lg_u32 s{sWAVE}, 7
        s_cbranch_scc1 L_pollok1
        """)
        poll("1", vPA, 9)
    a("s_barrier")
    stamp(11)
    for i in range(3):
        a(f"buffer_load_dwordx4 {q4(KS+4*i)}, v{vKq}, {srd(sWS)}, s{sK[i]} offen sc1")
    a(f"buffer_load_dwordx4 {q4(QF)}, v{vKq}, {srd(sWS)}, s{sQA} offen sc1")
    for i in range(3):
        a(f"buffer_load_dwordx4 {q4(VS+4*i)}, v{vV1 if i == 1 else vV0}, {srd(sWS)}, s{sV[i]} offen sc1")
    a(f"""
    s_lshr_b32 s3, s{sWAVE}, 2
    s_cmp_gt_u32 s{sBR}, s3
    s_cbranch_scc0 L_noB1
    """)
    def SB(j, t): return 8*(j-1) + 4*t
    for j in range(1, 5):
        bp = vBP1 if j == 1 else vBP
        a(f"v_mfma_f32_16x16x32_bf16 {q4(SB(j,0))}, {q4(Kf(j-1))}, {q4(Qf(j))}, {q4(bp)}")
        a(f"v_mfma_f32_16x16x32_bf16 {q4(SB(j,1))}, {q4(Kf(j))}, {q4(Qf(j))}, {q4(vBS)}")
    M = lambda j: 32 + (j-1)
    T = lambda j: 36 + (j-1)
    for j in range(1, 5):
        s = SB(j, 0)
        a(f"v_max3_f32 v{M(j)}, v{s}, v{s+1}, v{s+2}")
        a(f"v_max3_f32 v{T(j)}, v{s+3}, v{s+4}, v{s+5}")
        a(f"v_max3_f32 v{M(j)}, v{M(j)}, v{s+6}, v{s+7}")
        a(f"v_max_f32 v{M(j)}, v{M(j)}, v{T(j)}")
    for sw in ("v_permlane32_swap_b32", "v_permlane16_swap_b32"):
        for j in range(1, 5): a(f"v_mov_b32 v{T(j)}, v{M(j)}")
        for j in range(1, 5): a(f"{sw} v{M(j)}, v{T(j)}")
        for j in range(1, 5): a(f"v_max_f32 v{M(j)}, v{M(j)}, v{T(j)}")
    for j in range(1, 5): a(f"v_mul_f32 v{M(j)}, v{vC}, v{M(j)}")
    for j in range(1, 5):
        for i in range(8): a(f"v_fma_f32 v{SB(j,0)+i}, v{SB(j,0)+i}, v{vC}, -v{M(j)}")
    for j in range(1, 5):
        for i in range(8): a(f"v_exp_f32 v{SB(j,0)+i}, v{SB(j,0)+i}")
    P = lambda j: 40 + 4*(j-1)
    for j in range(1, 5):
        for i in range(4): cvt(P(j)+i, SB(j,0)+2*i)
    O = lambda j, dt: 8*(j-1) + 4*dt
    for j in range(1, 5):
        for dt in (1, 0):
            a(f"v_mfma_f32_16x16x32_bf16 {q4(O(j,dt))}, {q4(Vf(dt,j-1))}, {q4(P(j))}, 0")
    st = [normalize(O(j,0), O(j,1), 56+2*(j-1), 57+2*(j-1), 100+4*(j-1)) for j in range(1, 5)]
    for k in range(len(st[0])):
        for j in range(4):
            for x in st[j][k]: a(x)
    a.raw("L_noB1:")
    for r in wo_reads(WB_): a(r)
    a(f"""
    s_mov_b32 s{sBud}, {POLL_MAX}
    v_lshlrev_b32 v8, 2, v{vG}
    v_sub_u32 v8, v8, v{vR15}
    s_bitcmp1_b32 s{sWAVE}, 0
    s_cselect_b64 s[34:35], -1, 0
    """)
    for i in range(4):
        a(f"""
        v_add_u32 v9, {i}, v8
        v_cmp_lt_i32 vcc, 0, v9
        v_cndmask_b32 v10, v{vNEG}, 0, vcc
        v_cndmask_b32 v11, 0, v{vNEG}, vcc
        v_cndmask_b32 v{0+i}, v10, v{vNEG}, s[34:35]
        v_cndmask_b32 v{4+i}, 0, v10, s[34:35]
        v_cndmask_b32 v{64+i}, v11, 0, s[34:35]
        v_cndmask_b32 v{68+i}, v{vNEG}, v11, s[34:35]
        """)
    for i in range(8): a(f"v_add_u32 v{vWA+i}, {L_WOA}, v{vWA+i}")
    a("s_waitcnt lgkmcnt(0)")
    for x in wo_mask(WB_): a(x)
    a(f"""
    s_cmp_ge_u32 s{sARB}, 2
    s_cbranch_scc1 L_nofix
    s_waitcnt vmcnt(4)
    v_not_b32 v9, v{vQm}
    v_not_b32 v10, v{vQm+1}
    v_and_b32 v9, 0xff7f, v9
    v_and_b32 v10, 0xff7f, v10
    """)
    for i in range(3):
        qmask(KS+4*i)
        a(f"""
        s_cmp_eq_u32 s{sK[i]}, {BIG}
        s_cbranch_scc0 L_fx{i}
        v_or_b32 v{KS+4*i}, v9, v{KS+4*i}
        v_or_b32 v{KS+4*i+2}, v10, v{KS+4*i+2}
        L_fx{i}:
        """)
    a.raw("L_nofix:")
    for i in range(3):
        a(f"s_waitcnt vmcnt({6-i})")
        if i == 0: stamp(5)
        a(f"ds_write_b128 v{vKw}, {q4(KS+4*i)} offset:{1024*i}")
    for i in range(3):
        a(f"s_waitcnt vmcnt({2-i})")
        for r in range(4): a(f"v_or_b32 v{VS+4*i+r}, v{vOn1 if i == 1 else vOn0}, v{VS+4*i+r}")
        a(f"ds_write_b128 v{vKw}, {q4(VS+4*i)} offset:{24576+1024*i}")
    a(f"""
    s_lshr_b32 s3, s{sWAVE}, 2
    s_cmp_gt_u32 s{sBR}, s3
    s_cbranch_scc0 L_noB2
    """)
    for j in range(1, 5):
        a(f"buffer_store_dwordx4 {q4(100+4*(j-1))}, v{vOo}, {srd(sWS)}, s36 offen sc1")
        if j < 4: a("s_add_u32 s36, s36, 16384")
    a.raw("L_noB2:")
    stamp(6)
    qmask(QF)
    a(f"""
    s_cmp_ge_u32 s{sARB}, 2
    s_cbranch_scc1 L_nofixq
    v_not_b32 v9, v{vQm}
    v_not_b32 v10, v{vQm+1}
    v_and_b32 v9, 0x3f80, v9
    v_or_b32 v{QF}, v9, v{QF}
    v_and_b32 v10, 0x3f80, v10
    v_or_b32 v{QF+2}, v10, v{QF+2}
    L_nofixq:
    s_waitcnt lgkmcnt(0)
    s_barrier
    """)
    stamp(12)
    KBUF = 72; NKB = 6
    def kread(t): return f"ds_read_b128 {q4(KBUF + 4*(t % NKB))}, v{vKa} offset:{t*1024}"
    for t in range(NKB - 1): a(kread(t))
    vM, vT = 120, 121
    def mx(t):
        r = 4*t
        if t == 0:
            a(f"v_max_f32 v{vM}, v0, v1"); a(f"v_max_f32 v{vT}, v2, v3")
        else:
            a(f"v_max3_f32 v{vM}, v{vM}, v{r}, v{r+1}"); a(f"v_max3_f32 v{vT}, v{vT}, v{r+2}, v{r+3}")
    LAG = 4
    for t in range(18):
        if t + NKB - 1 < 18: a(kread(t + NKB - 1))
        outstanding = min(18, t + NKB) - (t + 1)
        a(f"s_waitcnt lgkmcnt({outstanding})")
        c = q4(4*t) if t in (0, 1, 16, 17) else "0"
        a(f"v_mfma_f32_16x16x32_bf16 {q4(4*t)}, {q4(KBUF + 4*(t % NKB))}, {q4(QF)}, {c}")
        if t >= LAG: mx(t - LAG)
    VBUF = [96 + 4*i for i in range(6)]
    NVB = len(VBUF)
    WA_ = 0
    ACCB = [64, 68, 72, 76, 80, 84, 88, 92]
    ACCA = [96, 100, 104, 108, 112, 116, 120, 124]
    sNext = 27
    lq = []
    def lds(ins, tag): a(ins); lq.append(tag)
    def lwait(tag):
        last = max(i for i, t in enumerate(lq) if t == tag)
        a(f"s_waitcnt lgkmcnt({min(15, len(lq) - 1 - last)})")
    def vread(n):
        lds(f"ds_read_b128 {q4(VBUF[n % NVB])}, v{vKa} offset:{24576 + (n>>1)*2048 + (n&1)*1024}", ("v", n))
    for n in range(NVB): vread(n)
    for t in range(18 - LAG, 18): mx(t)
    a(f"v_max_f32 v{vM}, v{vM}, v{vT}")
    for sw in ("v_permlane32_swap_b32", "v_permlane16_swap_b32"):
        a(f"v_mov_b32 v{vT}, v{vM}")
        a(f"{sw} v{vM}, v{vT}")
        a(f"v_max_f32 v{vM}, v{vM}, v{vT}")
    a(f"v_mul_f32 v{vM}, v{vC}, v{vM}")
    stamp(7)
    def o_load(f, s0):
        hq, tt = f >> 1, f & 1
        return f"buffer_load_dwordx4 {q4(OF_ + f*4)}, v{vOo}, {srd(sWS)}, s{s0 + tt} offen offset:{hq*1024} sc1"
    def frag(lbl, f, wbase, acc, wait, after):
        hq, tt = f >> 1, f & 1
        r = OF_ + f*4
        a(f"""
        s_cmp_lg_u32 s{sNext}, {f}
        s_cbranch_scc1 L_sk{lbl}{f}
        {wait}
        v_cmp_ne_u32 vcc, v{r+3}, v{vTAG}
        s_lshr_b32 s3, vcc_hi, 16
        s_cbranch_scc1 L_sk{lbl}{f}
        """)
        for cidx in range(4):
            d = acc[tt*4+cidx]
            a(f"v_mfma_f32_16x16x32_bf16 {q4(d)}, {q4(wbase + (hq*4+cidx)*4)}, {q4(r)}, {'0' if f < 2 else q4(d)}")
        a(f"s_add_u32 s{sNext}, s{sNext}, 1")
        if after is not None: a(o_load(f, after))
        a.raw(f"L_sk{lbl}{f}:")
    OACC = 224
    war = wo_reads(WA_); wam = wo_mask(WA_)
    LU, FU = opt.get("lu", 4), opt.get("fu", 5)
    a(f"s_mov_b32 s{sNext}, 0")
    for u in range(9):
        b = 8*u
        for i in range(8): a(f"v_fma_f32 v{b+i}, v{b+i}, v{vC}, -v{vM}")
        if LU <= u < LU + 4:
            for f in (2*(u-LU), 2*(u-LU)+1): a(o_load(f, sOB))
        for i in range(8): a(f"v_exp_f32 v{b+i}, v{b+i}")
        if opt.get('inpv', 0) and FU <= u < FU + 4:
            for f in range(2*(u-FU), 2*(u-FU)+2): frag("P", f, WB_, ACCB, f"s_waitcnt vmcnt({7-f})", None)
        for i in range(4): a(f"v_cvt_pk_bf16_f32 v{b+i}, v{b+2*i}, v{b+2*i+1}")
        lwait(("v", 2*u+1))
        for dt in range(2):
            c = "0" if u == 0 else q4(OACC + 4*dt)
            a(f"v_mfma_f32_16x16x32_bf16 {q4(OACC+4*dt)}, {q4(VBUF[(2*u+dt) % NVB])}, {q4(b)}, {c}")
        for n in (NVB + 2*u, NVB + 1 + 2*u):
            if n < 18: vread(n)
    for x in war: a(x)
    for grp in normalize(OACC, OACC+4, 232, 234, 236):
        for x in grp: a(x)
    a(f"buffer_store_dwordx4 {q4(236)}, v{vOo}, {srd(sWS)}, s33 offen sc1")
    stamp(13)
    a(f"""
    s_cmp_eq_u32 s{sCB}, 7
    s_cbranch_scc1 L_fin
    """)
    vXW, vXR, vOut = 224, 228, 230
    a(f"""
    s_lshl_b32 s3, s{sKQ}, 14
    s_lshl_b32 s35, s{sRP}, 13
    s_add_u32 s35, s35, s3
    v_lshlrev_b32 v231, 8, v{vR15}
    v_add_u32 v231, s35, v231
    v_xor_b32 v232, v{vG}, v{vR15}
    """)
    for cidx in range(4):
        a(f"""
        s_add_u32 s3, s{sKQ}, {cidx}
        s_and_b32 s3, s3, 3
        s_lshl_b32 s3, s3, 2
        v_xor_b32 v234, s3, v232
        v_lshl_add_u32 v{vXW+cidx}, v234, 4, v231
        """)
    a(f"""
    v_lshrrev_b32 v231, 3, v{vL}
    s_lshl_b32 s3, s{sWAVE}, 3
    v_add_u32 v231, s3, v231
    v_and_b32 v232, 7, v{vL}
    v_lshlrev_b32 v234, 1, v232
    v_and_b32 v235, 15, v231
    v_xor_b32 v234, v234, v235
    v_lshlrev_b32 v234, 4, v234
    v_lshl_add_u32 v{vXR}, v231, 8, v234
    v_xor_b32 v{vXR+1}, 16, v{vXR}
    s_lshl_b32 s3, s{sRB64}, 6
    v_add_u32 v231, s3, v231
    v_mul_u32_u24 v231, 1792, v231
    v_lshl_add_u32 v231, v232, 4, v231
    s_lshl_b32 s3, s{sCB}, 7
    v_add_u32 v{vOut}, s3, v231
    """)
    def finish(lbl, wbase, acc, s0, after):
        a(f"""
        s_cmp_eq_u32 s{sNext}, 8
        s_cbranch_scc1 L_done{lbl}
        L_again{lbl}:
        """)
        for f in range(8):
            a(f"s_cmp_gt_u32 s{sNext}, {f}")
            a(f"s_cbranch_scc1 L_rl{lbl}{f}")
            a(o_load(f, s0))
            a.raw(f"L_rl{lbl}{f}:")
        a("s_waitcnt vmcnt(0)")
        a.raw(f"L_first{lbl}:")
        for f in range(8): frag(lbl, f, wbase, acc, "", after)
        a(f"""
        s_cmp_eq_u32 s{sBud}, 0
        s_cbranch_scc1 L_done{lbl}
        s_sub_u32 s{sBud}, s{sBud}, 1
        s_cmp_lg_u32 s{sNext}, 8
        s_cbranch_scc1 L_again{lbl}
        {"s_waitcnt vmcnt(0)" if after is not None else ""}
        L_done{lbl}:
        """)
    def exch_write(acc):
        for tt in range(2):
            for cidx in range(4):
                a(f"ds_write_b128 v{vXW+cidx}, {q4(acc[tt*4+cidx])} offset:{tt*4096}")
        a("s_waitcnt lgkmcnt(0)")
        a("s_barrier")
    def exch_final(RB_, outoff):
        for k in range(4):
            for h in range(2):
                a(f"ds_read_b128 {q4(RB_ + (k*2+h)*4)}, v{vXR+h} offset:{k*16384}")
        a("s_waitcnt lgkmcnt(4)")
        for i in range(8): a(f"v_add_f32 v{RB_+i}, v{RB_+i}, v{RB_+8+i}")
        a("s_waitcnt lgkmcnt(0)")
        for i in range(8): a(f"v_add_f32 v{RB_+16+i}, v{RB_+16+i}, v{RB_+24+i}")
        for i in range(8): a(f"v_add_f32 v{RB_+i}, v{RB_+i}, v{RB_+16+i}")
        for i in range(4): a(f"v_cvt_pk_bf16_f32 v{RB_+8+i}, v{RB_+2*i}, v{RB_+2*i+1}")
        a(f"s_mov_b32 s3, {outoff}")
        a(f"buffer_store_dwordx4 {q4(RB_+8)}, v{vOut}, {srd(sOut)}, s3 offen")
    if not opt.get('inpv', 0):
        for f in range(8): frag("R", f, WB_, ACCB, f"s_waitcnt vmcnt({8-f})", None)
    finish("B", WB_, ACCB, sOB, None)
    stamp(8)
    AL = opt.get("al", 1)
    def aloads(k):
        if AL == k:
            for f in range(8): a(o_load(f, sOA))
    aloads(0)
    a(f"s_mov_b32 s{sNext}, 0")
    a("s_waitcnt lgkmcnt(0)")
    for x in wam: a(x)
    a("s_barrier")
    aloads(1)
    exch_write(ACCB)
    aloads(2)
    if opt.get("rechk", 1) and AL == 0:
        a("s_waitcnt vmcnt(0)")
        for f in range(8):
            a(f"""
            v_cmp_ne_u32 vcc, v{OF_+f*4+3}, v{vTAG}
            s_lshr_b32 s3, vcc_hi, 16
            s_cbranch_scc0 L_ok{f}
            {o_load(f, sOA)}
            L_ok{f}:
            """)
    exch_final(128, 896)
    aloads(3)
    for i in range(4): a(f"v_add_u32 v{vXW+i}, 65536, v{vXW+i}")
    for i in range(2): a(f"v_add_u32 v{vXR+i}, 65536, v{vXR+i}")
    stamp(14)
    for f in range(8): frag("Q", f, WA_, ACCA, "s_waitcnt vmcnt(1)" if (opt.get("rechk", 1) and AL == 0) else f"s_waitcnt vmcnt({(7 if AL == 3 else 8)-f})", None)
    finish("A", WA_, ACCA, sOA, None)
    stamp(9)
    exch_write(ACCA)
    exch_final(160, 0)
    a.raw("L_fin:")
    if stamps:
        stamp(15)
        if "probe" in opt:
            X = opt["probe"]
            a(f"""
            v_readfirstlane_b32 s12, v{vTAG}
            s_bfe_u32 s3, s12, 0xd0001
            s_bfe_u32 s34, s12, 0xf000f
            s_lshl_b32 s34, s34, 13
            s_or_b32 s3, s3, s34
            s_lshr_b32 s34, s12, 31
            s_lshl_b32 s34, s34, 28
            s_or_b32 s3, s3, s34
            s_sub_u32 s34, s{64+2*X}, s3
            s_add_u32 s34, s34, 200
            s_and_b32 s34, s34, 0x1fffffff
            s_cmp_lt_u32 s34, 5000
            s_cselect_b32 s34, s34, 0
            s_cmp_eq_u32 s{sBR}, {1 - opt.get("pbr", 5) if "pbr" in opt else 7}
            s_cselect_b32 s34, 0, s34
            s_add_u32 s34, s34, 3000
            s_mov_b32 s35, 100000
            L_pw:
            s_memrealtime s[16:17]
            s_waitcnt lgkmcnt(0)
            s_sub_u32 s16, s16, s3
            s_and_b32 s16, s16, 0x1fffffff
            s_sub_u32 s35, s35, 1
            s_cmp_eq_u32 s35, 0
            s_cbranch_scc1 L_end
            s_cmp_lt_u32 s16, s34
            s_cbranch_scc1 L_pw
            s_endpgm
            """)
        a(f"""
        s_sub_u32 s84, {POLL_MAX}, s{sBud}
        s_mul_i32 s84, s84, 100
        s_add_u32 s84, s84, s64
        s_lshl_b32 s3, s2, 3
        s_add_u32 s3, s3, s{sWAVE}
        s_lshl_b32 s3, s3, 6
        s_add_u32 s3, s3, {STAMP}
        v_mov_b32 v1, 0
        s_mov_b64 exec, 1
        """)
        if opt.get("dbgst"):
            ids = [1, 2, 3, 4, 5, 6, 7, 8, 9, 11, 12, 13, 14, 15]
            a("s_not_b32 s3, s64")
            a("v_mov_b32 v2, s3")
            a("global_atomic_umax v1, v2, s[30:31] offset:4")
            for k, i in enumerate(ids):
                a(f"s_sub_u32 s3, s{64+2*i}, s64")
                a("s_cmp_lt_u32 s3, 100000")
                a(f"s_cselect_b32 s3, s{64+2*i}, 0")
                a("v_mov_b32 v2, s3")
                a(f"global_atomic_umax v1, v2, s[30:31] offset:{8+4*k}")
            a("s_endpgm")
        for i in range(16):
            a(f"v_mov_b32 v2, s{64+2*i}")
            a(f"buffer_store_dword v2, v1, {srd(sWS)}, s3 offen offset:{4*i}")
    a.raw("L_end:")
    a("s_endpgm")
    bad = a.check_branches()
    for b in bad: print("BRANCH HAZARD", b, file=sys.stderr)
    assert not bad
    out = HEADER + f"""; @launch grid=(256,1,1) block=(512,1,1) lds=163840
.amdgcn_target "amdgcn-amd-amdhsa--gfx950"
.text
.globl {NAME}_kernel
.p2align 8
.type {NAME}_kernel,@function
""" + a.text() + f""".fill 1280, 4, 0xBF800000
s_endpgm
.section .rodata,"a"
.p2align 6
.amdhsa_kernel {NAME}_kernel
  .amdhsa_next_free_vgpr 256
  .amdhsa_next_free_sgpr 102
  .amdhsa_accum_offset 256
  .amdhsa_group_segment_fixed_size 0
  .amdhsa_kernarg_size 72
  .amdhsa_user_sgpr_count 2
  .amdhsa_user_sgpr_kernarg_segment_ptr 1
  .amdhsa_system_sgpr_workgroup_id_x 1
.end_amdhsa_kernel
"""
    return out

if __name__ == "__main__":
    stamps = int(sys.argv[1]); path = sys.argv[2]
    opt = dict((kv.split("=")[0], int(kv.split("=")[1])) for kv in sys.argv[3:])
    open(path, "w").write(gen(stamps, opt))
```

```python
import sys, struct, math
from asmlib import Asm

NAME = "concat_heads__sliding_block__sliding_local_dilated__prompt"
HEADER = open("cdna_kernels/%s.s.ref" % NAME).read().split("; Override launch")[0]
def f2u(x): return struct.unpack("<I", struct.pack("<f", x))[0]

XB, WB, WOB_BYTES, OUTB = 1835008, 1204224, 401408, 3670016
MB2 = 0x200000
QO, KO, VO = 0, MB2, 2*MB2
BRS = 3*MB2
OA, OB = 6*MB2, 7*MB2
FL1 = 8*MB2
STAMP = 8*MB2 + 0x100000
WSB = 9*MB2
BIG = 0x40000000
NEG = f2u(-1e30)
CSC = f2u((28 ** -0.5) * math.log2(math.e))
SLOT = 40960
L_WOB, L_WOA, L_KV = 57344, 0, 114688
POLL_MAX = 40000

sWAVE, sBR, sLAM, sRB, sAH, sARB, sRB64, sCB, sTAG = 4, 5, 6, 7, 8, 9, 10, 11, 12
sX, sW, sWoA, sWoB, sWS, sOut = 36, 40, 44, 48, 52, 56
def srd(b): return f"s[{b}:{b+3}]"
def q4(r): return f"v[{r}:{r+3}]"
def q2(r): return f"v[{r}:{r+1}]"
def q16(r): return f"v[{r}:{r+15}]"
vL, vL16, vTAG = 255, 254, 253

def gen(stamps=False, opt=None):
    opt = opt or {}
    a = Asm()
    def stamp(i):
        if stamps:
            a(f"s_memrealtime s[{64+2*i}:{65+2*i}]")
            a("s_waitcnt lgkmcnt(0)")
    def mk_srd(d, p, n):
        return f"s_mov_b32 s{d}, s{p}\ns_mov_b32 s{d+1}, s{p+1}\ns_mov_b32 s{d+2}, {n}\ns_mov_b32 s{d+3}, 0x20000\n"
    MAP = f"""
    s_lshr_b32 s{sLAM}, s14, 2
    s_and_b32 s15, s13, 3
    s_lshl_b32 s15, s15, 2
    s_and_b32 s3, s14, 3
    s_add_u32 s{sRB}, s15, s3
    """ if opt.get("map", 0) else f"""
    s_and_b32 s15, s13, 1
    s_lshl_b32 s15, s15, 2
    s_lshr_b32 s3, s14, 3
    s_add_u32 s{sLAM}, s15, s3
    s_and_b32 s15, s13, 2
    s_lshl_b32 s15, s15, 2
    s_and_b32 s3, s14, 7
    s_add_u32 s{sRB}, s15, s3
    """
    TAGC = f"""
    s_or_b32 s3, s2, s{sWAVE}
    s_cmp_lg_u32 s3, 0
    s_cbranch_scc1 L_notag
    s_memrealtime s[34:35]
    s_waitcnt lgkmcnt(0)
    s_and_b32 s35, s34, 0x1fff
    s_lshl_b32 s35, s35, 1
    s_or_b32 s35, s35, 1
    s_bfe_u32 s3, s34, 0xf000d
    s_lshl_b32 s3, s3, 15
    s_or_b32 s35, s35, s3
    s_lshl_b32 s34, s34, 3
    s_and_b32 s34, s34, 0x80000000
    s_or_b32 s34, s34, s35
    v_mov_b32 v4, s34
    v_mov_b32 v5, 0
    s_mov_b64 exec, 1
    global_atomic_cmpswap v1, v[4:5], s[30:31] sc1
    s_mov_b64 exec, -1
    L_notag:
    """
    MAPB = f"""
    s_and_b32 s15, s13, 1
    s_lshl_b32 s15, s15, 2
    s_and_b32 s3, s14, 3
    s_add_u32 s{sLAM}, s15, s3
    s_and_b32 s15, s13, 2
    s_lshl_b32 s15, s15, 2
    s_lshr_b32 s3, s14, 2
    s_add_u32 s{sRB}, s15, s3
    """
    a.raw(f"{NAME}_kernel:")
    a(f"""
    s_cmp_ge_u32 s2, 256
    s_cbranch_scc1 L_end
    s_load_dwordx16 s[16:31], s[0:1], 0
    s_load_dwordx2 s[32:33], s[0:1], 64
    v_lshrrev_b32 v1, 6, v0
    v_and_b32 v{vL}, 63, v0
    v_readfirstlane_b32 s{sWAVE}, v1
    s_and_b32 s13, s2, 7
    s_lshr_b32 s14, s2, 3
    s_lshr_b32 s{sBR}, s13, 2
    s_xor_b32 s{sBR}, s{sBR}, {opt.get('swap', 1)}
    {MAP}
    v_lshlrev_b32 v{vL16}, 4, v{vL}
    v_lshrrev_b32 v1, 3, v{vL}
    v_and_b32 v2, 7, v{vL}
    v_lshrrev_b32 v3, 4, v{vL}
    s_cmp_lg_u32 s{sBR}, 0
    s_cbranch_scc1 L_brB
    s_cmp_lt_u32 s{sWAVE}, 4
    s_cbranch_scc1 L_compute
    """)
    rest_setup = f"""
    s_lshl_b32 s{sAH}, s13, 1
    s_and_b32 s3, s14, 1
    s_add_u32 s{sAH}, s{sAH}, s3
    s_lshr_b32 s{sARB}, s14, 1
    s_lshl_b32 s{sRB64}, s13, 2
    s_lshr_b32 s3, s14, 3
    s_add_u32 s{sRB64}, s{sRB64}, s3
    s_and_b32 s{sCB}, s14, 7
    """ + mk_srd(sWoA, 20, WOB_BYTES) + mk_srd(sWoB, 26, WOB_BYTES) + mk_srd(sWS, 32, WSB) + mk_srd(sOut, 28, OUTB)
    def prefetch(l):
        if not opt.get("pf", 1): return
        a(f"""
        s_cmp_lg_u32 s{sWAVE}, 1
        s_cbranch_scc1 L_notouch{l}
        v_min_u32 v4, 8, v{vL}
        v_lshlrev_b32 v4, 21, v4
        v_add_u32 v4, 0x1ff780, v4
        buffer_load_dword v217, v4, {srd(sWS)}, 0 offen sc1
        v_and_b32 v4, 1, v{vL}
        v_lshlrev_b32 v4, 21, v4
        buffer_load_dword v218, v4, {srd(sOut)}, 0 offen
        L_notouch{l}:
        s_and_b32 s3, s14, 15
        s_lshl_b32 s34, s{sWAVE}, 4
        s_or_b32 s3, s3, s34
        s_cmp_lg_u32 s3, 0x2f
        s_cbranch_scc1 L_nocode{l}
        s_getpc_b64 s[34:35]
        L_pc{l}:
        s_sub_u32 s34, s34, L_pc{l}-{NAME}_kernel
        s_subb_u32 s35, s35, 0
        v_lshlrev_b32 v4, 7, v{vL}
        global_load_dword v217, v4, s[34:35]
        v_add_u32 v4, 8192, v4
        global_load_dword v218, v4, s[34:35]
        v_add_u32 v4, 8192, v4
        global_load_dword v219, v4, s[34:35]
        L_nocode{l}:
        """)
    def get_tag(lbl):
        a(f"""
        s_mov_b32 s35, {POLL_MAX}
        L_tag{lbl}:
        v_readfirstlane_b32 s{sTAG}, v{vTAG}
        s_cmp_lg_u32 s{sTAG}, 0
        s_cbranch_scc1 L_tagok{lbl}
        v_mov_b32 v219, 0
        global_load_dword v{vTAG}, v219, s[30:31] sc1
        s_sub_u32 s35, s35, 1
        s_waitcnt vmcnt(0)
        s_cmp_lg_u32 s35, 0
        s_cbranch_scc1 L_tag{lbl}
        L_tagok{lbl}:
        """)
    def poll(lbl, vaddr, vd):
        a(f"""
        s_mov_b32 s35, {POLL_MAX}
        L_poll{lbl}:
        buffer_load_dword v{vd}, v{vaddr}, {srd(sWS)}, s15 offen sc1
        s_sub_u32 s35, s35, 1
        s_waitcnt vmcnt(0)
        v_cmp_ne_u32 vcc, v{vd}, v{vTAG}
        s_cmp_eq_u32 s35, 0
        s_cbranch_scc1 L_pollok{lbl}
        s_cbranch_vccz L_pollok{lbl}
        s_branch L_poll{lbl}
        L_pollok{lbl}:
        """)
    sRP, sKQ, sT, sU = 60, 61, 62, 63
    vR15, vG, vWA, vMG, vV0, vC = 240, 241, 242, 250, 251, 252
    vNEG, vKa, vKw = 237, 239, 238
    vKq, vOo, vVa, vVb, vOne = 232, 233, 234, 235, 236
    vQm, vOn0, vOn1, vV1 = 228, 230, 231, 226
    sHB, sHQ, sP = 98, 100, 99
    sK = [16, 17, 18, 19, 20, 21]; sV = [22, 23, 24, 25, 26, 27]; sQA = 32
    sOB, sOA = 96, 28
    t0, t1, t2, t3, t4 = 220, 221, 222, 223, 224
    vPA = 225
    vWd = 227
    FLV = 64*16*128
    p2common = f"""
    s_and_b32 s{sRP}, s{sWAVE}, 1
    s_lshr_b32 s{sKQ}, s{sWAVE}, 1
    v_and_b32 v{vR15}, 15, v{vL}
    v_lshrrev_b32 v{vG}, 4, v{vL}
    v_cmp_gt_u32 vcc, 48, v{vL}
    v_cndmask_b32 v{vMG}, 0, -1, vcc
    v_lshrrev_b32 v{t0}, 2, v{vR15}
    v_lshl_add_u32 v{t1}, v{vG}, 2, v{t0}
    v_lshlrev_b32 v{t1}, 7, v{t1}
    s_mul_i32 s3, s{sKQ}, 14336
    s_add_u32 s3, s3, {L_WOB}
    v_add_u32 v{t1}, s3, v{t1}
    v_and_b32 v{t2}, 2, v{t0}
    v_and_b32 v{t3}, 1, v{vG}
    v_lshl_or_b32 v{t2}, v{t3}, 2, v{t2}
    v_lshlrev_b32 v{t2}, 4, v{t2}
    v_and_b32 v{t3}, 3, v{vL}
    v_lshlrev_b32 v{t4}, 3, v{t3}
    v_xor_b32 v{t2}, v{t2}, v{t4}
    v_add_u32 v{t1}, v{t1}, v{t2}
    v_and_b32 v{t2}, 2048, v{vMG}
    """ + "".join(f"""
    s_add_u32 s3, s{sKQ}, {c}
    s_and_b32 s3, s3, 3
    s_lshl_b32 s3, s3, 5
    v_xor_b32 v{vWA+c}, s3, v{t1}
    v_add_u32 v{vWA+4+c}, v{vWA+c}, v{t2}
    """ for c in range(4)) + f"""
    v_mov_b32 v{t4}, {BIG}
    v_lshlrev_b32 v{vKq}, 9, v{vG}
    v_lshl_add_u32 v{vKq}, v{vR15}, 4, v{vKq}
    v_lshlrev_b32 v{vOo}, 6, v{vR15}
    v_lshl_add_u32 v{vOo}, v{vG}, 4, v{vOo}
    v_lshlrev_b32 v{vVa}, 8, v{t0}
    v_lshl_add_u32 v{vVa}, v{vG}, 6, v{vVa}
    v_lshl_add_u32 v{vVa}, v{t3}, 4, v{vVa}
    v_add_u32 v{vVb}, 1024, v{vVa}
    v_cmp_gt_u32 vcc, 12, v{vR15}
    v_cndmask_b32 v{vVb}, v{t4}, v{vVb}, vcc
    v_cmp_eq_u32 vcc, 12, v{vR15}
    v_mov_b32 v{t4}, 0x3f803f80
    v_cndmask_b32 v{vOne}, 0, v{t4}, vcc
    v_mov_b32 v{vC}, {CSC}
    v_mov_b32 v{vNEG}, {NEG}
    s_and_b32 s3, s{sWAVE}, 6
    s_lshl_b32 s3, s3, 10
    s_add_u32 s3, s3, {L_KV}
    v_add_u32 v{vKa}, s3, v{vL16}
    s_mul_i32 s3, s{sAH}, 7
    s_lshr_b32 s{sHQ}, s3, 1
    s_lshl_b32 s{sHQ}, s{sHQ}, 9
    s_lshl_b32 s{sHB}, s3, 8
    v_cmp_lt_u32 vcc, 15, v{vL}
    v_cndmask_b32 v{t0}, 0, -1, vcc
    s_bitcmp1_b32 s{sAH}, 0
    s_cselect_b64 vcc, -1, 0
    v_cndmask_b32 v{vQm}, -1, v{t0}, vcc
    v_cndmask_b32 v{vQm+1}, v{vMG}, -1, vcc
    s_mul_i32 s3, s{sWAVE}, 3
    s_lshl_b32 s{sT}, s{sARB}, 3
    s_sub_u32 s{sT}, s{sT}, 16
    s_add_u32 s{sT}, s{sT}, s3
    s_lshl_b32 s3, s3, 10
    s_add_u32 s3, s3, {L_KV}
    v_add_u32 v{vKw}, s3, v{vL16}
    v_subrev_u32 v{t0}, 1024, v{vVb}
    s_bitcmp1_b32 s{sWAVE}, 0
    s_cselect_b64 vcc, -1, 0
    v_cndmask_b32 v{vV0}, v{vVa}, v{t0}, vcc
    v_cndmask_b32 v{vV1}, v{t0}, v{vVa}, vcc
    v_cndmask_b32 v{vOn0}, 0, v{vOne}, vcc
    v_cndmask_b32 v{vOn1}, v{vOne}, 0, vcc
    """ + "".join(f"""
    s_ashr_i32 s34, s{sT}, 1
    s_mul_i32 s34, s34, 28672
    s_and_b32 s35, s{sT}, 1
    s_lshl_b32 s3, s35, 10
    s_add_u32 s3, s3, s34
    s_add_u32 s3, s3, s{sHB}
    s_add_u32 s3, s3, {VO}
    s_lshl_b32 s35, s35, 8
    s_add_u32 s35, s35, s34
    s_add_u32 s35, s35, s{sHQ}
    s_add_u32 s35, s35, {KO}
    s_cmp_lt_i32 s{sT}, 0
    s_cselect_b32 s{sV[i]}, {BIG}, s3
    s_cselect_b32 s{sK[i]}, {BIG}, s35
    s_add_u32 s{sT}, s{sT}, 1
    """ for i in range(3)) + f"""
    s_lshl_b32 s3, s{sARB}, 3
    s_add_u32 s3, s3, s{sWAVE}
    s_lshr_b32 s34, s3, 1
    s_mul_i32 s34, s34, 28672
    s_and_b32 s35, s3, 1
    s_lshl_b32 s35, s35, 8
    s_add_u32 s35, s35, s34
    s_add_u32 s{sQA}, s35, s{sHQ}
    s_lshl_b32 s3, s3, 4
    s_add_u32 s3, s3, s{sAH}
    s_lshl_b32 s3, s3, 10
    s_add_u32 s33, s3, {OA}
    s_mul_i32 s3, s{sAH}, 7
    s_lshr_b32 s34, s3, 3
    s_add_u32 s3, s3, 6
    s_lshr_b32 s35, s3, 3
    s_sub_u32 s35, s35, s34
    v_and_b32 v{t0}, 1, v{vL}
    v_mul_u32_u24 v{t0}, s35, v{t0}
    v_add_u32 v{t0}, s34, v{t0}
    v_min_u32 v{t1}, 11, v{vL}
    v_lshrrev_b32 v{t1}, 1, v{t1}
    s_lshl_b32 s3, s{sARB}, 1
    s_sub_u32 s3, s3, 4
    v_add_u32 v{t1}, s3, v{t1}
    v_max_i32 v{t1}, 0, v{t1}
    v_lshl_add_u32 v{t1}, v{t1}, 4, v{t0}
    v_lshlrev_b32 v{vPA}, 7, v{t1}
    s_lshl_b32 s3, s{sRB64}, 2
    s_lshl_b32 s35, s{sRP}, 1
    s_add_u32 s3, s3, s35
    s_lshl_b32 s3, s3, 4
    s_lshl_b32 s35, s{sKQ}, 2
    s_add_u32 s3, s3, s35
    s_lshl_b32 s3, s3, 10
    s_add_u32 s{sOB}, s3, {OB}
    s_add_u32 s{sOB+1}, s{sOB}, 16384
    s_add_u32 s{sOA}, s3, {OA}
    s_add_u32 s{sOA+1}, s{sOA}, 16384
    s_mov_b32 s15, {FL1}
    v_lshrrev_b32 v{t0}, 3, v{vL}
    v_and_b32 v{t1}, 6, v{t0}
    v_and_b32 v{t2}, 7, v{vL}
    v_xor_b32 v{t1}, v{t2}, v{t1}
    v_mul_u32_u24 v{t0}, 896, v{t0}
    s_lshl_b32 s3, s{sCB}, 7
    s_mul_i32 s34, s{sWAVE}, 7168
    s_add_u32 s3, s3, s34
    v_add_u32 v{t0}, s3, v{t0}
    v_lshl_add_u32 v{vWd}, v{t1}, 4, v{t0}
    s_cmp_eq_u32 s{sCB}, 7
    s_cselect_b64 vcc, -1, 0
    v_mov_b32 v{t1}, {BIG}
    v_cndmask_b32 v{vWd}, v{vWd}, v{t1}, vcc
    s_lshl_b32 s13, s{sWAVE}, 10
    """
    def normalize(O0, O1, ta, tb, dst):
        return [
            [f"v_mov_b32 v{ta}, v{O1}", f"v_mov_b32 v{tb}, v{O1}"],
            [f"v_permlane32_swap_b32 v{ta}, v{tb}"],
            [f"v_mov_b32 v{ta}, v{tb}"],
            [f"v_permlane16_swap_b32 v{ta}, v{tb}"],
            [f"v_rcp_f32 v{tb}, v{tb}"],
            [f"v_mul_f32 v{O0+i}, v{O0+i}, v{tb}" for i in range(4)] + [f"v_mul_f32 v{O1+i}, v{O1+i}, v{tb}" for i in range(4)],
            [f"v_cvt_pk_bf16_f32 v{dst}, v{O0}, v{O0+1}", f"v_cvt_pk_bf16_f32 v{dst+1}, v{O0+2}, v{O0+3}",
             f"v_cvt_pk_bf16_f32 v{dst+2}, v{O1}, v{O1+1}", f"v_cvt_pk_bf16_f32 v{dst+3}, v{O1+2}, v{O1+3}"],
            [f"v_bfi_b32 v{dst+3}, v{vMG}, v{dst+3}, v{vTAG}"],
        ]
    vXe, vXo, vW0, vW1, vWo, vPw = 10, 11, 13, 14, 15, 17
    sLW, sLx, sLw, sT0, sT1 = 96, 97, 101, 34, 35
    sLwo, sL1k = 14, 15
    a(f"""
    s_sub_u32 s{sLW}, s{sWAVE}, 4
    s_lshl_b32 s{sT0}, s{sRB}, 7
    s_lshl_b32 s{sT1}, s{sLW}, 5
    s_add_u32 s{sT0}, s{sT0}, s{sT1}
    v_add_u32 v4, s{sT0}, v1
    v_mul_u32_u24 v4, 896, v4
    v_xor_b32 v5, v2, v3
    v_lshl_add_u32 v{vXe}, v5, 4, v4
    v_xor_b32 v5, 4, v5
    v_lshl_add_u32 v{vXo}, v5, 4, v4
    v_add_u32 v{vXo}, 6144, v{vXo}
    s_lshl_b32 s{sLx}, s{sLW}, 12
    s_lshl_b32 s{sLw}, s{sLW}, 11
    s_lshl_b32 s{sT1}, s{sLW}, 4
    v_add_u32 v4, s{sT1}, v1
    v_mul_u32_u24 v4, 2688, v4
    s_lshl_b32 s{sT1}, s{sLAM}, 7
    v_add_u32 v4, s{sT1}, v4
    v_and_b32 v5, 1, v3
    v_lshlrev_b32 v5, 2, v5
    v_xor_b32 v5, v2, v5
    v_lshl_add_u32 v{vW0}, v5, 4, v4
    v_add_u32 v{vW1}, {8*2688-1024}, v{vW0}
    s_mov_b32 s{sX+2}, {XB}
    s_mov_b32 s{sX+3}, 0x20000
    s_mov_b32 s{sW+2}, {WB}
    s_mov_b32 s{sW+3}, 0x20000
    s_waitcnt lgkmcnt(0)
    s_mov_b32 s{sX}, s16
    s_mov_b32 s{sX+1}, s17
    s_mov_b32 s{sW}, s18
    s_mov_b32 s{sW+1}, s19
    """)
    stamp(0)
    a(f"""
    s_cmp_eq_u32 s{sLAM}, 7
    s_cbranch_scc1 L_ld_idle
    """)
    order = []
    def D(c):
        slot = ((c + 1) % 4) * SLOT
        a(f"""
        s_add_u32 m0, s{sLx}, {slot}
        s_mov_b32 s{sT0}, {c*128}
        s_mov_b32 s{sT1}, {c*128 + 12288}
        buffer_load_dwordx4 v{vXe}, {srd(sX)}, s{sT0} offen lds
        buffer_load_dwordx4 v{vXo}, {srd(sX)}, s{sT0} offen offset:1024 lds
        buffer_load_dwordx4 v{vXe}, {srd(sX)}, s{sT1} offen offset:2048 lds
        buffer_load_dwordx4 v{vXo}, {srd(sX)}, s{sT1} offen offset:3072 lds
        """)
        for p in (1, 2, 0):
            a(f"""
            s_add_u32 m0, s{sLw}, {slot + 16384 + p*8192}
            s_mov_b32 s{sT1}, {c*64*2688 + p*896}
            buffer_load_dwordx4 v{vW0}, {srd(sW)}, s{sT1} offen lds
            buffer_load_dwordx4 v{vW1}, {srd(sW)}, s{sT1} offen offset:1024 lds
            """)
        order.extend([c] * 10)
    def Wt(c):
        last = max(i for i, o in enumerate(order) if o == c)
        a(f"s_waitcnt vmcnt({len(order) - 1 - last})")
        if c == 0: stamp(1)
        a("s_barrier")
    wo_setup = rest_setup + f"""
    v_and_b32 v5, 6, v1
    v_xor_b32 v5, v2, v5
    v_mul_u32_u24 v4, 896, v1
    s_lshl_b32 s{sT1}, s{sCB}, 7
    v_add_u32 v4, s{sT1}, v4
    v_lshl_add_u32 v{vWo}, v5, 4, v4
    s_cmp_eq_u32 s{sCB}, 7
    s_cselect_b64 vcc, -1, 0
    v_mov_b32 v7, {BIG}
    v_cndmask_b32 v{vWo}, v{vWo}, v7, vcc
    v_mov_b32 v1, 0
    s_mul_i32 s3, s14, 98
    s_and_b32 s{sT1}, s{sLW}, 1
    s_mul_i32 s{sT1}, s{sT1}, 49
    s_add_u32 s3, s3, s{sT1}
    v_min_u32 v4, 48, v{vL}
    v_add_u32 v4, s3, v4
    v_lshlrev_b32 v{vPw}, 7, v4
    s_mul_i32 s{sLwo}, s{sLW}, 7168
    s_lshl_b32 s{sL1k}, s{sLW}, 10
    global_load_dword v{vTAG}, v1, s[30:31] sc1
    """
    def issue_wo(i0, i1):
        for i in range(i0, i1):
            a(f"""
            s_add_u32 m0, s{sL1k}, {L_WOB + 4096*i}
            s_add_u32 s{sT1}, s{sLwo}, {4*i*7168}
            buffer_load_dwordx4 v{vWo}, {srd(sWoB)}, s{sT1} offen lds
            """)
            order.append("wo")
    vPf = 16
    sPS, sPO = 60, 61
    PFN = " nt" if opt.get("pnt", 0) else ""
    def pf_setup(wmul):
        a(f"""
        s_and_b32 s{sT0}, s13, 2
        s_lshl_b32 s{sT0}, s{sT0}, 9
        s_lshl_b32 s{sT1}, s14, 5
        s_add_u32 s{sT0}, s{sT0}, s{sT1}
        v_min_u32 v4, 31, v{vL}
        v_add_u32 v4, s{sT0}, v4
        v_mul_u32_u24 v{vPf}, 896, v4
        v_min_u32 v4, 23, v{vL}
        v_cmp_le_u32 vcc, 12, v4
        v_cndmask_b32 v5, 0, 1, vcc
        v_mul_u32_u24 v6, 12, v5
        v_sub_u32 v6, v4, v6
        s_lshl_b32 s{sT0}, s14, 1
        v_add_u32 v5, s{sT0}, v5
        v_mul_u32_u24 v5, 2688, v5
        v_lshrrev_b32 v4, 2, v6
        v_mul_u32_u24 v4, 896, v4
        v_add_u32 v5, v5, v4
        v_and_b32 v6, 3, v6
        v_lshl_add_u32 v5, v6, 7, v5
        s_and_b32 s{sT0}, s13, 1
        s_mul_i32 s{sT0}, s{sT0}, {wmul}
        v_add_u32 v5, s{sT0}, v5
        s_bitcmp1_b32 s{sLW}, 0
        s_cselect_b64 vcc, -1, 0
        s_mov_b32 s{sPS}, 128
        s_cselect_b32 s{sPS}, 172032, s{sPS}
        s_cselect_b32 s44, s{sW}, s{sX}
        s_cselect_b32 s45, s{sW+1}, s{sX+1}
        s_cselect_b32 s46, s{sW+2}, s{sX+2}
        s_mov_b32 s47, 0x20000
        v_cndmask_b32 v{vPf}, v{vPf}, v5, vcc
        s_lshr_b32 s{sPO}, s{sLW}, 1
        s_add_u32 s{sPO}, s{sPO}, 1
        s_mul_i32 s{sPO}, s{sPO}, s{sPS}
        s_lshl_b32 s{sPS}, s{sPS}, 1
        """)
    def pf():
        a(f"""
        buffer_load_dword v20, v{vPf}, s[44:47], s{sPO} offen{PFN}
        s_add_u32 s{sPO}, s{sPO}, s{sPS}
        """)
        order.append("pf")
    PMA, PMB = opt.get("pma", 1), opt.get("pmb", 2)
    def head(Dx, wmul):
        PM = PMA if wmul == 512 else PMB
        if PM == 0: Dx(0); Dx(1); Wt(0); Dx(2); Wt(1); Dx(3)
        elif PM == 1: Dx(0); pf_setup(wmul); pf(); Dx(1); Wt(0); Dx(2); pf(); pf(); Wt(1); Dx(3)
        elif PM == 2: Dx(0); pf_setup(wmul); pf(); Dx(1); Wt(0); pf(); Dx(2); Wt(1); pf(); Dx(3)
        elif PM == 3: Dx(0); pf_setup(wmul); pf(); pf(); pf(); Dx(1); Wt(0); Dx(2); Wt(1); Dx(3)
    def pf_wo(l):
        if opt.get("nopw"): return
        a(f"""
        s_cmp_lt_u32 s{sLW}, 2
        s_cbranch_scc1 L_pwB{l}
        buffer_load_dword v20, v{vPw}, {srd(sWoA)}, 0 offen
        s_branch L_pwD{l}
        L_pwB{l}:
        buffer_load_dword v20, v{vPw}, {srd(sWoB)}, 0 offen
        L_pwD{l}:
        """)
        order.append("pfw")
    head(D, 512)
    a(wo_setup); order.append("tag")
    if opt.get("seq", 0) == 1:
        Wt(2); D(4); Wt(3); D(5); pf_wo(0); Wt(4); D(6); issue_wo(0, 10); Wt(5); issue_wo(10, 20); Wt(6)
    elif opt.get("seq", 0) == 0:
        Wt(2); D(4); Wt(3); D(5); Wt(4); D(6); pf_wo(0); Wt(5)
        DEF = opt.get("defer", 2)
        issue_wo(0, 5)
        Wt(6)
        if DEF >= 2: a("s_barrier")
        if DEF == 1: a("s_barrier")
    else:
        Wt(2); D(4); Wt(3); D(5); Wt(4); D(6); pf_wo(0); Wt(5); issue_wo(0, 14); Wt(6); a("s_sleep 16"); issue_wo(14, 20)
    a("s_branch L_ld2")
    a.raw("L_ld_idle:")
    if PMA: pf_setup(512); pf(); pf(); pf()
    a(wo_setup)
    pf_wo(1)
    issue_wo(0, 5)
    a.raw("L_ld2:")
    issue_wo(5, 14)
    a(p2common)
    a("s_waitcnt vmcnt(28)" if opt.get("nowait", 0) else "s_waitcnt vmcnt(0)")
    get_tag("l")
    if not opt.get("lp"):
        a(f"""
        s_cmp_lg_u32 s{sWAVE}, 7
        s_cbranch_scc1 L_pollok1
        """)
        poll("1", vPA, 9)
    stamp(2)
    a("s_branch L_phase2")

    a.raw("L_compute:")
    sCH, sRH = 96, 97
    sSQ, sSK, sSV, sSQh, sSKh, sFl = 36, 37, 38, 39, 40, 41
    def Acc(p, rt): return p*32 + rt*16
    def Fx(s, rt): return 96 + 20*s + 4*rt
    def Fw(s, p): return 96 + 20*s + 8 + 4*p
    vxa = [200, 201, 202, 203]; vwa = 204
    vQo, vVo = 205, 206
    slot0 = SLOT
    a(f"""
    s_waitcnt lgkmcnt(0)
    v_mov_b32 v1, 0
    {'' if opt.get('swap', 1) else TAGC}
    """)
    stamp(0)
    a(rest_setup)
    prefetch('a')
    a(f"""
    s_and_b32 s{sCH}, s{sWAVE}, 1
    s_lshr_b32 s{sRH}, s{sWAVE}, 1
    s_cmp_eq_u32 s{sLAM}, 7
    s_cbranch_scc1 L_cmp_idle
    v_and_b32 v2, 31, v{vL}
    v_lshrrev_b32 v3, 5, v{vL}
    v_bfe_u32 v4, v{vL}, 2, 2
    s_lshl_b32 s3, s{sLAM}, 1
    s_add_u32 s3, s3, s{sCH}
    s_lshl_b32 s34, s3, 11
    v_add_u32 v{vQo}, s34, v{vL16}
    v_bfe_u32 v6, v{vL}, 4, 1
    v_lshlrev_b32 v6, 2, v6
    v_and_b32 v7, 1, v4
    v_lshl_add_u32 v6, v7, 1, v6
    v_lshrrev_b32 v7, 1, v4
    v_add_u32 v6, v6, v7
    v_lshl_add_u32 v7, v6, 8, s34
    v_lshl_add_u32 v7, v3, 6, v7
    v_and_b32 v8, 3, v{vL}
    v_lshl_add_u32 v{vVo}, v8, 4, v7
    s_lshl_b32 s34, s{sRB}, 1
    s_add_u32 s34, s34, s{sRH}
    s_mul_i32 s{sSQ}, s34, 57344
    s_add_u32 s{sSQh}, s{sSQ}, 28672
    s_add_u32 s{sSK}, s{sSQ}, {KO}
    s_add_u32 s{sSKh}, s{sSQh}, {KO}
    s_add_u32 s{sSV}, s{sSQ}, {VO}
    s_add_u32 s15, s{sSQh}, {VO}
    s_lshl_b32 s34, s34, 4
    s_add_u32 s34, s34, s3
    s_lshl_b32 s34, s34, 7
    s_add_u32 s{sFl}, s34, {FL1}
    """)
    def qkv_stores(data):
        for p, lo, hi in ((1, sSK, sSKh), (2, None, None), (0, sSQ, sSQh)):
            for rt in range(2):
                for half in range(2):
                    d = data(p, rt, half)
                    if p == 2: a(f"buffer_store_dwordx4 {q4(d)}, v{vVo}, {srd(sWS)}, s{sSV} offen offset:{rt*2048 + half*128} sc1")
                    else: a(f"buffer_store_dwordx4 {q4(d)}, v{vQo}, {srd(sWS)}, s{hi if half else lo} offen offset:{rt*512} sc1")
    a(f"""
    global_load_dword v{vTAG}, v1, s[30:31] sc1
    s_lshl_b32 s3, s{sRH}, 6
    v_add_u32 v5, s3, v2
    v_lshlrev_b32 v5, 7, v5
    v_bfe_u32 v6, v2, 1, 3
    v_xor_b32 v6, v6, v3
    v_lshl_add_u32 v{vxa[0]}, v6, 4, v5
    v_add_u32 v{vxa[0]}, {slot0}, v{vxa[0]}
    v_xor_b32 v{vxa[1]}, 32, v{vxa[0]}
    v_xor_b32 v{vxa[2]}, 64, v{vxa[0]}
    v_xor_b32 v{vxa[3]}, 96, v{vxa[0]}
    v_lshl_add_u32 v6, v3, 3, v4
    v_lshlrev_b32 v6, 7, v6
    v_add_u32 v6, {slot0 + 16384}, v6
    v_bfe_u32 v7, v{vL}, 4, 1
    v_lshlrev_b32 v7, 5, v7
    v_and_b32 v8, 1, v{vL}
    v_lshl_or_b32 v7, v8, 4, v7
    v_bfe_u32 v8, v{vL}, 1, 1
    v_lshl_or_b32 v7, v8, 3, v7
    s_lshl_b32 s3, s{sCH}, 6
    v_or_b32 v7, s3, v7
    v_and_b32 v8, 2, v4
    v_lshlrev_b32 v8, 5, v8
    v_xor_b32 v7, v7, v8
    v_add_u32 v{vwa}, v6, v7
    """)
    def reads(s, ks):
        L = [f"ds_read_b128 {q4(Fx(s,rt))}, v{vxa[ks]} offset:{rt*4096}" for rt in range(2)]
        for p in (1, 2, 0):
            for u in range(2):
                L.append(f"ds_read_b64_tr_b16 {q2(Fw(s, p) + 2*u)}, v{vwa} offset:{p*8192 + ks*2048 + u*512}")
        return L
    def kstep(s, rd, extra=(), zero=False):
        M = []
        for p in (1, 2, 0):
            for rt in range(2):
                A, B = (Fx(s,rt), Fw(s,p)) if p == 2 else (Fw(s,p), Fx(s,rt))
                M.append(f"v_mfma_f32_32x32x16_bf16 {q16(Acc(p,rt))}, {q4(A)}, {q4(B)}, {'0' if zero else q16(Acc(p,rt))}")
        per = [3, 3, 2, 0, 0, 0]
        k = 0
        extra = list(extra)
        for i, m in enumerate(M):
            a(m)
            for _ in range(per[i]):
                if k < len(rd): a(rd[k]); k += 1
            if i >= 3:
                for _ in range(4):
                    if extra: a(extra.pop(0))
        for e in extra: a(e)
    sC, sD = 42, 43
    a("s_barrier")
    stamp(1)
    for r in reads(0, 0): a(r)
    a(f"s_mov_b32 s{sC}, 0")
    ex0 = [f"s_and_b32 s3, s{sC}, 3", f"s_cmp_eq_u32 s3, 2", f"s_mov_b32 s{sD}, {SLOT}",
           f"s_cselect_b32 s{sD}, {(-3*SLOT) & 0xffffffff}, s{sD}",
           f"v_add_u32 v{vxa[0]}, s{sD}, v{vxa[0]}", f"v_add_u32 v{vxa[1]}, s{sD}, v{vxa[1]}"]
    a("s_waitcnt lgkmcnt(0)")
    kstep(0, reads(1, 1), ex0, zero=True)
    a("s_branch L_gemm1")
    a.raw("L_gemm:")
    a("s_waitcnt lgkmcnt(0)")
    kstep(0, reads(1, 1), ex0)
    a.raw("L_gemm1:")
    a("s_waitcnt lgkmcnt(0)")
    kstep(1, reads(0, 2), [f"v_add_u32 v{vxa[2]}, s{sD}, v{vxa[2]}"])
    a("s_waitcnt lgkmcnt(0)")
    kstep(0, reads(1, 3), [f"v_add_u32 v{vxa[3]}, s{sD}, v{vxa[3]}", f"v_add_u32 v{vwa}, s{sD}, v{vwa}",
                           f"s_add_u32 s{sC}, s{sC}, 1", f"s_cmp_lt_u32 s{sC}, 6"])
    a("s_waitcnt lgkmcnt(0)")
    a("s_barrier")
    kstep(1, reads(0, 0))
    a("s_cbranch_scc1 L_gemm")
    def cvt(d, s0): a(f"v_cvt_pk_bf16_f32 v{d}, v{s0}, v{s0+1}")
    def mf(p, rt, ks):
        A, B = (Fx(ks,rt), Fw(ks,p)) if p == 2 else (Fw(ks,p), Fx(ks,rt))
        return f"v_mfma_f32_32x32x16_bf16 {q16(Acc(p,rt))}, {q4(A)}, {q4(B)}, {q16(Acc(p,rt))}"
    rd = []
    for ks in (1, 2, 3):
        r = reads(ks, ks); rd += r[0:4]
    for ks in (1, 2, 3): rd += reads(ks, ks)[6:8]
    for ks in (1, 2, 3): rd += reads(ks, ks)[4:6]
    a("s_waitcnt vmcnt(0) lgkmcnt(0)")
    k = 0
    for p in (1, 0, 2):
        for rt in range(2):
            a(mf(p, rt, 0))
            for _ in range(3): a(rd[k]); k += 1
    def epi(p):
        L = []
        for rt in range(2):
            for half in range(2):
                if p == 2:
                    d = 176 + (rt*2+half)*4; s0 = Acc(2, rt) + 4*half
                    L += [f"v_cvt_pk_bf16_f32 v{d}, v{s0}, v{s0+1}", f"v_cvt_pk_bf16_f32 v{d+1}, v{s0+2}, v{s0+3}",
                          f"v_cvt_pk_bf16_f32 v{d+2}, v{s0+8}, v{s0+9}", f"v_cvt_pk_bf16_f32 v{d+3}, v{s0+10}, v{s0+11}",
                          f"buffer_store_dwordx4 {q4(d)}, v{vVo}, {srd(sWS)}, s{15 if rt else sSV} offen offset:{half*128} sc1"]
                else:
                    d = Acc(p, rt) + 8*half
                    lo, hi = (sSK, sSKh) if p == 1 else (sSQ, sSQh)
                    L += [f"v_cvt_pk_bf16_f32 v{d+i}, v{d+2*i}, v{d+2*i+1}" for i in range(4)]
                    L += [f"buffer_store_dwordx4 {q4(d)}, v{vQo}, {srd(sWS)}, s{hi if rt else lo} offen offset:{half*1024} sc1"]
        return L
    for n, ks in enumerate((1, 2, 3)):
        a(f"s_waitcnt lgkmcnt({min(15, k - 4*(n+1))})")
        for rt in range(2):
            a(mf(1, rt, ks))
            if k < 24: a(rd[k]); k += 1
    pend = epi(1)
    for p, nxt, base in ((0, 0, 12), (2, None, 18)):
        for n, ks in enumerate((1, 2, 3)):
            a(f"s_waitcnt lgkmcnt({24 - base - 2*(n+1)})")
            for rt in range(2):
                a(mf(p, rt, ks))
                if n or rt:
                    for _ in range(4):
                        if pend: a(pend.pop(0))
        for x in pend: a(x)
        pend = epi(p)
    stamp(3)
    for x in pend: a(x)
    if opt.get("defer", 2) in (1, 2): a("s_barrier")
    stamp(2)
    a("v_mov_b32 v219, 0")
    a("s_waitcnt vmcnt(0)")
    get_tag("c")
    a(f"""
    s_mov_b64 exec, 1
    buffer_store_dword v{vTAG}, v219, {srd(sWS)}, s{sFl} offen sc1
    s_mov_b64 exec, -1
    """)
    stamp(4)
    if opt.get("defer", 2) >= 3: a("s_barrier")
    a("s_branch L_cmp2")
    a.raw("L_cmp_idle:")
    a(f"global_load_dword v{vTAG}, v1, s[30:31] sc1")
    a("s_waitcnt vmcnt(0)")
    get_tag("i")
    a.raw("L_cmp2:")
    a(p2common)
    a("s_branch L_phase2")
    a.raw("L_brB:")
    SLB = 43008
    SB0 = 34816
    a(MAPB)
    a(f"""
    s_cmp_lt_u32 s{sWAVE}, 4
    s_cbranch_scc1 L_cmpB
    """)
    vXh = 12
    sLh = 63
    a(f"""
    s_sub_u32 s{sLW}, s{sWAVE}, 4
    s_lshl_b32 s{sT0}, s{sRB}, 7
    s_lshl_b32 s{sT1}, s{sLW}, 5
    s_add_u32 s{sT0}, s{sT0}, s{sT1}
    v_add_u32 v4, s{sT0}, v1
    v_mul_u32_u24 v4, 896, v4
    v_xor_b32 v5, v2, v3
    v_lshl_add_u32 v{vXe}, v5, 4, v4
    v_xor_b32 v5, 4, v5
    v_lshl_add_u32 v{vXo}, v5, 4, v4
    v_add_u32 v{vXo}, 6144, v{vXo}
    s_lshl_b32 s{sLx}, s{sLW}, 12
    s_lshl_b32 s{sLw}, s{sLW}, 11
    s_lshl_b32 s{sLh}, s{sLW}, 9
    s_lshl_b32 s{sT1}, s{sLW}, 4
    v_add_u32 v4, s{sT1}, v1
    v_mul_u32_u24 v4, 2688, v4
    s_mul_i32 s{sT1}, s{sLAM}, 112
    v_add_u32 v4, s{sT1}, v4
    v_and_b32 v5, 1, v3
    v_lshlrev_b32 v5, 1, v5
    v_xor_b32 v5, v2, v5
    v_mov_b32 v7, {BIG}
    v_lshl_add_u32 v{vW0}, v5, 4, v4
    v_cmp_eq_u32 vcc, 7, v5
    v_xor_b32 v6, 4, v5
    v_cndmask_b32 v{vW0}, v{vW0}, v7, vcc
    v_lshl_add_u32 v{vW1}, v6, 4, v4
    v_cmp_eq_u32 vcc, 7, v6
    v_add_u32 v{vW1}, {8*2688-1024}, v{vW1}
    v_cndmask_b32 v{vW1}, v{vW1}, v7, vcc
    s_lshl_b32 s{sT0}, s{sRB}, 7
    s_lshl_b32 s{sT1}, s{sLW}, 2
    s_add_u32 s{sT0}, s{sT0}, s{sT1}
    s_sub_u32 s{sT0}, s{sT0}, 16
    v_add_u32 v4, s{sT0}, v1
    v_mul_i32_i24 v4, 896, v4
    s_lshl_b32 s{sT1}, s{sLW}, 1
    v_add_u32 v5, s{sT1}, v3
    v_and_b32 v5, 7, v5
    v_xor_b32 v5, v2, v5
    v_lshl_add_u32 v{vXh}, v5, 4, v4
    s_cmp_eq_u32 s{sRB}, 0
    s_cselect_b64 vcc, -1, 0
    v_cndmask_b32 v{vXh}, v{vXh}, v7, vcc
    s_mov_b32 s{sX+2}, {XB}
    s_mov_b32 s{sX+3}, 0x20000
    s_mov_b32 s{sW+2}, {WB}
    s_mov_b32 s{sW+3}, 0x20000
    s_waitcnt lgkmcnt(0)
    s_mov_b32 s{sX}, s22
    s_mov_b32 s{sX+1}, s23
    s_mov_b32 s{sW}, s24
    s_mov_b32 s{sW+1}, s25
    """)
    stamp(0)
    del order[:]
    def DB(c):
        slot = SB0 + ((c + 2) % 3) * SLB
        a(f"""
        s_add_u32 m0, s{sLx}, {slot + 2048}
        s_mov_b32 s{sT0}, {c*128}
        s_mov_b32 s{sT1}, {c*128 + 12288}
        buffer_load_dwordx4 v{vXe}, {srd(sX)}, s{sT0} offen lds
        buffer_load_dwordx4 v{vXo}, {srd(sX)}, s{sT0} offen offset:1024 lds
        buffer_load_dwordx4 v{vXe}, {srd(sX)}, s{sT1} offen offset:2048 lds
        buffer_load_dwordx4 v{vXo}, {srd(sX)}, s{sT1} offen offset:3072 lds
        """)
        for p in range(3):
            a(f"""
            s_add_u32 m0, s{sLw}, {slot + 18432 + p*8192}
            s_mov_b32 s{sT1}, {c*64*2688 + p*896}
            buffer_load_dwordx4 v{vW0}, {srd(sW)}, s{sT1} offen lds
            buffer_load_dwordx4 v{vW1}, {srd(sW)}, s{sT1} offen offset:1024 lds
            """)
        a(f"""
        s_add_u32 m0, s{sLh}, {slot}
        s_mov_b64 exec, 0xffffffff
        buffer_load_dwordx4 v{vXh}, {srd(sX)}, s{sT0} offen lds
        s_mov_b64 exec, -1
        """)
        order.extend([c] * 11)
    head(DB, 384)
    a(wo_setup); order.append("tag")
    Wt(2); DB(4); Wt(3); DB(5); Wt(4); DB(6); pf_wo(2); Wt(5); issue_wo(0, 5); Wt(6)
    a("s_branch L_ld2")
    a.raw("L_cmpB:")
    sHH = 96
    def Qa(rt, ft): return ((rt-1)*2+ft)*4
    def Ka(rt, ft): return 32 + (rt*2+ft)*4
    def Va(rt, ft): return 72 + (rt*2+ft)*4
    def Gx(s, rt): return 112 + 44*s + 4*rt
    def Gw(s, p, ft): return 112 + 44*s + 20 + (p*2+ft)*4
    bxa = [200, 201]; bwa = [202, 203]
    vBS, vBP, vBP1 = 204, 208, 212
    sl0 = SB0 + 2 * SLB
    a(f"""
    s_and_b32 s{sHH}, s{sWAVE}, 1
    s_lshr_b32 s{sRH}, s{sWAVE}, 1
    v_and_b32 v2, 15, v{vL}
    s_lshl_b32 s3, s{sRH}, 6
    v_add_u32 v4, s3, v2
    v_lshlrev_b32 v4, 7, v4
    v_lshrrev_b32 v5, 1, v2
    v_xor_b32 v5, v5, v3
    v_lshl_add_u32 v{bxa[0]}, v5, 4, v4
    v_add_u32 v{bxa[0]}, {sl0}, v{bxa[0]}
    v_xor_b32 v{bxa[1]}, 64, v{bxa[0]}
    v_lshrrev_b32 v4, 2, v2
    v_and_b32 v5, 3, v{vL}
    v_lshl_add_u32 v6, v3, 3, v4
    v_lshlrev_b32 v6, 7, v6
    v_add_u32 v6, {sl0 + 18432}, v6
    v_and_b32 v7, 2, v4
    v_and_b32 v8, 1, v3
    v_lshl_or_b32 v7, v8, 2, v7
    v_lshlrev_b32 v7, 4, v7
    s_mul_i32 s3, s{sHH}, 56
    v_lshl_add_u32 v8, v5, 3, s3
    v_xor_b32 v9, v8, v7
    v_add_u32 v{bwa[0]}, v6, v9
    v_add_u32 v8, 32, v8
    v_cmp_eq_u32 vcc, 56, v8
    v_mov_b32 v9, 120
    v_cndmask_b32 v8, v8, v9, vcc
    v_xor_b32 v9, v8, v7
    v_add_u32 v{bwa[1]}, v6, v9
    v_cmp_eq_u32 vcc, 12, v2
    v_cndmask_b32 v216, 0, 1.0, vcc
    v_mov_b32 v217, v216
    v_mov_b32 v218, v216
    v_mov_b32 v219, v216
    s_lshl_b32 s34, s{sRB}, 1
    s_add_u32 s34, s34, s{sRH}
    s_lshl_b32 s37, s34, 6
    s_lshl_b32 s3, s{sLAM}, 1
    s_add_u32 s3, s3, s{sHH}
    s_add_u32 s3, s3, s37
    s_lshl_b32 s3, s3, 10
    s_add_u32 s36, s3, {OB}
    s_mov_b32 s37, s34
    v_mov_b32 v1, 0
    s_waitcnt lgkmcnt(0)
    {TAGC if opt.get('swap', 1) else ''}
    """)
    stamp(0)
    pc = [l for l in p2common.split("\n") if l.strip()]
    cut = next(k for k in range(len(pc)) if pc[k].strip().startswith("s_mul_i32 s3, s%d, 3" % sWAVE))
    bias = f"""
    v_mov_b32 v224, {NEG}
    v_and_b32 v220, 15, v{vL}
    v_lshrrev_b32 v221, 4, v{vL}
    v_lshlrev_b32 v221, 2, v221
    v_sub_u32 v220, v220, v221
    """ + "".join(f"""
    v_subrev_u32 v221, {i}, v220
    v_and_b32 v222, 0x80000001, v221
    v_cmp_eq_u32 vcc, 0, v222
    v_cndmask_b32 v{vBS+i}, v224, 0, vcc
    v_cmp_eq_u32 vcc, 0x80000000, v222
    v_cndmask_b32 v{vBP+i}, v224, 0, vcc
    """ for i in range(4)) + """
    s_cmp_eq_u32 s37, 0
    s_cselect_b64 vcc, -1, 0
    """ + "".join(f"v_cndmask_b32 v{vBP1+i}, v{vBP+i}, v224, vcc\n" for i in range(4))
    pieces = [rest_setup + f"v_mov_b32 v219, 0\nglobal_load_dword v{vTAG}, v219, s[30:31] sc1\n" + bias, "\n".join(pc[:cut]), "\n".join(pc[cut:])]
    def breads(s, ks):
        L = [f"ds_read_b128 {q4(Gx(s,rt))}, v{bxa[ks]} offset:{rt*2048}" for rt in (1, 2, 3, 4, 0)]
        for p in range(3):
            for ft in range(2):
                for u in range(2):
                    L.append(f"ds_read_b64_tr_b16 {q2(Gw(s,p,ft) + 2*u)}, v{bwa[ft]} offset:{p*8192 + ks*4096 + u*512}")
        return L
    def bstep(s, rd, zero=False):
        M = []
        C = lambda r, z='0': z if zero else q4(r)
        for rt in (1, 2, 3, 4, 0):
            for ft in range(2):
                if rt: M.append(f"v_mfma_f32_16x16x32_bf16 {q4(Qa(rt,ft))}, {q4(Gw(s,0,ft))}, {q4(Gx(s,rt))}, {C(Qa(rt,ft))}")
                M.append(f"v_mfma_f32_16x16x32_bf16 {q4(Ka(rt,ft))}, {q4(Gw(s,1,ft))}, {q4(Gx(s,rt))}, {C(Ka(rt,ft))}")
                M.append(f"v_mfma_f32_16x16x32_bf16 {q4(Va(rt,ft))}, {q4(Gx(s,rt))}, {q4(Gw(s,2,ft))}, {C(Va(rt,ft), q4(216) if ft else '0')}")
        for i, m in enumerate(M):
            a(m)
            if i < len(rd): a(rd[i])
    a("s_barrier")
    stamp(1)
    for r in breads(0, 0): a(r)
    a(f"s_mov_b32 s{sC}, 0")
    a("s_waitcnt lgkmcnt(0)")
    bstep(0, breads(1, 1), zero=True)
    a(pieces[0]); a(pieces[1])
    a(f"""
    s_mul_i32 s3, s{sC}, 86
    s_lshr_b32 s3, s3, 8
    s_mul_i32 s3, s3, 3
    s_cmp_eq_u32 s3, s{sC}
    s_mov_b32 s{sD}, {SLB}
    s_cselect_b32 s{sD}, {(-2*SLB) & 0xffffffff}, s{sD}
    v_add_u32 v{bxa[0]}, s{sD}, v{bxa[0]}
    v_add_u32 v{bxa[1]}, s{sD}, v{bxa[1]}
    v_add_u32 v{bwa[0]}, s{sD}, v{bwa[0]}
    v_add_u32 v{bwa[1]}, s{sD}, v{bwa[1]}
    s_cmp_eq_u32 s{sC}, 6
    s_waitcnt lgkmcnt(0)
    s_cbranch_scc1 L_nobarB0
    s_barrier
    L_nobarB0:
    """)
    bstep(1, breads(0, 0))
    a(pieces[2])
    a(f"s_mov_b32 s{sC}, 1")
    a.raw("L_gemmB:")
    a("s_waitcnt lgkmcnt(0)")
    bstep(0, breads(1, 1))
    a(f"""
    s_mul_i32 s3, s{sC}, 86
    s_lshr_b32 s3, s3, 8
    s_mul_i32 s3, s3, 3
    s_cmp_eq_u32 s3, s{sC}
    s_mov_b32 s{sD}, {SLB}
    s_cselect_b32 s{sD}, {(-2*SLB) & 0xffffffff}, s{sD}
    v_add_u32 v{bxa[0]}, s{sD}, v{bxa[0]}
    v_add_u32 v{bxa[1]}, s{sD}, v{bxa[1]}
    v_add_u32 v{bwa[0]}, s{sD}, v{bwa[0]}
    v_add_u32 v{bwa[1]}, s{sD}, v{bwa[1]}
    s_cmp_eq_u32 s{sC}, 6
    s_waitcnt lgkmcnt(0)
    s_cbranch_scc1 L_nobarB
    s_barrier
    L_nobarB:
    """)
    bstep(1, breads(0, 0))
    a(f"""
    s_add_u32 s{sC}, s{sC}, 1
    s_cmp_lt_u32 s{sC}, 7
    s_cbranch_scc1 L_gemmB
    """)
    stamp(3)
    def Qf(j): return 168 + 4*(j-1)
    def Kf(rt): return 128 + 4*rt
    def Vf(dt, rt): return 148 + 10*dt + 2*rt
    a("s_waitcnt vmcnt(0) lgkmcnt(0)")
    get_tag("b")
    for rt in (1, 2, 3, 4, 0):
        for ft in range(2):
            if rt:
                cvt(Qf(rt)+2*ft, Qa(rt,ft)); cvt(Qf(rt)+2*ft+1, Qa(rt,ft)+2)
            cvt(Kf(rt)+2*ft, Ka(rt,ft)); cvt(Kf(rt)+2*ft+1, Ka(rt,ft)+2)
            cvt(Vf(ft,rt), Va(rt,ft)); cvt(Vf(ft,rt)+1, Va(rt,ft)+2)
    stamp(4)
    a.raw("L_phase2:")
    def wo_reads(base):
        L = []
        for hq in range(4):
            for cidx in range(4):
                for u in range(2):
                    d = base + (hq*4 + cidx)*4 + 2*u
                    L.append(f"ds_read_b64_tr_b16 {q2(d)}, v{vWA + 4*u + ((cidx + 2*(hq&1)) & 3)} offset:{hq*3584}")
        return L
    def wo_mask(base):
        return [f"v_and_b32 v{base + f*4 + 2 + r}, v{vMG}, v{base + f*4 + 2 + r}" for f in range(16) for r in range(2)]
    WB_, OF_ = 128, 192
    QF = 124
    KS, VS = 72, 84
    QB_, KB_, VB_ = 8, 16, 28
    sBud = 14
    def qmask(r):
        for i in range(4): a(f"v_and_b32 v{r+i}, v{vQm + (i>>1)}, v{r+i}")
    if opt.get("lp"):
        a("s_barrier")
        a(f"""
        s_cmp_lg_u32 s{sWAVE}, 7
        s_cbranch_scc1 L_pollok1
        """)
        poll("1", vPA, 9)
    a("s_barrier")
    stamp(11)
    for i in range(3):
        a(f"buffer_load_dwordx4 {q4(KS+4*i)}, v{vKq}, {srd(sWS)}, s{sK[i]} offen sc1")
    a(f"buffer_load_dwordx4 {q4(QF)}, v{vKq}, {srd(sWS)}, s{sQA} offen sc1")
    for i in range(3):
        a(f"buffer_load_dwordx4 {q4(VS+4*i)}, v{vV1 if i == 1 else vV0}, {srd(sWS)}, s{sV[i]} offen sc1")
    a(f"""
    s_lshr_b32 s3, s{sWAVE}, 2
    s_cmp_gt_u32 s{sBR}, s3
    s_cbranch_scc0 L_noB1
    """)
    def SB(j, t): return 8*(j-1) + 4*t
    for j in range(1, 5):
        bp = vBP1 if j == 1 else vBP
        a(f"v_mfma_f32_16x16x32_bf16 {q4(SB(j,0))}, {q4(Kf(j-1))}, {q4(Qf(j))}, {q4(bp)}")
        a(f"v_mfma_f32_16x16x32_bf16 {q4(SB(j,1))}, {q4(Kf(j))}, {q4(Qf(j))}, {q4(vBS)}")
    M = lambda j: 32 + (j-1)
    T = lambda j: 36 + (j-1)
    for j in range(1, 5):
        s = SB(j, 0)
        a(f"v_max3_f32 v{M(j)}, v{s}, v{s+1}, v{s+2}")
        a(f"v_max3_f32 v{T(j)}, v{s+3}, v{s+4}, v{s+5}")
        a(f"v_max3_f32 v{M(j)}, v{M(j)}, v{s+6}, v{s+7}")
        a(f"v_max_f32 v{M(j)}, v{M(j)}, v{T(j)}")
    for sw in ("v_permlane32_swap_b32", "v_permlane16_swap_b32"):
        for j in range(1, 5): a(f"v_mov_b32 v{T(j)}, v{M(j)}")
        for j in range(1, 5): a(f"{sw} v{M(j)}, v{T(j)}")
        for j in range(1, 5): a(f"v_max_f32 v{M(j)}, v{M(j)}, v{T(j)}")
    for j in range(1, 5): a(f"v_mul_f32 v{M(j)}, v{vC}, v{M(j)}")
    for j in range(1, 5):
        for i in range(8): a(f"v_fma_f32 v{SB(j,0)+i}, v{SB(j,0)+i}, v{vC}, -v{M(j)}")
    for j in range(1, 5):
        for i in range(8): a(f"v_exp_f32 v{SB(j,0)+i}, v{SB(j,0)+i}")
    P = lambda j: 40 + 4*(j-1)
    for j in range(1, 5):
        for i in range(4): cvt(P(j)+i, SB(j,0)+2*i)
    O = lambda j, dt: 8*(j-1) + 4*dt
    for j in range(1, 5):
        for dt in (1, 0):
            a(f"v_mfma_f32_16x16x32_bf16 {q4(O(j,dt))}, {q4(Vf(dt,j-1))}, {q4(P(j))}, 0")
    st = [normalize(O(j,0), O(j,1), 56+2*(j-1), 57+2*(j-1), 100+4*(j-1)) for j in range(1, 5)]
    for k in range(len(st[0])):
        for j in range(4):
            for x in st[j][k]: a(x)
    a.raw("L_noB1:")
    for r in wo_reads(WB_): a(r)
    a(f"""
    s_mov_b32 s{sBud}, {POLL_MAX}
    v_lshlrev_b32 v8, 2, v{vG}
    v_sub_u32 v8, v8, v{vR15}
    s_bitcmp1_b32 s{sWAVE}, 0
    s_cselect_b64 s[34:35], -1, 0
    """)
    for i in range(4):
        a(f"""
        v_add_u32 v9, {i}, v8
        v_cmp_lt_i32 vcc, 0, v9
        v_cndmask_b32 v10, v{vNEG}, 0, vcc
        v_cndmask_b32 v11, 0, v{vNEG}, vcc
        v_cndmask_b32 v{0+i}, v10, v{vNEG}, s[34:35]
        v_cndmask_b32 v{4+i}, 0, v10, s[34:35]
        v_cndmask_b32 v{64+i}, v11, 0, s[34:35]
        v_cndmask_b32 v{68+i}, v{vNEG}, v11, s[34:35]
        """)
    for i in range(8): a(f"v_subrev_u32 v{vWA+i}, {L_WOB}, v{vWA+i}")
    a("s_waitcnt lgkmcnt(0)")
    for x in wo_mask(WB_): a(x)
    a(f"""
    s_cmp_ge_u32 s{sARB}, 2
    s_cbranch_scc1 L_nofix
    s_waitcnt vmcnt(4)
    v_not_b32 v9, v{vQm}
    v_not_b32 v10, v{vQm+1}
    v_and_b32 v9, 0xff7f, v9
    v_and_b32 v10, 0xff7f, v10
    """)
    for i in range(3):
        qmask(KS+4*i)
        a(f"""
        s_cmp_eq_u32 s{sK[i]}, {BIG}
        s_cbranch_scc0 L_fx{i}
        v_or_b32 v{KS+4*i}, v9, v{KS+4*i}
        v_or_b32 v{KS+4*i+2}, v10, v{KS+4*i+2}
        L_fx{i}:
        """)
    a.raw("L_nofix:")
    for i in range(3):
        a(f"s_waitcnt vmcnt({6-i})")
        if i == 0: stamp(5)
        a(f"ds_write_b128 v{vKw}, {q4(KS+4*i)} offset:{1024*i}")
    for i in range(3):
        a(f"s_waitcnt vmcnt({2-i})")
        for r in range(4): a(f"v_or_b32 v{VS+4*i+r}, v{vOn1 if i == 1 else vOn0}, v{VS+4*i+r}")
        a(f"ds_write_b128 v{vKw}, {q4(VS+4*i)} offset:{24576+1024*i}")
    a(f"""
    s_lshr_b32 s3, s{sWAVE}, 2
    s_cmp_gt_u32 s{sBR}, s3
    s_cbranch_scc0 L_noB2
    """)
    for j in range(1, 5):
        a(f"buffer_store_dwordx4 {q4(100+4*(j-1))}, v{vOo}, {srd(sWS)}, s36 offen sc1")
        if j < 4: a("s_add_u32 s36, s36, 16384")
    a.raw("L_noB2:")
    stamp(6)
    qmask(QF)
    a(f"""
    s_cmp_ge_u32 s{sARB}, 2
    s_cbranch_scc1 L_nofixq
    v_not_b32 v9, v{vQm}
    v_not_b32 v10, v{vQm+1}
    v_and_b32 v9, 0x3f80, v9
    v_or_b32 v{QF}, v9, v{QF}
    v_and_b32 v10, 0x3f80, v10
    v_or_b32 v{QF+2}, v10, v{QF+2}
    L_nofixq:
    s_waitcnt lgkmcnt(0)
    s_barrier
    """)
    stamp(12)
    KBUF = 72; NKB = 6
    def kread(t): return f"ds_read_b128 {q4(KBUF + 4*(t % NKB))}, v{vKa} offset:{t*1024}"
    for t in range(NKB - 1): a(kread(t))
    vM, vT = 120, 121
    def mx(t):
        r = 4*t
        if t == 0:
            a(f"v_max_f32 v{vM}, v0, v1"); a(f"v_max_f32 v{vT}, v2, v3")
        else:
            a(f"v_max3_f32 v{vM}, v{vM}, v{r}, v{r+1}"); a(f"v_max3_f32 v{vT}, v{vT}, v{r+2}, v{r+3}")
    LAG = 4
    for t in range(18):
        if t + NKB - 1 < 18: a(kread(t + NKB - 1))
        outstanding = min(18, t + NKB) - (t + 1)
        a(f"s_waitcnt lgkmcnt({outstanding})")
        c = q4(4*t) if t in (0, 1, 16, 17) else "0"
        a(f"v_mfma_f32_16x16x32_bf16 {q4(4*t)}, {q4(KBUF + 4*(t % NKB))}, {q4(QF)}, {c}")
        if t >= LAG: mx(t - LAG)
        if t % 2 == 1 and t < 14:
            a(f"""
            s_add_u32 m0, s13, {L_WOA + 8192*(t//2)}
            s_mov_b32 s3, {8*(t//2)*7168}
            buffer_load_dwordx4 v{vWd}, {srd(sWoA)}, s3 offen lds
            """)
    VBUF = [96 + 4*i for i in range(6)]
    NVB = len(VBUF)
    WA_ = 0
    ACCB = [64, 68, 72, 76, 80, 84, 88, 92]
    ACCA = [96, 100, 104, 108, 112, 116, 120, 124]
    sNext = 27
    lq = []
    def lds(ins, tag): a(ins); lq.append(tag)
    def lwait(tag):
        last = max(i for i, t in enumerate(lq) if t == tag)
        a(f"s_waitcnt lgkmcnt({min(15, len(lq) - 1 - last)})")
    def vread(n):
        lds(f"ds_read_b128 {q4(VBUF[n % NVB])}, v{vKa} offset:{24576 + (n>>1)*2048 + (n&1)*1024}", ("v", n))
    for n in range(NVB): vread(n)
    for t in range(18 - LAG, 18): mx(t)
    a(f"v_max_f32 v{vM}, v{vM}, v{vT}")
    for sw in ("v_permlane32_swap_b32", "v_permlane16_swap_b32"):
        a(f"v_mov_b32 v{vT}, v{vM}")
        a(f"{sw} v{vM}, v{vT}")
        a(f"v_max_f32 v{vM}, v{vM}, v{vT}")
    a(f"v_mul_f32 v{vM}, v{vC}, v{vM}")
    stamp(7)
    def o_load(f, s0):
        hq, tt = f >> 1, f & 1
        return f"buffer_load_dwordx4 {q4(OF_ + f*4)}, v{vOo}, {srd(sWS)}, s{s0 + tt} offen offset:{hq*1024} sc1"
    def frag(lbl, f, wbase, acc, wait, after):
        hq, tt = f >> 1, f & 1
        r = OF_ + f*4
        a(f"""
        s_cmp_lg_u32 s{sNext}, {f}
        s_cbranch_scc1 L_sk{lbl}{f}
        {wait}
        v_cmp_ne_u32 vcc, v{r+3}, v{vTAG}
        s_lshr_b32 s3, vcc_hi, 16
        s_cbranch_scc1 L_sk{lbl}{f}
        """)
        for cidx in range(4):
            d = acc[tt*4+cidx]
            a(f"v_mfma_f32_16x16x32_bf16 {q4(d)}, {q4(wbase + (hq*4+cidx)*4)}, {q4(r)}, {'0' if f < 2 else q4(d)}")
        a(f"s_add_u32 s{sNext}, s{sNext}, 1")
        if after is not None: a(o_load(f, after))
        a.raw(f"L_sk{lbl}{f}:")
    OACC = 224
    war = wo_reads(WA_); wam = wo_mask(WA_)
    LU, FU = opt.get("lu", 4), opt.get("fu", 5)
    a(f"s_mov_b32 s{sNext}, 0")
    for u in range(9):
        b = 8*u
        for i in range(8): a(f"v_fma_f32 v{b+i}, v{b+i}, v{vC}, -v{vM}")
        if u == LU - 1 and opt.get("mb", 1):
            a("s_waitcnt vmcnt(0)")
            a("s_barrier")
        if LU <= u < LU + 4:
            for f in (2*(u-LU), 2*(u-LU)+1): a(o_load(f, sOB))
        for i in range(8): a(f"v_exp_f32 v{b+i}, v{b+i}")
        if opt.get('inpv', 0) and FU <= u < FU + 4:
            for f in range(2*(u-FU), 2*(u-FU)+2): frag("P", f, WB_, ACCB, f"s_waitcnt vmcnt({7-f})", None)
        for i in range(4): a(f"v_cvt_pk_bf16_f32 v{b+i}, v{b+2*i}, v{b+2*i+1}")
        lwait(("v", 2*u+1))
        for dt in range(2):
            c = "0" if u == 0 else q4(OACC + 4*dt)
            a(f"v_mfma_f32_16x16x32_bf16 {q4(OACC+4*dt)}, {q4(VBUF[(2*u+dt) % NVB])}, {q4(b)}, {c}")
        for n in (NVB + 2*u, NVB + 1 + 2*u):
            if n < 18: vread(n)
    if opt.get('mb', 1):
        for x in war: a(x)
    for grp in normalize(OACC, OACC+4, 232, 234, 236):
        for x in grp: a(x)
    a(f"buffer_store_dwordx4 {q4(236)}, v{vOo}, {srd(sWS)}, s33 offen sc1")
    stamp(13)
    a(f"""
    s_cmp_eq_u32 s{sCB}, 7
    s_cbranch_scc1 L_fin
    """)
    vXW, vXR, vOut = 224, 228, 230
    a(f"""
    s_lshl_b32 s3, s{sKQ}, 14
    s_lshl_b32 s35, s{sRP}, 13
    s_add_u32 s35, s35, s3
    s_add_u32 s35, s35, 98304
    v_lshlrev_b32 v231, 8, v{vR15}
    v_add_u32 v231, s35, v231
    v_xor_b32 v232, v{vG}, v{vR15}
    """)
    for cidx in range(4):
        a(f"""
        s_add_u32 s3, s{sKQ}, {cidx}
        s_and_b32 s3, s3, 3
        s_lshl_b32 s3, s3, 2
        v_xor_b32 v234, s3, v232
        v_lshl_add_u32 v{vXW+cidx}, v234, 4, v231
        """)
    a(f"""
    v_lshrrev_b32 v231, 3, v{vL}
    s_lshl_b32 s3, s{sWAVE}, 3
    v_add_u32 v231, s3, v231
    v_and_b32 v232, 7, v{vL}
    v_lshlrev_b32 v234, 1, v232
    v_and_b32 v235, 15, v231
    v_xor_b32 v234, v234, v235
    v_lshlrev_b32 v234, 4, v234
    v_lshl_add_u32 v{vXR}, v231, 8, v234
    v_add_u32 v{vXR}, 98304, v{vXR}
    v_xor_b32 v{vXR+1}, 16, v{vXR}
    s_lshl_b32 s3, s{sRB64}, 6
    v_add_u32 v231, s3, v231
    v_mul_u32_u24 v231, 1792, v231
    v_lshl_add_u32 v231, v232, 4, v231
    s_lshl_b32 s3, s{sCB}, 7
    v_add_u32 v{vOut}, s3, v231
    """)
    def finish(lbl, wbase, acc, s0, after):
        a(f"""
        s_cmp_eq_u32 s{sNext}, 8
        s_cbranch_scc1 L_done{lbl}
        L_again{lbl}:
        """)
        for f in range(8):
            a(f"s_cmp_gt_u32 s{sNext}, {f}")
            a(f"s_cbranch_scc1 L_rl{lbl}{f}")
            a(o_load(f, s0))
            a.raw(f"L_rl{lbl}{f}:")
        a("s_waitcnt vmcnt(0)")
        a.raw(f"L_first{lbl}:")
        for f in range(8): frag(lbl, f, wbase, acc, "", after)
        a(f"""
        s_cmp_eq_u32 s{sBud}, 0
        s_cbranch_scc1 L_done{lbl}
        s_sub_u32 s{sBud}, s{sBud}, 1
        s_cmp_lg_u32 s{sNext}, 8
        s_cbranch_scc1 L_again{lbl}
        {"s_waitcnt vmcnt(0)" if after is not None else ""}
        L_done{lbl}:
        """)
    def exch_write(acc):
        for tt in range(2):
            for cidx in range(4):
                a(f"ds_write_b128 v{vXW+cidx}, {q4(acc[tt*4+cidx])} offset:{tt*4096}")
        a("s_waitcnt lgkmcnt(0)")
        a("s_barrier")
    def exch_final(RB_, outoff):
        for k in range(4):
            for h in range(2):
                a(f"ds_read_b128 {q4(RB_ + (k*2+h)*4)}, v{vXR+h} offset:{k*16384}")
        a("s_waitcnt lgkmcnt(4)")
        for i in range(8): a(f"v_add_f32 v{RB_+i}, v{RB_+i}, v{RB_+8+i}")
        a("s_waitcnt lgkmcnt(0)")
        for i in range(8): a(f"v_add_f32 v{RB_+16+i}, v{RB_+16+i}, v{RB_+24+i}")
        for i in range(8): a(f"v_add_f32 v{RB_+i}, v{RB_+i}, v{RB_+16+i}")
        for i in range(4): a(f"v_cvt_pk_bf16_f32 v{RB_+8+i}, v{RB_+2*i}, v{RB_+2*i+1}")
        a(f"s_mov_b32 s3, {outoff}")
        a(f"buffer_store_dwordx4 {q4(RB_+8)}, v{vOut}, {srd(sOut)}, s3 offen")
    if not opt.get('inpv', 0):
        for f in range(8): frag("R", f, WB_, ACCB, f"s_waitcnt vmcnt({8-f})", None)
    finish("B", WB_, ACCB, sOB, None)
    stamp(8)
    AL = opt.get("al", 1)
    def aloads(k):
        if AL == k:
            for f in range(8): a(o_load(f, sOA))
    aloads(0)
    a(f"s_mov_b32 s{sNext}, 0")
    if opt.get('mb', 1):
        a("s_waitcnt lgkmcnt(0)")
        for x in wam: a(x)
    a("s_barrier")
    aloads(1)
    if not opt.get('mb', 1):
        for x in war: a(x)
    exch_write(ACCB)
    if not opt.get('mb', 1):
        for x in wam: a(x)
    aloads(2)
    if opt.get("rechk", 1) and AL == 0:
        a("s_waitcnt vmcnt(0)")
        for f in range(8):
            a(f"""
            v_cmp_ne_u32 vcc, v{OF_+f*4+3}, v{vTAG}
            s_lshr_b32 s3, vcc_hi, 16
            s_cbranch_scc0 L_ok{f}
            {o_load(f, sOA)}
            L_ok{f}:
            """)
    exch_final(128, 896)
    aloads(3)
    for i in range(4): a(f"v_subrev_u32 v{vXW+i}, 98304, v{vXW+i}")
    for i in range(2): a(f"v_subrev_u32 v{vXR+i}, 98304, v{vXR+i}")
    stamp(14)
    for f in range(8): frag("Q", f, WA_, ACCA, "s_waitcnt vmcnt(1)" if (opt.get("rechk", 1) and AL == 0) else f"s_waitcnt vmcnt({(7 if AL == 3 else 8)-f})", None)
    finish("A", WA_, ACCA, sOA, None)
    stamp(9)
    exch_write(ACCA)
    exch_final(160, 0)
    a.raw("L_fin:")
    if stamps:
        stamp(15)
        if "probe" in opt:
            X = opt["probe"]
            a(f"""
            v_readfirstlane_b32 s12, v{vTAG}
            s_bfe_u32 s3, s12, 0xd0001
            s_bfe_u32 s34, s12, 0xf000f
            s_lshl_b32 s34, s34, 13
            s_or_b32 s3, s3, s34
            s_lshr_b32 s34, s12, 31
            s_lshl_b32 s34, s34, 28
            s_or_b32 s3, s3, s34
            s_sub_u32 s34, s{64+2*X}, s3
            s_add_u32 s34, s34, 200
            s_and_b32 s34, s34, 0x1fffffff
            s_cmp_lt_u32 s34, 5000
            s_cselect_b32 s34, s34, 0
            s_add_u32 s34, s34, 3000
            s_mov_b32 s35, 100000
            L_pw:
            s_memrealtime s[16:17]
            s_waitcnt lgkmcnt(0)
            s_sub_u32 s16, s16, s3
            s_and_b32 s16, s16, 0x1fffffff
            s_sub_u32 s35, s35, 1
            s_cmp_eq_u32 s35, 0
            s_cbranch_scc1 L_end
            s_cmp_lt_u32 s16, s34
            s_cbranch_scc1 L_pw
            s_endpgm
            """)
        a(f"""
        s_sub_u32 s84, {POLL_MAX}, s{sBud}
        s_mul_i32 s84, s84, 100
        s_add_u32 s84, s84, s64
        s_lshl_b32 s3, s2, 3
        s_add_u32 s3, s3, s{sWAVE}
        s_lshl_b32 s3, s3, 6
        s_add_u32 s3, s3, {STAMP}
        v_mov_b32 v1, 0
        s_mov_b64 exec, 1
        """)
        if opt.get("dbgst"):
            ids = [1, 2, 3, 4, 5, 6, 7, 8, 9, 11, 12, 13, 14, 15]
            a("s_not_b32 s3, s64")
            a("v_mov_b32 v2, s3")
            a("global_atomic_umax v1, v2, s[30:31] offset:4")
            for k, i in enumerate(ids):
                a(f"s_sub_u32 s3, s{64+2*i}, s64")
                a("s_cmp_lt_u32 s3, 100000")
                a(f"s_cselect_b32 s3, s{64+2*i}, 0")
                a("v_mov_b32 v2, s3")
                a(f"global_atomic_umax v1, v2, s[30:31] offset:{8+4*k}")
            a("s_endpgm")
        for i in range(16):
            a(f"v_mov_b32 v2, s{64+2*i}")
            a(f"buffer_store_dword v2, v1, {srd(sWS)}, s3 offen offset:{4*i}")
    a.raw("L_end:")
    a("s_endpgm")
    bad = a.check_branches()
    for b in bad: print("BRANCH HAZARD", b, file=sys.stderr)
    assert not bad
    out = HEADER + f"""; @launch grid=(256,1,1) block=(512,1,1) lds=163840
.amdgcn_target "amdgcn-amd-amdhsa--gfx950"
.text
.globl {NAME}_kernel
.p2align 8
.type {NAME}_kernel,@function
""" + a.text() + f""".fill 1280, 4, 0xBF800000
s_endpgm
.section .rodata,"a"
.p2align 6
.amdhsa_kernel {NAME}_kernel
  .amdhsa_next_free_vgpr 256
  .amdhsa_next_free_sgpr 102
  .amdhsa_accum_offset 256
  .amdhsa_group_segment_fixed_size 0
  .amdhsa_kernarg_size 72
  .amdhsa_user_sgpr_count 2
  .amdhsa_user_sgpr_kernarg_segment_ptr 1
  .amdhsa_system_sgpr_workgroup_id_x 1
.end_amdhsa_kernel
"""
    return out

if __name__ == "__main__":
    stamps = int(sys.argv[1]); path = sys.argv[2]
    opt = dict((kv.split("=")[0], int(kv.split("=")[1])) for kv in sys.argv[3:])
    open(path, "w").write(gen(stamps, opt))
```

```python
import sys, struct, math
from asmlib import Asm

NAME = "concat_heads__sliding_block__sliding_local_dilated__prompt"
HEADER = open("cdna_kernels/%s.s.ref" % NAME).read().split("; Override launch")[0]
def f2u(x): return struct.unpack("<I", struct.pack("<f", x))[0]

XB, WB, WOB_BYTES, OUTB = 1835008, 1204224, 401408, 3670016
MB2 = 0x200000
QO, KO, VO = 0, MB2, 2*MB2
BRS = 3*MB2
OA, OB = 6*MB2, 7*MB2
FL1 = 8*MB2
STAMP = 8*MB2 + 0x100000
WSB = 9*MB2
BIG = 0x40000000
NEG = f2u(-1e30)
CSC = f2u((28 ** -0.5) * math.log2(math.e))
SLOT = 40960
L_WOB, L_WOA, L_KV = 0, 57344, 114688
POLL_MAX = 40000

sWAVE, sBR, sLAM, sRB, sAH, sARB, sRB64, sCB, sTAG = 4, 5, 6, 7, 8, 9, 10, 11, 12
sX, sW, sWoA, sWoB, sWS, sOut = 36, 40, 44, 48, 52, 56
def srd(b): return f"s[{b}:{b+3}]"
def q4(r): return f"v[{r}:{r+3}]"
def q2(r): return f"v[{r}:{r+1}]"
def q16(r): return f"v[{r}:{r+15}]"
vL, vL16, vTAG = 255, 254, 253

def gen(stamps=False, opt=None):
    opt = opt or {}
    a = Asm()
    def stamp(i):
        if stamps:
            a(f"s_memrealtime s[{64+2*i}:{65+2*i}]")
            a("s_waitcnt lgkmcnt(0)")
    def mk_srd(d, p, n):
        return f"s_mov_b32 s{d}, s{p}\ns_mov_b32 s{d+1}, s{p+1}\ns_mov_b32 s{d+2}, {n}\ns_mov_b32 s{d+3}, 0x20000\n"
    MAP = f"""
    s_lshr_b32 s{sLAM}, s14, 2
    s_and_b32 s15, s13, 3
    s_lshl_b32 s15, s15, 2
    s_and_b32 s3, s14, 3
    s_add_u32 s{sRB}, s15, s3
    """ if opt.get("map", 0) else f"""
    s_and_b32 s15, s13, 1
    s_lshl_b32 s15, s15, 2
    s_lshr_b32 s3, s14, 3
    s_add_u32 s{sLAM}, s15, s3
    s_and_b32 s15, s13, 2
    s_lshl_b32 s15, s15, 2
    s_and_b32 s3, s14, 7
    s_add_u32 s{sRB}, s15, s3
    """
    TAGC = f"""
    s_or_b32 s3, s2, s{sWAVE}
    s_cmp_lg_u32 s3, 0
    s_cbranch_scc1 L_notag
    s_memrealtime s[34:35]
    s_waitcnt lgkmcnt(0)
    s_and_b32 s35, s34, 0x1fff
    s_lshl_b32 s35, s35, 1
    s_or_b32 s35, s35, 1
    s_bfe_u32 s3, s34, 0xf000d
    s_lshl_b32 s3, s3, 15
    s_or_b32 s35, s35, s3
    s_lshl_b32 s34, s34, 3
    s_and_b32 s34, s34, 0x80000000
    s_or_b32 s34, s34, s35
    v_mov_b32 v4, s34
    v_mov_b32 v5, 0
    s_mov_b64 exec, 1
    global_atomic_cmpswap v1, v[4:5], s[30:31] sc1
    s_mov_b64 exec, -1
    L_notag:
    """
    MAPB = f"""
    s_and_b32 s15, s13, 1
    s_lshl_b32 s15, s15, 2
    s_and_b32 s3, s14, 3
    s_add_u32 s{sLAM}, s15, s3
    s_and_b32 s15, s13, 2
    s_lshl_b32 s15, s15, 2
    s_lshr_b32 s3, s14, 2
    s_add_u32 s{sRB}, s15, s3
    """
    a.raw(f"{NAME}_kernel:")
    a(f"""
    s_cmp_ge_u32 s2, 256
    s_cbranch_scc1 L_end
    s_load_dwordx16 s[16:31], s[0:1], 0
    s_load_dwordx2 s[32:33], s[0:1], 64
    v_lshrrev_b32 v1, 6, v0
    v_and_b32 v{vL}, 63, v0
    v_readfirstlane_b32 s{sWAVE}, v1
    s_and_b32 s13, s2, 7
    s_lshr_b32 s14, s2, 3
    s_lshr_b32 s{sBR}, s13, 2
    s_xor_b32 s{sBR}, s{sBR}, {opt.get('swap', 1)}
    {MAP}
    v_lshlrev_b32 v{vL16}, 4, v{vL}
    v_lshrrev_b32 v1, 3, v{vL}
    v_and_b32 v2, 7, v{vL}
    v_lshrrev_b32 v3, 4, v{vL}
    s_cmp_lg_u32 s{sBR}, 0
    s_cbranch_scc1 L_brB
    s_cmp_lt_u32 s{sWAVE}, 4
    s_cbranch_scc1 L_compute
    """)
    rest_setup = f"""
    s_lshl_b32 s{sAH}, s13, 1
    s_and_b32 s3, s14, 1
    s_add_u32 s{sAH}, s{sAH}, s3
    s_lshr_b32 s{sARB}, s14, 1
    s_lshl_b32 s{sRB64}, s13, 2
    s_lshr_b32 s3, s14, 3
    s_add_u32 s{sRB64}, s{sRB64}, s3
    s_and_b32 s{sCB}, s14, 7
    """ + mk_srd(sWoA, 20, WOB_BYTES) + mk_srd(sWoB, 26, WOB_BYTES) + mk_srd(sWS, 32, WSB) + (f"s_add_u32 s{sWS}, s{sWS}, {opt['wso'] << 20}\ns_addc_u32 s{sWS+1}, s{sWS+1}, 0\n" if opt.get("wso") else "") + mk_srd(sOut, 28, OUTB)
    def prefetch(l):
        if not opt.get("pf", 1): return
        a(f"""
        s_cmp_lg_u32 s{sWAVE}, 1
        s_cbranch_scc1 L_notouch{l}
        v_min_u32 v4, 8, v{vL}
        v_lshlrev_b32 v4, 21, v4
        v_add_u32 v4, 0x1ff780, v4
        buffer_load_dword v217, v4, {srd(sWS)}, 0 offen sc1
        v_and_b32 v4, 1, v{vL}
        v_lshlrev_b32 v4, 21, v4
        buffer_load_dword v218, v4, {srd(sOut)}, 0 offen
        L_notouch{l}:
        s_and_b32 s3, s14, 15
        s_lshl_b32 s34, s{sWAVE}, 4
        s_or_b32 s3, s3, s34
        s_cmp_lg_u32 s3, 0x2f
        s_cbranch_scc1 L_nocode{l}
        s_getpc_b64 s[34:35]
        L_pc{l}:
        s_sub_u32 s34, s34, L_pc{l}-{NAME}_kernel
        s_subb_u32 s35, s35, 0
        v_lshlrev_b32 v4, 7, v{vL}
        global_load_dword v217, v4, s[34:35]
        v_add_u32 v4, 8192, v4
        global_load_dword v218, v4, s[34:35]
        v_add_u32 v4, 8192, v4
        global_load_dword v219, v4, s[34:35]
        L_nocode{l}:
        """)
    def get_tag(lbl):
        a(f"""
        s_mov_b32 s35, {POLL_MAX}
        L_tag{lbl}:
        v_readfirstlane_b32 s{sTAG}, v{vTAG}
        s_cmp_lg_u32 s{sTAG}, 0
        s_cbranch_scc1 L_tagok{lbl}
        v_mov_b32 v227, 0
        global_load_dword v{vTAG}, v227, s[30:31] sc1
        s_sub_u32 s35, s35, 1
        s_waitcnt vmcnt(0)
        s_cmp_lg_u32 s35, 0
        s_cbranch_scc1 L_tag{lbl}
        L_tagok{lbl}:
        """)
    def poll(lbl, vaddr, vd):
        a(f"""
        s_mov_b32 s35, {POLL_MAX}
        {"s_mov_b64 exec, 0xfff" if opt.get("apoll") else ""}
        L_poll{lbl}:
        {f"v_mov_b32 v{vd}, 0" if opt.get("apoll") else ""}
        {f"buffer_atomic_or v{vd}, v{vaddr}, {srd(sWS)}, s15 offen sc0 sc1" if opt.get("apoll") else f"buffer_load_dword v{vd}, v{vaddr}, {srd(sWS)}, s15 offen sc1"}
        s_sub_u32 s35, s35, 1
        s_waitcnt vmcnt(0)
        v_cmp_ne_u32 vcc, v{vd}, v{vTAG}
        s_cmp_eq_u32 s35, 0
        s_cbranch_scc1 L_pollok{lbl}
        s_cbranch_vccz L_pollok{lbl}
        s_branch L_poll{lbl}
        L_pollok{lbl}:
        {"s_mov_b64 exec, -1" if opt.get("apoll") else ""}
        """)
    sRP, sKQ, sT, sU = 60, 61, 62, 63
    vR15, vG, vWA, vMG, vV0, vC = 240, 241, 242, 250, 251, 252
    vNEG, vKa, vKw = 237, 239, 238
    vKq, vOo, vVa, vVb, vOne = 232, 233, 234, 235, 236
    vQm, vOn0, vOn1, vV1 = 228, 230, 231, 226
    sHB, sHQ, sP = 98, 100, 99
    sK = [16, 17, 18, 19, 20, 21]; sV = [22, 23, 24, 25, 26, 27]; sQA = 32
    sOB, sOA = 96, 28
    t0, t1, t2, t3, t4 = 220, 221, 222, 223, 224
    vPA = 225
    FLV = 64*16*128
    p2common = f"""
    s_and_b32 s{sRP}, s{sWAVE}, 1
    s_lshr_b32 s{sKQ}, s{sWAVE}, 1
    v_and_b32 v{vR15}, 15, v{vL}
    v_lshrrev_b32 v{vG}, 4, v{vL}
    v_cmp_gt_u32 vcc, 48, v{vL}
    v_cndmask_b32 v{vMG}, 0, -1, vcc
    v_lshrrev_b32 v{t0}, 2, v{vR15}
    v_lshl_add_u32 v{t1}, v{vG}, 2, v{t0}
    v_lshlrev_b32 v{t1}, 7, v{t1}
    s_mul_i32 s3, s{sKQ}, 14336
    v_add_u32 v{t1}, s3, v{t1}
    v_and_b32 v{t2}, 2, v{t0}
    v_and_b32 v{t3}, 1, v{vG}
    v_lshl_or_b32 v{t2}, v{t3}, 2, v{t2}
    v_lshlrev_b32 v{t2}, 4, v{t2}
    v_and_b32 v{t3}, 3, v{vL}
    v_lshlrev_b32 v{t4}, 3, v{t3}
    v_xor_b32 v{t2}, v{t2}, v{t4}
    v_add_u32 v{t1}, v{t1}, v{t2}
    v_and_b32 v{t2}, 2048, v{vMG}
    """ + "".join(f"""
    s_add_u32 s3, s{sKQ}, {c}
    s_and_b32 s3, s3, 3
    s_lshl_b32 s3, s3, 5
    v_xor_b32 v{vWA+c}, s3, v{t1}
    v_add_u32 v{vWA+4+c}, v{vWA+c}, v{t2}
    """ for c in range(4)) + f"""
    v_mov_b32 v{t4}, {BIG}
    v_lshlrev_b32 v{vKq}, 9, v{vG}
    v_lshl_add_u32 v{vKq}, v{vR15}, 4, v{vKq}
    v_lshlrev_b32 v{vOo}, 6, v{vR15}
    v_lshl_add_u32 v{vOo}, v{vG}, 4, v{vOo}
    v_lshlrev_b32 v{vVa}, 8, v{t0}
    v_lshl_add_u32 v{vVa}, v{vG}, 6, v{vVa}
    v_lshl_add_u32 v{vVa}, v{t3}, 4, v{vVa}
    v_add_u32 v{vVb}, 1024, v{vVa}
    v_cmp_gt_u32 vcc, 12, v{vR15}
    v_cndmask_b32 v{vVb}, v{t4}, v{vVb}, vcc
    v_cmp_eq_u32 vcc, 12, v{vR15}
    v_mov_b32 v{t4}, 0x3f803f80
    v_cndmask_b32 v{vOne}, 0, v{t4}, vcc
    v_mov_b32 v{vC}, {CSC}
    v_mov_b32 v{vNEG}, {NEG}
    s_and_b32 s3, s{sWAVE}, 6
    s_lshl_b32 s3, s3, 10
    s_add_u32 s3, s3, {L_KV}
    v_add_u32 v{vKa}, s3, v{vL16}
    s_mul_i32 s3, s{sAH}, 7
    s_lshr_b32 s{sHQ}, s3, 1
    s_lshl_b32 s{sHQ}, s{sHQ}, 9
    s_lshl_b32 s{sHB}, s3, 8
    v_cmp_lt_u32 vcc, 15, v{vL}
    v_cndmask_b32 v{t0}, 0, -1, vcc
    s_bitcmp1_b32 s{sAH}, 0
    s_cselect_b64 vcc, -1, 0
    v_cndmask_b32 v{vQm}, -1, v{t0}, vcc
    v_cndmask_b32 v{vQm+1}, v{vMG}, -1, vcc
    s_mul_i32 s3, s{sWAVE}, 3
    s_lshl_b32 s{sT}, s{sARB}, 3
    s_sub_u32 s{sT}, s{sT}, 16
    s_add_u32 s{sT}, s{sT}, s3
    s_lshl_b32 s3, s3, 10
    s_add_u32 s3, s3, {L_KV}
    v_add_u32 v{vKw}, s3, v{vL16}
    v_subrev_u32 v{t0}, 1024, v{vVb}
    s_bitcmp1_b32 s{sWAVE}, 0
    s_cselect_b64 vcc, -1, 0
    v_cndmask_b32 v{vV0}, v{vVa}, v{t0}, vcc
    v_cndmask_b32 v{vV1}, v{t0}, v{vVa}, vcc
    v_cndmask_b32 v{vOn0}, 0, v{vOne}, vcc
    v_cndmask_b32 v{vOn1}, v{vOne}, 0, vcc
    """ + "".join(f"""
    s_ashr_i32 s34, s{sT}, 1
    s_mul_i32 s34, s34, 28672
    s_and_b32 s35, s{sT}, 1
    s_lshl_b32 s3, s35, 10
    s_add_u32 s3, s3, s34
    s_add_u32 s3, s3, s{sHB}
    s_add_u32 s3, s3, {VO}
    s_lshl_b32 s35, s35, 8
    s_add_u32 s35, s35, s34
    s_add_u32 s35, s35, s{sHQ}
    s_add_u32 s35, s35, {KO}
    s_cmp_lt_i32 s{sT}, 0
    s_cselect_b32 s{sV[i]}, {BIG}, s3
    s_cselect_b32 s{sK[i]}, {BIG}, s35
    s_add_u32 s{sT}, s{sT}, 1
    """ for i in range(3)) + f"""
    s_lshl_b32 s3, s{sARB}, 3
    s_add_u32 s3, s3, s{sWAVE}
    s_lshr_b32 s34, s3, 1
    s_mul_i32 s34, s34, 28672
    s_and_b32 s35, s3, 1
    s_lshl_b32 s35, s35, 8
    s_add_u32 s35, s35, s34
    s_add_u32 s{sQA}, s35, s{sHQ}
    s_lshl_b32 s3, s3, 4
    s_add_u32 s3, s3, s{sAH}
    s_lshl_b32 s3, s3, 10
    s_add_u32 s33, s3, {OA}
    s_mul_i32 s3, s{sAH}, 7
    s_lshr_b32 s34, s3, 3
    s_add_u32 s3, s3, 6
    s_lshr_b32 s35, s3, 3
    s_sub_u32 s35, s35, s34
    v_and_b32 v{t0}, 1, v{vL}
    v_mul_u32_u24 v{t0}, s35, v{t0}
    v_add_u32 v{t0}, s34, v{t0}
    v_min_u32 v{t1}, 11, v{vL}
    v_lshrrev_b32 v{t1}, 1, v{t1}
    s_lshl_b32 s3, s{sARB}, 1
    s_sub_u32 s3, s3, 4
    v_add_u32 v{t1}, s3, v{t1}
    v_max_i32 v{t1}, 0, v{t1}
    v_lshl_add_u32 v{t1}, v{t1}, 4, v{t0}
    v_lshlrev_b32 v{vPA}, 7, v{t1}
    s_lshl_b32 s3, s{sRB64}, 2
    s_lshl_b32 s35, s{sRP}, 1
    s_add_u32 s3, s3, s35
    s_lshl_b32 s3, s3, 4
    s_lshl_b32 s35, s{sKQ}, 2
    s_add_u32 s3, s3, s35
    s_lshl_b32 s3, s3, 10
    s_add_u32 s{sOB}, s3, {OB}
    s_add_u32 s{sOB+1}, s{sOB}, 16384
    s_add_u32 s{sOA}, s3, {OA}
    s_add_u32 s{sOA+1}, s{sOA}, 16384
    s_mov_b32 s15, {FL1}
    """
    def normalize(O0, O1, ta, tb, dst):
        return [
            [f"v_mov_b32 v{ta}, v{O1}", f"v_mov_b32 v{tb}, v{O1}"],
            [f"v_permlane32_swap_b32 v{ta}, v{tb}"],
            [f"v_mov_b32 v{ta}, v{tb}"],
            [f"v_permlane16_swap_b32 v{ta}, v{tb}"],
            [f"v_rcp_f32 v{tb}, v{tb}"],
            [f"v_mul_f32 v{O0+i}, v{O0+i}, v{tb}" for i in range(4)] + [f"v_mul_f32 v{O1+i}, v{O1+i}, v{tb}" for i in range(4)],
            [f"v_cvt_pk_bf16_f32 v{dst}, v{O0}, v{O0+1}", f"v_cvt_pk_bf16_f32 v{dst+1}, v{O0+2}, v{O0+3}",
             f"v_cvt_pk_bf16_f32 v{dst+2}, v{O1}, v{O1+1}", f"v_cvt_pk_bf16_f32 v{dst+3}, v{O1+2}, v{O1+3}"],
            [f"v_bfi_b32 v{dst+3}, v{vMG}, v{dst+3}, v{vTAG}"],
        ]
    vXe, vXo, vW0, vW1, vWo, vPw = 10, 11, 13, 14, 15, 17
    sLW, sLx, sLw, sT0, sT1 = 96, 97, 101, 34, 35
    sLwo, sL1k = 14, 15
    a(f"""
    s_sub_u32 s{sLW}, s{sWAVE}, 4
    s_lshl_b32 s{sT0}, s{sRB}, 7
    s_lshl_b32 s{sT1}, s{sLW}, 5
    s_add_u32 s{sT0}, s{sT0}, s{sT1}
    v_add_u32 v4, s{sT0}, v1
    v_mul_u32_u24 v4, 896, v4
    v_xor_b32 v5, v2, v3
    v_lshl_add_u32 v{vXe}, v5, 4, v4
    v_xor_b32 v5, 4, v5
    v_lshl_add_u32 v{vXo}, v5, 4, v4
    v_add_u32 v{vXo}, 6144, v{vXo}
    s_lshl_b32 s{sLx}, s{sLW}, 12
    s_lshl_b32 s{sLw}, s{sLW}, 11
    s_lshl_b32 s{sT1}, s{sLW}, 4
    v_add_u32 v4, s{sT1}, v1
    v_mul_u32_u24 v4, 2688, v4
    s_lshl_b32 s{sT1}, s{sLAM}, 7
    v_add_u32 v4, s{sT1}, v4
    v_and_b32 v5, 1, v3
    v_lshlrev_b32 v5, 2, v5
    v_xor_b32 v5, v2, v5
    v_lshl_add_u32 v{vW0}, v5, 4, v4
    v_add_u32 v{vW1}, {8*2688-1024}, v{vW0}
    s_mov_b32 s{sX+2}, {XB}
    s_mov_b32 s{sX+3}, 0x20000
    s_mov_b32 s{sW+2}, {WB}
    s_mov_b32 s{sW+3}, 0x20000
    s_waitcnt lgkmcnt(0)
    s_mov_b32 s{sX}, s16
    s_mov_b32 s{sX+1}, s17
    s_mov_b32 s{sW}, s18
    s_mov_b32 s{sW+1}, s19
    """)
    stamp(0)
    a(f"""
    s_cmp_eq_u32 s{sLAM}, 7
    s_cbranch_scc1 L_ld_idle
    """)
    order = []
    def D(c):
        slot = ((c + 1) % 4) * SLOT
        a(f"""
        s_add_u32 m0, s{sLx}, {slot}
        s_mov_b32 s{sT0}, {c*128}
        s_mov_b32 s{sT1}, {c*128 + 12288}
        buffer_load_dwordx4 v{vXe}, {srd(sX)}, s{sT0} offen lds
        buffer_load_dwordx4 v{vXo}, {srd(sX)}, s{sT0} offen offset:1024 lds
        buffer_load_dwordx4 v{vXe}, {srd(sX)}, s{sT1} offen offset:2048 lds
        buffer_load_dwordx4 v{vXo}, {srd(sX)}, s{sT1} offen offset:3072 lds
        """)
        for p in (1, 2, 0):
            a(f"""
            s_add_u32 m0, s{sLw}, {slot + 16384 + p*8192}
            s_mov_b32 s{sT1}, {c*64*2688 + p*896}
            buffer_load_dwordx4 v{vW0}, {srd(sW)}, s{sT1} offen lds
            buffer_load_dwordx4 v{vW1}, {srd(sW)}, s{sT1} offen offset:1024 lds
            """)
        order.extend([c] * 10)
    def Wt(c):
        last = max(i for i, o in enumerate(order) if o == c)
        a(f"s_waitcnt vmcnt({len(order) - 1 - last})")
        if c == 0: stamp(1)
        a("s_barrier")
    wo_setup = rest_setup + f"""
    v_and_b32 v5, 6, v1
    v_xor_b32 v5, v2, v5
    v_mul_u32_u24 v4, 896, v1
    s_lshl_b32 s{sT1}, s{sCB}, 7
    v_add_u32 v4, s{sT1}, v4
    v_lshl_add_u32 v{vWo}, v5, 4, v4
    s_cmp_eq_u32 s{sCB}, 7
    s_cselect_b64 vcc, -1, 0
    v_mov_b32 v7, {BIG}
    v_cndmask_b32 v{vWo}, v{vWo}, v7, vcc
    v_mov_b32 v1, 0
    s_mul_i32 s3, s14, 98
    s_and_b32 s{sT1}, s{sLW}, 1
    s_mul_i32 s{sT1}, s{sT1}, 49
    s_add_u32 s3, s3, s{sT1}
    v_min_u32 v4, 48, v{vL}
    v_add_u32 v4, s3, v4
    v_lshlrev_b32 v{vPw}, 7, v4
    s_mul_i32 s{sLwo}, s{sLW}, 7168
    s_lshl_b32 s{sL1k}, s{sLW}, 10
    global_load_dword v{vTAG}, v1, s[30:31] sc1
    """
    def issue_wo(i0, i1):
        for i in range(i0, i1):
            br = i >= 14
            a(f"""
            s_add_u32 m0, s{sL1k}, {4096*i}
            s_add_u32 s{sT1}, s{sLwo}, {(4*i - 56*br)*7168}
            buffer_load_dwordx4 v{vWo}, {srd(sWoA if br else sWoB)}, s{sT1} offen lds
            """)
            order.append("wo")
    vPf = 16
    sPS, sPO = 60, 61
    PFN = " nt" if opt.get("pnt", 0) else ""
    def pf_setup(wmul):
        a(f"""
        s_and_b32 s{sT0}, s13, 2
        s_lshl_b32 s{sT0}, s{sT0}, 9
        s_lshl_b32 s{sT1}, s14, 5
        s_add_u32 s{sT0}, s{sT0}, s{sT1}
        v_min_u32 v4, 31, v{vL}
        v_add_u32 v4, s{sT0}, v4
        v_mul_u32_u24 v{vPf}, 896, v4
        v_min_u32 v4, 23, v{vL}
        v_cmp_le_u32 vcc, 12, v4
        v_cndmask_b32 v5, 0, 1, vcc
        v_mul_u32_u24 v6, 12, v5
        v_sub_u32 v6, v4, v6
        s_lshl_b32 s{sT0}, s14, 1
        v_add_u32 v5, s{sT0}, v5
        v_mul_u32_u24 v5, 2688, v5
        v_lshrrev_b32 v4, 2, v6
        v_mul_u32_u24 v4, 896, v4
        v_add_u32 v5, v5, v4
        v_and_b32 v6, 3, v6
        v_lshl_add_u32 v5, v6, 7, v5
        s_and_b32 s{sT0}, s13, 1
        s_mul_i32 s{sT0}, s{sT0}, {wmul}
        v_add_u32 v5, s{sT0}, v5
        s_bitcmp1_b32 s{sLW}, 0
        s_cselect_b64 vcc, -1, 0
        s_mov_b32 s{sPS}, 128
        s_cselect_b32 s{sPS}, 172032, s{sPS}
        s_cselect_b32 s44, s{sW}, s{sX}
        s_cselect_b32 s45, s{sW+1}, s{sX+1}
        s_cselect_b32 s46, s{sW+2}, s{sX+2}
        s_mov_b32 s47, 0x20000
        v_cndmask_b32 v{vPf}, v{vPf}, v5, vcc
        s_lshr_b32 s{sPO}, s{sLW}, 1
        s_add_u32 s{sPO}, s{sPO}, 1
        s_mul_i32 s{sPO}, s{sPO}, s{sPS}
        s_lshl_b32 s{sPS}, s{sPS}, 1
        """)
    def pf():
        a(f"""
        buffer_load_dword v20, v{vPf}, s[44:47], s{sPO} offen{PFN}
        s_add_u32 s{sPO}, s{sPO}, s{sPS}
        """)
        order.append("pf")
    PMA, PMB = opt.get("pma", 1), opt.get("pmb", 2)
    def head(Dx, wmul):
        PM = PMA if wmul == 512 else PMB
        if PM == 0: Dx(0); Dx(1); Wt(0); Dx(2); Wt(1); Dx(3)
        elif PM == 1: Dx(0); pf_setup(wmul); pf(); Dx(1); Wt(0); Dx(2); pf(); pf(); Wt(1); Dx(3)
        elif PM == 2: Dx(0); pf_setup(wmul); pf(); Dx(1); Wt(0); pf(); Dx(2); Wt(1); pf(); Dx(3)
        elif PM == 3: Dx(0); pf_setup(wmul); pf(); pf(); pf(); Dx(1); Wt(0); Dx(2); Wt(1); Dx(3)
    def pf_wo(l):
        if opt.get("nopw"): return
        a(f"""
        s_cmp_lt_u32 s{sLW}, 2
        s_cbranch_scc1 L_pwB{l}
        buffer_load_dword v20, v{vPw}, {srd(sWoA)}, 0 offen
        s_branch L_pwD{l}
        L_pwB{l}:
        buffer_load_dword v20, v{vPw}, {srd(sWoB)}, 0 offen
        L_pwD{l}:
        """)
        order.append("pfw")
    head(D, 512)
    a(wo_setup); order.append("tag")
    if opt.get("seq", 0) == 1:
        Wt(2); D(4); Wt(3); D(5); pf_wo(0); Wt(4); D(6); issue_wo(0, 10); Wt(5); issue_wo(10, 20); Wt(6)
    elif opt.get("seq", 0) == 0:
        Wt(2); D(4); Wt(3); D(5); Wt(4); D(6); pf_wo(0); Wt(5)
        DEF = opt.get("defer", 2)
        if DEF < 4: issue_wo(0, 10)
        Wt(6)
        if DEF >= 2: a("s_barrier")
        if DEF == 4: issue_wo(0, 10)
        issue_wo(10, 20)
        if DEF == 1: a("s_barrier")
    else:
        Wt(2); D(4); Wt(3); D(5); Wt(4); D(6); pf_wo(0); Wt(5); issue_wo(0, 14); Wt(6); a("s_sleep 16"); issue_wo(14, 20)
    a("s_branch L_ld2")
    a.raw("L_ld_idle:")
    if PMA: pf_setup(512); pf(); pf(); pf()
    a(wo_setup)
    pf_wo(1)
    issue_wo(0, 20)
    a.raw("L_ld2:")
    issue_wo(20, 28)
    a(p2common)
    a("s_waitcnt vmcnt(28)" if opt.get("nowait", 0) else "s_waitcnt vmcnt(0)")
    get_tag("l")
    if not opt.get("lp"):
        a(f"""
        s_cmp_lg_u32 s{sWAVE}, 7
        s_cbranch_scc1 L_pollok1
        """)
        poll("1", vPA, 9)
    stamp(2)
    a("s_branch L_phase2")

    a.raw("L_compute:")
    sCH, sRH = 96, 97
    sSQ, sSK, sSV, sSQh, sSKh, sFl = 36, 37, 38, 39, 40, 41
    def Acc(p, rt): return p*32 + rt*16
    def Fx(s, rt): return 96 + 20*s + 4*rt
    def Fw(s, p): return 96 + 20*s + 8 + 4*p
    vxa = [200, 201, 202, 203]; vwa = 204
    vQo, vVo = 205, 206
    slot0 = SLOT
    a(f"""
    s_waitcnt lgkmcnt(0)
    v_mov_b32 v1, 0
    {'' if opt.get('swap', 1) else TAGC}
    """)
    stamp(0)
    a(rest_setup)
    prefetch('a')
    a(f"""
    s_and_b32 s{sCH}, s{sWAVE}, 1
    s_lshr_b32 s{sRH}, s{sWAVE}, 1
    s_cmp_eq_u32 s{sLAM}, 7
    s_cbranch_scc1 L_cmp_idle
    v_and_b32 v2, 31, v{vL}
    v_lshrrev_b32 v3, 5, v{vL}
    v_bfe_u32 v4, v{vL}, 2, 2
    s_lshl_b32 s3, s{sLAM}, 1
    s_add_u32 s3, s3, s{sCH}
    s_lshl_b32 s34, s3, 11
    v_add_u32 v{vQo}, s34, v{vL16}
    v_bfe_u32 v6, v{vL}, 4, 1
    v_lshlrev_b32 v6, 2, v6
    v_and_b32 v7, 1, v4
    v_lshl_add_u32 v6, v7, 1, v6
    v_lshrrev_b32 v7, 1, v4
    v_add_u32 v6, v6, v7
    v_lshl_add_u32 v7, v6, 8, s34
    v_lshl_add_u32 v7, v3, 6, v7
    v_and_b32 v8, 3, v{vL}
    v_lshl_add_u32 v{vVo}, v8, 4, v7
    s_lshl_b32 s34, s{sRB}, 1
    s_add_u32 s34, s34, s{sRH}
    s_mul_i32 s{sSQ}, s34, 57344
    s_add_u32 s{sSQh}, s{sSQ}, 28672
    s_add_u32 s{sSK}, s{sSQ}, {KO}
    s_add_u32 s{sSKh}, s{sSQh}, {KO}
    s_add_u32 s{sSV}, s{sSQ}, {VO}
    s_add_u32 s15, s{sSQh}, {VO}
    s_lshl_b32 s34, s34, 4
    s_add_u32 s34, s34, s3
    s_lshl_b32 s34, s34, 7
    s_add_u32 s{sFl}, s34, {FL1}
    """)
    def qkv_stores(data):
        for p, lo, hi in ((1, sSK, sSKh), (2, None, None), (0, sSQ, sSQh)):
            for rt in range(2):
                for half in range(2):
                    d = data(p, rt, half)
                    if p == 2: a(f"buffer_store_dwordx4 {q4(d)}, v{vVo}, {srd(sWS)}, s{sSV} offen offset:{rt*2048 + half*128} sc1")
                    else: a(f"buffer_store_dwordx4 {q4(d)}, v{vQo}, {srd(sWS)}, s{hi if half else lo} offen offset:{rt*512} sc1")
    a(f"""
    global_load_dword v{vTAG}, v1, s[30:31] sc1
    s_lshl_b32 s3, s{sRH}, 6
    v_add_u32 v5, s3, v2
    v_lshlrev_b32 v5, 7, v5
    v_bfe_u32 v6, v2, 1, 3
    v_xor_b32 v6, v6, v3
    v_lshl_add_u32 v{vxa[0]}, v6, 4, v5
    v_add_u32 v{vxa[0]}, {slot0}, v{vxa[0]}
    v_xor_b32 v{vxa[1]}, 32, v{vxa[0]}
    v_xor_b32 v{vxa[2]}, 64, v{vxa[0]}
    v_xor_b32 v{vxa[3]}, 96, v{vxa[0]}
    v_lshl_add_u32 v6, v3, 3, v4
    v_lshlrev_b32 v6, 7, v6
    v_add_u32 v6, {slot0 + 16384}, v6
    v_bfe_u32 v7, v{vL}, 4, 1
    v_lshlrev_b32 v7, 5, v7
    v_and_b32 v8, 1, v{vL}
    v_lshl_or_b32 v7, v8, 4, v7
    v_bfe_u32 v8, v{vL}, 1, 1
    v_lshl_or_b32 v7, v8, 3, v7
    s_lshl_b32 s3, s{sCH}, 6
    v_or_b32 v7, s3, v7
    v_and_b32 v8, 2, v4
    v_lshlrev_b32 v8, 5, v8
    v_xor_b32 v7, v7, v8
    v_add_u32 v{vwa}, v6, v7
    """)
    def reads(s, ks):
        L = [f"ds_read_b128 {q4(Fx(s,rt))}, v{vxa[ks]} offset:{rt*4096}" for rt in range(2)]
        for p in (1, 2, 0):
            for u in range(2):
                L.append(f"ds_read_b64_tr_b16 {q2(Fw(s, p) + 2*u)}, v{vwa} offset:{p*8192 + ks*2048 + u*512}")
        return L
    def kstep(s, rd, extra=(), zero=False):
        M = []
        for p in (1, 2, 0):
            for rt in range(2):
                A, B = (Fx(s,rt), Fw(s,p)) if p == 2 else (Fw(s,p), Fx(s,rt))
                M.append(f"v_mfma_f32_32x32x16_bf16 {q16(Acc(p,rt))}, {q4(A)}, {q4(B)}, {'0' if zero else q16(Acc(p,rt))}")
        per = [3, 3, 2, 0, 0, 0]
        k = 0
        extra = list(extra)
        for i, m in enumerate(M):
            a(m)
            for _ in range(per[i]):
                if k < len(rd): a(rd[k]); k += 1
            if i >= 3:
                for _ in range(4):
                    if extra: a(extra.pop(0))
        for e in extra: a(e)
    sC, sD = 42, 43
    a("s_barrier")
    stamp(1)
    for r in reads(0, 0): a(r)
    a(f"s_mov_b32 s{sC}, 0")
    ex0 = [f"s_and_b32 s3, s{sC}, 3", f"s_cmp_eq_u32 s3, 2", f"s_mov_b32 s{sD}, {SLOT}",
           f"s_cselect_b32 s{sD}, {(-3*SLOT) & 0xffffffff}, s{sD}",
           f"v_add_u32 v{vxa[0]}, s{sD}, v{vxa[0]}", f"v_add_u32 v{vxa[1]}, s{sD}, v{vxa[1]}"]
    a("s_waitcnt lgkmcnt(0)")
    kstep(0, reads(1, 1), ex0, zero=True)
    a("s_branch L_gemm1")
    a.raw("L_gemm:")
    a("s_waitcnt lgkmcnt(0)")
    kstep(0, reads(1, 1), ex0)
    a.raw("L_gemm1:")
    a("s_waitcnt lgkmcnt(0)")
    kstep(1, reads(0, 2), [f"v_add_u32 v{vxa[2]}, s{sD}, v{vxa[2]}"])
    a("s_waitcnt lgkmcnt(0)")
    kstep(0, reads(1, 3), [f"v_add_u32 v{vxa[3]}, s{sD}, v{vxa[3]}", f"v_add_u32 v{vwa}, s{sD}, v{vwa}",
                           f"s_add_u32 s{sC}, s{sC}, 1", f"s_cmp_lt_u32 s{sC}, 6"])
    a("s_waitcnt lgkmcnt(0)")
    a("s_barrier")
    kstep(1, reads(0, 0))
    a("s_cbranch_scc1 L_gemm")
    def cvt(d, s0): a(f"v_cvt_pk_bf16_f32 v{d}, v{s0}, v{s0+1}")
    def mf(p, rt, ks):
        A, B = (Fx(ks,rt), Fw(ks,p)) if p == 2 else (Fw(ks,p), Fx(ks,rt))
        return f"v_mfma_f32_32x32x16_bf16 {q16(Acc(p,rt))}, {q4(A)}, {q4(B)}, {q16(Acc(p,rt))}"
    rd = []
    for ks in (1, 2, 3):
        r = reads(ks, ks); rd += r[0:4]
    for ks in (1, 2, 3): rd += reads(ks, ks)[6:8]
    for ks in (1, 2, 3): rd += reads(ks, ks)[4:6]
    a("s_waitcnt vmcnt(0) lgkmcnt(0)")
    k = 0
    for p in (1, 0, 2):
        for rt in range(2):
            a(mf(p, rt, 0))
            for _ in range(3): a(rd[k]); k += 1
    def epi(p):
        L = []
        for rt in range(2):
            for half in range(2):
                if p == 2:
                    d = 176 + (rt*2+half)*4; s0 = Acc(2, rt) + 4*half
                    L += [f"v_cvt_pk_bf16_f32 v{d}, v{s0}, v{s0+1}", f"v_cvt_pk_bf16_f32 v{d+1}, v{s0+2}, v{s0+3}",
                          f"v_cvt_pk_bf16_f32 v{d+2}, v{s0+8}, v{s0+9}", f"v_cvt_pk_bf16_f32 v{d+3}, v{s0+10}, v{s0+11}",
                          f"buffer_store_dwordx4 {q4(d)}, v{vVo}, {srd(sWS)}, s{15 if rt else sSV} offen offset:{half*128} sc1"]
                else:
                    d = Acc(p, rt) + 8*half
                    lo, hi = (sSK, sSKh) if p == 1 else (sSQ, sSQh)
                    L += [f"v_cvt_pk_bf16_f32 v{d+i}, v{d+2*i}, v{d+2*i+1}" for i in range(4)]
                    L += [f"buffer_store_dwordx4 {q4(d)}, v{vQo}, {srd(sWS)}, s{hi if rt else lo} offen offset:{half*1024} sc1"]
        return L
    for n, ks in enumerate((1, 2, 3)):
        a(f"s_waitcnt lgkmcnt({min(15, k - 4*(n+1))})")
        for rt in range(2):
            a(mf(1, rt, ks))
            if k < 24: a(rd[k]); k += 1
    pend = epi(1)
    for p, nxt, base in ((0, 0, 12), (2, None, 18)):
        for n, ks in enumerate((1, 2, 3)):
            a(f"s_waitcnt lgkmcnt({24 - base - 2*(n+1)})")
            for rt in range(2):
                a(mf(p, rt, ks))
                if n or rt:
                    for _ in range(4):
                        if pend: a(pend.pop(0))
        for x in pend: a(x)
        pend = epi(p)
    stamp(3)
    for x in pend: a(x)
    if opt.get("defer", 2) in (1, 2): a("s_barrier")
    stamp(2)
    a("v_mov_b32 v227, 0")
    a("s_waitcnt vmcnt(0)")
    get_tag("c")
    a(f"""
    s_mov_b64 exec, 1
    buffer_store_dword v{vTAG}, v227, {srd(sWS)}, s{sFl} offen sc1
    s_mov_b64 exec, -1
    """)
    stamp(4)
    if opt.get("defer", 2) >= 3: a("s_barrier")
    a("s_branch L_cmp2")
    a.raw("L_cmp_idle:")
    a(f"global_load_dword v{vTAG}, v1, s[30:31] sc1")
    a("s_waitcnt vmcnt(0)")
    get_tag("i")
    a.raw("L_cmp2:")
    a(p2common)
    a("s_branch L_phase2")
    a.raw("L_brB:")
    SLB = 43008
    SB0 = 34816
    a(MAPB)
    a(f"""
    s_cmp_lt_u32 s{sWAVE}, 4
    s_cbranch_scc1 L_cmpB
    """)
    vXh = 12
    sLh = 63
    a(f"""
    s_sub_u32 s{sLW}, s{sWAVE}, 4
    s_lshl_b32 s{sT0}, s{sRB}, 7
    s_lshl_b32 s{sT1}, s{sLW}, 5
    s_add_u32 s{sT0}, s{sT0}, s{sT1}
    v_add_u32 v4, s{sT0}, v1
    v_mul_u32_u24 v4, 896, v4
    v_xor_b32 v5, v2, v3
    v_lshl_add_u32 v{vXe}, v5, 4, v4
    v_xor_b32 v5, 4, v5
    v_lshl_add_u32 v{vXo}, v5, 4, v4
    v_add_u32 v{vXo}, 6144, v{vXo}
    s_lshl_b32 s{sLx}, s{sLW}, 12
    s_lshl_b32 s{sLw}, s{sLW}, 11
    s_lshl_b32 s{sLh}, s{sLW}, 9
    s_lshl_b32 s{sT1}, s{sLW}, 4
    v_add_u32 v4, s{sT1}, v1
    v_mul_u32_u24 v4, 2688, v4
    s_mul_i32 s{sT1}, s{sLAM}, 112
    v_add_u32 v4, s{sT1}, v4
    v_and_b32 v5, 1, v3
    v_lshlrev_b32 v5, 1, v5
    v_xor_b32 v5, v2, v5
    v_mov_b32 v7, {BIG}
    v_lshl_add_u32 v{vW0}, v5, 4, v4
    v_cmp_eq_u32 vcc, 7, v5
    v_xor_b32 v6, 4, v5
    v_cndmask_b32 v{vW0}, v{vW0}, v7, vcc
    v_lshl_add_u32 v{vW1}, v6, 4, v4
    v_cmp_eq_u32 vcc, 7, v6
    v_add_u32 v{vW1}, {8*2688-1024}, v{vW1}
    v_cndmask_b32 v{vW1}, v{vW1}, v7, vcc
    s_lshl_b32 s{sT0}, s{sRB}, 7
    s_lshl_b32 s{sT1}, s{sLW}, 2
    s_add_u32 s{sT0}, s{sT0}, s{sT1}
    s_sub_u32 s{sT0}, s{sT0}, 16
    v_add_u32 v4, s{sT0}, v1
    v_mul_i32_i24 v4, 896, v4
    s_lshl_b32 s{sT1}, s{sLW}, 1
    v_add_u32 v5, s{sT1}, v3
    v_and_b32 v5, 7, v5
    v_xor_b32 v5, v2, v5
    v_lshl_add_u32 v{vXh}, v5, 4, v4
    s_cmp_eq_u32 s{sRB}, 0
    s_cselect_b64 vcc, -1, 0
    v_cndmask_b32 v{vXh}, v{vXh}, v7, vcc
    s_mov_b32 s{sX+2}, {XB}
    s_mov_b32 s{sX+3}, 0x20000
    s_mov_b32 s{sW+2}, {WB}
    s_mov_b32 s{sW+3}, 0x20000
    s_waitcnt lgkmcnt(0)
    s_mov_b32 s{sX}, s22
    s_mov_b32 s{sX+1}, s23
    s_mov_b32 s{sW}, s24
    s_mov_b32 s{sW+1}, s25
    """)
    stamp(0)
    del order[:]
    def DB(c):
        slot = SB0 + ((c + 2) % 3) * SLB
        a(f"""
        s_add_u32 m0, s{sLx}, {slot + 2048}
        s_mov_b32 s{sT0}, {c*128}
        s_mov_b32 s{sT1}, {c*128 + 12288}
        buffer_load_dwordx4 v{vXe}, {srd(sX)}, s{sT0} offen lds
        buffer_load_dwordx4 v{vXo}, {srd(sX)}, s{sT0} offen offset:1024 lds
        buffer_load_dwordx4 v{vXe}, {srd(sX)}, s{sT1} offen offset:2048 lds
        buffer_load_dwordx4 v{vXo}, {srd(sX)}, s{sT1} offen offset:3072 lds
        """)
        for p in range(3):
            a(f"""
            s_add_u32 m0, s{sLw}, {slot + 18432 + p*8192}
            s_mov_b32 s{sT1}, {c*64*2688 + p*896}
            buffer_load_dwordx4 v{vW0}, {srd(sW)}, s{sT1} offen lds
            buffer_load_dwordx4 v{vW1}, {srd(sW)}, s{sT1} offen offset:1024 lds
            """)
        a(f"""
        s_add_u32 m0, s{sLh}, {slot}
        s_mov_b64 exec, 0xffffffff
        buffer_load_dwordx4 v{vXh}, {srd(sX)}, s{sT0} offen lds
        s_mov_b64 exec, -1
        """)
        order.extend([c] * 11)
    head(DB, 384)
    a(wo_setup); order.append("tag")
    Wt(2); DB(4); Wt(3); DB(5); Wt(4); DB(6); pf_wo(2); Wt(5); issue_wo(0, 10); Wt(6); issue_wo(10, 20)
    a("s_branch L_ld2")
    a.raw("L_cmpB:")
    sHH = 96
    def Qa(rt, ft): return ((rt-1)*2+ft)*4
    def Ka(rt, ft): return 32 + (rt*2+ft)*4
    def Va(rt, ft): return 72 + (rt*2+ft)*4
    def Gx(s, rt): return 112 + 44*s + 4*rt
    def Gw(s, p, ft): return 112 + 44*s + 20 + (p*2+ft)*4
    bxa = [200, 201]; bwa = [202, 203]
    vBS, vBP, vBP1 = 204, 208, 212
    sl0 = SB0 + 2 * SLB
    a(f"""
    s_and_b32 s{sHH}, s{sWAVE}, 1
    s_lshr_b32 s{sRH}, s{sWAVE}, 1
    v_and_b32 v2, 15, v{vL}
    s_lshl_b32 s3, s{sRH}, 6
    v_add_u32 v4, s3, v2
    v_lshlrev_b32 v4, 7, v4
    v_lshrrev_b32 v5, 1, v2
    v_xor_b32 v5, v5, v3
    v_lshl_add_u32 v{bxa[0]}, v5, 4, v4
    v_add_u32 v{bxa[0]}, {sl0}, v{bxa[0]}
    v_xor_b32 v{bxa[1]}, 64, v{bxa[0]}
    v_lshrrev_b32 v4, 2, v2
    v_and_b32 v5, 3, v{vL}
    v_lshl_add_u32 v6, v3, 3, v4
    v_lshlrev_b32 v6, 7, v6
    v_add_u32 v6, {sl0 + 18432}, v6
    v_and_b32 v7, 2, v4
    v_and_b32 v8, 1, v3
    v_lshl_or_b32 v7, v8, 2, v7
    v_lshlrev_b32 v7, 4, v7
    s_mul_i32 s3, s{sHH}, 56
    v_lshl_add_u32 v8, v5, 3, s3
    v_xor_b32 v9, v8, v7
    v_add_u32 v{bwa[0]}, v6, v9
    v_add_u32 v8, 32, v8
    v_cmp_eq_u32 vcc, 56, v8
    v_mov_b32 v9, 120
    v_cndmask_b32 v8, v8, v9, vcc
    v_xor_b32 v9, v8, v7
    v_add_u32 v{bwa[1]}, v6, v9
    v_cmp_eq_u32 vcc, 12, v2
    v_cndmask_b32 v216, 0, 1.0, vcc
    v_mov_b32 v217, v216
    v_mov_b32 v218, v216
    v_mov_b32 v219, v216
    s_lshl_b32 s34, s{sRB}, 1
    s_add_u32 s34, s34, s{sRH}
    s_lshl_b32 s37, s34, 6
    s_lshl_b32 s3, s{sLAM}, 1
    s_add_u32 s3, s3, s{sHH}
    s_add_u32 s3, s3, s37
    s_lshl_b32 s3, s3, 10
    s_add_u32 s36, s3, {OB}
    s_mov_b32 s37, s34
    v_mov_b32 v1, 0
    s_waitcnt lgkmcnt(0)
    {TAGC if opt.get('swap', 1) else ''}
    """)
    stamp(0)
    pc = [l for l in p2common.split("\n") if l.strip()]
    cut = next(k for k in range(len(pc)) if pc[k].strip().startswith("s_mul_i32 s3, s%d, 3" % sWAVE))
    bias = f"""
    v_mov_b32 v224, {NEG}
    v_and_b32 v220, 15, v{vL}
    v_lshrrev_b32 v221, 4, v{vL}
    v_lshlrev_b32 v221, 2, v221
    v_sub_u32 v220, v220, v221
    """ + "".join(f"""
    v_subrev_u32 v221, {i}, v220
    v_and_b32 v222, 0x80000001, v221
    v_cmp_eq_u32 vcc, 0, v222
    v_cndmask_b32 v{vBS+i}, v224, 0, vcc
    v_cmp_eq_u32 vcc, 0x80000000, v222
    v_cndmask_b32 v{vBP+i}, v224, 0, vcc
    """ for i in range(4)) + """
    s_cmp_eq_u32 s37, 0
    s_cselect_b64 vcc, -1, 0
    """ + "".join(f"v_cndmask_b32 v{vBP1+i}, v{vBP+i}, v224, vcc\n" for i in range(4))
    pieces = [rest_setup + f"v_mov_b32 v227, 0\nglobal_load_dword v{vTAG}, v227, s[30:31] sc1\n" + bias, "\n".join(pc[:cut]), "\n".join(pc[cut:])]
    def breads(s, ks):
        L = [f"ds_read_b128 {q4(Gx(s,rt))}, v{bxa[ks]} offset:{rt*2048}" for rt in (1, 2, 3, 4, 0)]
        for p in range(3):
            for ft in range(2):
                for u in range(2):
                    L.append(f"ds_read_b64_tr_b16 {q2(Gw(s,p,ft) + 2*u)}, v{bwa[ft]} offset:{p*8192 + ks*4096 + u*512}")
        return L
    def bstep(s, rd, zero=False):
        M = []
        C = lambda r, z='0': z if zero else q4(r)
        for rt in (1, 2, 3, 4, 0):
            for ft in range(2):
                if rt: M.append(f"v_mfma_f32_16x16x32_bf16 {q4(Qa(rt,ft))}, {q4(Gw(s,0,ft))}, {q4(Gx(s,rt))}, {C(Qa(rt,ft))}")
                M.append(f"v_mfma_f32_16x16x32_bf16 {q4(Ka(rt,ft))}, {q4(Gw(s,1,ft))}, {q4(Gx(s,rt))}, {C(Ka(rt,ft))}")
                M.append(f"v_mfma_f32_16x16x32_bf16 {q4(Va(rt,ft))}, {q4(Gx(s,rt))}, {q4(Gw(s,2,ft))}, {C(Va(rt,ft), q4(216) if ft else '0')}")
        for i, m in enumerate(M):
            a(m)
            if i < len(rd): a(rd[i])
    a("s_barrier")
    stamp(1)
    for r in breads(0, 0): a(r)
    a(f"s_mov_b32 s{sC}, 0")
    a("s_waitcnt lgkmcnt(0)")
    bstep(0, breads(1, 1), zero=True)
    a(pieces[0]); a(pieces[1])
    a(f"""
    s_mul_i32 s3, s{sC}, 86
    s_lshr_b32 s3, s3, 8
    s_mul_i32 s3, s3, 3
    s_cmp_eq_u32 s3, s{sC}
    s_mov_b32 s{sD}, {SLB}
    s_cselect_b32 s{sD}, {(-2*SLB) & 0xffffffff}, s{sD}
    v_add_u32 v{bxa[0]}, s{sD}, v{bxa[0]}
    v_add_u32 v{bxa[1]}, s{sD}, v{bxa[1]}
    v_add_u32 v{bwa[0]}, s{sD}, v{bwa[0]}
    v_add_u32 v{bwa[1]}, s{sD}, v{bwa[1]}
    s_cmp_eq_u32 s{sC}, 6
    s_waitcnt lgkmcnt(0)
    s_cbranch_scc1 L_nobarB0
    s_barrier
    L_nobarB0:
    """)
    bstep(1, breads(0, 0))
    a(pieces[2])
    a(f"s_mov_b32 s{sC}, 1")
    a.raw("L_gemmB:")
    a("s_waitcnt lgkmcnt(0)")
    bstep(0, breads(1, 1))
    a(f"""
    s_mul_i32 s3, s{sC}, 86
    s_lshr_b32 s3, s3, 8
    s_mul_i32 s3, s3, 3
    s_cmp_eq_u32 s3, s{sC}
    s_mov_b32 s{sD}, {SLB}
    s_cselect_b32 s{sD}, {(-2*SLB) & 0xffffffff}, s{sD}
    v_add_u32 v{bxa[0]}, s{sD}, v{bxa[0]}
    v_add_u32 v{bxa[1]}, s{sD}, v{bxa[1]}
    v_add_u32 v{bwa[0]}, s{sD}, v{bwa[0]}
    v_add_u32 v{bwa[1]}, s{sD}, v{bwa[1]}
    s_cmp_eq_u32 s{sC}, 6
    s_waitcnt lgkmcnt(0)
    s_cbranch_scc1 L_nobarB
    s_barrier
    L_nobarB:
    """)
    bstep(1, breads(0, 0))
    a(f"""
    s_add_u32 s{sC}, s{sC}, 1
    s_cmp_lt_u32 s{sC}, 7
    s_cbranch_scc1 L_gemmB
    """)
    stamp(3)
    def Qf(j): return 168 + 4*(j-1)
    def Kf(rt): return 128 + 4*rt
    def Vf(dt, rt): return 148 + 10*dt + 2*rt
    a("s_waitcnt vmcnt(0) lgkmcnt(0)")
    get_tag("b")
    for rt in (1, 2, 3, 4, 0):
        for ft in range(2):
            if rt:
                cvt(Qf(rt)+2*ft, Qa(rt,ft)); cvt(Qf(rt)+2*ft+1, Qa(rt,ft)+2)
            cvt(Kf(rt)+2*ft, Ka(rt,ft)); cvt(Kf(rt)+2*ft+1, Ka(rt,ft)+2)
            cvt(Vf(ft,rt), Va(rt,ft)); cvt(Vf(ft,rt)+1, Va(rt,ft)+2)
    stamp(4)
    a.raw("L_phase2:")
    def wo_reads(base):
        L = []
        for hq in range(4):
            for cidx in range(4):
                for u in range(2):
                    d = base + (hq*4 + cidx)*4 + 2*u
                    L.append(f"ds_read_b64_tr_b16 {q2(d)}, v{vWA + 4*u + ((cidx + 2*(hq&1)) & 3)} offset:{hq*3584}")
        return L
    def wo_mask(base):
        return [f"v_and_b32 v{base + f*4 + 2 + r}, v{vMG}, v{base + f*4 + 2 + r}" for f in range(16) for r in range(2)]
    WB_, OF_ = 128, 192
    QF = 124
    KS, VS = 72, 84
    QB_, KB_, VB_ = 8, 16, 28
    sBud = 14
    def qmask(r):
        for i in range(4): a(f"v_and_b32 v{r+i}, v{vQm + (i>>1)}, v{r+i}")
    if opt.get("lp"):
        a("s_barrier")
        a(f"""
        s_cmp_lg_u32 s{sWAVE}, 7
        s_cbranch_scc1 L_pollok1
        """)
        poll("1", vPA, 9)
    a("s_barrier")
    stamp(11)
    for i in range(3):
        a(f"buffer_load_dwordx4 {q4(KS+4*i)}, v{vKq}, {srd(sWS)}, s{sK[i]} offen sc1")
    a(f"buffer_load_dwordx4 {q4(QF)}, v{vKq}, {srd(sWS)}, s{sQA} offen sc1")
    for i in range(3):
        a(f"buffer_load_dwordx4 {q4(VS+4*i)}, v{vV1 if i == 1 else vV0}, {srd(sWS)}, s{sV[i]} offen sc1")
    a(f"""
    s_lshr_b32 s3, s{sWAVE}, 2
    s_cmp_gt_u32 s{sBR}, s3
    s_cbranch_scc0 L_noB1
    """)
    def SB(j, t): return 8*(j-1) + 4*t
    for j in range(1, 5):
        bp = vBP1 if j == 1 else vBP
        a(f"v_mfma_f32_16x16x32_bf16 {q4(SB(j,0))}, {q4(Kf(j-1))}, {q4(Qf(j))}, {q4(bp)}")
        a(f"v_mfma_f32_16x16x32_bf16 {q4(SB(j,1))}, {q4(Kf(j))}, {q4(Qf(j))}, {q4(vBS)}")
    M = lambda j: 32 + (j-1)
    T = lambda j: 36 + (j-1)
    for j in range(1, 5):
        s = SB(j, 0)
        a(f"v_max3_f32 v{M(j)}, v{s}, v{s+1}, v{s+2}")
        a(f"v_max3_f32 v{T(j)}, v{s+3}, v{s+4}, v{s+5}")
        a(f"v_max3_f32 v{M(j)}, v{M(j)}, v{s+6}, v{s+7}")
        a(f"v_max_f32 v{M(j)}, v{M(j)}, v{T(j)}")
    for sw in ("v_permlane32_swap_b32", "v_permlane16_swap_b32"):
        for j in range(1, 5): a(f"v_mov_b32 v{T(j)}, v{M(j)}")
        for j in range(1, 5): a(f"{sw} v{M(j)}, v{T(j)}")
        for j in range(1, 5): a(f"v_max_f32 v{M(j)}, v{M(j)}, v{T(j)}")
    for j in range(1, 5): a(f"v_mul_f32 v{M(j)}, v{vC}, v{M(j)}")
    for j in range(1, 5):
        for i in range(8): a(f"v_fma_f32 v{SB(j,0)+i}, v{SB(j,0)+i}, v{vC}, -v{M(j)}")
    for j in range(1, 5):
        for i in range(8): a(f"v_exp_f32 v{SB(j,0)+i}, v{SB(j,0)+i}")
    P = lambda j: 40 + 4*(j-1)
    for j in range(1, 5):
        for i in range(4): cvt(P(j)+i, SB(j,0)+2*i)
    O = lambda j, dt: 8*(j-1) + 4*dt
    for j in range(1, 5):
        for dt in (1, 0):
            a(f"v_mfma_f32_16x16x32_bf16 {q4(O(j,dt))}, {q4(Vf(dt,j-1))}, {q4(P(j))}, 0")
    st = [normalize(O(j,0), O(j,1), 56+2*(j-1), 57+2*(j-1), 100+4*(j-1)) for j in range(1, 5)]
    for k in range(len(st[0])):
        for j in range(4):
            for x in st[j][k]: a(x)
    a.raw("L_noB1:")
    for r in wo_reads(WB_): a(r)
    a(f"""
    s_mov_b32 s{sBud}, {POLL_MAX}
    v_lshlrev_b32 v8, 2, v{vG}
    v_sub_u32 v8, v8, v{vR15}
    s_bitcmp1_b32 s{sWAVE}, 0
    s_cselect_b64 s[34:35], -1, 0
    """)
    for i in range(4):
        a(f"""
        v_add_u32 v9, {i}, v8
        v_cmp_lt_i32 vcc, 0, v9
        v_cndmask_b32 v10, v{vNEG}, 0, vcc
        v_cndmask_b32 v11, 0, v{vNEG}, vcc
        v_cndmask_b32 v{0+i}, v10, v{vNEG}, s[34:35]
        v_cndmask_b32 v{4+i}, 0, v10, s[34:35]
        v_cndmask_b32 v{64+i}, v11, 0, s[34:35]
        v_cndmask_b32 v{68+i}, v{vNEG}, v11, s[34:35]
        """)
    for i in range(8): a(f"v_add_u32 v{vWA+i}, {L_WOA}, v{vWA+i}")
    a("s_waitcnt lgkmcnt(0)")
    for x in wo_mask(WB_): a(x)
    a(f"""
    s_cmp_ge_u32 s{sARB}, 2
    s_cbranch_scc1 L_nofix
    s_waitcnt vmcnt(4)
    v_not_b32 v9, v{vQm}
    v_not_b32 v10, v{vQm+1}
    v_and_b32 v9, 0xff7f, v9
    v_and_b32 v10, 0xff7f, v10
    """)
    for i in range(3):
        qmask(KS+4*i)
        a(f"""
        s_cmp_eq_u32 s{sK[i]}, {BIG}
        s_cbranch_scc0 L_fx{i}
        v_or_b32 v{KS+4*i}, v9, v{KS+4*i}
        v_or_b32 v{KS+4*i+2}, v10, v{KS+4*i+2}
        L_fx{i}:
        """)
    a.raw("L_nofix:")
    for i in range(3):
        a(f"s_waitcnt vmcnt({6-i})")
        if i == 0: stamp(5)
        a(f"ds_write_b128 v{vKw}, {q4(KS+4*i)} offset:{1024*i}")
    for i in range(3):
        a(f"s_waitcnt vmcnt({2-i})")
        for r in range(4): a(f"v_or_b32 v{VS+4*i+r}, v{vOn1 if i == 1 else vOn0}, v{VS+4*i+r}")
        a(f"ds_write_b128 v{vKw}, {q4(VS+4*i)} offset:{24576+1024*i}")
    a(f"""
    s_lshr_b32 s3, s{sWAVE}, 2
    s_cmp_gt_u32 s{sBR}, s3
    s_cbranch_scc0 L_noB2
    """)
    for j in range(1, 5):
        a(f"buffer_store_dwordx4 {q4(100+4*(j-1))}, v{vOo}, {srd(sWS)}, s36 offen sc1")
        if j < 4: a("s_add_u32 s36, s36, 16384")
    a.raw("L_noB2:")
    stamp(6)
    qmask(QF)
    a(f"""
    s_cmp_ge_u32 s{sARB}, 2
    s_cbranch_scc1 L_nofixq
    v_not_b32 v9, v{vQm}
    v_not_b32 v10, v{vQm+1}
    v_and_b32 v9, 0x3f80, v9
    v_or_b32 v{QF}, v9, v{QF}
    v_and_b32 v10, 0x3f80, v10
    v_or_b32 v{QF+2}, v10, v{QF+2}
    L_nofixq:
    s_waitcnt lgkmcnt(0)
    s_barrier
    """)
    stamp(12)
    KBUF = 72; NKB = 6
    def kread(t): return f"ds_read_b128 {q4(KBUF + 4*(t % NKB))}, v{vKa} offset:{t*1024}"
    for t in range(NKB - 1): a(kread(t))
    vM, vT = 120, 121
    def mx(t):
        r = 4*t
        if t == 0:
            a(f"v_max_f32 v{vM}, v0, v1"); a(f"v_max_f32 v{vT}, v2, v3")
        else:
            a(f"v_max3_f32 v{vM}, v{vM}, v{r}, v{r+1}"); a(f"v_max3_f32 v{vT}, v{vT}, v{r+2}, v{r+3}")
    LAG = 4
    for t in range(18):
        if t + NKB - 1 < 18: a(kread(t + NKB - 1))
        outstanding = min(18, t + NKB) - (t + 1)
        a(f"s_waitcnt lgkmcnt({outstanding})")
        c = q4(4*t) if t in (0, 1, 16, 17) else "0"
        a(f"v_mfma_f32_16x16x32_bf16 {q4(4*t)}, {q4(KBUF + 4*(t % NKB))}, {q4(QF)}, {c}")
        if t >= LAG: mx(t - LAG)
    VBUF = [96 + 4*i for i in range(6)]
    NVB = len(VBUF)
    WA_ = 0
    ACCB = [64, 68, 72, 76, 80, 84, 88, 92]
    ACCA = [96, 100, 104, 108, 112, 116, 120, 124]
    sNext = 27
    lq = []
    def lds(ins, tag): a(ins); lq.append(tag)
    def lwait(tag):
        last = max(i for i, t in enumerate(lq) if t == tag)
        a(f"s_waitcnt lgkmcnt({min(15, len(lq) - 1 - last)})")
    def vread(n):
        lds(f"ds_read_b128 {q4(VBUF[n % NVB])}, v{vKa} offset:{24576 + (n>>1)*2048 + (n&1)*1024}", ("v", n))
    for n in range(NVB): vread(n)
    for t in range(18 - LAG, 18): mx(t)
    a(f"v_max_f32 v{vM}, v{vM}, v{vT}")
    for sw in ("v_permlane32_swap_b32", "v_permlane16_swap_b32"):
        a(f"v_mov_b32 v{vT}, v{vM}")
        a(f"{sw} v{vM}, v{vT}")
        a(f"v_max_f32 v{vM}, v{vM}, v{vT}")
    a(f"v_mul_f32 v{vM}, v{vC}, v{vM}")
    stamp(7)
    def o_load(f, s0):
        hq, tt = f >> 1, f & 1
        return f"buffer_load_dwordx4 {q4(OF_ + f*4)}, v{vOo}, {srd(sWS)}, s{s0 + tt} offen offset:{hq*1024} sc1"
    def frag(lbl, f, wbase, acc, wait, after):
        hq, tt = f >> 1, f & 1
        r = OF_ + f*4
        a(f"""
        s_cmp_lg_u32 s{sNext}, {f}
        s_cbranch_scc1 L_sk{lbl}{f}
        {wait}
        v_cmp_ne_u32 vcc, v{r+3}, v{vTAG}
        s_lshr_b32 s3, vcc_hi, 16
        s_cbranch_scc1 L_sk{lbl}{f}
        """)
        for cidx in range(4):
            d = acc[tt*4+cidx]
            a(f"v_mfma_f32_16x16x32_bf16 {q4(d)}, {q4(wbase + (hq*4+cidx)*4)}, {q4(r)}, {'0' if f < 2 else q4(d)}")
        a(f"s_add_u32 s{sNext}, s{sNext}, 1")
        if after is not None: a(o_load(f, after))
        a.raw(f"L_sk{lbl}{f}:")
    OACC = 224
    war = wo_reads(WA_); wam = wo_mask(WA_)
    LU, FU = opt.get("lu", 4), opt.get("fu", 5)
    a(f"s_mov_b32 s{sNext}, 0")
    for u in range(9):
        b = 8*u
        for i in range(8): a(f"v_fma_f32 v{b+i}, v{b+i}, v{vC}, -v{vM}")
        if LU <= u < LU + 4:
            for f in (2*(u-LU), 2*(u-LU)+1): a(o_load(f, sOB))
        for i in range(8): a(f"v_exp_f32 v{b+i}, v{b+i}")
        if opt.get('inpv', 0) and FU <= u < FU + 4:
            for f in range(2*(u-FU), 2*(u-FU)+2): frag("P", f, WB_, ACCB, f"s_waitcnt vmcnt({7-f})", None)
        for i in range(4): a(f"v_cvt_pk_bf16_f32 v{b+i}, v{b+2*i}, v{b+2*i+1}")
        lwait(("v", 2*u+1))
        for dt in range(2):
            c = "0" if u == 0 else q4(OACC + 4*dt)
            a(f"v_mfma_f32_16x16x32_bf16 {q4(OACC+4*dt)}, {q4(VBUF[(2*u+dt) % NVB])}, {q4(b)}, {c}")
        for n in (NVB + 2*u, NVB + 1 + 2*u):
            if n < 18: vread(n)
    for x in war: a(x)
    for grp in normalize(OACC, OACC+4, 232, 234, 236):
        for x in grp: a(x)
    a(f"buffer_store_dwordx4 {q4(236)}, v{vOo}, {srd(sWS)}, s33 offen sc1")
    stamp(13)
    a(f"""
    s_cmp_eq_u32 s{sCB}, 7
    s_cbranch_scc1 L_fin
    """)
    vXW, vXR, vOut = 224, 228, 230
    a(f"""
    s_lshl_b32 s3, s{sKQ}, 14
    s_lshl_b32 s35, s{sRP}, 13
    s_add_u32 s35, s35, s3
    v_lshlrev_b32 v231, 8, v{vR15}
    v_add_u32 v231, s35, v231
    v_xor_b32 v232, v{vG}, v{vR15}
    """)
    for cidx in range(4):
        a(f"""
        s_add_u32 s3, s{sKQ}, {cidx}
        s_and_b32 s3, s3, 3
        s_lshl_b32 s3, s3, 2
        v_xor_b32 v234, s3, v232
        v_lshl_add_u32 v{vXW+cidx}, v234, 4, v231
        """)
    a(f"""
    v_lshrrev_b32 v231, 3, v{vL}
    s_lshl_b32 s3, s{sWAVE}, 3
    v_add_u32 v231, s3, v231
    v_and_b32 v232, 7, v{vL}
    v_lshlrev_b32 v234, 1, v232
    v_and_b32 v235, 15, v231
    v_xor_b32 v234, v234, v235
    v_lshlrev_b32 v234, 4, v234
    v_lshl_add_u32 v{vXR}, v231, 8, v234
    v_xor_b32 v{vXR+1}, 16, v{vXR}
    s_lshl_b32 s3, s{sRB64}, 6
    v_add_u32 v231, s3, v231
    v_mul_u32_u24 v231, 1792, v231
    v_lshl_add_u32 v231, v232, 4, v231
    s_lshl_b32 s3, s{sCB}, 7
    v_add_u32 v{vOut}, s3, v231
    """)
    def finish(lbl, wbase, acc, s0, after):
        a(f"""
        s_cmp_eq_u32 s{sNext}, 8
        s_cbranch_scc1 L_done{lbl}
        L_again{lbl}:
        """)
        for f in range(8):
            a(f"s_cmp_gt_u32 s{sNext}, {f}")
            a(f"s_cbranch_scc1 L_rl{lbl}{f}")
            a(o_load(f, s0))
            a.raw(f"L_rl{lbl}{f}:")
        a("s_waitcnt vmcnt(0)")
        a.raw(f"L_first{lbl}:")
        for f in range(8): frag(lbl, f, wbase, acc, "", after)
        a(f"""
        s_cmp_eq_u32 s{sBud}, 0
        s_cbranch_scc1 L_done{lbl}
        s_sub_u32 s{sBud}, s{sBud}, 1
        s_cmp_lg_u32 s{sNext}, 8
        s_cbranch_scc1 L_again{lbl}
        {"s_waitcnt vmcnt(0)" if after is not None else ""}
        L_done{lbl}:
        """)
    def exch_write(acc):
        for tt in range(2):
            for cidx in range(4):
                a(f"ds_write_b128 v{vXW+cidx}, {q4(acc[tt*4+cidx])} offset:{tt*4096}")
        a("s_waitcnt lgkmcnt(0)")
        a("s_barrier")
    def exch_final(RB_, outoff):
        for k in range(4):
            for h in range(2):
                a(f"ds_read_b128 {q4(RB_ + (k*2+h)*4)}, v{vXR+h} offset:{k*16384}")
        a("s_waitcnt lgkmcnt(4)")
        for i in range(8): a(f"v_add_f32 v{RB_+i}, v{RB_+i}, v{RB_+8+i}")
        a("s_waitcnt lgkmcnt(0)")
        for i in range(8): a(f"v_add_f32 v{RB_+16+i}, v{RB_+16+i}, v{RB_+24+i}")
        for i in range(8): a(f"v_add_f32 v{RB_+i}, v{RB_+i}, v{RB_+16+i}")
        for i in range(4): a(f"v_cvt_pk_bf16_f32 v{RB_+8+i}, v{RB_+2*i}, v{RB_+2*i+1}")
        a(f"s_mov_b32 s3, {outoff}")
        a(f"buffer_store_dwordx4 {q4(RB_+8)}, v{vOut}, {srd(sOut)}, s3 offen")
    if not opt.get('inpv', 0):
        for f in range(8): frag("R", f, WB_, ACCB, f"s_waitcnt vmcnt({8-f})", None)
    finish("B", WB_, ACCB, sOB, None)
    stamp(8)
    AL = opt.get("al", 1)
    def aloads(k):
        if AL == k:
            for f in range(8): a(o_load(f, sOA))
    aloads(0)
    a(f"s_mov_b32 s{sNext}, 0")
    a("s_waitcnt lgkmcnt(0)")
    for x in wam: a(x)
    a("s_barrier")
    aloads(1)
    exch_write(ACCB)
    aloads(2)
    if opt.get("rechk", 1) and AL == 0:
        a("s_waitcnt vmcnt(0)")
        for f in range(8):
            a(f"""
            v_cmp_ne_u32 vcc, v{OF_+f*4+3}, v{vTAG}
            s_lshr_b32 s3, vcc_hi, 16
            s_cbranch_scc0 L_ok{f}
            {o_load(f, sOA)}
            L_ok{f}:
            """)
    exch_final(128, 896)
    aloads(3)
    for i in range(4): a(f"v_add_u32 v{vXW+i}, 65536, v{vXW+i}")
    for i in range(2): a(f"v_add_u32 v{vXR+i}, 65536, v{vXR+i}")
    stamp(14)
    for f in range(8): frag("Q", f, WA_, ACCA, "s_waitcnt vmcnt(1)" if (opt.get("rechk", 1) and AL == 0) else f"s_waitcnt vmcnt({(7 if AL == 3 else 8)-f})", None)
    finish("A", WA_, ACCA, sOA, None)
    stamp(9)
    exch_write(ACCA)
    exch_final(160, 0)
    a.raw("L_fin:")
    if stamps:
        stamp(15)
        if "probe" in opt:
            X = opt["probe"]
            a(f"""
            v_readfirstlane_b32 s12, v{vTAG}
            s_bfe_u32 s3, s12, 0xd0001
            s_bfe_u32 s34, s12, 0xf000f
            s_lshl_b32 s34, s34, 13
            s_or_b32 s3, s3, s34
            s_lshr_b32 s34, s12, 31
            s_lshl_b32 s34, s34, 28
            s_or_b32 s3, s3, s34
            s_sub_u32 s34, s{64+2*X}, s3
            s_add_u32 s34, s34, 200
            s_and_b32 s34, s34, 0x1fffffff
            s_cmp_lt_u32 s34, 5000
            s_cselect_b32 s34, s34, 0
            s_cmp_eq_u32 s{sBR}, {1 - opt.get("pbr", 5) if "pbr" in opt else 7}
            s_cselect_b32 s34, 0, s34
            s_add_u32 s34, s34, 3000
            s_mov_b32 s35, 100000
            L_pw:
            s_memrealtime s[16:17]
            s_waitcnt lgkmcnt(0)
            s_sub_u32 s16, s16, s3
            s_and_b32 s16, s16, 0x1fffffff
            s_sub_u32 s35, s35, 1
            s_cmp_eq_u32 s35, 0
            s_cbranch_scc1 L_end
            s_cmp_lt_u32 s16, s34
            s_cbranch_scc1 L_pw
            s_endpgm
            """)
        a(f"""
        s_sub_u32 s84, {POLL_MAX}, s{sBud}
        s_mul_i32 s84, s84, 100
        s_add_u32 s84, s84, s64
        s_lshl_b32 s3, s2, 3
        s_add_u32 s3, s3, s{sWAVE}
        s_lshl_b32 s3, s3, 6
        s_add_u32 s3, s3, {STAMP}
        v_mov_b32 v1, 0
        s_mov_b64 exec, 1
        """)
        if opt.get("dbgst"):
            ids = [1, 2, 3, 4, 5, 6, 7, 8, 9, 11, 12, 13, 14, 15]
            a("s_not_b32 s3, s64")
            a("v_mov_b32 v2, s3")
            a("global_atomic_umax v1, v2, s[30:31] offset:4")
            for k, i in enumerate(ids):
                a(f"s_sub_u32 s3, s{64+2*i}, s64")
                a("s_cmp_lt_u32 s3, 100000")
                a(f"s_cselect_b32 s3, s{64+2*i}, 0")
                a("v_mov_b32 v2, s3")
                a(f"global_atomic_umax v1, v2, s[30:31] offset:{8+4*k}")
            a("s_endpgm")
        for i in range(16):
            a(f"v_mov_b32 v2, s{64+2*i}")
            a(f"buffer_store_dword v2, v1, {srd(sWS)}, s3 offen offset:{4*i}")
    a.raw("L_end:")
    a("s_endpgm")
    bad = a.check_branches()
    for b in bad: print("BRANCH HAZARD", b, file=sys.stderr)
    assert not bad
    out = HEADER + f"""; @launch grid=(256,1,1) block=(512,1,1) lds=163840
.amdgcn_target "amdgcn-amd-amdhsa--gfx950"
.text
.globl {NAME}_kernel
.p2align 8
.type {NAME}_kernel,@function
""" + a.text() + f""".fill 1280, 4, 0xBF800000
s_endpgm
.section .rodata,"a"
.p2align 6
.amdhsa_kernel {NAME}_kernel
  .amdhsa_next_free_vgpr 256
  .amdhsa_next_free_sgpr 102
  .amdhsa_accum_offset 256
  .amdhsa_group_segment_fixed_size 0
  .amdhsa_kernarg_size 72
  .amdhsa_user_sgpr_count 2
  .amdhsa_user_sgpr_kernarg_segment_ptr 1
  .amdhsa_system_sgpr_workgroup_id_x 1
.end_amdhsa_kernel
"""
    return out

if __name__ == "__main__":
    stamps = int(sys.argv[1]); path = sys.argv[2]
    opt = dict((kv.split("=")[0], int(kv.split("=")[1])) for kv in sys.argv[3:])
    open(path, "w").write(gen(stamps, opt))
```

```python
import sys, struct, math
from asmlib import Asm

NAME = "concat_heads__sliding_block__sliding_local_dilated__prompt"
HEADER = open("cdna_kernels/%s.s.ref" % NAME).read().split("; Override launch")[0]
def f2u(x): return struct.unpack("<I", struct.pack("<f", x))[0]

XB, WB, WOB_BYTES, OUTB = 1835008, 1204224, 401408, 3670016
MB2 = 0x200000
QO, KO, VO = 0, MB2, 2*MB2
BRS = 3*MB2
OA, OB = 6*MB2, 7*MB2
FL1 = 8*MB2
STAMP = 8*MB2 + 0x100000
WSB = 9*MB2
BIG = 0x40000000
NEG = f2u(-1e30)
CSC = f2u((28 ** -0.5) * math.log2(math.e))
SLOT = 40960
L_WOB, L_WOA, L_KV = 0, 57344, 114688
POLL_MAX = 40000

sWAVE, sBR, sLAM, sRB, sAH, sARB, sRB64, sCB, sTAG = 4, 5, 6, 7, 8, 9, 10, 11, 12
sX, sW, sWoA, sWoB, sWS, sOut = 36, 40, 44, 48, 52, 56
def srd(b): return f"s[{b}:{b+3}]"
def q4(r): return f"v[{r}:{r+3}]"
def q2(r): return f"v[{r}:{r+1}]"
def q16(r): return f"v[{r}:{r+15}]"
vL, vL16, vTAG = 255, 254, 253

def gen(stamps=False, opt=None):
    opt = opt or {}
    a = Asm()
    def stamp(i):
        if stamps:
            a(f"s_memrealtime s[{64+2*i}:{65+2*i}]")
            a("s_waitcnt lgkmcnt(0)")
    def mk_srd(d, p, n):
        return f"s_mov_b32 s{d}, s{p}\ns_mov_b32 s{d+1}, s{p+1}\ns_mov_b32 s{d+2}, {n}\ns_mov_b32 s{d+3}, 0x20000\n"
    MAP = f"""
    s_lshr_b32 s{sLAM}, s14, 2
    s_and_b32 s15, s13, 3
    s_lshl_b32 s15, s15, 2
    s_and_b32 s3, s14, 3
    s_add_u32 s{sRB}, s15, s3
    """ if opt.get("map", 0) else f"""
    s_and_b32 s15, s13, 1
    s_lshl_b32 s15, s15, 2
    s_lshr_b32 s3, s14, 3
    s_add_u32 s{sLAM}, s15, s3
    s_and_b32 s15, s13, 2
    s_lshl_b32 s15, s15, 2
    s_and_b32 s3, s14, 7
    s_add_u32 s{sRB}, s15, s3
    """
    TAGC = f"""
    s_or_b32 s3, s2, s{sWAVE}
    s_cmp_lg_u32 s3, 0
    s_cbranch_scc1 L_notag
    s_memrealtime s[34:35]
    s_waitcnt lgkmcnt(0)
    s_and_b32 s35, s34, 0x1fff
    s_lshl_b32 s35, s35, 1
    s_or_b32 s35, s35, 1
    s_bfe_u32 s3, s34, 0xf000d
    s_lshl_b32 s3, s3, 15
    s_or_b32 s35, s35, s3
    s_lshl_b32 s34, s34, 3
    s_and_b32 s34, s34, 0x80000000
    s_or_b32 s34, s34, s35
    v_mov_b32 v4, s34
    v_mov_b32 v5, 0
    s_mov_b64 exec, 1
    global_atomic_cmpswap v1, v[4:5], s[30:31] sc1
    s_mov_b64 exec, -1
    L_notag:
    """
    MAPB = f"""
    s_and_b32 s15, s13, 1
    s_lshl_b32 s15, s15, 2
    s_and_b32 s3, s14, 3
    s_add_u32 s{sLAM}, s15, s3
    s_and_b32 s15, s13, 2
    s_lshl_b32 s15, s15, 2
    s_lshr_b32 s3, s14, 2
    s_add_u32 s{sRB}, s15, s3
    """
    a.raw(f"{NAME}_kernel:")
    a(f"""
    s_cmp_ge_u32 s2, 256
    s_cbranch_scc1 L_end
    s_load_dwordx16 s[16:31], s[0:1], 0
    s_load_dwordx2 s[32:33], s[0:1], 64
    v_lshrrev_b32 v1, 6, v0
    v_and_b32 v{vL}, 63, v0
    v_readfirstlane_b32 s{sWAVE}, v1
    s_and_b32 s13, s2, 7
    s_lshr_b32 s14, s2, 3
    s_lshr_b32 s{sBR}, s13, 2
    s_xor_b32 s{sBR}, s{sBR}, {opt.get('swap', 1)}
    {MAP}
    v_lshlrev_b32 v{vL16}, 4, v{vL}
    v_lshrrev_b32 v1, 3, v{vL}
    v_and_b32 v2, 7, v{vL}
    v_lshrrev_b32 v3, 4, v{vL}
    s_cmp_lg_u32 s{sBR}, 0
    s_cbranch_scc1 L_brB
    s_cmp_lt_u32 s{sWAVE}, 4
    s_cbranch_scc1 L_compute
    """)
    rest_setup = f"""
    s_lshl_b32 s{sAH}, s13, 1
    s_and_b32 s3, s14, 1
    s_add_u32 s{sAH}, s{sAH}, s3
    s_lshr_b32 s{sARB}, s14, 1
    s_lshl_b32 s{sRB64}, s13, 2
    s_lshr_b32 s3, s14, 3
    s_add_u32 s{sRB64}, s{sRB64}, s3
    s_and_b32 s{sCB}, s14, 7
    """ + mk_srd(sWoA, 20, WOB_BYTES) + mk_srd(sWoB, 26, WOB_BYTES) + mk_srd(sWS, 32, WSB) + (f"s_add_u32 s{sWS}, s{sWS}, {opt['wso'] << 20}\ns_addc_u32 s{sWS+1}, s{sWS+1}, 0\n" if opt.get("wso") else "") + mk_srd(sOut, 28, OUTB)
    def prefetch(l):
        if not opt.get("pf", 1): return
        a(f"""
        s_cmp_lg_u32 s{sWAVE}, 1
        s_cbranch_scc1 L_notouch{l}
        v_min_u32 v4, 8, v{vL}
        v_lshlrev_b32 v4, 21, v4
        v_add_u32 v4, 0x1ff780, v4
        buffer_load_dword v217, v4, {srd(sWS)}, 0 offen sc1
        v_and_b32 v4, 1, v{vL}
        v_lshlrev_b32 v4, 21, v4
        buffer_load_dword v218, v4, {srd(sOut)}, 0 offen
        L_notouch{l}:
        s_and_b32 s3, s14, 15
        s_lshl_b32 s34, s{sWAVE}, 4
        s_or_b32 s3, s3, s34
        s_cmp_lg_u32 s3, 0x2f
        s_cbranch_scc1 L_nocode{l}
        s_getpc_b64 s[34:35]
        L_pc{l}:
        s_sub_u32 s34, s34, L_pc{l}-{NAME}_kernel
        s_subb_u32 s35, s35, 0
        v_lshlrev_b32 v4, 7, v{vL}
        global_load_dword v217, v4, s[34:35]
        v_add_u32 v4, 8192, v4
        global_load_dword v218, v4, s[34:35]
        v_add_u32 v4, 8192, v4
        global_load_dword v219, v4, s[34:35]
        L_nocode{l}:
        """)
    def get_tag(lbl):
        a(f"""
        s_mov_b32 s35, {POLL_MAX}
        L_tag{lbl}:
        v_readfirstlane_b32 s{sTAG}, v{vTAG}
        s_cmp_lg_u32 s{sTAG}, 0
        s_cbranch_scc1 L_tagok{lbl}
        v_mov_b32 v227, 0
        global_load_dword v{vTAG}, v227, s[30:31] sc1
        s_sub_u32 s35, s35, 1
        s_waitcnt vmcnt(0)
        s_cmp_lg_u32 s35, 0
        s_cbranch_scc1 L_tag{lbl}
        L_tagok{lbl}:
        """)
    def poll(lbl, vaddr, vd):
        a(f"""
        s_mov_b32 s35, {POLL_MAX}
        {"s_mov_b64 exec, 0xfff" if opt.get("apoll") else ""}
        L_poll{lbl}:
        {f"v_mov_b32 v{vd}, 0" if opt.get("apoll") else ""}
        {f"buffer_atomic_or v{vd}, v{vaddr}, {srd(sWS)}, s15 offen sc0 sc1" if opt.get("apoll") else f"buffer_load_dword v{vd}, v{vaddr}, {srd(sWS)}, s15 offen sc1"}
        s_sub_u32 s35, s35, 1
        s_waitcnt vmcnt(0)
        v_cmp_ne_u32 vcc, v{vd}, v{vTAG}
        s_cmp_eq_u32 s35, 0
        s_cbranch_scc1 L_pollok{lbl}
        s_cbranch_vccz L_pollok{lbl}
        {f"s_sleep {opt['ps']}" if opt.get("ps") else ""}
        s_branch L_poll{lbl}
        L_pollok{lbl}:
        {"s_mov_b64 exec, -1" if opt.get("apoll") else ""}
        """)
    sRP, sKQ, sT, sU = 60, 61, 62, 63
    vR15, vG, vWA, vMG, vV0, vC = 240, 241, 242, 250, 251, 252
    vNEG, vKa, vKw = 237, 239, 238
    vKq, vOo, vVa, vVb, vOne = 232, 233, 234, 235, 236
    vQm, vOn0, vOn1, vV1 = 228, 230, 231, 226
    sHB, sHQ, sP = 98, 100, 99
    sK = [16, 17, 18, 19, 20, 21]; sV = [22, 23, 24, 25, 26, 27]; sQA = 32
    sOB, sOA = 96, 28
    t0, t1, t2, t3, t4 = 220, 221, 222, 223, 224
    vPA = 225
    FLV = 64*16*128
    p2common = f"""
    s_and_b32 s{sRP}, s{sWAVE}, 1
    s_lshr_b32 s{sKQ}, s{sWAVE}, 1
    v_and_b32 v{vR15}, 15, v{vL}
    v_lshrrev_b32 v{vG}, 4, v{vL}
    v_cmp_gt_u32 vcc, 48, v{vL}
    v_cndmask_b32 v{vMG}, 0, -1, vcc
    v_lshrrev_b32 v{t0}, 2, v{vR15}
    v_lshl_add_u32 v{t1}, v{vG}, 2, v{t0}
    v_lshlrev_b32 v{t1}, 7, v{t1}
    s_mul_i32 s3, s{sKQ}, 14336
    v_add_u32 v{t1}, s3, v{t1}
    v_and_b32 v{t2}, 2, v{t0}
    v_and_b32 v{t3}, 1, v{vG}
    v_lshl_or_b32 v{t2}, v{t3}, 2, v{t2}
    v_lshlrev_b32 v{t2}, 4, v{t2}
    v_and_b32 v{t3}, 3, v{vL}
    v_lshlrev_b32 v{t4}, 3, v{t3}
    v_xor_b32 v{t2}, v{t2}, v{t4}
    v_add_u32 v{t1}, v{t1}, v{t2}
    v_and_b32 v{t2}, 2048, v{vMG}
    """ + "".join(f"""
    s_add_u32 s3, s{sKQ}, {c}
    s_and_b32 s3, s3, 3
    s_lshl_b32 s3, s3, 5
    v_xor_b32 v{vWA+c}, s3, v{t1}
    v_add_u32 v{vWA+4+c}, v{vWA+c}, v{t2}
    """ for c in range(4)) + f"""
    v_mov_b32 v{t4}, {BIG}
    v_lshlrev_b32 v{vKq}, 9, v{vG}
    v_lshl_add_u32 v{vKq}, v{vR15}, 4, v{vKq}
    v_lshlrev_b32 v{vOo}, 6, v{vR15}
    v_lshl_add_u32 v{vOo}, v{vG}, 4, v{vOo}
    v_lshlrev_b32 v{vVa}, 8, v{t0}
    v_lshl_add_u32 v{vVa}, v{vG}, 6, v{vVa}
    v_lshl_add_u32 v{vVa}, v{t3}, 4, v{vVa}
    v_add_u32 v{vVb}, 1024, v{vVa}
    v_cmp_gt_u32 vcc, 12, v{vR15}
    v_cndmask_b32 v{vVb}, v{t4}, v{vVb}, vcc
    v_cmp_eq_u32 vcc, 12, v{vR15}
    v_mov_b32 v{t4}, 0x3f803f80
    v_cndmask_b32 v{vOne}, 0, v{t4}, vcc
    v_mov_b32 v{vC}, {CSC}
    v_mov_b32 v{vNEG}, {NEG}
    s_and_b32 s3, s{sWAVE}, 6
    s_lshl_b32 s3, s3, 10
    s_add_u32 s3, s3, {L_KV}
    v_add_u32 v{vKa}, s3, v{vL16}
    s_mul_i32 s3, s{sAH}, 7
    s_lshr_b32 s{sHQ}, s3, 1
    s_lshl_b32 s{sHQ}, s{sHQ}, 9
    s_lshl_b32 s{sHB}, s3, 8
    v_cmp_lt_u32 vcc, 15, v{vL}
    v_cndmask_b32 v{t0}, 0, -1, vcc
    s_bitcmp1_b32 s{sAH}, 0
    s_cselect_b64 vcc, -1, 0
    v_cndmask_b32 v{vQm}, -1, v{t0}, vcc
    v_cndmask_b32 v{vQm+1}, v{vMG}, -1, vcc
    s_mul_i32 s3, s{sWAVE}, 3
    s_lshl_b32 s{sT}, s{sARB}, 3
    s_sub_u32 s{sT}, s{sT}, 16
    s_add_u32 s{sT}, s{sT}, s3
    s_lshl_b32 s3, s3, 10
    s_add_u32 s3, s3, {L_KV}
    v_add_u32 v{vKw}, s3, v{vL16}
    v_subrev_u32 v{t0}, 1024, v{vVb}
    s_bitcmp1_b32 s{sWAVE}, 0
    s_cselect_b64 vcc, -1, 0
    v_cndmask_b32 v{vV0}, v{vVa}, v{t0}, vcc
    v_cndmask_b32 v{vV1}, v{t0}, v{vVa}, vcc
    v_cndmask_b32 v{vOn0}, 0, v{vOne}, vcc
    v_cndmask_b32 v{vOn1}, v{vOne}, 0, vcc
    """ + "".join(f"""
    s_ashr_i32 s34, s{sT}, 1
    s_mul_i32 s34, s34, 28672
    s_and_b32 s35, s{sT}, 1
    s_lshl_b32 s3, s35, 10
    s_add_u32 s3, s3, s34
    s_add_u32 s3, s3, s{sHB}
    s_add_u32 s3, s3, {VO}
    s_lshl_b32 s35, s35, 8
    s_add_u32 s35, s35, s34
    s_add_u32 s35, s35, s{sHQ}
    s_add_u32 s35, s35, {KO}
    s_cmp_lt_i32 s{sT}, 0
    s_cselect_b32 s{sV[i]}, {BIG}, s3
    s_cselect_b32 s{sK[i]}, {BIG}, s35
    s_add_u32 s{sT}, s{sT}, 1
    """ for i in range(3)) + f"""
    s_lshl_b32 s3, s{sARB}, 3
    s_add_u32 s3, s3, s{sWAVE}
    s_lshr_b32 s34, s3, 1
    s_mul_i32 s34, s34, 28672
    s_and_b32 s35, s3, 1
    s_lshl_b32 s35, s35, 8
    s_add_u32 s35, s35, s34
    s_add_u32 s{sQA}, s35, s{sHQ}
    s_lshl_b32 s3, s3, 4
    s_add_u32 s3, s3, s{sAH}
    s_lshl_b32 s3, s3, 10
    s_add_u32 s33, s3, {OA}
    s_mul_i32 s3, s{sAH}, 7
    s_lshr_b32 s34, s3, 3
    s_add_u32 s3, s3, 6
    s_lshr_b32 s35, s3, 3
    s_sub_u32 s35, s35, s34
    v_and_b32 v{t0}, 1, v{vL}
    v_mul_u32_u24 v{t0}, s35, v{t0}
    v_add_u32 v{t0}, s34, v{t0}
    v_min_u32 v{t1}, 11, v{vL}
    v_lshrrev_b32 v{t1}, 1, v{t1}
    s_lshl_b32 s3, s{sARB}, 1
    s_sub_u32 s3, s3, 4
    v_add_u32 v{t1}, s3, v{t1}
    v_max_i32 v{t1}, 0, v{t1}
    v_lshl_add_u32 v{t1}, v{t1}, 4, v{t0}
    v_lshlrev_b32 v{vPA}, 7, v{t1}
    s_lshl_b32 s3, s{sRB64}, 2
    s_lshl_b32 s35, s{sRP}, 1
    s_add_u32 s3, s3, s35
    s_lshl_b32 s3, s3, 4
    s_lshl_b32 s35, s{sKQ}, 2
    s_add_u32 s3, s3, s35
    s_lshl_b32 s3, s3, 10
    s_add_u32 s{sOB}, s3, {OB}
    s_add_u32 s{sOB+1}, s{sOB}, 16384
    s_add_u32 s{sOA}, s3, {OA}
    s_add_u32 s{sOA+1}, s{sOA}, 16384
    s_mov_b32 s15, {FL1}
    """
    def normalize(O0, O1, ta, tb, dst):
        return [
            [f"v_mov_b32 v{ta}, v{O1}", f"v_mov_b32 v{tb}, v{O1}"],
            [f"v_permlane32_swap_b32 v{ta}, v{tb}"],
            [f"v_mov_b32 v{ta}, v{tb}"],
            [f"v_permlane16_swap_b32 v{ta}, v{tb}"],
            [f"v_rcp_f32 v{tb}, v{tb}"],
            [f"v_mul_f32 v{O0+i}, v{O0+i}, v{tb}" for i in range(4)] + [f"v_mul_f32 v{O1+i}, v{O1+i}, v{tb}" for i in range(4)],
            [f"v_cvt_pk_bf16_f32 v{dst}, v{O0}, v{O0+1}", f"v_cvt_pk_bf16_f32 v{dst+1}, v{O0+2}, v{O0+3}",
             f"v_cvt_pk_bf16_f32 v{dst+2}, v{O1}, v{O1+1}", f"v_cvt_pk_bf16_f32 v{dst+3}, v{O1+2}, v{O1+3}"],
            [f"v_bfi_b32 v{dst+3}, v{vMG}, v{dst+3}, v{vTAG}"],
        ]
    vXe, vXo, vW0, vW1, vWo, vPw = 10, 11, 13, 14, 15, 17
    sLW, sLx, sLw, sT0, sT1 = 96, 97, 101, 34, 35
    sLwo, sL1k = 14, 15
    a(f"""
    s_sub_u32 s{sLW}, s{sWAVE}, 4
    s_lshl_b32 s{sT0}, s{sRB}, 7
    s_lshl_b32 s{sT1}, s{sLW}, 5
    s_add_u32 s{sT0}, s{sT0}, s{sT1}
    v_add_u32 v4, s{sT0}, v1
    v_mul_u32_u24 v4, 896, v4
    v_xor_b32 v5, v2, v3
    v_lshl_add_u32 v{vXe}, v5, 4, v4
    v_xor_b32 v5, 4, v5
    v_lshl_add_u32 v{vXo}, v5, 4, v4
    v_add_u32 v{vXo}, 6144, v{vXo}
    s_lshl_b32 s{sLx}, s{sLW}, 12
    s_lshl_b32 s{sLw}, s{sLW}, 11
    s_lshl_b32 s{sT1}, s{sLW}, 4
    v_add_u32 v4, s{sT1}, v1
    v_mul_u32_u24 v4, 2688, v4
    s_lshl_b32 s{sT1}, s{sLAM}, 7
    v_add_u32 v4, s{sT1}, v4
    v_and_b32 v5, 1, v3
    v_lshlrev_b32 v5, 2, v5
    v_xor_b32 v5, v2, v5
    v_lshl_add_u32 v{vW0}, v5, 4, v4
    v_add_u32 v{vW1}, {8*2688-1024}, v{vW0}
    s_mov_b32 s{sX+2}, {XB}
    s_mov_b32 s{sX+3}, 0x20000
    s_mov_b32 s{sW+2}, {WB}
    s_mov_b32 s{sW+3}, 0x20000
    s_waitcnt lgkmcnt(0)
    s_mov_b32 s{sX}, s16
    s_mov_b32 s{sX+1}, s17
    s_mov_b32 s{sW}, s18
    s_mov_b32 s{sW+1}, s19
    """)
    stamp(0)
    a(f"""
    s_cmp_eq_u32 s{sLAM}, 7
    s_cbranch_scc1 L_ld_idle
    """)
    order = []
    def D(c):
        slot = ((c + 1) % 4) * SLOT
        a(f"""
        s_add_u32 m0, s{sLx}, {slot}
        s_mov_b32 s{sT0}, {c*128}
        s_mov_b32 s{sT1}, {c*128 + 12288}
        buffer_load_dwordx4 v{vXe}, {srd(sX)}, s{sT0} offen lds
        buffer_load_dwordx4 v{vXo}, {srd(sX)}, s{sT0} offen offset:1024 lds
        buffer_load_dwordx4 v{vXe}, {srd(sX)}, s{sT1} offen offset:2048 lds
        buffer_load_dwordx4 v{vXo}, {srd(sX)}, s{sT1} offen offset:3072 lds
        """)
        for p in (1, 2, 0):
            a(f"""
            s_add_u32 m0, s{sLw}, {slot + 16384 + p*8192}
            s_mov_b32 s{sT1}, {c*64*2688 + p*896}
            buffer_load_dwordx4 v{vW0}, {srd(sW)}, s{sT1} offen lds
            buffer_load_dwordx4 v{vW1}, {srd(sW)}, s{sT1} offen offset:1024 lds
            """)
        order.extend([c] * 10)
    def Wt(c):
        last = max(i for i, o in enumerate(order) if o == c)
        a(f"s_waitcnt vmcnt({len(order) - 1 - last})")
        if c == 0: stamp(1)
        a("s_barrier")
    wo_setup = rest_setup + f"""
    v_and_b32 v5, 6, v1
    v_xor_b32 v5, v2, v5
    v_mul_u32_u24 v4, 896, v1
    s_lshl_b32 s{sT1}, s{sCB}, 7
    v_add_u32 v4, s{sT1}, v4
    v_lshl_add_u32 v{vWo}, v5, 4, v4
    s_cmp_eq_u32 s{sCB}, 7
    s_cselect_b64 vcc, -1, 0
    v_mov_b32 v7, {BIG}
    v_cndmask_b32 v{vWo}, v{vWo}, v7, vcc
    v_mov_b32 v1, 0
    s_mul_i32 s3, s14, 98
    s_and_b32 s{sT1}, s{sLW}, 1
    s_mul_i32 s{sT1}, s{sT1}, 49
    s_add_u32 s3, s3, s{sT1}
    v_min_u32 v4, 48, v{vL}
    v_add_u32 v4, s3, v4
    v_lshlrev_b32 v{vPw}, 7, v4
    s_mul_i32 s{sLwo}, s{sLW}, 7168
    s_lshl_b32 s{sL1k}, s{sLW}, 10
    global_load_dword v{vTAG}, v1, s[30:31] sc1
    """
    def issue_wo(i0, i1):
        for i in range(i0, i1):
            br = i >= 14
            a(f"""
            s_add_u32 m0, s{sL1k}, {4096*i}
            s_add_u32 s{sT1}, s{sLwo}, {(4*i - 56*br)*7168}
            buffer_load_dwordx4 v{vWo}, {srd(sWoA if br else sWoB)}, s{sT1} offen lds
            """)
            order.append("wo")
    vPf = 16
    sPS, sPO = 60, 61
    PFN = " nt" if opt.get("pnt", 0) else ""
    def pf_setup(wmul):
        a(f"""
        s_and_b32 s{sT0}, s13, 2
        s_lshl_b32 s{sT0}, s{sT0}, 9
        s_lshl_b32 s{sT1}, s14, 5
        s_add_u32 s{sT0}, s{sT0}, s{sT1}
        v_min_u32 v4, 31, v{vL}
        v_add_u32 v4, s{sT0}, v4
        v_mul_u32_u24 v{vPf}, 896, v4
        v_min_u32 v4, 23, v{vL}
        v_cmp_le_u32 vcc, 12, v4
        v_cndmask_b32 v5, 0, 1, vcc
        v_mul_u32_u24 v6, 12, v5
        v_sub_u32 v6, v4, v6
        s_lshl_b32 s{sT0}, s14, 1
        v_add_u32 v5, s{sT0}, v5
        v_mul_u32_u24 v5, 2688, v5
        v_lshrrev_b32 v4, 2, v6
        v_mul_u32_u24 v4, 896, v4
        v_add_u32 v5, v5, v4
        v_and_b32 v6, 3, v6
        v_lshl_add_u32 v5, v6, 7, v5
        s_and_b32 s{sT0}, s13, 1
        s_mul_i32 s{sT0}, s{sT0}, {wmul}
        v_add_u32 v5, s{sT0}, v5
        s_bitcmp1_b32 s{sLW}, 0
        s_cselect_b64 vcc, -1, 0
        s_mov_b32 s{sPS}, 128
        s_cselect_b32 s{sPS}, 172032, s{sPS}
        s_cselect_b32 s44, s{sW}, s{sX}
        s_cselect_b32 s45, s{sW+1}, s{sX+1}
        s_cselect_b32 s46, s{sW+2}, s{sX+2}
        s_mov_b32 s47, 0x20000
        v_cndmask_b32 v{vPf}, v{vPf}, v5, vcc
        s_lshr_b32 s{sPO}, s{sLW}, 1
        s_add_u32 s{sPO}, s{sPO}, 1
        s_mul_i32 s{sPO}, s{sPO}, s{sPS}
        s_lshl_b32 s{sPS}, s{sPS}, 1
        """)
    def pf():
        a(f"""
        buffer_load_dword v20, v{vPf}, s[44:47], s{sPO} offen{PFN}
        s_add_u32 s{sPO}, s{sPO}, s{sPS}
        """)
        order.append("pf")
    PMA, PMB = opt.get("pma", 1), opt.get("pmb", 2)
    def head(Dx, wmul):
        PM = PMA if wmul == 512 else PMB
        if PM == 0: Dx(0); Dx(1); Wt(0); Dx(2); Wt(1); Dx(3)
        elif PM == 1: Dx(0); pf_setup(wmul); pf(); Dx(1); Wt(0); Dx(2); pf(); pf(); Wt(1); Dx(3)
        elif PM == 2: Dx(0); pf_setup(wmul); pf(); Dx(1); Wt(0); pf(); Dx(2); Wt(1); pf(); Dx(3)
        elif PM == 3: Dx(0); pf_setup(wmul); pf(); pf(); pf(); Dx(1); Wt(0); Dx(2); Wt(1); Dx(3)
    def pf_wo(l):
        if opt.get("nopw"): return
        a(f"""
        s_cmp_lt_u32 s{sLW}, 2
        s_cbranch_scc1 L_pwB{l}
        buffer_load_dword v20, v{vPw}, {srd(sWoA)}, 0 offen
        s_branch L_pwD{l}
        L_pwB{l}:
        buffer_load_dword v20, v{vPw}, {srd(sWoB)}, 0 offen
        L_pwD{l}:
        """)
        order.append("pfw")
    head(D, 512)
    a(wo_setup); order.append("tag")
    if opt.get("seq", 0) == 1:
        Wt(2); D(4); Wt(3); D(5); pf_wo(0); Wt(4); D(6); issue_wo(0, 10); Wt(5); issue_wo(10, 20); Wt(6)
    elif opt.get("seq", 0) == 0:
        Wt(2); D(4); Wt(3); D(5); Wt(4); D(6); pf_wo(0); Wt(5)
        DEF = opt.get("defer", 2)
        if DEF < 4: issue_wo(0, 10)
        Wt(6)
        if DEF >= 2: a("s_barrier")
        if DEF == 4: issue_wo(0, 10)
        issue_wo(10, 20)
        if DEF == 1: a("s_barrier")
    else:
        Wt(2); D(4); Wt(3); D(5); Wt(4); D(6); pf_wo(0); Wt(5); issue_wo(0, 14); Wt(6); a("s_sleep 16"); issue_wo(14, 20)
    a("s_branch L_ld2")
    a.raw("L_ld_idle:")
    if PMA: pf_setup(512); pf(); pf(); pf()
    a(wo_setup)
    pf_wo(1)
    issue_wo(0, 20)
    a.raw("L_ld2:")
    issue_wo(20, 28)
    a(p2common)
    a("s_waitcnt vmcnt(28)" if opt.get("nowait", 0) else "s_waitcnt vmcnt(0)")
    get_tag("l")
    if not opt.get("lp", 1):
        a(f"""
        s_cmp_lg_u32 s{sWAVE}, 7
        s_cbranch_scc1 L_pollok1
        """)
        poll("1", vPA, 9)
    stamp(2)
    a("s_branch L_phase2")

    a.raw("L_compute:")
    sCH, sRH = 96, 97
    sSQ, sSK, sSV, sSQh, sSKh, sFl = 36, 37, 38, 39, 40, 41
    def Acc(p, rt): return p*32 + rt*16
    def Fx(s, rt): return 96 + 20*s + 4*rt
    def Fw(s, p): return 96 + 20*s + 8 + 4*p
    vxa = [200, 201, 202, 203]; vwa = 204
    vQo, vVo = 205, 206
    slot0 = SLOT
    a(f"""
    s_waitcnt lgkmcnt(0)
    v_mov_b32 v1, 0
    {'' if opt.get('swap', 1) else TAGC}
    """)
    stamp(0)
    a(rest_setup)
    prefetch('a')
    a(f"""
    s_and_b32 s{sCH}, s{sWAVE}, 1
    s_lshr_b32 s{sRH}, s{sWAVE}, 1
    s_cmp_eq_u32 s{sLAM}, 7
    s_cbranch_scc1 L_cmp_idle
    v_and_b32 v2, 31, v{vL}
    v_lshrrev_b32 v3, 5, v{vL}
    v_bfe_u32 v4, v{vL}, 2, 2
    s_lshl_b32 s3, s{sLAM}, 1
    s_add_u32 s3, s3, s{sCH}
    s_lshl_b32 s34, s3, 11
    v_add_u32 v{vQo}, s34, v{vL16}
    v_bfe_u32 v6, v{vL}, 4, 1
    v_lshlrev_b32 v6, 2, v6
    v_and_b32 v7, 1, v4
    v_lshl_add_u32 v6, v7, 1, v6
    v_lshrrev_b32 v7, 1, v4
    v_add_u32 v6, v6, v7
    v_lshl_add_u32 v7, v6, 8, s34
    v_lshl_add_u32 v7, v3, 6, v7
    v_and_b32 v8, 3, v{vL}
    v_lshl_add_u32 v{vVo}, v8, 4, v7
    s_lshl_b32 s34, s{sRB}, 1
    s_add_u32 s34, s34, s{sRH}
    s_mul_i32 s{sSQ}, s34, 57344
    s_add_u32 s{sSQh}, s{sSQ}, 28672
    s_add_u32 s{sSK}, s{sSQ}, {KO}
    s_add_u32 s{sSKh}, s{sSQh}, {KO}
    s_add_u32 s{sSV}, s{sSQ}, {VO}
    s_add_u32 s15, s{sSQh}, {VO}
    s_lshl_b32 s34, s34, 4
    s_add_u32 s34, s34, s3
    s_lshl_b32 s34, s34, 7
    s_add_u32 s{sFl}, s34, {FL1}
    """)
    def qkv_stores(data):
        for p, lo, hi in ((1, sSK, sSKh), (2, None, None), (0, sSQ, sSQh)):
            for rt in range(2):
                for half in range(2):
                    d = data(p, rt, half)
                    if p == 2: a(f"buffer_store_dwordx4 {q4(d)}, v{vVo}, {srd(sWS)}, s{sSV} offen offset:{rt*2048 + half*128} sc1")
                    else: a(f"buffer_store_dwordx4 {q4(d)}, v{vQo}, {srd(sWS)}, s{hi if half else lo} offen offset:{rt*512} sc1")
    a(f"""
    global_load_dword v{vTAG}, v1, s[30:31] sc1
    s_lshl_b32 s3, s{sRH}, 6
    v_add_u32 v5, s3, v2
    v_lshlrev_b32 v5, 7, v5
    v_bfe_u32 v6, v2, 1, 3
    v_xor_b32 v6, v6, v3
    v_lshl_add_u32 v{vxa[0]}, v6, 4, v5
    v_add_u32 v{vxa[0]}, {slot0}, v{vxa[0]}
    v_xor_b32 v{vxa[1]}, 32, v{vxa[0]}
    v_xor_b32 v{vxa[2]}, 64, v{vxa[0]}
    v_xor_b32 v{vxa[3]}, 96, v{vxa[0]}
    v_lshl_add_u32 v6, v3, 3, v4
    v_lshlrev_b32 v6, 7, v6
    v_add_u32 v6, {slot0 + 16384}, v6
    v_bfe_u32 v7, v{vL}, 4, 1
    v_lshlrev_b32 v7, 5, v7
    v_and_b32 v8, 1, v{vL}
    v_lshl_or_b32 v7, v8, 4, v7
    v_bfe_u32 v8, v{vL}, 1, 1
    v_lshl_or_b32 v7, v8, 3, v7
    s_lshl_b32 s3, s{sCH}, 6
    v_or_b32 v7, s3, v7
    v_and_b32 v8, 2, v4
    v_lshlrev_b32 v8, 5, v8
    v_xor_b32 v7, v7, v8
    v_add_u32 v{vwa}, v6, v7
    """)
    def reads(s, ks):
        L = [f"ds_read_b128 {q4(Fx(s,rt))}, v{vxa[ks]} offset:{rt*4096}" for rt in range(2)]
        for p in (1, 2, 0):
            for u in range(2):
                L.append(f"ds_read_b64_tr_b16 {q2(Fw(s, p) + 2*u)}, v{vwa} offset:{p*8192 + ks*2048 + u*512}")
        return L
    def kstep(s, rd, extra=(), zero=False):
        M = []
        for p in (1, 2, 0):
            for rt in range(2):
                A, B = (Fx(s,rt), Fw(s,p)) if p == 2 else (Fw(s,p), Fx(s,rt))
                M.append(f"v_mfma_f32_32x32x16_bf16 {q16(Acc(p,rt))}, {q4(A)}, {q4(B)}, {'0' if zero else q16(Acc(p,rt))}")
        per = [3, 3, 2, 0, 0, 0]
        k = 0
        extra = list(extra)
        for i, m in enumerate(M):
            a(m)
            for _ in range(per[i]):
                if k < len(rd): a(rd[k]); k += 1
            if i >= 3:
                for _ in range(4):
                    if extra: a(extra.pop(0))
        for e in extra: a(e)
    sC, sD = 42, 43
    a("s_barrier")
    stamp(1)
    for r in reads(0, 0): a(r)
    a(f"s_mov_b32 s{sC}, 0")
    ex0 = [f"s_and_b32 s3, s{sC}, 3", f"s_cmp_eq_u32 s3, 2", f"s_mov_b32 s{sD}, {SLOT}",
           f"s_cselect_b32 s{sD}, {(-3*SLOT) & 0xffffffff}, s{sD}",
           f"v_add_u32 v{vxa[0]}, s{sD}, v{vxa[0]}", f"v_add_u32 v{vxa[1]}, s{sD}, v{vxa[1]}"]
    a("s_waitcnt lgkmcnt(0)")
    kstep(0, reads(1, 1), ex0, zero=True)
    a("s_branch L_gemm1")
    a.raw("L_gemm:")
    a("s_waitcnt lgkmcnt(0)")
    kstep(0, reads(1, 1), ex0)
    a.raw("L_gemm1:")
    a("s_waitcnt lgkmcnt(0)")
    kstep(1, reads(0, 2), [f"v_add_u32 v{vxa[2]}, s{sD}, v{vxa[2]}"])
    a("s_waitcnt lgkmcnt(0)")
    kstep(0, reads(1, 3), [f"v_add_u32 v{vxa[3]}, s{sD}, v{vxa[3]}", f"v_add_u32 v{vwa}, s{sD}, v{vwa}",
                           f"s_add_u32 s{sC}, s{sC}, 1", f"s_cmp_lt_u32 s{sC}, 6"])
    a("s_waitcnt lgkmcnt(0)")
    a("s_barrier")
    kstep(1, reads(0, 0))
    a("s_cbranch_scc1 L_gemm")
    def cvt(d, s0): a(f"v_cvt_pk_bf16_f32 v{d}, v{s0}, v{s0+1}")
    def mf(p, rt, ks):
        A, B = (Fx(ks,rt), Fw(ks,p)) if p == 2 else (Fw(ks,p), Fx(ks,rt))
        return f"v_mfma_f32_32x32x16_bf16 {q16(Acc(p,rt))}, {q4(A)}, {q4(B)}, {q16(Acc(p,rt))}"
    rd = []
    for ks in (1, 2, 3):
        r = reads(ks, ks); rd += r[0:4]
    for ks in (1, 2, 3): rd += reads(ks, ks)[6:8]
    for ks in (1, 2, 3): rd += reads(ks, ks)[4:6]
    a("s_waitcnt vmcnt(0) lgkmcnt(0)")
    k = 0
    for p in (1, 0, 2):
        for rt in range(2):
            a(mf(p, rt, 0))
            for _ in range(3): a(rd[k]); k += 1
    def epi(p):
        L = []
        for rt in range(2):
            for half in range(2):
                if p == 2:
                    d = 176 + (rt*2+half)*4; s0 = Acc(2, rt) + 4*half
                    L += [f"v_cvt_pk_bf16_f32 v{d}, v{s0}, v{s0+1}", f"v_cvt_pk_bf16_f32 v{d+1}, v{s0+2}, v{s0+3}",
                          f"v_cvt_pk_bf16_f32 v{d+2}, v{s0+8}, v{s0+9}", f"v_cvt_pk_bf16_f32 v{d+3}, v{s0+10}, v{s0+11}",
                          f"buffer_store_dwordx4 {q4(d)}, v{vVo}, {srd(sWS)}, s{15 if rt else sSV} offen offset:{half*128} sc1"]
                else:
                    d = Acc(p, rt) + 8*half
                    lo, hi = (sSK, sSKh) if p == 1 else (sSQ, sSQh)
                    L += [f"v_cvt_pk_bf16_f32 v{d+i}, v{d+2*i}, v{d+2*i+1}" for i in range(4)]
                    L += [f"buffer_store_dwordx4 {q4(d)}, v{vQo}, {srd(sWS)}, s{hi if rt else lo} offen offset:{half*1024} sc1"]
        return L
    for n, ks in enumerate((1, 2, 3)):
        a(f"s_waitcnt lgkmcnt({min(15, k - 4*(n+1))})")
        for rt in range(2):
            a(mf(1, rt, ks))
            if k < 24: a(rd[k]); k += 1
    pend = epi(1)
    for p, nxt, base in ((0, 0, 12), (2, None, 18)):
        for n, ks in enumerate((1, 2, 3)):
            a(f"s_waitcnt lgkmcnt({24 - base - 2*(n+1)})")
            for rt in range(2):
                a(mf(p, rt, ks))
                if n or rt:
                    for _ in range(4):
                        if pend: a(pend.pop(0))
        for x in pend: a(x)
        pend = epi(p)
    stamp(3)
    for x in pend: a(x)
    if opt.get("defer", 2) in (1, 2): a("s_barrier")
    stamp(2)
    a("v_mov_b32 v227, 0")
    a("s_waitcnt vmcnt(0)")
    get_tag("c")
    a(f"""
    s_mov_b64 exec, 1
    buffer_store_dword v{vTAG}, v227, {srd(sWS)}, s{sFl} offen sc1
    s_mov_b64 exec, -1
    """)
    stamp(4)
    if opt.get("defer", 2) >= 3: a("s_barrier")
    a("s_branch L_cmp2")
    a.raw("L_cmp_idle:")
    a(f"global_load_dword v{vTAG}, v1, s[30:31] sc1")
    a("s_waitcnt vmcnt(0)")
    get_tag("i")
    a.raw("L_cmp2:")
    a(p2common)
    a("s_branch L_phase2")
    a.raw("L_brB:")
    SLB = 43008
    SB0 = 34816
    a(MAPB)
    a(f"""
    s_cmp_lt_u32 s{sWAVE}, 4
    s_cbranch_scc1 L_cmpB
    """)
    vXh = 12
    sLh = 63
    a(f"""
    s_sub_u32 s{sLW}, s{sWAVE}, 4
    s_lshl_b32 s{sT0}, s{sRB}, 7
    s_lshl_b32 s{sT1}, s{sLW}, 5
    s_add_u32 s{sT0}, s{sT0}, s{sT1}
    v_add_u32 v4, s{sT0}, v1
    v_mul_u32_u24 v4, 896, v4
    v_xor_b32 v5, v2, v3
    v_lshl_add_u32 v{vXe}, v5, 4, v4
    v_xor_b32 v5, 4, v5
    v_lshl_add_u32 v{vXo}, v5, 4, v4
    v_add_u32 v{vXo}, 6144, v{vXo}
    s_lshl_b32 s{sLx}, s{sLW}, 12
    s_lshl_b32 s{sLw}, s{sLW}, 11
    s_lshl_b32 s{sLh}, s{sLW}, 9
    s_lshl_b32 s{sT1}, s{sLW}, 4
    v_add_u32 v4, s{sT1}, v1
    v_mul_u32_u24 v4, 2688, v4
    s_mul_i32 s{sT1}, s{sLAM}, 112
    v_add_u32 v4, s{sT1}, v4
    v_and_b32 v5, 1, v3
    v_lshlrev_b32 v5, 1, v5
    v_xor_b32 v5, v2, v5
    v_mov_b32 v7, {BIG}
    v_lshl_add_u32 v{vW0}, v5, 4, v4
    v_cmp_eq_u32 vcc, 7, v5
    v_xor_b32 v6, 4, v5
    v_cndmask_b32 v{vW0}, v{vW0}, v7, vcc
    v_lshl_add_u32 v{vW1}, v6, 4, v4
    v_cmp_eq_u32 vcc, 7, v6
    v_add_u32 v{vW1}, {8*2688-1024}, v{vW1}
    v_cndmask_b32 v{vW1}, v{vW1}, v7, vcc
    s_lshl_b32 s{sT0}, s{sRB}, 7
    s_lshl_b32 s{sT1}, s{sLW}, 2
    s_add_u32 s{sT0}, s{sT0}, s{sT1}
    s_sub_u32 s{sT0}, s{sT0}, 16
    v_add_u32 v4, s{sT0}, v1
    v_mul_i32_i24 v4, 896, v4
    s_lshl_b32 s{sT1}, s{sLW}, 1
    v_add_u32 v5, s{sT1}, v3
    v_and_b32 v5, 7, v5
    v_xor_b32 v5, v2, v5
    v_lshl_add_u32 v{vXh}, v5, 4, v4
    s_cmp_eq_u32 s{sRB}, 0
    s_cselect_b64 vcc, -1, 0
    v_cndmask_b32 v{vXh}, v{vXh}, v7, vcc
    s_mov_b32 s{sX+2}, {XB}
    s_mov_b32 s{sX+3}, 0x20000
    s_mov_b32 s{sW+2}, {WB}
    s_mov_b32 s{sW+3}, 0x20000
    s_waitcnt lgkmcnt(0)
    s_mov_b32 s{sX}, s22
    s_mov_b32 s{sX+1}, s23
    s_mov_b32 s{sW}, s24
    s_mov_b32 s{sW+1}, s25
    """)
    stamp(0)
    del order[:]
    def DB(c):
        slot = SB0 + ((c + 2) % 3) * SLB
        a(f"""
        s_add_u32 m0, s{sLx}, {slot + 2048}
        s_mov_b32 s{sT0}, {c*128}
        s_mov_b32 s{sT1}, {c*128 + 12288}
        buffer_load_dwordx4 v{vXe}, {srd(sX)}, s{sT0} offen lds
        buffer_load_dwordx4 v{vXo}, {srd(sX)}, s{sT0} offen offset:1024 lds
        buffer_load_dwordx4 v{vXe}, {srd(sX)}, s{sT1} offen offset:2048 lds
        buffer_load_dwordx4 v{vXo}, {srd(sX)}, s{sT1} offen offset:3072 lds
        """)
        for p in range(3):
            a(f"""
            s_add_u32 m0, s{sLw}, {slot + 18432 + p*8192}
            s_mov_b32 s{sT1}, {c*64*2688 + p*896}
            buffer_load_dwordx4 v{vW0}, {srd(sW)}, s{sT1} offen lds
            buffer_load_dwordx4 v{vW1}, {srd(sW)}, s{sT1} offen offset:1024 lds
            """)
        a(f"""
        s_add_u32 m0, s{sLh}, {slot}
        s_mov_b64 exec, 0xffffffff
        buffer_load_dwordx4 v{vXh}, {srd(sX)}, s{sT0} offen lds
        s_mov_b64 exec, -1
        """)
        order.extend([c] * 11)
    head(DB, 384)
    a(wo_setup); order.append("tag")
    Wt(2); DB(4); Wt(3); DB(5); Wt(4); DB(6); pf_wo(2); Wt(5); issue_wo(0, 10); Wt(6); issue_wo(10, 20)
    a("s_branch L_ld2")
    a.raw("L_cmpB:")
    sHH = 96
    def Qa(rt, ft): return ((rt-1)*2+ft)*4
    def Ka(rt, ft): return 32 + (rt*2+ft)*4
    def Va(rt, ft): return 72 + (rt*2+ft)*4
    def Gx(s, rt): return 112 + 44*s + 4*rt
    def Gw(s, p, ft): return 112 + 44*s + 20 + (p*2+ft)*4
    bxa = [200, 201]; bwa = [202, 203]
    vBS, vBP, vBP1 = 204, 208, 212
    sl0 = SB0 + 2 * SLB
    a(f"""
    s_and_b32 s{sHH}, s{sWAVE}, 1
    s_lshr_b32 s{sRH}, s{sWAVE}, 1
    v_and_b32 v2, 15, v{vL}
    s_lshl_b32 s3, s{sRH}, 6
    v_add_u32 v4, s3, v2
    v_lshlrev_b32 v4, 7, v4
    v_lshrrev_b32 v5, 1, v2
    v_xor_b32 v5, v5, v3
    v_lshl_add_u32 v{bxa[0]}, v5, 4, v4
    v_add_u32 v{bxa[0]}, {sl0}, v{bxa[0]}
    v_xor_b32 v{bxa[1]}, 64, v{bxa[0]}
    v_lshrrev_b32 v4, 2, v2
    v_and_b32 v5, 3, v{vL}
    v_lshl_add_u32 v6, v3, 3, v4
    v_lshlrev_b32 v6, 7, v6
    v_add_u32 v6, {sl0 + 18432}, v6
    v_and_b32 v7, 2, v4
    v_and_b32 v8, 1, v3
    v_lshl_or_b32 v7, v8, 2, v7
    v_lshlrev_b32 v7, 4, v7
    s_mul_i32 s3, s{sHH}, 56
    v_lshl_add_u32 v8, v5, 3, s3
    v_xor_b32 v9, v8, v7
    v_add_u32 v{bwa[0]}, v6, v9
    v_add_u32 v8, 32, v8
    v_cmp_eq_u32 vcc, 56, v8
    v_mov_b32 v9, 120
    v_cndmask_b32 v8, v8, v9, vcc
    v_xor_b32 v9, v8, v7
    v_add_u32 v{bwa[1]}, v6, v9
    v_cmp_eq_u32 vcc, 12, v2
    v_cndmask_b32 v216, 0, 1.0, vcc
    v_mov_b32 v217, v216
    v_mov_b32 v218, v216
    v_mov_b32 v219, v216
    s_lshl_b32 s34, s{sRB}, 1
    s_add_u32 s34, s34, s{sRH}
    s_lshl_b32 s37, s34, 6
    s_lshl_b32 s3, s{sLAM}, 1
    s_add_u32 s3, s3, s{sHH}
    s_add_u32 s3, s3, s37
    s_lshl_b32 s3, s3, 10
    s_add_u32 s36, s3, {OB}
    s_mov_b32 s37, s34
    v_mov_b32 v1, 0
    s_waitcnt lgkmcnt(0)
    {TAGC if opt.get('swap', 1) else ''}
    """)
    stamp(0)
    pc = [l for l in p2common.split("\n") if l.strip()]
    cut = next(k for k in range(len(pc)) if pc[k].strip().startswith("s_mul_i32 s3, s%d, 3" % sWAVE))
    bias = f"""
    v_mov_b32 v224, {NEG}
    v_and_b32 v220, 15, v{vL}
    v_lshrrev_b32 v221, 4, v{vL}
    v_lshlrev_b32 v221, 2, v221
    v_sub_u32 v220, v220, v221
    """ + "".join(f"""
    v_subrev_u32 v221, {i}, v220
    v_and_b32 v222, 0x80000001, v221
    v_cmp_eq_u32 vcc, 0, v222
    v_cndmask_b32 v{vBS+i}, v224, 0, vcc
    v_cmp_eq_u32 vcc, 0x80000000, v222
    v_cndmask_b32 v{vBP+i}, v224, 0, vcc
    """ for i in range(4)) + """
    s_cmp_eq_u32 s37, 0
    s_cselect_b64 vcc, -1, 0
    """ + "".join(f"v_cndmask_b32 v{vBP1+i}, v{vBP+i}, v224, vcc\n" for i in range(4))
    pieces = [rest_setup + f"v_mov_b32 v227, 0\nglobal_load_dword v{vTAG}, v227, s[30:31] sc1\n" + bias, "\n".join(pc[:cut]), "\n".join(pc[cut:])]
    def breads(s, ks):
        L = [f"ds_read_b128 {q4(Gx(s,rt))}, v{bxa[ks]} offset:{rt*2048}" for rt in (1, 2, 3, 4, 0)]
        for p in range(3):
            for ft in range(2):
                for u in range(2):
                    L.append(f"ds_read_b64_tr_b16 {q2(Gw(s,p,ft) + 2*u)}, v{bwa[ft]} offset:{p*8192 + ks*4096 + u*512}")
        return L
    def bstep(s, rd, zero=False):
        M = []
        C = lambda r, z='0': z if zero else q4(r)
        for rt in (1, 2, 3, 4, 0):
            for ft in range(2):
                if rt: M.append(f"v_mfma_f32_16x16x32_bf16 {q4(Qa(rt,ft))}, {q4(Gw(s,0,ft))}, {q4(Gx(s,rt))}, {C(Qa(rt,ft))}")
                M.append(f"v_mfma_f32_16x16x32_bf16 {q4(Ka(rt,ft))}, {q4(Gw(s,1,ft))}, {q4(Gx(s,rt))}, {C(Ka(rt,ft))}")
                M.append(f"v_mfma_f32_16x16x32_bf16 {q4(Va(rt,ft))}, {q4(Gx(s,rt))}, {q4(Gw(s,2,ft))}, {C(Va(rt,ft), q4(216) if ft else '0')}")
        for i, m in enumerate(M):
            a(m)
            if i < len(rd): a(rd[i])
    a("s_barrier")
    stamp(1)
    for r in breads(0, 0): a(r)
    a(f"s_mov_b32 s{sC}, 0")
    a("s_waitcnt lgkmcnt(0)")
    bstep(0, breads(1, 1), zero=True)
    a(pieces[0]); a(pieces[1])
    a(f"""
    s_mul_i32 s3, s{sC}, 86
    s_lshr_b32 s3, s3, 8
    s_mul_i32 s3, s3, 3
    s_cmp_eq_u32 s3, s{sC}
    s_mov_b32 s{sD}, {SLB}
    s_cselect_b32 s{sD}, {(-2*SLB) & 0xffffffff}, s{sD}
    v_add_u32 v{bxa[0]}, s{sD}, v{bxa[0]}
    v_add_u32 v{bxa[1]}, s{sD}, v{bxa[1]}
    v_add_u32 v{bwa[0]}, s{sD}, v{bwa[0]}
    v_add_u32 v{bwa[1]}, s{sD}, v{bwa[1]}
    s_cmp_eq_u32 s{sC}, 6
    s_waitcnt lgkmcnt(0)
    s_cbranch_scc1 L_nobarB0
    s_barrier
    L_nobarB0:
    """)
    bstep(1, breads(0, 0))
    a(pieces[2])
    a(f"s_mov_b32 s{sC}, 1")
    a.raw("L_gemmB:")
    a("s_waitcnt lgkmcnt(0)")
    bstep(0, breads(1, 1))
    a(f"""
    s_mul_i32 s3, s{sC}, 86
    s_lshr_b32 s3, s3, 8
    s_mul_i32 s3, s3, 3
    s_cmp_eq_u32 s3, s{sC}
    s_mov_b32 s{sD}, {SLB}
    s_cselect_b32 s{sD}, {(-2*SLB) & 0xffffffff}, s{sD}
    v_add_u32 v{bxa[0]}, s{sD}, v{bxa[0]}
    v_add_u32 v{bxa[1]}, s{sD}, v{bxa[1]}
    v_add_u32 v{bwa[0]}, s{sD}, v{bwa[0]}
    v_add_u32 v{bwa[1]}, s{sD}, v{bwa[1]}
    s_cmp_eq_u32 s{sC}, 6
    s_waitcnt lgkmcnt(0)
    s_cbranch_scc1 L_nobarB
    s_barrier
    L_nobarB:
    """)
    bstep(1, breads(0, 0))
    a(f"""
    s_add_u32 s{sC}, s{sC}, 1
    s_cmp_lt_u32 s{sC}, 7
    s_cbranch_scc1 L_gemmB
    """)
    stamp(3)
    def Qf(j): return 168 + 4*(j-1)
    def Kf(rt): return 128 + 4*rt
    def Vf(dt, rt): return 148 + 10*dt + 2*rt
    a("s_waitcnt vmcnt(0) lgkmcnt(0)")
    get_tag("b")
    for rt in (1, 2, 3, 4, 0):
        for ft in range(2):
            if rt:
                cvt(Qf(rt)+2*ft, Qa(rt,ft)); cvt(Qf(rt)+2*ft+1, Qa(rt,ft)+2)
            cvt(Kf(rt)+2*ft, Ka(rt,ft)); cvt(Kf(rt)+2*ft+1, Ka(rt,ft)+2)
            cvt(Vf(ft,rt), Va(rt,ft)); cvt(Vf(ft,rt)+1, Va(rt,ft)+2)
    stamp(4)
    a.raw("L_phase2:")
    def wo_reads(base):
        L = []
        for hq in range(4):
            for cidx in range(4):
                for u in range(2):
                    d = base + (hq*4 + cidx)*4 + 2*u
                    L.append(f"ds_read_b64_tr_b16 {q2(d)}, v{vWA + 4*u + ((cidx + 2*(hq&1)) & 3)} offset:{hq*3584}")
        return L
    def wo_mask(base):
        return [f"v_and_b32 v{base + f*4 + 2 + r}, v{vMG}, v{base + f*4 + 2 + r}" for f in range(16) for r in range(2)]
    WB_, OF_ = 128, 192
    QF = 124
    KS, VS = 72, 84
    QB_, KB_, VB_ = 8, 16, 28
    sBud = 14
    def qmask(r):
        for i in range(4): a(f"v_and_b32 v{r+i}, v{vQm + (i>>1)}, v{r+i}")
    if opt.get("lp", 1):
        a("s_barrier")
        a(f"""
        s_cmp_lg_u32 s{sWAVE}, 7
        s_cbranch_scc1 L_pollok1
        """)
        poll("1", vPA, 9)
    a("s_barrier")
    stamp(11)
    for i in range(3):
        a(f"buffer_load_dwordx4 {q4(KS+4*i)}, v{vKq}, {srd(sWS)}, s{sK[i]} offen sc1")
    a(f"buffer_load_dwordx4 {q4(QF)}, v{vKq}, {srd(sWS)}, s{sQA} offen sc1")
    for i in range(3):
        a(f"buffer_load_dwordx4 {q4(VS+4*i)}, v{vV1 if i == 1 else vV0}, {srd(sWS)}, s{sV[i]} offen sc1")
    a(f"""
    s_lshr_b32 s3, s{sWAVE}, 2
    s_cmp_gt_u32 s{sBR}, s3
    s_cbranch_scc0 L_noB1
    """)
    def SB(j, t): return 8*(j-1) + 4*t
    for j in range(1, 5):
        bp = vBP1 if j == 1 else vBP
        a(f"v_mfma_f32_16x16x32_bf16 {q4(SB(j,0))}, {q4(Kf(j-1))}, {q4(Qf(j))}, {q4(bp)}")
        a(f"v_mfma_f32_16x16x32_bf16 {q4(SB(j,1))}, {q4(Kf(j))}, {q4(Qf(j))}, {q4(vBS)}")
    M = lambda j: 32 + (j-1)
    T = lambda j: 36 + (j-1)
    for j in range(1, 5):
        s = SB(j, 0)
        a(f"v_max3_f32 v{M(j)}, v{s}, v{s+1}, v{s+2}")
        a(f"v_max3_f32 v{T(j)}, v{s+3}, v{s+4}, v{s+5}")
        a(f"v_max3_f32 v{M(j)}, v{M(j)}, v{s+6}, v{s+7}")
        a(f"v_max_f32 v{M(j)}, v{M(j)}, v{T(j)}")
    for sw in ("v_permlane32_swap_b32", "v_permlane16_swap_b32"):
        for j in range(1, 5): a(f"v_mov_b32 v{T(j)}, v{M(j)}")
        for j in range(1, 5): a(f"{sw} v{M(j)}, v{T(j)}")
        for j in range(1, 5): a(f"v_max_f32 v{M(j)}, v{M(j)}, v{T(j)}")
    for j in range(1, 5): a(f"v_mul_f32 v{M(j)}, v{vC}, v{M(j)}")
    for j in range(1, 5):
        for i in range(8): a(f"v_fma_f32 v{SB(j,0)+i}, v{SB(j,0)+i}, v{vC}, -v{M(j)}")
    for j in range(1, 5):
        for i in range(8): a(f"v_exp_f32 v{SB(j,0)+i}, v{SB(j,0)+i}")
    P = lambda j: 40 + 4*(j-1)
    for j in range(1, 5):
        for i in range(4): cvt(P(j)+i, SB(j,0)+2*i)
    O = lambda j, dt: 8*(j-1) + 4*dt
    for j in range(1, 5):
        for dt in (1, 0):
            a(f"v_mfma_f32_16x16x32_bf16 {q4(O(j,dt))}, {q4(Vf(dt,j-1))}, {q4(P(j))}, 0")
    st = [normalize(O(j,0), O(j,1), 56+2*(j-1), 57+2*(j-1), 100+4*(j-1)) for j in range(1, 5)]
    for k in range(len(st[0])):
        for j in range(4):
            for x in st[j][k]: a(x)
    a.raw("L_noB1:")
    for r in wo_reads(WB_): a(r)
    a(f"""
    s_mov_b32 s{sBud}, {POLL_MAX}
    v_lshlrev_b32 v8, 2, v{vG}
    v_sub_u32 v8, v8, v{vR15}
    s_bitcmp1_b32 s{sWAVE}, 0
    s_cselect_b64 s[34:35], -1, 0
    """)
    for i in range(4):
        a(f"""
        v_add_u32 v9, {i}, v8
        v_cmp_lt_i32 vcc, 0, v9
        v_cndmask_b32 v10, v{vNEG}, 0, vcc
        v_cndmask_b32 v11, 0, v{vNEG}, vcc
        v_cndmask_b32 v{0+i}, v10, v{vNEG}, s[34:35]
        v_cndmask_b32 v{4+i}, 0, v10, s[34:35]
        v_cndmask_b32 v{64+i}, v11, 0, s[34:35]
        v_cndmask_b32 v{68+i}, v{vNEG}, v11, s[34:35]
        """)
    for i in range(8): a(f"v_add_u32 v{vWA+i}, {L_WOA}, v{vWA+i}")
    a("s_waitcnt lgkmcnt(0)")
    for x in wo_mask(WB_): a(x)
    a(f"""
    s_cmp_ge_u32 s{sARB}, 2
    s_cbranch_scc1 L_nofix
    s_waitcnt vmcnt(4)
    v_not_b32 v9, v{vQm}
    v_not_b32 v10, v{vQm+1}
    v_and_b32 v9, 0xff7f, v9
    v_and_b32 v10, 0xff7f, v10
    """)
    for i in range(3):
        qmask(KS+4*i)
        a(f"""
        s_cmp_eq_u32 s{sK[i]}, {BIG}
        s_cbranch_scc0 L_fx{i}
        v_or_b32 v{KS+4*i}, v9, v{KS+4*i}
        v_or_b32 v{KS+4*i+2}, v10, v{KS+4*i+2}
        L_fx{i}:
        """)
    a.raw("L_nofix:")
    for i in range(3):
        a(f"s_waitcnt vmcnt({6-i})")
        if i == 0: stamp(5)
        a(f"ds_write_b128 v{vKw}, {q4(KS+4*i)} offset:{1024*i}")
    for i in range(3):
        a(f"s_waitcnt vmcnt({2-i})")
        for r in range(4): a(f"v_or_b32 v{VS+4*i+r}, v{vOn1 if i == 1 else vOn0}, v{VS+4*i+r}")
        a(f"ds_write_b128 v{vKw}, {q4(VS+4*i)} offset:{24576+1024*i}")
    a(f"""
    s_lshr_b32 s3, s{sWAVE}, 2
    s_cmp_gt_u32 s{sBR}, s3
    s_cbranch_scc0 L_noB2
    """)
    for j in range(1, 5):
        a(f"buffer_store_dwordx4 {q4(100+4*(j-1))}, v{vOo}, {srd(sWS)}, s36 offen sc1")
        if j < 4: a("s_add_u32 s36, s36, 16384")
    a.raw("L_noB2:")
    stamp(6)
    qmask(QF)
    a(f"""
    s_cmp_ge_u32 s{sARB}, 2
    s_cbranch_scc1 L_nofixq
    v_not_b32 v9, v{vQm}
    v_not_b32 v10, v{vQm+1}
    v_and_b32 v9, 0x3f80, v9
    v_or_b32 v{QF}, v9, v{QF}
    v_and_b32 v10, 0x3f80, v10
    v_or_b32 v{QF+2}, v10, v{QF+2}
    L_nofixq:
    s_waitcnt lgkmcnt(0)
    s_barrier
    """)
    stamp(12)
    KBUF = 72; NKB = 6
    def kread(t): return f"ds_read_b128 {q4(KBUF + 4*(t % NKB))}, v{vKa} offset:{t*1024}"
    for t in range(NKB - 1): a(kread(t))
    vM, vT = 120, 121
    def mx(t):
        r = 4*t
        if t == 0:
            a(f"v_max_f32 v{vM}, v0, v1"); a(f"v_max_f32 v{vT}, v2, v3")
        else:
            a(f"v_max3_f32 v{vM}, v{vM}, v{r}, v{r+1}"); a(f"v_max3_f32 v{vT}, v{vT}, v{r+2}, v{r+3}")
    LAG = 4
    for t in range(18):
        if t + NKB - 1 < 18: a(kread(t + NKB - 1))
        outstanding = min(18, t + NKB) - (t + 1)
        a(f"s_waitcnt lgkmcnt({outstanding})")
        c = q4(4*t) if t in (0, 1, 16, 17) else "0"
        a(f"v_mfma_f32_16x16x32_bf16 {q4(4*t)}, {q4(KBUF + 4*(t % NKB))}, {q4(QF)}, {c}")
        if t >= LAG: mx(t - LAG)
    VBUF = [96 + 4*i for i in range(6)]
    NVB = len(VBUF)
    WA_ = 0
    ACCB = [64, 68, 72, 76, 80, 84, 88, 92]
    ACCA = [96, 100, 104, 108, 112, 116, 120, 124]
    sNext = 27
    lq = []
    def lds(ins, tag): a(ins); lq.append(tag)
    def lwait(tag):
        last = max(i for i, t in enumerate(lq) if t == tag)
        a(f"s_waitcnt lgkmcnt({min(15, len(lq) - 1 - last)})")
    def vread(n):
        lds(f"ds_read_b128 {q4(VBUF[n % NVB])}, v{vKa} offset:{24576 + (n>>1)*2048 + (n&1)*1024}", ("v", n))
    for n in range(NVB): vread(n)
    for t in range(18 - LAG, 18): mx(t)
    a(f"v_max_f32 v{vM}, v{vM}, v{vT}")
    for sw in ("v_permlane32_swap_b32", "v_permlane16_swap_b32"):
        a(f"v_mov_b32 v{vT}, v{vM}")
        a(f"{sw} v{vM}, v{vT}")
        a(f"v_max_f32 v{vM}, v{vM}, v{vT}")
    a(f"v_mul_f32 v{vM}, v{vC}, v{vM}")
    stamp(7)
    def o_load(f, s0):
        hq, tt = f >> 1, f & 1
        return f"buffer_load_dwordx4 {q4(OF_ + f*4)}, v{vOo}, {srd(sWS)}, s{s0 + tt} offen offset:{hq*1024} sc1"
    def frag(lbl, f, wbase, acc, wait, after):
        hq, tt = f >> 1, f & 1
        r = OF_ + f*4
        a(f"""
        s_cmp_lg_u32 s{sNext}, {f}
        s_cbranch_scc1 L_sk{lbl}{f}
        {wait}
        v_cmp_ne_u32 vcc, v{r+3}, v{vTAG}
        s_lshr_b32 s3, vcc_hi, 16
        s_cbranch_scc1 L_sk{lbl}{f}
        """)
        for cidx in range(4):
            d = acc[tt*4+cidx]
            a(f"v_mfma_f32_16x16x32_bf16 {q4(d)}, {q4(wbase + (hq*4+cidx)*4)}, {q4(r)}, {'0' if f < 2 else q4(d)}")
        a(f"s_add_u32 s{sNext}, s{sNext}, 1")
        if after is not None: a(o_load(f, after))
        a.raw(f"L_sk{lbl}{f}:")
    OACC = 224
    war = wo_reads(WA_); wam = wo_mask(WA_)
    LU, FU = opt.get("lu", 4), opt.get("fu", 5)
    a(f"s_mov_b32 s{sNext}, 0")
    for u in range(9):
        b = 8*u
        for i in range(8): a(f"v_fma_f32 v{b+i}, v{b+i}, v{vC}, -v{vM}")
        if LU <= u < LU + 4:
            for f in (2*(u-LU), 2*(u-LU)+1): a(o_load(f, sOB))
        for i in range(8): a(f"v_exp_f32 v{b+i}, v{b+i}")
        if opt.get('inpv', 0) and FU <= u < FU + 4:
            for f in range(2*(u-FU), 2*(u-FU)+2): frag("P", f, WB_, ACCB, f"s_waitcnt vmcnt({7-f})", None)
        for i in range(4): a(f"v_cvt_pk_bf16_f32 v{b+i}, v{b+2*i}, v{b+2*i+1}")
        lwait(("v", 2*u+1))
        for dt in range(2):
            c = "0" if u == 0 else q4(OACC + 4*dt)
            a(f"v_mfma_f32_16x16x32_bf16 {q4(OACC+4*dt)}, {q4(VBUF[(2*u+dt) % NVB])}, {q4(b)}, {c}")
        for n in (NVB + 2*u, NVB + 1 + 2*u):
            if n < 18: vread(n)
    for x in war: a(x)
    for grp in normalize(OACC, OACC+4, 232, 234, 236):
        for x in grp: a(x)
    a(f"buffer_store_dwordx4 {q4(236)}, v{vOo}, {srd(sWS)}, s33 offen sc1")
    stamp(13)
    a(f"""
    s_cmp_eq_u32 s{sCB}, 7
    s_cbranch_scc1 L_fin
    """)
    vXW, vXR, vOut = 224, 228, 230
    a(f"""
    s_lshl_b32 s3, s{sKQ}, 14
    s_lshl_b32 s35, s{sRP}, 13
    s_add_u32 s35, s35, s3
    v_lshlrev_b32 v231, 8, v{vR15}
    v_add_u32 v231, s35, v231
    v_xor_b32 v232, v{vG}, v{vR15}
    """)
    for cidx in range(4):
        a(f"""
        s_add_u32 s3, s{sKQ}, {cidx}
        s_and_b32 s3, s3, 3
        s_lshl_b32 s3, s3, 2
        v_xor_b32 v234, s3, v232
        v_lshl_add_u32 v{vXW+cidx}, v234, 4, v231
        """)
    a(f"""
    v_lshrrev_b32 v231, 3, v{vL}
    s_lshl_b32 s3, s{sWAVE}, 3
    v_add_u32 v231, s3, v231
    v_and_b32 v232, 7, v{vL}
    v_lshlrev_b32 v234, 1, v232
    v_and_b32 v235, 15, v231
    v_xor_b32 v234, v234, v235
    v_lshlrev_b32 v234, 4, v234
    v_lshl_add_u32 v{vXR}, v231, 8, v234
    v_xor_b32 v{vXR+1}, 16, v{vXR}
    s_lshl_b32 s3, s{sRB64}, 6
    v_add_u32 v231, s3, v231
    v_mul_u32_u24 v231, 1792, v231
    v_lshl_add_u32 v231, v232, 4, v231
    s_lshl_b32 s3, s{sCB}, 7
    v_add_u32 v{vOut}, s3, v231
    """)
    def finish(lbl, wbase, acc, s0, after):
        a(f"""
        s_cmp_eq_u32 s{sNext}, 8
        s_cbranch_scc1 L_done{lbl}
        L_again{lbl}:
        {f"s_sleep {opt['as']}" if opt.get("as") else ""}
        """)
        for f in range(8):
            a(f"s_cmp_gt_u32 s{sNext}, {f}")
            a(f"s_cbranch_scc1 L_rl{lbl}{f}")
            a(o_load(f, s0))
            a.raw(f"L_rl{lbl}{f}:")
        a("s_waitcnt vmcnt(0)")
        a.raw(f"L_first{lbl}:")
        for f in range(8): frag(lbl, f, wbase, acc, "", after)
        a(f"""
        s_cmp_eq_u32 s{sBud}, 0
        s_cbranch_scc1 L_done{lbl}
        s_sub_u32 s{sBud}, s{sBud}, 1
        s_cmp_lg_u32 s{sNext}, 8
        s_cbranch_scc1 L_again{lbl}
        {"s_waitcnt vmcnt(0)" if after is not None else ""}
        L_done{lbl}:
        """)
    def exch_write(acc):
        for tt in range(2):
            for cidx in range(4):
                a(f"ds_write_b128 v{vXW+cidx}, {q4(acc[tt*4+cidx])} offset:{tt*4096}")
        a("s_waitcnt lgkmcnt(0)")
        a("s_barrier")
    def exch_final(RB_, outoff):
        for k in range(4):
            for h in range(2):
                a(f"ds_read_b128 {q4(RB_ + (k*2+h)*4)}, v{vXR+h} offset:{k*16384}")
        a("s_waitcnt lgkmcnt(4)")
        for i in range(8): a(f"v_add_f32 v{RB_+i}, v{RB_+i}, v{RB_+8+i}")
        a("s_waitcnt lgkmcnt(0)")
        for i in range(8): a(f"v_add_f32 v{RB_+16+i}, v{RB_+16+i}, v{RB_+24+i}")
        for i in range(8): a(f"v_add_f32 v{RB_+i}, v{RB_+i}, v{RB_+16+i}")
        for i in range(4): a(f"v_cvt_pk_bf16_f32 v{RB_+8+i}, v{RB_+2*i}, v{RB_+2*i+1}")
        a(f"s_mov_b32 s3, {outoff}")
        a(f"buffer_store_dwordx4 {q4(RB_+8)}, v{vOut}, {srd(sOut)}, s3 offen")
    if not opt.get('inpv', 0):
        for f in range(8): frag("R", f, WB_, ACCB, f"s_waitcnt vmcnt({8-f})", None)
    finish("B", WB_, ACCB, sOB, None)
    stamp(8)
    AL = opt.get("al", 1)
    def aloads(k):
        if AL == k:
            for f in range(8): a(o_load(f, sOA))
    aloads(0)
    a(f"s_mov_b32 s{sNext}, 0")
    a("s_waitcnt lgkmcnt(0)")
    for x in wam: a(x)
    a("s_barrier")
    aloads(1)
    exch_write(ACCB)
    aloads(2)
    if opt.get("rechk", 1) and AL == 0:
        a("s_waitcnt vmcnt(0)")
        for f in range(8):
            a(f"""
            v_cmp_ne_u32 vcc, v{OF_+f*4+3}, v{vTAG}
            s_lshr_b32 s3, vcc_hi, 16
            s_cbranch_scc0 L_ok{f}
            {o_load(f, sOA)}
            L_ok{f}:
            """)
    exch_final(128, 896)
    aloads(3)
    for i in range(4): a(f"v_add_u32 v{vXW+i}, 65536, v{vXW+i}")
    for i in range(2): a(f"v_add_u32 v{vXR+i}, 65536, v{vXR+i}")
    stamp(14)
    for f in range(8): frag("Q", f, WA_, ACCA, "s_waitcnt vmcnt(1)" if (opt.get("rechk", 1) and AL == 0) else f"s_waitcnt vmcnt({(7 if AL == 3 else 8)-f})", None)
    finish("A", WA_, ACCA, sOA, None)
    stamp(9)
    exch_write(ACCA)
    exch_final(160, 0)
    a.raw("L_fin:")
    if stamps:
        stamp(15)
        if "probe" in opt:
            X = opt["probe"]
            a(f"""
            v_readfirstlane_b32 s12, v{vTAG}
            s_bfe_u32 s3, s12, 0xd0001
            s_bfe_u32 s34, s12, 0xf000f
            s_lshl_b32 s34, s34, 13
            s_or_b32 s3, s3, s34
            s_lshr_b32 s34, s12, 31
            s_lshl_b32 s34, s34, 28
            s_or_b32 s3, s3, s34
            s_sub_u32 s34, s{64+2*X}, s3
            s_add_u32 s34, s34, 200
            s_and_b32 s34, s34, 0x1fffffff
            s_cmp_lt_u32 s34, 5000
            s_cselect_b32 s34, s34, 0
            s_cmp_eq_u32 s{sBR}, {1 - opt.get("pbr", 5) if "pbr" in opt else 7}
            s_cselect_b32 s34, 0, s34
            s_add_u32 s34, s34, 3000
            s_mov_b32 s35, 100000
            L_pw:
            s_memrealtime s[16:17]
            s_waitcnt lgkmcnt(0)
            s_sub_u32 s16, s16, s3
            s_and_b32 s16, s16, 0x1fffffff
            s_sub_u32 s35, s35, 1
            s_cmp_eq_u32 s35, 0
            s_cbranch_scc1 L_end
            s_cmp_lt_u32 s16, s34
            s_cbranch_scc1 L_pw
            s_endpgm
            """)
        a(f"""
        s_sub_u32 s84, {POLL_MAX}, s{sBud}
        s_mul_i32 s84, s84, 100
        s_add_u32 s84, s84, s64
        s_lshl_b32 s3, s2, 3
        s_add_u32 s3, s3, s{sWAVE}
        s_lshl_b32 s3, s3, 6
        s_add_u32 s3, s3, {STAMP}
        v_mov_b32 v1, 0
        s_mov_b64 exec, 1
        """)
        if opt.get("dbgst"):
            ids = [1, 2, 3, 4, 5, 6, 7, 8, 9, 11, 12, 13, 14, 15]
            a("s_not_b32 s3, s64")
            a("v_mov_b32 v2, s3")
            a("global_atomic_umax v1, v2, s[30:31] offset:4")
            for k, i in enumerate(ids):
                a(f"s_sub_u32 s3, s{64+2*i}, s64")
                a("s_cmp_lt_u32 s3, 100000")
                a(f"s_cselect_b32 s3, s{64+2*i}, 0")
                a("v_mov_b32 v2, s3")
                a(f"global_atomic_umax v1, v2, s[30:31] offset:{8+4*k}")
            a("s_endpgm")
        for i in range(16):
            a(f"v_mov_b32 v2, s{64+2*i}")
            a(f"buffer_store_dword v2, v1, {srd(sWS)}, s3 offen offset:{4*i}")
    a.raw("L_end:")
    a("s_endpgm")
    bad = a.check_branches()
    for b in bad: print("BRANCH HAZARD", b, file=sys.stderr)
    assert not bad
    out = HEADER + f"""; @launch grid=(256,1,1) block=(512,1,1) lds=163840
.amdgcn_target "amdgcn-amd-amdhsa--gfx950"
.text
.globl {NAME}_kernel
.p2align 8
.type {NAME}_kernel,@function
""" + a.text() + f""".fill 1280, 4, 0xBF800000
s_endpgm
.section .rodata,"a"
.p2align 6
.amdhsa_kernel {NAME}_kernel
  .amdhsa_next_free_vgpr 256
  .amdhsa_next_free_sgpr 102
  .amdhsa_accum_offset 256
  .amdhsa_group_segment_fixed_size 0
  .amdhsa_kernarg_size 72
  .amdhsa_user_sgpr_count 2
  .amdhsa_user_sgpr_kernarg_segment_ptr 1
  .amdhsa_system_sgpr_workgroup_id_x 1
.end_amdhsa_kernel
"""
    return out

if __name__ == "__main__":
    stamps = int(sys.argv[1]); path = sys.argv[2]
    opt = dict((kv.split("=")[0], int(kv.split("=")[1])) for kv in sys.argv[3:])
    open(path, "w").write(gen(stamps, opt))
```

```python
import sys, struct, math
from asmlib import Asm

NAME = "concat_heads__sliding_block__sliding_local_dilated__prompt"
HEADER = open("cdna_kernels/%s.s.ref" % NAME).read().split("; Override launch")[0]
def f2u(x): return struct.unpack("<I", struct.pack("<f", x))[0]

XB, WB, WOB_BYTES, OUTB = 1835008, 1204224, 401408, 3670016
MB2 = 0x200000
QO, KO, VO = 0, MB2, 2*MB2
BRS = 3*MB2
OA, OB = 6*MB2, 7*MB2
FL1 = 8*MB2
STAMP = 8*MB2 + 0x100000
WSB = 9*MB2
BIG = 0x40000000
NEG = f2u(-1e30)
CSC = f2u((28 ** -0.5) * math.log2(math.e))
SLOT = 40960
L_WOB, L_WOA, L_KV = 0, 57344, 114688
POLL_MAX = 40000

sWAVE, sBR, sLAM, sRB, sAH, sARB, sRB64, sCB, sTAG = 4, 5, 6, 7, 8, 9, 10, 11, 12
sX, sW, sWoA, sWoB, sWS, sOut = 36, 40, 44, 48, 52, 56
def srd(b): return f"s[{b}:{b+3}]"
def q4(r): return f"v[{r}:{r+3}]"
def q2(r): return f"v[{r}:{r+1}]"
def q16(r): return f"v[{r}:{r+15}]"
vL, vL16, vTAG = 255, 254, 253

def gen(stamps=False, opt=None):
    opt = opt or {}
    a = Asm()
    def stamp(i):
        if stamps:
            a(f"s_memrealtime s[{64+2*i}:{65+2*i}]")
            a("s_waitcnt lgkmcnt(0)")
    def mk_srd(d, p, n):
        return f"s_mov_b32 s{d}, s{p}\ns_mov_b32 s{d+1}, s{p+1}\ns_mov_b32 s{d+2}, {n}\ns_mov_b32 s{d+3}, 0x20000\n"
    MAP = f"""
    s_lshr_b32 s{sLAM}, s14, 2
    s_and_b32 s15, s13, 3
    s_lshl_b32 s15, s15, 2
    s_and_b32 s3, s14, 3
    s_add_u32 s{sRB}, s15, s3
    """ if opt.get("map", 0) else f"""
    s_and_b32 s15, s13, 1
    s_lshl_b32 s15, s15, 2
    s_lshr_b32 s3, s14, 3
    s_add_u32 s{sLAM}, s15, s3
    s_and_b32 s15, s13, 2
    s_lshl_b32 s15, s15, 2
    s_and_b32 s3, s14, 7
    s_add_u32 s{sRB}, s15, s3
    """
    TAGC = f"""
    s_or_b32 s3, s2, s{sWAVE}
    s_cmp_lg_u32 s3, 0
    s_cbranch_scc1 L_notag
    s_memrealtime s[34:35]
    s_waitcnt lgkmcnt(0)
    s_and_b32 s35, s34, 0x1fff
    s_lshl_b32 s35, s35, 1
    s_or_b32 s35, s35, 1
    s_bfe_u32 s3, s34, 0xf000d
    s_lshl_b32 s3, s3, 15
    s_or_b32 s35, s35, s3
    s_lshl_b32 s34, s34, 3
    s_and_b32 s34, s34, 0x80000000
    s_or_b32 s34, s34, s35
    v_mov_b32 v4, s34
    v_mov_b32 v5, 0
    s_mov_b64 exec, 1
    global_atomic_cmpswap v1, v[4:5], s[30:31] sc1
    s_mov_b64 exec, -1
    L_notag:
    """
    MAPB = f"""
    s_and_b32 s15, s13, 1
    s_lshl_b32 s15, s15, 2
    s_and_b32 s3, s14, 3
    s_add_u32 s{sLAM}, s15, s3
    s_and_b32 s15, s13, 2
    s_lshl_b32 s15, s15, 2
    s_lshr_b32 s3, s14, 2
    s_add_u32 s{sRB}, s15, s3
    """
    a.raw(f"{NAME}_kernel:")
    a(f"""
    s_cmp_ge_u32 s2, 256
    s_cbranch_scc1 L_end
    s_load_dwordx16 s[16:31], s[0:1], 0
    s_load_dwordx2 s[32:33], s[0:1], 64
    v_lshrrev_b32 v1, 6, v0
    v_and_b32 v{vL}, 63, v0
    v_readfirstlane_b32 s{sWAVE}, v1
    s_and_b32 s13, s2, 7
    s_lshr_b32 s14, s2, 3
    s_lshr_b32 s{sBR}, s13, 2
    s_xor_b32 s{sBR}, s{sBR}, {opt.get('swap', 1)}
    {MAP}
    v_lshlrev_b32 v{vL16}, 4, v{vL}
    v_lshrrev_b32 v1, 3, v{vL}
    v_and_b32 v2, 7, v{vL}
    v_lshrrev_b32 v3, 4, v{vL}
    s_cmp_lg_u32 s{sBR}, 0
    s_cbranch_scc1 L_brB
    s_cmp_lt_u32 s{sWAVE}, 4
    s_cbranch_scc1 L_compute
    """)
    rest_setup = f"""
    s_lshl_b32 s{sAH}, s13, 1
    s_and_b32 s3, s14, 1
    s_add_u32 s{sAH}, s{sAH}, s3
    s_lshr_b32 s{sARB}, s14, 1
    s_lshl_b32 s{sRB64}, s13, 2
    s_lshr_b32 s3, s14, 3
    s_add_u32 s{sRB64}, s{sRB64}, s3
    s_and_b32 s{sCB}, s14, 7
    """ + mk_srd(sWoA, 20, WOB_BYTES) + mk_srd(sWoB, 26, WOB_BYTES) + mk_srd(sWS, 32, WSB) + (f"s_add_u32 s{sWS}, s{sWS}, {opt['wso'] << 20}\ns_addc_u32 s{sWS+1}, s{sWS+1}, 0\n" if opt.get("wso") else "") + mk_srd(sOut, 28, OUTB)
    def prefetch(l):
        if not opt.get("pf", 0): return
        a(f"""
        s_cmp_lg_u32 s{sWAVE}, 1
        s_cbranch_scc1 L_notouch{l}
        v_min_u32 v4, 8, v{vL}
        v_lshlrev_b32 v4, 21, v4
        v_add_u32 v4, 0x1ff780, v4
        buffer_load_dword v217, v4, {srd(sWS)}, 0 offen sc1
        v_and_b32 v4, 1, v{vL}
        v_lshlrev_b32 v4, 21, v4
        buffer_load_dword v218, v4, {srd(sOut)}, 0 offen
        L_notouch{l}:
        s_and_b32 s3, s14, 15
        s_lshl_b32 s34, s{sWAVE}, 4
        s_or_b32 s3, s3, s34
        s_cmp_lg_u32 s3, 0x2f
        s_cbranch_scc1 L_nocode{l}
        s_getpc_b64 s[34:35]
        L_pc{l}:
        s_sub_u32 s34, s34, L_pc{l}-{NAME}_kernel
        s_subb_u32 s35, s35, 0
        v_lshlrev_b32 v4, 7, v{vL}
        global_load_dword v217, v4, s[34:35]
        v_add_u32 v4, 8192, v4
        global_load_dword v218, v4, s[34:35]
        v_add_u32 v4, 8192, v4
        global_load_dword v219, v4, s[34:35]
        L_nocode{l}:
        """)
    def get_tag(lbl):
        a(f"""
        s_mov_b32 s35, {POLL_MAX}
        L_tag{lbl}:
        v_readfirstlane_b32 s{sTAG}, v{vTAG}
        s_cmp_lg_u32 s{sTAG}, 0
        s_cbranch_scc1 L_tagok{lbl}
        v_mov_b32 v227, 0
        global_load_dword v{vTAG}, v227, s[30:31] sc1
        s_sub_u32 s35, s35, 1
        s_waitcnt vmcnt(0)
        s_cmp_lg_u32 s35, 0
        s_cbranch_scc1 L_tag{lbl}
        L_tagok{lbl}:
        """)
    def poll(lbl, vaddr, vd):
        a(f"""
        s_mov_b32 s35, {POLL_MAX}
        {"s_mov_b64 exec, 0xfff" if opt.get("apoll") else ""}
        L_poll{lbl}:
        {f"v_mov_b32 v{vd}, 0" if opt.get("apoll") else ""}
        {f"buffer_atomic_or v{vd}, v{vaddr}, {srd(sWS)}, s15 offen sc0 sc1" if opt.get("apoll") else f"buffer_load_dword v{vd}, v{vaddr}, {srd(sWS)}, s15 offen sc1"}
        s_sub_u32 s35, s35, 1
        s_waitcnt vmcnt(0)
        v_cmp_ne_u32 vcc, v{vd}, v{vTAG}
        s_cmp_eq_u32 s35, 0
        s_cbranch_scc1 L_pollok{lbl}
        s_cbranch_vccz L_pollok{lbl}
        s_sleep {opt.get("ps", 4)}
        s_branch L_poll{lbl}
        L_pollok{lbl}:
        {"s_mov_b64 exec, -1" if opt.get("apoll") else ""}
        """)
    sRP, sKQ, sT, sU = 60, 61, 62, 63
    vR15, vG, vWA, vMG, vV0, vC = 240, 241, 242, 250, 251, 252
    vNEG, vKa, vKw = 237, 239, 238
    vKq, vOo, vVa, vVb, vOne = 232, 233, 234, 235, 236
    vQm, vOn0, vOn1, vV1 = 228, 230, 231, 226
    sHB, sHQ, sP = 98, 100, 99
    sK = [16, 17, 18, 19, 20, 21]; sV = [22, 23, 24, 25, 26, 27]; sQA = 32
    sOB, sOA = 96, 28
    t0, t1, t2, t3, t4 = 220, 221, 222, 223, 224
    vPA = 225
    FLV = 64*16*128
    p2common = f"""
    s_and_b32 s{sRP}, s{sWAVE}, 1
    s_lshr_b32 s{sKQ}, s{sWAVE}, 1
    v_and_b32 v{vR15}, 15, v{vL}
    v_lshrrev_b32 v{vG}, 4, v{vL}
    v_cmp_gt_u32 vcc, 48, v{vL}
    v_cndmask_b32 v{vMG}, 0, -1, vcc
    v_lshrrev_b32 v{t0}, 2, v{vR15}
    v_lshl_add_u32 v{t1}, v{vG}, 2, v{t0}
    v_lshlrev_b32 v{t1}, 7, v{t1}
    s_mul_i32 s3, s{sKQ}, 14336
    v_add_u32 v{t1}, s3, v{t1}
    v_and_b32 v{t2}, 2, v{t0}
    v_and_b32 v{t3}, 1, v{vG}
    v_lshl_or_b32 v{t2}, v{t3}, 2, v{t2}
    v_lshlrev_b32 v{t2}, 4, v{t2}
    v_and_b32 v{t3}, 3, v{vL}
    v_lshlrev_b32 v{t4}, 3, v{t3}
    v_xor_b32 v{t2}, v{t2}, v{t4}
    v_add_u32 v{t1}, v{t1}, v{t2}
    v_and_b32 v{t2}, 2048, v{vMG}
    """ + "".join(f"""
    s_add_u32 s3, s{sKQ}, {c}
    s_and_b32 s3, s3, 3
    s_lshl_b32 s3, s3, 5
    v_xor_b32 v{vWA+c}, s3, v{t1}
    v_add_u32 v{vWA+4+c}, v{vWA+c}, v{t2}
    """ for c in range(4)) + f"""
    v_mov_b32 v{t4}, {BIG}
    v_lshlrev_b32 v{vKq}, 9, v{vG}
    v_lshl_add_u32 v{vKq}, v{vR15}, 4, v{vKq}
    v_lshlrev_b32 v{vOo}, 6, v{vR15}
    v_lshl_add_u32 v{vOo}, v{vG}, 4, v{vOo}
    v_lshlrev_b32 v{vVa}, 8, v{t0}
    v_lshl_add_u32 v{vVa}, v{vG}, 6, v{vVa}
    v_lshl_add_u32 v{vVa}, v{t3}, 4, v{vVa}
    v_add_u32 v{vVb}, 1024, v{vVa}
    v_cmp_gt_u32 vcc, 12, v{vR15}
    v_cndmask_b32 v{vVb}, v{t4}, v{vVb}, vcc
    v_cmp_eq_u32 vcc, 12, v{vR15}
    v_mov_b32 v{t4}, 0x3f803f80
    v_cndmask_b32 v{vOne}, 0, v{t4}, vcc
    v_mov_b32 v{vC}, {CSC}
    v_mov_b32 v{vNEG}, {NEG}
    s_and_b32 s3, s{sWAVE}, 6
    s_lshl_b32 s3, s3, 10
    s_add_u32 s3, s3, {L_KV}
    v_add_u32 v{vKa}, s3, v{vL16}
    s_mul_i32 s3, s{sAH}, 7
    s_lshr_b32 s{sHQ}, s3, 1
    s_lshl_b32 s{sHQ}, s{sHQ}, 9
    s_lshl_b32 s{sHB}, s3, 8
    v_cmp_lt_u32 vcc, 15, v{vL}
    v_cndmask_b32 v{t0}, 0, -1, vcc
    s_bitcmp1_b32 s{sAH}, 0
    s_cselect_b64 vcc, -1, 0
    v_cndmask_b32 v{vQm}, -1, v{t0}, vcc
    v_cndmask_b32 v{vQm+1}, v{vMG}, -1, vcc
    s_mul_i32 s3, s{sWAVE}, 3
    s_lshl_b32 s{sT}, s{sARB}, 3
    s_sub_u32 s{sT}, s{sT}, 16
    s_add_u32 s{sT}, s{sT}, s3
    s_lshl_b32 s3, s3, 10
    s_add_u32 s3, s3, {L_KV}
    v_add_u32 v{vKw}, s3, v{vL16}
    v_subrev_u32 v{t0}, 1024, v{vVb}
    s_bitcmp1_b32 s{sWAVE}, 0
    s_cselect_b64 vcc, -1, 0
    v_cndmask_b32 v{vV0}, v{vVa}, v{t0}, vcc
    v_cndmask_b32 v{vV1}, v{t0}, v{vVa}, vcc
    v_cndmask_b32 v{vOn0}, 0, v{vOne}, vcc
    v_cndmask_b32 v{vOn1}, v{vOne}, 0, vcc
    """ + "".join(f"""
    s_ashr_i32 s34, s{sT}, 1
    s_mul_i32 s34, s34, 28672
    s_and_b32 s35, s{sT}, 1
    s_lshl_b32 s3, s35, 10
    s_add_u32 s3, s3, s34
    s_add_u32 s3, s3, s{sHB}
    s_add_u32 s3, s3, {VO}
    s_lshl_b32 s35, s35, 8
    s_add_u32 s35, s35, s34
    s_add_u32 s35, s35, s{sHQ}
    s_add_u32 s35, s35, {KO}
    s_cmp_lt_i32 s{sT}, 0
    s_cselect_b32 s{sV[i]}, {BIG}, s3
    s_cselect_b32 s{sK[i]}, {BIG}, s35
    s_add_u32 s{sT}, s{sT}, 1
    """ for i in range(3)) + f"""
    s_lshl_b32 s3, s{sARB}, 3
    s_add_u32 s3, s3, s{sWAVE}
    s_lshr_b32 s34, s3, 1
    s_mul_i32 s34, s34, 28672
    s_and_b32 s35, s3, 1
    s_lshl_b32 s35, s35, 8
    s_add_u32 s35, s35, s34
    s_add_u32 s{sQA}, s35, s{sHQ}
    s_lshl_b32 s3, s3, 4
    s_add_u32 s3, s3, s{sAH}
    s_lshl_b32 s3, s3, 10
    s_add_u32 s33, s3, {OA}
    s_mul_i32 s3, s{sAH}, 7
    s_lshr_b32 s34, s3, 3
    s_add_u32 s3, s3, 6
    s_lshr_b32 s35, s3, 3
    s_sub_u32 s35, s35, s34
    v_and_b32 v{t0}, 1, v{vL}
    v_mul_u32_u24 v{t0}, s35, v{t0}
    v_add_u32 v{t0}, s34, v{t0}
    v_min_u32 v{t1}, 11, v{vL}
    v_lshrrev_b32 v{t1}, 1, v{t1}
    s_lshl_b32 s3, s{sARB}, 1
    s_sub_u32 s3, s3, 4
    v_add_u32 v{t1}, s3, v{t1}
    v_max_i32 v{t1}, 0, v{t1}
    v_lshl_add_u32 v{t1}, v{t1}, 4, v{t0}
    v_lshlrev_b32 v{vPA}, 7, v{t1}
    s_lshl_b32 s3, s{sRB64}, 2
    s_lshl_b32 s35, s{sRP}, 1
    s_add_u32 s3, s3, s35
    s_lshl_b32 s3, s3, 4
    s_lshl_b32 s35, s{sKQ}, 2
    s_add_u32 s3, s3, s35
    s_lshl_b32 s3, s3, 10
    s_add_u32 s{sOB}, s3, {OB}
    s_add_u32 s{sOB+1}, s{sOB}, 16384
    s_add_u32 s{sOA}, s3, {OA}
    s_add_u32 s{sOA+1}, s{sOA}, 16384
    s_mov_b32 s15, {FL1}
    """
    def normalize(O0, O1, ta, tb, dst):
        return [
            [f"v_mov_b32 v{ta}, v{O1}", f"v_mov_b32 v{tb}, v{O1}"],
            [f"v_permlane32_swap_b32 v{ta}, v{tb}"],
            [f"v_mov_b32 v{ta}, v{tb}"],
            [f"v_permlane16_swap_b32 v{ta}, v{tb}"],
            [f"v_rcp_f32 v{tb}, v{tb}"],
            [f"v_mul_f32 v{O0+i}, v{O0+i}, v{tb}" for i in range(4)] + [f"v_mul_f32 v{O1+i}, v{O1+i}, v{tb}" for i in range(4)],
            [f"v_cvt_pk_bf16_f32 v{dst}, v{O0}, v{O0+1}", f"v_cvt_pk_bf16_f32 v{dst+1}, v{O0+2}, v{O0+3}",
             f"v_cvt_pk_bf16_f32 v{dst+2}, v{O1}, v{O1+1}", f"v_cvt_pk_bf16_f32 v{dst+3}, v{O1+2}, v{O1+3}"],
            [f"v_bfi_b32 v{dst+3}, v{vMG}, v{dst+3}, v{vTAG}"],
        ]
    vXe, vXo, vW0, vW1, vWo, vPw = 10, 11, 13, 14, 15, 17
    sLW, sLx, sLw, sT0, sT1 = 96, 97, 101, 34, 35
    sLwo, sL1k = 14, 15
    a(f"""
    s_sub_u32 s{sLW}, s{sWAVE}, 4
    s_lshl_b32 s{sT0}, s{sRB}, 7
    s_lshl_b32 s{sT1}, s{sLW}, 5
    s_add_u32 s{sT0}, s{sT0}, s{sT1}
    v_add_u32 v4, s{sT0}, v1
    v_mul_u32_u24 v4, 896, v4
    v_xor_b32 v5, v2, v3
    v_lshl_add_u32 v{vXe}, v5, 4, v4
    v_xor_b32 v5, 4, v5
    v_lshl_add_u32 v{vXo}, v5, 4, v4
    v_add_u32 v{vXo}, 6144, v{vXo}
    s_lshl_b32 s{sLx}, s{sLW}, 12
    s_lshl_b32 s{sLw}, s{sLW}, 11
    s_lshl_b32 s{sT1}, s{sLW}, 4
    v_add_u32 v4, s{sT1}, v1
    v_mul_u32_u24 v4, 2688, v4
    s_lshl_b32 s{sT1}, s{sLAM}, 7
    v_add_u32 v4, s{sT1}, v4
    v_and_b32 v5, 1, v3
    v_lshlrev_b32 v5, 2, v5
    v_xor_b32 v5, v2, v5
    v_lshl_add_u32 v{vW0}, v5, 4, v4
    v_add_u32 v{vW1}, {8*2688-1024}, v{vW0}
    s_mov_b32 s{sX+2}, {XB}
    s_mov_b32 s{sX+3}, 0x20000
    s_mov_b32 s{sW+2}, {WB}
    s_mov_b32 s{sW+3}, 0x20000
    s_waitcnt lgkmcnt(0)
    s_mov_b32 s{sX}, s16
    s_mov_b32 s{sX+1}, s17
    s_mov_b32 s{sW}, s18
    s_mov_b32 s{sW+1}, s19
    """)
    stamp(0)
    a(f"""
    s_cmp_eq_u32 s{sLAM}, 7
    s_cbranch_scc1 L_ld_idle
    """)
    order = []
    def D(c):
        slot = ((c + 1) % 4) * SLOT
        a(f"""
        s_add_u32 m0, s{sLx}, {slot}
        s_mov_b32 s{sT0}, {c*128}
        s_mov_b32 s{sT1}, {c*128 + 12288}
        buffer_load_dwordx4 v{vXe}, {srd(sX)}, s{sT0} offen lds
        buffer_load_dwordx4 v{vXo}, {srd(sX)}, s{sT0} offen offset:1024 lds
        buffer_load_dwordx4 v{vXe}, {srd(sX)}, s{sT1} offen offset:2048 lds
        buffer_load_dwordx4 v{vXo}, {srd(sX)}, s{sT1} offen offset:3072 lds
        """)
        for p in (1, 2, 0):
            a(f"""
            s_add_u32 m0, s{sLw}, {slot + 16384 + p*8192}
            s_mov_b32 s{sT1}, {c*64*2688 + p*896}
            buffer_load_dwordx4 v{vW0}, {srd(sW)}, s{sT1} offen lds
            buffer_load_dwordx4 v{vW1}, {srd(sW)}, s{sT1} offen offset:1024 lds
            """)
        order.extend([c] * 10)
    def Wt(c):
        last = max(i for i, o in enumerate(order) if o == c)
        a(f"s_waitcnt vmcnt({len(order) - 1 - last})")
        if c == 0: stamp(1)
        a("s_barrier")
    wo_setup = rest_setup + f"""
    v_and_b32 v5, 6, v1
    v_xor_b32 v5, v2, v5
    v_mul_u32_u24 v4, 896, v1
    s_lshl_b32 s{sT1}, s{sCB}, 7
    v_add_u32 v4, s{sT1}, v4
    v_lshl_add_u32 v{vWo}, v5, 4, v4
    s_cmp_eq_u32 s{sCB}, 7
    s_cselect_b64 vcc, -1, 0
    v_mov_b32 v7, {BIG}
    v_cndmask_b32 v{vWo}, v{vWo}, v7, vcc
    v_mov_b32 v1, 0
    s_mul_i32 s3, s14, 98
    s_and_b32 s{sT1}, s{sLW}, 1
    s_mul_i32 s{sT1}, s{sT1}, 49
    s_add_u32 s3, s3, s{sT1}
    v_min_u32 v4, 48, v{vL}
    v_add_u32 v4, s3, v4
    v_lshlrev_b32 v{vPw}, 7, v4
    s_mul_i32 s{sLwo}, s{sLW}, 7168
    s_lshl_b32 s{sL1k}, s{sLW}, 10
    global_load_dword v{vTAG}, v1, s[30:31] sc1
    """
    def issue_wo(i0, i1):
        for i in range(i0, i1):
            br = i >= 14
            a(f"""
            s_add_u32 m0, s{sL1k}, {4096*i}
            s_add_u32 s{sT1}, s{sLwo}, {(4*i - 56*br)*7168}
            buffer_load_dwordx4 v{vWo}, {srd(sWoA if br else sWoB)}, s{sT1} offen lds
            """)
            order.append("wo")
    vPf = 16
    sPS, sPO = 60, 61
    PFN = " nt" if opt.get("pnt", 0) else ""
    def pf_setup(wmul):
        a(f"""
        s_and_b32 s{sT0}, s13, 2
        s_lshl_b32 s{sT0}, s{sT0}, 9
        s_lshl_b32 s{sT1}, s14, 5
        s_add_u32 s{sT0}, s{sT0}, s{sT1}
        v_min_u32 v4, 31, v{vL}
        v_add_u32 v4, s{sT0}, v4
        v_mul_u32_u24 v{vPf}, 896, v4
        v_min_u32 v4, 23, v{vL}
        v_cmp_le_u32 vcc, 12, v4
        v_cndmask_b32 v5, 0, 1, vcc
        v_mul_u32_u24 v6, 12, v5
        v_sub_u32 v6, v4, v6
        s_lshl_b32 s{sT0}, s14, 1
        v_add_u32 v5, s{sT0}, v5
        v_mul_u32_u24 v5, 2688, v5
        v_lshrrev_b32 v4, 2, v6
        v_mul_u32_u24 v4, 896, v4
        v_add_u32 v5, v5, v4
        v_and_b32 v6, 3, v6
        v_lshl_add_u32 v5, v6, 7, v5
        s_and_b32 s{sT0}, s13, 1
        s_mul_i32 s{sT0}, s{sT0}, {wmul}
        v_add_u32 v5, s{sT0}, v5
        s_bitcmp1_b32 s{sLW}, 0
        s_cselect_b64 vcc, -1, 0
        s_mov_b32 s{sPS}, 128
        s_cselect_b32 s{sPS}, 172032, s{sPS}
        s_cselect_b32 s44, s{sW}, s{sX}
        s_cselect_b32 s45, s{sW+1}, s{sX+1}
        s_cselect_b32 s46, s{sW+2}, s{sX+2}
        s_mov_b32 s47, 0x20000
        v_cndmask_b32 v{vPf}, v{vPf}, v5, vcc
        s_lshr_b32 s{sPO}, s{sLW}, 1
        s_add_u32 s{sPO}, s{sPO}, 1
        s_mul_i32 s{sPO}, s{sPO}, s{sPS}
        s_lshl_b32 s{sPS}, s{sPS}, 1
        """)
    def pf():
        a(f"""
        buffer_load_dword v20, v{vPf}, s[44:47], s{sPO} offen{PFN}
        s_add_u32 s{sPO}, s{sPO}, s{sPS}
        """)
        order.append("pf")
    PMA, PMB = opt.get("pma", 1), opt.get("pmb", 2)
    def head(Dx, wmul):
        PM = PMA if wmul == 512 else PMB
        if PM == 0: Dx(0); Dx(1); Wt(0); Dx(2); Wt(1); Dx(3)
        elif PM == 1: Dx(0); pf_setup(wmul); pf(); Dx(1); Wt(0); Dx(2); pf(); pf(); Wt(1); Dx(3)
        elif PM == 2: Dx(0); pf_setup(wmul); pf(); Dx(1); Wt(0); pf(); Dx(2); Wt(1); pf(); Dx(3)
        elif PM == 3: Dx(0); pf_setup(wmul); pf(); pf(); pf(); Dx(1); Wt(0); Dx(2); Wt(1); Dx(3)
    def pf_wo(l):
        if opt.get("nopw"): return
        a(f"""
        s_cmp_lt_u32 s{sLW}, 2
        s_cbranch_scc1 L_pwB{l}
        buffer_load_dword v20, v{vPw}, {srd(sWoA)}, 0 offen
        s_branch L_pwD{l}
        L_pwB{l}:
        buffer_load_dword v20, v{vPw}, {srd(sWoB)}, 0 offen
        L_pwD{l}:
        """)
        order.append("pfw")
    head(D, 512)
    a(wo_setup); order.append("tag")
    if opt.get("seq", 0) == 1:
        Wt(2); D(4); Wt(3); D(5); pf_wo(0); Wt(4); D(6); issue_wo(0, 10); Wt(5); issue_wo(10, 20); Wt(6)
    elif opt.get("seq", 0) == 0:
        Wt(2); D(4); Wt(3); D(5); Wt(4); D(6); pf_wo(0); Wt(5)
        DEF = opt.get("defer", 2)
        if DEF < 4: issue_wo(0, 10)
        Wt(6)
        if DEF >= 2: a("s_barrier")
        if DEF == 4: issue_wo(0, 10)
        issue_wo(10, 20)
        if DEF == 1: a("s_barrier")
    else:
        Wt(2); D(4); Wt(3); D(5); Wt(4); D(6); pf_wo(0); Wt(5); issue_wo(0, 14); Wt(6); a("s_sleep 16"); issue_wo(14, 20)
    a("s_branch L_ld2")
    a.raw("L_ld_idle:")
    if PMA: pf_setup(512); pf(); pf(); pf()
    a(wo_setup)
    pf_wo(1)
    issue_wo(0, 20)
    a.raw("L_ld2:")
    issue_wo(20, 28)
    a(p2common)
    a("s_waitcnt vmcnt(28)" if opt.get("nowait", 0) else "s_waitcnt vmcnt(0)")
    get_tag("l")
    if not opt.get("lp", 1):
        a(f"""
        s_cmp_lg_u32 s{sWAVE}, 7
        s_cbranch_scc1 L_pollok1
        """)
        poll("1", vPA, 9)
    stamp(2)
    a("s_branch L_phase2")

    a.raw("L_compute:")
    sCH, sRH = 96, 97
    sSQ, sSK, sSV, sSQh, sSKh, sFl = 36, 37, 38, 39, 40, 41
    def Acc(p, rt): return p*32 + rt*16
    def Fx(s, rt): return 96 + 20*s + 4*rt
    def Fw(s, p): return 96 + 20*s + 8 + 4*p
    vxa = [200, 201, 202, 203]; vwa = 204
    vQo, vVo = 205, 206
    slot0 = SLOT
    a(f"""
    s_waitcnt lgkmcnt(0)
    v_mov_b32 v1, 0
    {'' if opt.get('swap', 1) else TAGC}
    """)
    stamp(0)
    a(rest_setup)
    prefetch('a')
    a(f"""
    s_and_b32 s{sCH}, s{sWAVE}, 1
    s_lshr_b32 s{sRH}, s{sWAVE}, 1
    s_cmp_eq_u32 s{sLAM}, 7
    s_cbranch_scc1 L_cmp_idle
    v_and_b32 v2, 31, v{vL}
    v_lshrrev_b32 v3, 5, v{vL}
    v_bfe_u32 v4, v{vL}, 2, 2
    s_lshl_b32 s3, s{sLAM}, 1
    s_add_u32 s3, s3, s{sCH}
    s_lshl_b32 s34, s3, 11
    v_add_u32 v{vQo}, s34, v{vL16}
    v_bfe_u32 v6, v{vL}, 4, 1
    v_lshlrev_b32 v6, 2, v6
    v_and_b32 v7, 1, v4
    v_lshl_add_u32 v6, v7, 1, v6
    v_lshrrev_b32 v7, 1, v4
    v_add_u32 v6, v6, v7
    v_lshl_add_u32 v7, v6, 8, s34
    v_lshl_add_u32 v7, v3, 6, v7
    v_and_b32 v8, 3, v{vL}
    v_lshl_add_u32 v{vVo}, v8, 4, v7
    s_lshl_b32 s34, s{sRB}, 1
    s_add_u32 s34, s34, s{sRH}
    s_mul_i32 s{sSQ}, s34, 57344
    s_add_u32 s{sSQh}, s{sSQ}, 28672
    s_add_u32 s{sSK}, s{sSQ}, {KO}
    s_add_u32 s{sSKh}, s{sSQh}, {KO}
    s_add_u32 s{sSV}, s{sSQ}, {VO}
    s_add_u32 s15, s{sSQh}, {VO}
    s_lshl_b32 s34, s34, 4
    s_add_u32 s34, s34, s3
    s_lshl_b32 s34, s34, 7
    s_add_u32 s{sFl}, s34, {FL1}
    """)
    def qkv_stores(data):
        for p, lo, hi in ((1, sSK, sSKh), (2, None, None), (0, sSQ, sSQh)):
            for rt in range(2):
                for half in range(2):
                    d = data(p, rt, half)
                    if p == 2: a(f"buffer_store_dwordx4 {q4(d)}, v{vVo}, {srd(sWS)}, s{sSV} offen offset:{rt*2048 + half*128} sc1")
                    else: a(f"buffer_store_dwordx4 {q4(d)}, v{vQo}, {srd(sWS)}, s{hi if half else lo} offen offset:{rt*512} sc1")
    a(f"""
    global_load_dword v{vTAG}, v1, s[30:31] sc1
    s_lshl_b32 s3, s{sRH}, 6
    v_add_u32 v5, s3, v2
    v_lshlrev_b32 v5, 7, v5
    v_bfe_u32 v6, v2, 1, 3
    v_xor_b32 v6, v6, v3
    v_lshl_add_u32 v{vxa[0]}, v6, 4, v5
    v_add_u32 v{vxa[0]}, {slot0}, v{vxa[0]}
    v_xor_b32 v{vxa[1]}, 32, v{vxa[0]}
    v_xor_b32 v{vxa[2]}, 64, v{vxa[0]}
    v_xor_b32 v{vxa[3]}, 96, v{vxa[0]}
    v_lshl_add_u32 v6, v3, 3, v4
    v_lshlrev_b32 v6, 7, v6
    v_add_u32 v6, {slot0 + 16384}, v6
    v_bfe_u32 v7, v{vL}, 4, 1
    v_lshlrev_b32 v7, 5, v7
    v_and_b32 v8, 1, v{vL}
    v_lshl_or_b32 v7, v8, 4, v7
    v_bfe_u32 v8, v{vL}, 1, 1
    v_lshl_or_b32 v7, v8, 3, v7
    s_lshl_b32 s3, s{sCH}, 6
    v_or_b32 v7, s3, v7
    v_and_b32 v8, 2, v4
    v_lshlrev_b32 v8, 5, v8
    v_xor_b32 v7, v7, v8
    v_add_u32 v{vwa}, v6, v7
    """)
    def reads(s, ks):
        L = [f"ds_read_b128 {q4(Fx(s,rt))}, v{vxa[ks]} offset:{rt*4096}" for rt in range(2)]
        for p in (1, 2, 0):
            for u in range(2):
                L.append(f"ds_read_b64_tr_b16 {q2(Fw(s, p) + 2*u)}, v{vwa} offset:{p*8192 + ks*2048 + u*512}")
        return L
    def kstep(s, rd, extra=(), zero=False):
        M = []
        for p in (1, 2, 0):
            for rt in range(2):
                A, B = (Fx(s,rt), Fw(s,p)) if p == 2 else (Fw(s,p), Fx(s,rt))
                M.append(f"v_mfma_f32_32x32x16_bf16 {q16(Acc(p,rt))}, {q4(A)}, {q4(B)}, {'0' if zero else q16(Acc(p,rt))}")
        per = [3, 3, 2, 0, 0, 0]
        k = 0
        extra = list(extra)
        for i, m in enumerate(M):
            a(m)
            for _ in range(per[i]):
                if k < len(rd): a(rd[k]); k += 1
            if i >= 3:
                for _ in range(4):
                    if extra: a(extra.pop(0))
        for e in extra: a(e)
    sC, sD = 42, 43
    a("s_barrier")
    stamp(1)
    for r in reads(0, 0): a(r)
    a(f"s_mov_b32 s{sC}, 0")
    ex0 = [f"s_and_b32 s3, s{sC}, 3", f"s_cmp_eq_u32 s3, 2", f"s_mov_b32 s{sD}, {SLOT}",
           f"s_cselect_b32 s{sD}, {(-3*SLOT) & 0xffffffff}, s{sD}",
           f"v_add_u32 v{vxa[0]}, s{sD}, v{vxa[0]}", f"v_add_u32 v{vxa[1]}, s{sD}, v{vxa[1]}"]
    a("s_waitcnt lgkmcnt(0)")
    kstep(0, reads(1, 1), ex0, zero=True)
    a("s_branch L_gemm1")
    a.raw("L_gemm:")
    a("s_waitcnt lgkmcnt(0)")
    kstep(0, reads(1, 1), ex0)
    a.raw("L_gemm1:")
    a("s_waitcnt lgkmcnt(0)")
    kstep(1, reads(0, 2), [f"v_add_u32 v{vxa[2]}, s{sD}, v{vxa[2]}"])
    a("s_waitcnt lgkmcnt(0)")
    kstep(0, reads(1, 3), [f"v_add_u32 v{vxa[3]}, s{sD}, v{vxa[3]}", f"v_add_u32 v{vwa}, s{sD}, v{vwa}",
                           f"s_add_u32 s{sC}, s{sC}, 1", f"s_cmp_lt_u32 s{sC}, 6"])
    a("s_waitcnt lgkmcnt(0)")
    a("s_barrier")
    kstep(1, reads(0, 0))
    a("s_cbranch_scc1 L_gemm")
    def cvt(d, s0): a(f"v_cvt_pk_bf16_f32 v{d}, v{s0}, v{s0+1}")
    def mf(p, rt, ks):
        A, B = (Fx(ks,rt), Fw(ks,p)) if p == 2 else (Fw(ks,p), Fx(ks,rt))
        return f"v_mfma_f32_32x32x16_bf16 {q16(Acc(p,rt))}, {q4(A)}, {q4(B)}, {q16(Acc(p,rt))}"
    rd = []
    for ks in (1, 2, 3):
        r = reads(ks, ks); rd += r[0:4]
    for ks in (1, 2, 3): rd += reads(ks, ks)[6:8]
    for ks in (1, 2, 3): rd += reads(ks, ks)[4:6]
    a("s_waitcnt vmcnt(0) lgkmcnt(0)")
    k = 0
    for p in (1, 0, 2):
        for rt in range(2):
            a(mf(p, rt, 0))
            for _ in range(3): a(rd[k]); k += 1
    def epi(p):
        L = []
        for rt in range(2):
            for half in range(2):
                if p == 2:
                    d = 176 + (rt*2+half)*4; s0 = Acc(2, rt) + 4*half
                    L += [f"v_cvt_pk_bf16_f32 v{d}, v{s0}, v{s0+1}", f"v_cvt_pk_bf16_f32 v{d+1}, v{s0+2}, v{s0+3}",
                          f"v_cvt_pk_bf16_f32 v{d+2}, v{s0+8}, v{s0+9}", f"v_cvt_pk_bf16_f32 v{d+3}, v{s0+10}, v{s0+11}",
                          f"buffer_store_dwordx4 {q4(d)}, v{vVo}, {srd(sWS)}, s{15 if rt else sSV} offen offset:{half*128} sc1"]
                else:
                    d = Acc(p, rt) + 8*half
                    lo, hi = (sSK, sSKh) if p == 1 else (sSQ, sSQh)
                    L += [f"v_cvt_pk_bf16_f32 v{d+i}, v{d+2*i}, v{d+2*i+1}" for i in range(4)]
                    L += [f"buffer_store_dwordx4 {q4(d)}, v{vQo}, {srd(sWS)}, s{hi if rt else lo} offen offset:{half*1024} sc1"]
        return L
    for n, ks in enumerate((1, 2, 3)):
        a(f"s_waitcnt lgkmcnt({min(15, k - 4*(n+1))})")
        for rt in range(2):
            a(mf(1, rt, ks))
            if k < 24: a(rd[k]); k += 1
    pend = epi(1)
    for p, nxt, base in ((0, 0, 12), (2, None, 18)):
        for n, ks in enumerate((1, 2, 3)):
            a(f"s_waitcnt lgkmcnt({24 - base - 2*(n+1)})")
            for rt in range(2):
                a(mf(p, rt, ks))
                if n or rt:
                    for _ in range(4):
                        if pend: a(pend.pop(0))
        for x in pend: a(x)
        pend = epi(p)
    stamp(3)
    for x in pend: a(x)
    if opt.get("defer", 2) in (1, 2): a("s_barrier")
    stamp(2)
    a("v_mov_b32 v227, 0")
    a("s_waitcnt vmcnt(0)")
    get_tag("c")
    a(f"""
    s_mov_b64 exec, 1
    buffer_store_dword v{vTAG}, v227, {srd(sWS)}, s{sFl} offen sc1
    s_mov_b64 exec, -1
    """)
    stamp(4)
    if opt.get("defer", 2) >= 3: a("s_barrier")
    a("s_branch L_cmp2")
    a.raw("L_cmp_idle:")
    a(f"global_load_dword v{vTAG}, v1, s[30:31] sc1")
    a("s_waitcnt vmcnt(0)")
    get_tag("i")
    a.raw("L_cmp2:")
    a(p2common)
    a("s_branch L_phase2")
    a.raw("L_brB:")
    SLB = 43008
    SB0 = 34816
    a(MAPB)
    a(f"""
    s_cmp_lt_u32 s{sWAVE}, 4
    s_cbranch_scc1 L_cmpB
    """)
    vXh = 12
    sLh = 63
    a(f"""
    s_sub_u32 s{sLW}, s{sWAVE}, 4
    s_lshl_b32 s{sT0}, s{sRB}, 7
    s_lshl_b32 s{sT1}, s{sLW}, 5
    s_add_u32 s{sT0}, s{sT0}, s{sT1}
    v_add_u32 v4, s{sT0}, v1
    v_mul_u32_u24 v4, 896, v4
    v_xor_b32 v5, v2, v3
    v_lshl_add_u32 v{vXe}, v5, 4, v4
    v_xor_b32 v5, 4, v5
    v_lshl_add_u32 v{vXo}, v5, 4, v4
    v_add_u32 v{vXo}, 6144, v{vXo}
    s_lshl_b32 s{sLx}, s{sLW}, 12
    s_lshl_b32 s{sLw}, s{sLW}, 11
    s_lshl_b32 s{sLh}, s{sLW}, 9
    s_lshl_b32 s{sT1}, s{sLW}, 4
    v_add_u32 v4, s{sT1}, v1
    v_mul_u32_u24 v4, 2688, v4
    s_mul_i32 s{sT1}, s{sLAM}, 112
    v_add_u32 v4, s{sT1}, v4
    v_and_b32 v5, 1, v3
    v_lshlrev_b32 v5, 1, v5
    v_xor_b32 v5, v2, v5
    v_mov_b32 v7, {BIG}
    v_lshl_add_u32 v{vW0}, v5, 4, v4
    v_cmp_eq_u32 vcc, 7, v5
    v_xor_b32 v6, 4, v5
    v_cndmask_b32 v{vW0}, v{vW0}, v7, vcc
    v_lshl_add_u32 v{vW1}, v6, 4, v4
    v_cmp_eq_u32 vcc, 7, v6
    v_add_u32 v{vW1}, {8*2688-1024}, v{vW1}
    v_cndmask_b32 v{vW1}, v{vW1}, v7, vcc
    s_lshl_b32 s{sT0}, s{sRB}, 7
    s_lshl_b32 s{sT1}, s{sLW}, 2
    s_add_u32 s{sT0}, s{sT0}, s{sT1}
    s_sub_u32 s{sT0}, s{sT0}, 16
    v_add_u32 v4, s{sT0}, v1
    v_mul_i32_i24 v4, 896, v4
    s_lshl_b32 s{sT1}, s{sLW}, 1
    v_add_u32 v5, s{sT1}, v3
    v_and_b32 v5, 7, v5
    v_xor_b32 v5, v2, v5
    v_lshl_add_u32 v{vXh}, v5, 4, v4
    s_cmp_eq_u32 s{sRB}, 0
    s_cselect_b64 vcc, -1, 0
    v_cndmask_b32 v{vXh}, v{vXh}, v7, vcc
    s_mov_b32 s{sX+2}, {XB}
    s_mov_b32 s{sX+3}, 0x20000
    s_mov_b32 s{sW+2}, {WB}
    s_mov_b32 s{sW+3}, 0x20000
    s_waitcnt lgkmcnt(0)
    s_mov_b32 s{sX}, s22
    s_mov_b32 s{sX+1}, s23
    s_mov_b32 s{sW}, s24
    s_mov_b32 s{sW+1}, s25
    """)
    stamp(0)
    del order[:]
    def DB(c):
        slot = SB0 + ((c + 2) % 3) * SLB
        a(f"""
        s_add_u32 m0, s{sLx}, {slot + 2048}
        s_mov_b32 s{sT0}, {c*128}
        s_mov_b32 s{sT1}, {c*128 + 12288}
        buffer_load_dwordx4 v{vXe}, {srd(sX)}, s{sT0} offen lds
        buffer_load_dwordx4 v{vXo}, {srd(sX)}, s{sT0} offen offset:1024 lds
        buffer_load_dwordx4 v{vXe}, {srd(sX)}, s{sT1} offen offset:2048 lds
        buffer_load_dwordx4 v{vXo}, {srd(sX)}, s{sT1} offen offset:3072 lds
        """)
        for p in range(3):
            a(f"""
            s_add_u32 m0, s{sLw}, {slot + 18432 + p*8192}
            s_mov_b32 s{sT1}, {c*64*2688 + p*896}
            buffer_load_dwordx4 v{vW0}, {srd(sW)}, s{sT1} offen lds
            buffer_load_dwordx4 v{vW1}, {srd(sW)}, s{sT1} offen offset:1024 lds
            """)
        a(f"""
        s_add_u32 m0, s{sLh}, {slot}
        s_mov_b64 exec, 0xffffffff
        buffer_load_dwordx4 v{vXh}, {srd(sX)}, s{sT0} offen lds
        s_mov_b64 exec, -1
        """)
        order.extend([c] * 11)
    head(DB, 384)
    a(wo_setup); order.append("tag")
    Wt(2); DB(4); Wt(3); DB(5); Wt(4); DB(6); pf_wo(2); Wt(5); issue_wo(0, 10); Wt(6); issue_wo(10, 20)
    a("s_branch L_ld2")
    a.raw("L_cmpB:")
    sHH = 96
    def Qa(rt, ft): return ((rt-1)*2+ft)*4
    def Ka(rt, ft): return 32 + (rt*2+ft)*4
    def Va(rt, ft): return 72 + (rt*2+ft)*4
    def Gx(s, rt): return 112 + 44*s + 4*rt
    def Gw(s, p, ft): return 112 + 44*s + 20 + (p*2+ft)*4
    bxa = [200, 201]; bwa = [202, 203]
    vBS, vBP, vBP1 = 204, 208, 212
    sl0 = SB0 + 2 * SLB
    a(f"""
    s_and_b32 s{sHH}, s{sWAVE}, 1
    s_lshr_b32 s{sRH}, s{sWAVE}, 1
    v_and_b32 v2, 15, v{vL}
    s_lshl_b32 s3, s{sRH}, 6
    v_add_u32 v4, s3, v2
    v_lshlrev_b32 v4, 7, v4
    v_lshrrev_b32 v5, 1, v2
    v_xor_b32 v5, v5, v3
    v_lshl_add_u32 v{bxa[0]}, v5, 4, v4
    v_add_u32 v{bxa[0]}, {sl0}, v{bxa[0]}
    v_xor_b32 v{bxa[1]}, 64, v{bxa[0]}
    v_lshrrev_b32 v4, 2, v2
    v_and_b32 v5, 3, v{vL}
    v_lshl_add_u32 v6, v3, 3, v4
    v_lshlrev_b32 v6, 7, v6
    v_add_u32 v6, {sl0 + 18432}, v6
    v_and_b32 v7, 2, v4
    v_and_b32 v8, 1, v3
    v_lshl_or_b32 v7, v8, 2, v7
    v_lshlrev_b32 v7, 4, v7
    s_mul_i32 s3, s{sHH}, 56
    v_lshl_add_u32 v8, v5, 3, s3
    v_xor_b32 v9, v8, v7
    v_add_u32 v{bwa[0]}, v6, v9
    v_add_u32 v8, 32, v8
    v_cmp_eq_u32 vcc, 56, v8
    v_mov_b32 v9, 120
    v_cndmask_b32 v8, v8, v9, vcc
    v_xor_b32 v9, v8, v7
    v_add_u32 v{bwa[1]}, v6, v9
    v_cmp_eq_u32 vcc, 12, v2
    v_cndmask_b32 v216, 0, 1.0, vcc
    v_mov_b32 v217, v216
    v_mov_b32 v218, v216
    v_mov_b32 v219, v216
    s_lshl_b32 s34, s{sRB}, 1
    s_add_u32 s34, s34, s{sRH}
    s_lshl_b32 s37, s34, 6
    s_lshl_b32 s3, s{sLAM}, 1
    s_add_u32 s3, s3, s{sHH}
    s_add_u32 s3, s3, s37
    s_lshl_b32 s3, s3, 10
    s_add_u32 s36, s3, {OB}
    s_mov_b32 s37, s34
    v_mov_b32 v1, 0
    s_waitcnt lgkmcnt(0)
    {TAGC if opt.get('swap', 1) else ''}
    """)
    stamp(0)
    pc = [l for l in p2common.split("\n") if l.strip()]
    cut = next(k for k in range(len(pc)) if pc[k].strip().startswith("s_mul_i32 s3, s%d, 3" % sWAVE))
    bias = f"""
    v_mov_b32 v224, {NEG}
    v_and_b32 v220, 15, v{vL}
    v_lshrrev_b32 v221, 4, v{vL}
    v_lshlrev_b32 v221, 2, v221
    v_sub_u32 v220, v220, v221
    """ + "".join(f"""
    v_subrev_u32 v221, {i}, v220
    v_and_b32 v222, 0x80000001, v221
    v_cmp_eq_u32 vcc, 0, v222
    v_cndmask_b32 v{vBS+i}, v224, 0, vcc
    v_cmp_eq_u32 vcc, 0x80000000, v222
    v_cndmask_b32 v{vBP+i}, v224, 0, vcc
    """ for i in range(4)) + """
    s_cmp_eq_u32 s37, 0
    s_cselect_b64 vcc, -1, 0
    """ + "".join(f"v_cndmask_b32 v{vBP1+i}, v{vBP+i}, v224, vcc\n" for i in range(4))
    pieces = [rest_setup + f"v_mov_b32 v227, 0\nglobal_load_dword v{vTAG}, v227, s[30:31] sc1\n" + bias, "\n".join(pc[:cut]), "\n".join(pc[cut:])]
    def breads(s, ks):
        L = [f"ds_read_b128 {q4(Gx(s,rt))}, v{bxa[ks]} offset:{rt*2048}" for rt in (1, 2, 3, 4, 0)]
        for p in range(3):
            for ft in range(2):
                for u in range(2):
                    L.append(f"ds_read_b64_tr_b16 {q2(Gw(s,p,ft) + 2*u)}, v{bwa[ft]} offset:{p*8192 + ks*4096 + u*512}")
        return L
    def bstep(s, rd, zero=False):
        M = []
        C = lambda r, z='0': z if zero else q4(r)
        for rt in (1, 2, 3, 4, 0):
            for ft in range(2):
                if rt: M.append(f"v_mfma_f32_16x16x32_bf16 {q4(Qa(rt,ft))}, {q4(Gw(s,0,ft))}, {q4(Gx(s,rt))}, {C(Qa(rt,ft))}")
                M.append(f"v_mfma_f32_16x16x32_bf16 {q4(Ka(rt,ft))}, {q4(Gw(s,1,ft))}, {q4(Gx(s,rt))}, {C(Ka(rt,ft))}")
                M.append(f"v_mfma_f32_16x16x32_bf16 {q4(Va(rt,ft))}, {q4(Gx(s,rt))}, {q4(Gw(s,2,ft))}, {C(Va(rt,ft), q4(216) if ft else '0')}")
        for i, m in enumerate(M):
            a(m)
            if i < len(rd): a(rd[i])
    a("s_barrier")
    stamp(1)
    for r in breads(0, 0): a(r)
    a(f"s_mov_b32 s{sC}, 0")
    a("s_waitcnt lgkmcnt(0)")
    bstep(0, breads(1, 1), zero=True)
    a(pieces[0]); a(pieces[1])
    a(f"""
    s_mul_i32 s3, s{sC}, 86
    s_lshr_b32 s3, s3, 8
    s_mul_i32 s3, s3, 3
    s_cmp_eq_u32 s3, s{sC}
    s_mov_b32 s{sD}, {SLB}
    s_cselect_b32 s{sD}, {(-2*SLB) & 0xffffffff}, s{sD}
    v_add_u32 v{bxa[0]}, s{sD}, v{bxa[0]}
    v_add_u32 v{bxa[1]}, s{sD}, v{bxa[1]}
    v_add_u32 v{bwa[0]}, s{sD}, v{bwa[0]}
    v_add_u32 v{bwa[1]}, s{sD}, v{bwa[1]}
    s_cmp_eq_u32 s{sC}, 6
    s_waitcnt lgkmcnt(0)
    s_cbranch_scc1 L_nobarB0
    s_barrier
    L_nobarB0:
    """)
    bstep(1, breads(0, 0))
    a(pieces[2])
    a(f"s_mov_b32 s{sC}, 1")
    a.raw("L_gemmB:")
    a("s_waitcnt lgkmcnt(0)")
    bstep(0, breads(1, 1))
    a(f"""
    s_mul_i32 s3, s{sC}, 86
    s_lshr_b32 s3, s3, 8
    s_mul_i32 s3, s3, 3
    s_cmp_eq_u32 s3, s{sC}
    s_mov_b32 s{sD}, {SLB}
    s_cselect_b32 s{sD}, {(-2*SLB) & 0xffffffff}, s{sD}
    v_add_u32 v{bxa[0]}, s{sD}, v{bxa[0]}
    v_add_u32 v{bxa[1]}, s{sD}, v{bxa[1]}
    v_add_u32 v{bwa[0]}, s{sD}, v{bwa[0]}
    v_add_u32 v{bwa[1]}, s{sD}, v{bwa[1]}
    s_cmp_eq_u32 s{sC}, 6
    s_waitcnt lgkmcnt(0)
    s_cbranch_scc1 L_nobarB
    s_barrier
    L_nobarB:
    """)
    bstep(1, breads(0, 0))
    a(f"""
    s_add_u32 s{sC}, s{sC}, 1
    s_cmp_lt_u32 s{sC}, 7
    s_cbranch_scc1 L_gemmB
    """)
    stamp(3)
    def Qf(j): return 168 + 4*(j-1)
    def Kf(rt): return 128 + 4*rt
    def Vf(dt, rt): return 148 + 10*dt + 2*rt
    a("s_waitcnt vmcnt(0) lgkmcnt(0)")
    get_tag("b")
    for rt in (1, 2, 3, 4, 0):
        for ft in range(2):
            if rt:
                cvt(Qf(rt)+2*ft, Qa(rt,ft)); cvt(Qf(rt)+2*ft+1, Qa(rt,ft)+2)
            cvt(Kf(rt)+2*ft, Ka(rt,ft)); cvt(Kf(rt)+2*ft+1, Ka(rt,ft)+2)
            cvt(Vf(ft,rt), Va(rt,ft)); cvt(Vf(ft,rt)+1, Va(rt,ft)+2)
    stamp(4)
    a.raw("L_phase2:")
    def wo_reads(base):
        L = []
        for hq in range(4):
            for cidx in range(4):
                for u in range(2):
                    d = base + (hq*4 + cidx)*4 + 2*u
                    L.append(f"ds_read_b64_tr_b16 {q2(d)}, v{vWA + 4*u + ((cidx + 2*(hq&1)) & 3)} offset:{hq*3584}")
        return L
    def wo_mask(base):
        return [f"v_and_b32 v{base + f*4 + 2 + r}, v{vMG}, v{base + f*4 + 2 + r}" for f in range(16) for r in range(2)]
    WB_, OF_ = 128, 192
    QF = 124
    KS, VS = 72, 84
    QB_, KB_, VB_ = 8, 16, 28
    sBud = 14
    def qmask(r):
        for i in range(4): a(f"v_and_b32 v{r+i}, v{vQm + (i>>1)}, v{r+i}")
    if opt.get("lp", 1):
        a("s_barrier")
        a(f"""
        s_cmp_lg_u32 s{sWAVE}, 7
        s_cbranch_scc1 L_pollok1
        """)
        poll("1", vPA, 9)
    a("s_barrier")
    stamp(11)
    for i in range(3):
        a(f"buffer_load_dwordx4 {q4(KS+4*i)}, v{vKq}, {srd(sWS)}, s{sK[i]} offen sc1")
    a(f"buffer_load_dwordx4 {q4(QF)}, v{vKq}, {srd(sWS)}, s{sQA} offen sc1")
    for i in range(3):
        a(f"buffer_load_dwordx4 {q4(VS+4*i)}, v{vV1 if i == 1 else vV0}, {srd(sWS)}, s{sV[i]} offen sc1")
    a(f"""
    s_lshr_b32 s3, s{sWAVE}, 2
    s_cmp_gt_u32 s{sBR}, s3
    s_cbranch_scc0 L_noB1
    """)
    def SB(j, t): return 8*(j-1) + 4*t
    for j in range(1, 5):
        bp = vBP1 if j == 1 else vBP
        a(f"v_mfma_f32_16x16x32_bf16 {q4(SB(j,0))}, {q4(Kf(j-1))}, {q4(Qf(j))}, {q4(bp)}")
        a(f"v_mfma_f32_16x16x32_bf16 {q4(SB(j,1))}, {q4(Kf(j))}, {q4(Qf(j))}, {q4(vBS)}")
    M = lambda j: 32 + (j-1)
    T = lambda j: 36 + (j-1)
    for j in range(1, 5):
        s = SB(j, 0)
        a(f"v_max3_f32 v{M(j)}, v{s}, v{s+1}, v{s+2}")
        a(f"v_max3_f32 v{T(j)}, v{s+3}, v{s+4}, v{s+5}")
        a(f"v_max3_f32 v{M(j)}, v{M(j)}, v{s+6}, v{s+7}")
        a(f"v_max_f32 v{M(j)}, v{M(j)}, v{T(j)}")
    for sw in ("v_permlane32_swap_b32", "v_permlane16_swap_b32"):
        for j in range(1, 5): a(f"v_mov_b32 v{T(j)}, v{M(j)}")
        for j in range(1, 5): a(f"{sw} v{M(j)}, v{T(j)}")
        for j in range(1, 5): a(f"v_max_f32 v{M(j)}, v{M(j)}, v{T(j)}")
    for j in range(1, 5): a(f"v_mul_f32 v{M(j)}, v{vC}, v{M(j)}")
    for j in range(1, 5):
        for i in range(8): a(f"v_fma_f32 v{SB(j,0)+i}, v{SB(j,0)+i}, v{vC}, -v{M(j)}")
    for j in range(1, 5):
        for i in range(8): a(f"v_exp_f32 v{SB(j,0)+i}, v{SB(j,0)+i}")
    P = lambda j: 40 + 4*(j-1)
    for j in range(1, 5):
        for i in range(4): cvt(P(j)+i, SB(j,0)+2*i)
    O = lambda j, dt: 8*(j-1) + 4*dt
    for j in range(1, 5):
        for dt in (1, 0):
            a(f"v_mfma_f32_16x16x32_bf16 {q4(O(j,dt))}, {q4(Vf(dt,j-1))}, {q4(P(j))}, 0")
    st = [normalize(O(j,0), O(j,1), 56+2*(j-1), 57+2*(j-1), 100+4*(j-1)) for j in range(1, 5)]
    for k in range(len(st[0])):
        for j in range(4):
            for x in st[j][k]: a(x)
    a.raw("L_noB1:")
    for r in wo_reads(WB_): a(r)
    a(f"""
    s_mov_b32 s{sBud}, {POLL_MAX}
    v_lshlrev_b32 v8, 2, v{vG}
    v_sub_u32 v8, v8, v{vR15}
    s_bitcmp1_b32 s{sWAVE}, 0
    s_cselect_b64 s[34:35], -1, 0
    """)
    for i in range(4):
        a(f"""
        v_add_u32 v9, {i}, v8
        v_cmp_lt_i32 vcc, 0, v9
        v_cndmask_b32 v10, v{vNEG}, 0, vcc
        v_cndmask_b32 v11, 0, v{vNEG}, vcc
        v_cndmask_b32 v{0+i}, v10, v{vNEG}, s[34:35]
        v_cndmask_b32 v{4+i}, 0, v10, s[34:35]
        v_cndmask_b32 v{64+i}, v11, 0, s[34:35]
        v_cndmask_b32 v{68+i}, v{vNEG}, v11, s[34:35]
        """)
    for i in range(8): a(f"v_add_u32 v{vWA+i}, {L_WOA}, v{vWA+i}")
    a("s_waitcnt lgkmcnt(0)")
    for x in wo_mask(WB_): a(x)
    a(f"""
    s_cmp_ge_u32 s{sARB}, 2
    s_cbranch_scc1 L_nofix
    s_waitcnt vmcnt(4)
    v_not_b32 v9, v{vQm}
    v_not_b32 v10, v{vQm+1}
    v_and_b32 v9, 0xff7f, v9
    v_and_b32 v10, 0xff7f, v10
    """)
    for i in range(3):
        qmask(KS+4*i)
        a(f"""
        s_cmp_eq_u32 s{sK[i]}, {BIG}
        s_cbranch_scc0 L_fx{i}
        v_or_b32 v{KS+4*i}, v9, v{KS+4*i}
        v_or_b32 v{KS+4*i+2}, v10, v{KS+4*i+2}
        L_fx{i}:
        """)
    a.raw("L_nofix:")
    for i in range(3):
        a(f"s_waitcnt vmcnt({6-i})")
        if i == 0: stamp(5)
        a(f"ds_write_b128 v{vKw}, {q4(KS+4*i)} offset:{1024*i}")
    for i in range(3):
        a(f"s_waitcnt vmcnt({2-i})")
        for r in range(4): a(f"v_or_b32 v{VS+4*i+r}, v{vOn1 if i == 1 else vOn0}, v{VS+4*i+r}")
        a(f"ds_write_b128 v{vKw}, {q4(VS+4*i)} offset:{24576+1024*i}")
    a(f"""
    s_lshr_b32 s3, s{sWAVE}, 2
    s_cmp_gt_u32 s{sBR}, s3
    s_cbranch_scc0 L_noB2
    """)
    for j in range(1, 5):
        a(f"buffer_store_dwordx4 {q4(100+4*(j-1))}, v{vOo}, {srd(sWS)}, s36 offen sc1")
        if j < 4: a("s_add_u32 s36, s36, 16384")
    a.raw("L_noB2:")
    stamp(6)
    qmask(QF)
    a(f"""
    s_cmp_ge_u32 s{sARB}, 2
    s_cbranch_scc1 L_nofixq
    v_not_b32 v9, v{vQm}
    v_not_b32 v10, v{vQm+1}
    v_and_b32 v9, 0x3f80, v9
    v_or_b32 v{QF}, v9, v{QF}
    v_and_b32 v10, 0x3f80, v10
    v_or_b32 v{QF+2}, v10, v{QF+2}
    L_nofixq:
    s_waitcnt lgkmcnt(0)
    s_barrier
    """)
    stamp(12)
    KBUF = 72; NKB = 6
    def kread(t): return f"ds_read_b128 {q4(KBUF + 4*(t % NKB))}, v{vKa} offset:{t*1024}"
    for t in range(NKB - 1): a(kread(t))
    vM, vT = 120, 121
    def mx(t):
        r = 4*t
        if t == 0:
            a(f"v_max_f32 v{vM}, v0, v1"); a(f"v_max_f32 v{vT}, v2, v3")
        else:
            a(f"v_max3_f32 v{vM}, v{vM}, v{r}, v{r+1}"); a(f"v_max3_f32 v{vT}, v{vT}, v{r+2}, v{r+3}")
    LAG = 4
    for t in range(18):
        if t + NKB - 1 < 18: a(kread(t + NKB - 1))
        outstanding = min(18, t + NKB) - (t + 1)
        a(f"s_waitcnt lgkmcnt({outstanding})")
        c = q4(4*t) if t in (0, 1, 16, 17) else "0"
        a(f"v_mfma_f32_16x16x32_bf16 {q4(4*t)}, {q4(KBUF + 4*(t % NKB))}, {q4(QF)}, {c}")
        if t >= LAG: mx(t - LAG)
    VBUF = [96 + 4*i for i in range(6)]
    NVB = len(VBUF)
    WA_ = 0
    ACCB = [64, 68, 72, 76, 80, 84, 88, 92]
    ACCA = [96, 100, 104, 108, 112, 116, 120, 124]
    sNext = 27
    lq = []
    def lds(ins, tag): a(ins); lq.append(tag)
    def lwait(tag):
        last = max(i for i, t in enumerate(lq) if t == tag)
        a(f"s_waitcnt lgkmcnt({min(15, len(lq) - 1 - last)})")
    def vread(n):
        lds(f"ds_read_b128 {q4(VBUF[n % NVB])}, v{vKa} offset:{24576 + (n>>1)*2048 + (n&1)*1024}", ("v", n))
    for n in range(NVB): vread(n)
    for t in range(18 - LAG, 18): mx(t)
    a(f"v_max_f32 v{vM}, v{vM}, v{vT}")
    for sw in ("v_permlane32_swap_b32", "v_permlane16_swap_b32"):
        a(f"v_mov_b32 v{vT}, v{vM}")
        a(f"{sw} v{vM}, v{vT}")
        a(f"v_max_f32 v{vM}, v{vM}, v{vT}")
    a(f"v_mul_f32 v{vM}, v{vC}, v{vM}")
    stamp(7)
    def o_load(f, s0):
        hq, tt = f >> 1, f & 1
        return f"buffer_load_dwordx4 {q4(OF_ + f*4)}, v{vOo}, {srd(sWS)}, s{s0 + tt} offen offset:{hq*1024} sc1"
    def frag(lbl, f, wbase, acc, wait, after):
        hq, tt = f >> 1, f & 1
        r = OF_ + f*4
        a(f"""
        s_cmp_lg_u32 s{sNext}, {f}
        s_cbranch_scc1 L_sk{lbl}{f}
        {wait}
        v_cmp_ne_u32 vcc, v{r+3}, v{vTAG}
        s_lshr_b32 s3, vcc_hi, 16
        s_cbranch_scc1 L_sk{lbl}{f}
        """)
        for cidx in range(4):
            d = acc[tt*4+cidx]
            a(f"v_mfma_f32_16x16x32_bf16 {q4(d)}, {q4(wbase + (hq*4+cidx)*4)}, {q4(r)}, {'0' if f < 2 else q4(d)}")
        a(f"s_add_u32 s{sNext}, s{sNext}, 1")
        if after is not None: a(o_load(f, after))
        a.raw(f"L_sk{lbl}{f}:")
    OACC = 224
    war = wo_reads(WA_); wam = wo_mask(WA_)
    LU, FU = opt.get("lu", 4), opt.get("fu", 5)
    a(f"s_mov_b32 s{sNext}, 0")
    for u in range(9):
        b = 8*u
        for i in range(8): a(f"v_fma_f32 v{b+i}, v{b+i}, v{vC}, -v{vM}")
        if LU <= u < LU + 4:
            for f in (2*(u-LU), 2*(u-LU)+1): a(o_load(f, sOB))
        for i in range(8): a(f"v_exp_f32 v{b+i}, v{b+i}")
        if opt.get('inpv', 0) and FU <= u < FU + 4:
            for f in range(2*(u-FU), 2*(u-FU)+2): frag("P", f, WB_, ACCB, f"s_waitcnt vmcnt({7-f})", None)
        for i in range(4): a(f"v_cvt_pk_bf16_f32 v{b+i}, v{b+2*i}, v{b+2*i+1}")
        lwait(("v", 2*u+1))
        for dt in range(2):
            c = "0" if u == 0 else q4(OACC + 4*dt)
            a(f"v_mfma_f32_16x16x32_bf16 {q4(OACC+4*dt)}, {q4(VBUF[(2*u+dt) % NVB])}, {q4(b)}, {c}")
        for n in (NVB + 2*u, NVB + 1 + 2*u):
            if n < 18: vread(n)
    for x in war: a(x)
    for grp in normalize(OACC, OACC+4, 232, 234, 236):
        for x in grp: a(x)
    a(f"buffer_store_dwordx4 {q4(236)}, v{vOo}, {srd(sWS)}, s33 offen sc1")
    stamp(13)
    a(f"""
    s_cmp_eq_u32 s{sCB}, 7
    s_cbranch_scc1 L_fin
    """)
    vXW, vXR, vOut = 224, 228, 230
    a(f"""
    s_lshl_b32 s3, s{sKQ}, 14
    s_lshl_b32 s35, s{sRP}, 13
    s_add_u32 s35, s35, s3
    v_lshlrev_b32 v231, 8, v{vR15}
    v_add_u32 v231, s35, v231
    v_xor_b32 v232, v{vG}, v{vR15}
    """)
    for cidx in range(4):
        a(f"""
        s_add_u32 s3, s{sKQ}, {cidx}
        s_and_b32 s3, s3, 3
        s_lshl_b32 s3, s3, 2
        v_xor_b32 v234, s3, v232
        v_lshl_add_u32 v{vXW+cidx}, v234, 4, v231
        """)
    a(f"""
    v_lshrrev_b32 v231, 3, v{vL}
    s_lshl_b32 s3, s{sWAVE}, 3
    v_add_u32 v231, s3, v231
    v_and_b32 v232, 7, v{vL}
    v_lshlrev_b32 v234, 1, v232
    v_and_b32 v235, 15, v231
    v_xor_b32 v234, v234, v235
    v_lshlrev_b32 v234, 4, v234
    v_lshl_add_u32 v{vXR}, v231, 8, v234
    v_xor_b32 v{vXR+1}, 16, v{vXR}
    s_lshl_b32 s3, s{sRB64}, 6
    v_add_u32 v231, s3, v231
    v_mul_u32_u24 v231, 1792, v231
    v_lshl_add_u32 v231, v232, 4, v231
    s_lshl_b32 s3, s{sCB}, 7
    v_add_u32 v{vOut}, s3, v231
    """)
    def finish(lbl, wbase, acc, s0, after):
        a(f"""
        s_cmp_eq_u32 s{sNext}, 8
        s_cbranch_scc1 L_done{lbl}
        L_again{lbl}:
        {f"s_sleep {opt['as']}" if opt.get("as") else ""}
        """)
        for f in range(8):
            a(f"s_cmp_gt_u32 s{sNext}, {f}")
            a(f"s_cbranch_scc1 L_rl{lbl}{f}")
            a(o_load(f, s0))
            a.raw(f"L_rl{lbl}{f}:")
        a("s_waitcnt vmcnt(0)")
        a.raw(f"L_first{lbl}:")
        for f in range(8): frag(lbl, f, wbase, acc, "", after)
        a(f"""
        s_cmp_eq_u32 s{sBud}, 0
        s_cbranch_scc1 L_done{lbl}
        s_sub_u32 s{sBud}, s{sBud}, 1
        s_cmp_lg_u32 s{sNext}, 8
        s_cbranch_scc1 L_again{lbl}
        {"s_waitcnt vmcnt(0)" if after is not None else ""}
        L_done{lbl}:
        """)
    def exch_write(acc):
        for tt in range(2):
            for cidx in range(4):
                a(f"ds_write_b128 v{vXW+cidx}, {q4(acc[tt*4+cidx])} offset:{tt*4096}")
        a("s_waitcnt lgkmcnt(0)")
        a("s_barrier")
    def exch_final(RB_, outoff):
        for k in range(4):
            for h in range(2):
                a(f"ds_read_b128 {q4(RB_ + (k*2+h)*4)}, v{vXR+h} offset:{k*16384}")
        a("s_waitcnt lgkmcnt(4)")
        for i in range(8): a(f"v_add_f32 v{RB_+i}, v{RB_+i}, v{RB_+8+i}")
        a("s_waitcnt lgkmcnt(0)")
        for i in range(8): a(f"v_add_f32 v{RB_+16+i}, v{RB_+16+i}, v{RB_+24+i}")
        for i in range(8): a(f"v_add_f32 v{RB_+i}, v{RB_+i}, v{RB_+16+i}")
        for i in range(4): a(f"v_cvt_pk_bf16_f32 v{RB_+8+i}, v{RB_+2*i}, v{RB_+2*i+1}")
        a(f"s_mov_b32 s3, {outoff}")
        a(f"buffer_store_dwordx4 {q4(RB_+8)}, v{vOut}, {srd(sOut)}, s3 offen")
    if not opt.get('inpv', 0):
        for f in range(8): frag("R", f, WB_, ACCB, f"s_waitcnt vmcnt({8-f})", None)
    finish("B", WB_, ACCB, sOB, None)
    stamp(8)
    AL = opt.get("al", 1)
    def aloads(k):
        if AL == k:
            for f in range(8): a(o_load(f, sOA))
    aloads(0)
    a(f"s_mov_b32 s{sNext}, 0")
    a("s_waitcnt lgkmcnt(0)")
    for x in wam: a(x)
    a("s_barrier")
    aloads(1)
    exch_write(ACCB)
    aloads(2)
    if opt.get("rechk", 1) and AL == 0:
        a("s_waitcnt vmcnt(0)")
        for f in range(8):
            a(f"""
            v_cmp_ne_u32 vcc, v{OF_+f*4+3}, v{vTAG}
            s_lshr_b32 s3, vcc_hi, 16
            s_cbranch_scc0 L_ok{f}
            {o_load(f, sOA)}
            L_ok{f}:
            """)
    exch_final(128, 896)
    aloads(3)
    for i in range(4): a(f"v_add_u32 v{vXW+i}, 65536, v{vXW+i}")
    for i in range(2): a(f"v_add_u32 v{vXR+i}, 65536, v{vXR+i}")
    stamp(14)
    for f in range(8): frag("Q", f, WA_, ACCA, "s_waitcnt vmcnt(1)" if (opt.get("rechk", 1) and AL == 0) else f"s_waitcnt vmcnt({(7 if AL == 3 else 8)-f})", None)
    finish("A", WA_, ACCA, sOA, None)
    stamp(9)
    exch_write(ACCA)
    exch_final(160, 0)
    a.raw("L_fin:")
    if stamps:
        stamp(15)
        if "probe" in opt:
            X = opt["probe"]
            a(f"""
            v_readfirstlane_b32 s12, v{vTAG}
            s_bfe_u32 s3, s12, 0xd0001
            s_bfe_u32 s34, s12, 0xf000f
            s_lshl_b32 s34, s34, 13
            s_or_b32 s3, s3, s34
            s_lshr_b32 s34, s12, 31
            s_lshl_b32 s34, s34, 28
            s_or_b32 s3, s3, s34
            s_sub_u32 s34, s{64+2*X}, s3
            s_add_u32 s34, s34, 200
            s_and_b32 s34, s34, 0x1fffffff
            s_cmp_lt_u32 s34, 5000
            s_cselect_b32 s34, s34, 0
            s_cmp_eq_u32 s{sBR}, {1 - opt.get("pbr", 5) if "pbr" in opt else 7}
            s_cselect_b32 s34, 0, s34
            s_add_u32 s34, s34, 3000
            s_mov_b32 s35, 100000
            L_pw:
            s_memrealtime s[16:17]
            s_waitcnt lgkmcnt(0)
            s_sub_u32 s16, s16, s3
            s_and_b32 s16, s16, 0x1fffffff
            s_sub_u32 s35, s35, 1
            s_cmp_eq_u32 s35, 0
            s_cbranch_scc1 L_end
            s_cmp_lt_u32 s16, s34
            s_cbranch_scc1 L_pw
            s_endpgm
            """)
        a(f"""
        s_sub_u32 s84, {POLL_MAX}, s{sBud}
        s_mul_i32 s84, s84, 100
        s_add_u32 s84, s84, s64
        s_lshl_b32 s3, s2, 3
        s_add_u32 s3, s3, s{sWAVE}
        s_lshl_b32 s3, s3, 6
        s_add_u32 s3, s3, {STAMP}
        v_mov_b32 v1, 0
        s_mov_b64 exec, 1
        """)
        if opt.get("dbgst"):
            ids = [1, 2, 3, 4, 5, 6, 7, 8, 9, 11, 12, 13, 14, 15]
            a("s_not_b32 s3, s64")
            a("v_mov_b32 v2, s3")
            a("global_atomic_umax v1, v2, s[30:31] offset:4")
            for k, i in enumerate(ids):
                a(f"s_sub_u32 s3, s{64+2*i}, s64")
                a("s_cmp_lt_u32 s3, 100000")
                a(f"s_cselect_b32 s3, s{64+2*i}, 0")
                a("v_mov_b32 v2, s3")
                a(f"global_atomic_umax v1, v2, s[30:31] offset:{8+4*k}")
            a("s_endpgm")
        for i in range(16):
            a(f"v_mov_b32 v2, s{64+2*i}")
            a(f"buffer_store_dword v2, v1, {srd(sWS)}, s3 offen offset:{4*i}")
    a.raw("L_end:")
    a("s_endpgm")
    bad = a.check_branches()
    for b in bad: print("BRANCH HAZARD", b, file=sys.stderr)
    assert not bad
    out = HEADER + f"""; @launch grid=(256,1,1) block=(512,1,1) lds=163840
.amdgcn_target "amdgcn-amd-amdhsa--gfx950"
.text
.globl {NAME}_kernel
.p2align 8
.type {NAME}_kernel,@function
""" + a.text() + f""".section .rodata,"a"
.p2align 6
.amdhsa_kernel {NAME}_kernel
  .amdhsa_next_free_vgpr 256
  .amdhsa_next_free_sgpr 102
  .amdhsa_accum_offset 256
  .amdhsa_group_segment_fixed_size 0
  .amdhsa_kernarg_size 72
  .amdhsa_user_sgpr_count 2
  .amdhsa_user_sgpr_kernarg_segment_ptr 1
  .amdhsa_system_sgpr_workgroup_id_x 1
.end_amdhsa_kernel
"""
    return out

if __name__ == "__main__":
    stamps = int(sys.argv[1]); path = sys.argv[2]
    opt = dict((kv.split("=")[0], int(kv.split("=")[1])) for kv in sys.argv[3:])
    open(path, "w").write(gen(stamps, opt))
```

```python
import sys, struct, math
from asmlib import Asm

NAME = "concat_heads__sliding_block__sliding_local_dilated__prompt"
HEADER = open("cdna_kernels/%s.s.ref" % NAME).read().split("; Override launch")[0]
def f2u(x): return struct.unpack("<I", struct.pack("<f", x))[0]

XB, WB, WOB_BYTES, OUTB = 1835008, 1204224, 401408, 3670016
MB2 = 0x200000
QO, KO, VO = 0, MB2, 2*MB2
BRS = 3*MB2
OA, OB = 6*MB2, 7*MB2
FL1 = 8*MB2
STAMP = 8*MB2 + 0x100000
WSB = 9*MB2
BIG = 0x40000000
NEG = f2u(-1e30)
CSC = f2u((28 ** -0.5) * math.log2(math.e))
SLOT = 40960
L_WOB, L_WOA, L_KV = 0, 57344, 114688
POLL_MAX = 40000

sWAVE, sBR, sLAM, sRB, sAH, sARB, sRB64, sCB, sTAG = 4, 5, 6, 7, 8, 9, 10, 11, 12
sX, sW, sWoA, sWoB, sWS, sOut = 36, 40, 44, 48, 52, 56
def srd(b): return f"s[{b}:{b+3}]"
def q4(r): return f"v[{r}:{r+3}]"
def q2(r): return f"v[{r}:{r+1}]"
def q16(r): return f"v[{r}:{r+15}]"
vL, vL16, vTAG = 255, 254, 253

DOC = '; Single persistent launch, one 8-wave workgroup per CU (generated by gen/gen_final.py).\n'

def gen(stamps=False, opt=None):
    opt = opt or {}
    a = Asm()
    def stamp(i):
        if stamps:
            a(f"s_memrealtime s[{64+2*i}:{65+2*i}]")
            a("s_waitcnt lgkmcnt(0)")
    def mk_srd(d, p, n):
        return f"s_mov_b32 s{d}, s{p}\ns_mov_b32 s{d+1}, s{p+1}\ns_mov_b32 s{d+2}, {n}\ns_mov_b32 s{d+3}, 0x20000\n"
    MAP = f"""
    s_lshr_b32 s{sLAM}, s14, 2
    s_and_b32 s15, s13, 3
    s_lshl_b32 s15, s15, 2
    s_and_b32 s3, s14, 3
    s_add_u32 s{sRB}, s15, s3
    """ if opt.get("map", 0) else f"""
    s_and_b32 s15, s13, 1
    s_lshl_b32 s15, s15, 2
    s_lshr_b32 s3, s14, 3
    s_add_u32 s{sLAM}, s15, s3
    s_and_b32 s15, s13, 2
    s_lshl_b32 s15, s15, 2
    s_and_b32 s3, s14, 7
    s_add_u32 s{sRB}, s15, s3
    """
    TAGC = f"""
    s_or_b32 s3, s2, s{sWAVE}
    s_cmp_lg_u32 s3, 0
    s_cbranch_scc1 L_notag
    s_memrealtime s[34:35]
    s_waitcnt lgkmcnt(0)
    s_and_b32 s35, s34, 0x1fff
    s_lshl_b32 s35, s35, 1
    s_or_b32 s35, s35, 1
    s_bfe_u32 s3, s34, 0xf000d
    s_lshl_b32 s3, s3, 15
    s_or_b32 s35, s35, s3
    s_lshl_b32 s34, s34, 3
    s_and_b32 s34, s34, 0x80000000
    s_or_b32 s34, s34, s35
    v_mov_b32 v4, s34
    v_mov_b32 v5, 0
    s_mov_b64 exec, 1
    global_atomic_cmpswap v1, v[4:5], s[30:31] sc1
    s_mov_b64 exec, -1
    L_notag:
    """
    MAPB = f"""
    s_and_b32 s15, s13, 1
    s_lshl_b32 s15, s15, 2
    s_and_b32 s3, s14, 3
    s_add_u32 s{sLAM}, s15, s3
    s_and_b32 s15, s13, 2
    s_lshl_b32 s15, s15, 2
    s_lshr_b32 s3, s14, 2
    s_add_u32 s{sRB}, s15, s3
    """
    SPF = ""
    if opt.get("spf", 0):
        SPF = "s_getpc_b64 s[34:35]\nL_pc0:\n"
        n = 0
        for r, (l, cnt) in enumerate((("L_brB", 7), ("L_cmpB", 2), ("L_compute", 2))):
            SPF += f"s_add_u32 s{36+2*r}, s34, {l}-L_pc0\ns_addc_u32 s{37+2*r}, s35, 0\n"
            for k in range(cnt):
                SPF += f"s_load_dword s{64+n}, s[{36+2*r}:{37+2*r}], {128*k}\n"; n += 1
    a.raw(f"{NAME}_kernel:")
    a(f"""
    s_cmp_ge_u32 s2, 256
    s_cbranch_scc1 L_end
    s_load_dwordx16 s[16:31], s[0:1], 0
    s_load_dwordx2 s[32:33], s[0:1], 64
    {SPF}
    v_lshrrev_b32 v1, 6, v0
    v_and_b32 v{vL}, 63, v0
    v_readfirstlane_b32 s{sWAVE}, v1
    s_and_b32 s13, s2, 7
    s_lshr_b32 s14, s2, 3
    s_lshr_b32 s{sBR}, s13, 2
    s_xor_b32 s{sBR}, s{sBR}, {opt.get('swap', 1)}
    {MAP}
    v_lshlrev_b32 v{vL16}, 4, v{vL}
    v_lshrrev_b32 v1, 3, v{vL}
    v_and_b32 v2, 7, v{vL}
    v_lshrrev_b32 v3, 4, v{vL}
    s_cmp_lg_u32 s{sBR}, 0
    s_cbranch_scc1 L_brB
    s_cmp_lt_u32 s{sWAVE}, 4
    s_cbranch_scc1 L_compute
    """)
    rest_setup = f"""
    s_lshl_b32 s{sAH}, s13, 1
    s_and_b32 s3, s14, 1
    s_add_u32 s{sAH}, s{sAH}, s3
    s_lshr_b32 s{sARB}, s14, 1
    s_lshl_b32 s{sRB64}, s13, 2
    s_lshr_b32 s3, s14, 3
    s_add_u32 s{sRB64}, s{sRB64}, s3
    s_and_b32 s{sCB}, s14, 7
    """ + mk_srd(sWoA, 20, WOB_BYTES) + mk_srd(sWoB, 26, WOB_BYTES) + mk_srd(sWS, 32, WSB) + (f"s_add_u32 s{sWS}, s{sWS}, {opt['wso'] << 20}\ns_addc_u32 s{sWS+1}, s{sWS+1}, 0\n" if opt.get("wso") else "") + mk_srd(sOut, 28, OUTB)
    def prefetch(l):
        if not opt.get("pf", 0): return
        a(f"""
        s_cmp_lg_u32 s{sWAVE}, 1
        s_cbranch_scc1 L_notouch{l}
        v_min_u32 v4, 8, v{vL}
        v_lshlrev_b32 v4, 21, v4
        v_add_u32 v4, 0x1ff780, v4
        buffer_load_dword v217, v4, {srd(sWS)}, 0 offen sc1
        v_and_b32 v4, 1, v{vL}
        v_lshlrev_b32 v4, 21, v4
        buffer_load_dword v218, v4, {srd(sOut)}, 0 offen
        L_notouch{l}:
        s_and_b32 s3, s14, 15
        s_lshl_b32 s34, s{sWAVE}, 4
        s_or_b32 s3, s3, s34
        s_cmp_lg_u32 s3, 0x2f
        s_cbranch_scc1 L_nocode{l}
        s_getpc_b64 s[34:35]
        L_pc{l}:
        s_sub_u32 s34, s34, L_pc{l}-{NAME}_kernel
        s_subb_u32 s35, s35, 0
        v_lshlrev_b32 v4, 7, v{vL}
        global_load_dword v217, v4, s[34:35]
        v_add_u32 v4, 8192, v4
        global_load_dword v218, v4, s[34:35]
        v_add_u32 v4, 8192, v4
        global_load_dword v219, v4, s[34:35]
        L_nocode{l}:
        """)
    def get_tag(lbl):
        a(f"""
        s_mov_b32 s35, {POLL_MAX}
        L_tag{lbl}:
        v_readfirstlane_b32 s{sTAG}, v{vTAG}
        s_cmp_lg_u32 s{sTAG}, 0
        s_cbranch_scc1 L_tagok{lbl}
        v_mov_b32 v227, 0
        global_load_dword v{vTAG}, v227, s[30:31] sc1
        s_sub_u32 s35, s35, 1
        s_waitcnt vmcnt(0)
        s_cmp_lg_u32 s35, 0
        s_cbranch_scc1 L_tag{lbl}
        L_tagok{lbl}:
        """)
    def poll(lbl, vaddr, vd):
        a(f"""
        s_mov_b32 s35, {POLL_MAX}
        {"s_mov_b64 exec, 0xfff" if opt.get("apoll") else ""}
        L_poll{lbl}:
        {f"v_mov_b32 v{vd}, 0" if opt.get("apoll") else ""}
        {f"buffer_atomic_or v{vd}, v{vaddr}, {srd(sWS)}, s15 offen sc0 sc1" if opt.get("apoll") else f"buffer_load_dword v{vd}, v{vaddr}, {srd(sWS)}, s15 offen sc1"}
        s_sub_u32 s35, s35, 1
        s_waitcnt vmcnt(0)
        v_cmp_ne_u32 vcc, v{vd}, v{vTAG}
        s_cmp_eq_u32 s35, 0
        s_cbranch_scc1 L_pollok{lbl}
        s_cbranch_vccz L_pollok{lbl}
        s_sleep {opt.get("ps", 4)}
        s_branch L_poll{lbl}
        L_pollok{lbl}:
        {"s_mov_b64 exec, -1" if opt.get("apoll") else ""}
        """)
    sRP, sKQ, sT, sU = 60, 61, 62, 63
    vR15, vG, vWA, vMG, vV0, vC = 240, 241, 242, 250, 251, 252
    vNEG, vKa, vKw = 237, 239, 238
    vKq, vOo, vVa, vVb, vOne = 232, 233, 234, 235, 236
    vQm, vOn0, vOn1, vV1 = 228, 230, 231, 226
    sHB, sHQ, sP = 98, 100, 99
    sK = [16, 17, 18, 19, 20, 21]; sV = [22, 23, 24, 25, 26, 27]; sQA = 32
    sOB, sOA = 96, 28
    t0, t1, t2, t3, t4 = 220, 221, 222, 223, 224
    vPA = 225
    FLV = 64*16*128
    p2common = f"""
    s_and_b32 s{sRP}, s{sWAVE}, 1
    s_lshr_b32 s{sKQ}, s{sWAVE}, 1
    v_and_b32 v{vR15}, 15, v{vL}
    v_lshrrev_b32 v{vG}, 4, v{vL}
    v_cmp_gt_u32 vcc, 48, v{vL}
    v_cndmask_b32 v{vMG}, 0, -1, vcc
    v_lshrrev_b32 v{t0}, 2, v{vR15}
    v_lshl_add_u32 v{t1}, v{vG}, 2, v{t0}
    v_lshlrev_b32 v{t1}, 7, v{t1}
    s_mul_i32 s3, s{sKQ}, 14336
    v_add_u32 v{t1}, s3, v{t1}
    v_and_b32 v{t2}, 2, v{t0}
    v_and_b32 v{t3}, 1, v{vG}
    v_lshl_or_b32 v{t2}, v{t3}, 2, v{t2}
    v_lshlrev_b32 v{t2}, 4, v{t2}
    v_and_b32 v{t3}, 3, v{vL}
    v_lshlrev_b32 v{t4}, 3, v{t3}
    v_xor_b32 v{t2}, v{t2}, v{t4}
    v_add_u32 v{t1}, v{t1}, v{t2}
    v_and_b32 v{t2}, 2048, v{vMG}
    """ + "".join(f"""
    s_add_u32 s3, s{sKQ}, {c}
    s_and_b32 s3, s3, 3
    s_lshl_b32 s3, s3, 5
    v_xor_b32 v{vWA+c}, s3, v{t1}
    v_add_u32 v{vWA+4+c}, v{vWA+c}, v{t2}
    """ for c in range(4)) + f"""
    v_mov_b32 v{t4}, {BIG}
    v_lshlrev_b32 v{vKq}, 9, v{vG}
    v_lshl_add_u32 v{vKq}, v{vR15}, 4, v{vKq}
    v_lshlrev_b32 v{vOo}, 6, v{vR15}
    v_lshl_add_u32 v{vOo}, v{vG}, 4, v{vOo}
    v_lshlrev_b32 v{vVa}, 8, v{t0}
    v_lshl_add_u32 v{vVa}, v{vG}, 6, v{vVa}
    v_lshl_add_u32 v{vVa}, v{t3}, 4, v{vVa}
    v_add_u32 v{vVb}, 1024, v{vVa}
    v_cmp_gt_u32 vcc, 12, v{vR15}
    v_cndmask_b32 v{vVb}, v{t4}, v{vVb}, vcc
    v_cmp_eq_u32 vcc, 12, v{vR15}
    v_mov_b32 v{t4}, 0x3f803f80
    v_cndmask_b32 v{vOne}, 0, v{t4}, vcc
    v_mov_b32 v{vC}, {CSC}
    v_mov_b32 v{vNEG}, {NEG}
    s_and_b32 s3, s{sWAVE}, 6
    s_lshl_b32 s3, s3, 10
    s_add_u32 s3, s3, {L_KV}
    v_add_u32 v{vKa}, s3, v{vL16}
    s_mul_i32 s3, s{sAH}, 7
    s_lshr_b32 s{sHQ}, s3, 1
    s_lshl_b32 s{sHQ}, s{sHQ}, 9
    s_lshl_b32 s{sHB}, s3, 8
    v_cmp_lt_u32 vcc, 15, v{vL}
    v_cndmask_b32 v{t0}, 0, -1, vcc
    s_bitcmp1_b32 s{sAH}, 0
    s_cselect_b64 vcc, -1, 0
    v_cndmask_b32 v{vQm}, -1, v{t0}, vcc
    v_cndmask_b32 v{vQm+1}, v{vMG}, -1, vcc
    s_mul_i32 s3, s{sWAVE}, 3
    s_lshl_b32 s{sT}, s{sARB}, 3
    s_sub_u32 s{sT}, s{sT}, 16
    s_add_u32 s{sT}, s{sT}, s3
    s_lshl_b32 s3, s3, 10
    s_add_u32 s3, s3, {L_KV}
    v_add_u32 v{vKw}, s3, v{vL16}
    v_subrev_u32 v{t0}, 1024, v{vVb}
    s_bitcmp1_b32 s{sWAVE}, 0
    s_cselect_b64 vcc, -1, 0
    v_cndmask_b32 v{vV0}, v{vVa}, v{t0}, vcc
    v_cndmask_b32 v{vV1}, v{t0}, v{vVa}, vcc
    v_cndmask_b32 v{vOn0}, 0, v{vOne}, vcc
    v_cndmask_b32 v{vOn1}, v{vOne}, 0, vcc
    """ + "".join(f"""
    s_ashr_i32 s34, s{sT}, 1
    s_mul_i32 s34, s34, 28672
    s_and_b32 s35, s{sT}, 1
    s_lshl_b32 s3, s35, 10
    s_add_u32 s3, s3, s34
    s_add_u32 s3, s3, s{sHB}
    s_add_u32 s3, s3, {VO}
    s_lshl_b32 s35, s35, 8
    s_add_u32 s35, s35, s34
    s_add_u32 s35, s35, s{sHQ}
    s_add_u32 s35, s35, {KO}
    s_cmp_lt_i32 s{sT}, 0
    s_cselect_b32 s{sV[i]}, {BIG}, s3
    s_cselect_b32 s{sK[i]}, {BIG}, s35
    s_add_u32 s{sT}, s{sT}, 1
    """ for i in range(3)) + f"""
    s_lshl_b32 s3, s{sARB}, 3
    s_add_u32 s3, s3, s{sWAVE}
    s_lshr_b32 s34, s3, 1
    s_mul_i32 s34, s34, 28672
    s_and_b32 s35, s3, 1
    s_lshl_b32 s35, s35, 8
    s_add_u32 s35, s35, s34
    s_add_u32 s{sQA}, s35, s{sHQ}
    s_lshl_b32 s3, s3, 4
    s_add_u32 s3, s3, s{sAH}
    s_lshl_b32 s3, s3, 10
    s_add_u32 s33, s3, {OA}
    s_mul_i32 s3, s{sAH}, 7
    s_lshr_b32 s34, s3, 3
    s_add_u32 s3, s3, 6
    s_lshr_b32 s35, s3, 3
    s_sub_u32 s35, s35, s34
    v_and_b32 v{t0}, 1, v{vL}
    v_mul_u32_u24 v{t0}, s35, v{t0}
    v_add_u32 v{t0}, s34, v{t0}
    v_min_u32 v{t1}, 11, v{vL}
    v_lshrrev_b32 v{t1}, 1, v{t1}
    s_lshl_b32 s3, s{sARB}, 1
    s_sub_u32 s3, s3, 4
    v_add_u32 v{t1}, s3, v{t1}
    v_max_i32 v{t1}, 0, v{t1}
    v_lshl_add_u32 v{t1}, v{t1}, 4, v{t0}
    v_lshlrev_b32 v{vPA}, 7, v{t1}
    s_lshl_b32 s3, s{sRB64}, 2
    s_lshl_b32 s35, s{sRP}, 1
    s_add_u32 s3, s3, s35
    s_lshl_b32 s3, s3, 4
    s_lshl_b32 s35, s{sKQ}, 2
    s_add_u32 s3, s3, s35
    s_lshl_b32 s3, s3, 10
    s_add_u32 s{sOB}, s3, {OB}
    s_add_u32 s{sOB+1}, s{sOB}, 16384
    s_add_u32 s{sOA}, s3, {OA}
    s_add_u32 s{sOA+1}, s{sOA}, 16384
    s_mov_b32 s15, {FL1}
    """
    def normalize(O0, O1, ta, tb, dst):
        return [
            [f"v_mov_b32 v{ta}, v{O1}", f"v_mov_b32 v{tb}, v{O1}"],
            [f"v_permlane32_swap_b32 v{ta}, v{tb}"],
            [f"v_mov_b32 v{ta}, v{tb}"],
            [f"v_permlane16_swap_b32 v{ta}, v{tb}"],
            [f"v_rcp_f32 v{tb}, v{tb}"],
            [f"v_mul_f32 v{O0+i}, v{O0+i}, v{tb}" for i in range(4)] + [f"v_mul_f32 v{O1+i}, v{O1+i}, v{tb}" for i in range(4)],
            [f"v_cvt_pk_bf16_f32 v{dst}, v{O0}, v{O0+1}", f"v_cvt_pk_bf16_f32 v{dst+1}, v{O0+2}, v{O0+3}",
             f"v_cvt_pk_bf16_f32 v{dst+2}, v{O1}, v{O1+1}", f"v_cvt_pk_bf16_f32 v{dst+3}, v{O1+2}, v{O1+3}"],
            [f"v_bfi_b32 v{dst+3}, v{vMG}, v{dst+3}, v{vTAG}"],
        ]
    vXe, vXo, vW0, vW1, vWo, vPw = 10, 11, 13, 14, 15, 17
    sLW, sLx, sLw, sT0, sT1 = 96, 97, 101, 34, 35
    sLwo, sL1k = 14, 15
    a(f"""
    s_sub_u32 s{sLW}, s{sWAVE}, 4
    s_lshl_b32 s{sT0}, s{sRB}, 7
    s_lshl_b32 s{sT1}, s{sLW}, 5
    s_add_u32 s{sT0}, s{sT0}, s{sT1}
    v_add_u32 v4, s{sT0}, v1
    v_mul_u32_u24 v4, 896, v4
    v_xor_b32 v5, v2, v3
    v_lshl_add_u32 v{vXe}, v5, 4, v4
    v_xor_b32 v5, 4, v5
    v_lshl_add_u32 v{vXo}, v5, 4, v4
    v_add_u32 v{vXo}, 6144, v{vXo}
    s_lshl_b32 s{sLx}, s{sLW}, 12
    s_lshl_b32 s{sLw}, s{sLW}, 11
    s_lshl_b32 s{sT1}, s{sLW}, 4
    v_add_u32 v4, s{sT1}, v1
    v_mul_u32_u24 v4, 2688, v4
    s_lshl_b32 s{sT1}, s{sLAM}, 7
    v_add_u32 v4, s{sT1}, v4
    v_and_b32 v5, 1, v3
    v_lshlrev_b32 v5, 2, v5
    v_xor_b32 v5, v2, v5
    v_lshl_add_u32 v{vW0}, v5, 4, v4
    v_add_u32 v{vW1}, {8*2688-1024}, v{vW0}
    s_mov_b32 s{sX+2}, {XB}
    s_mov_b32 s{sX+3}, 0x20000
    s_mov_b32 s{sW+2}, {WB}
    s_mov_b32 s{sW+3}, 0x20000
    s_waitcnt lgkmcnt(0)
    s_mov_b32 s{sX}, s16
    s_mov_b32 s{sX+1}, s17
    s_mov_b32 s{sW}, s18
    s_mov_b32 s{sW+1}, s19
    """)
    stamp(0)
    a(f"""
    s_cmp_eq_u32 s{sLAM}, 7
    s_cbranch_scc1 L_ld_idle
    """)
    order = []
    def D(c):
        slot = ((c + 1) % 4) * SLOT
        a(f"""
        s_add_u32 m0, s{sLx}, {slot}
        s_mov_b32 s{sT0}, {c*128}
        s_mov_b32 s{sT1}, {c*128 + 12288}
        buffer_load_dwordx4 v{vXe}, {srd(sX)}, s{sT0} offen lds
        buffer_load_dwordx4 v{vXo}, {srd(sX)}, s{sT0} offen offset:1024 lds
        buffer_load_dwordx4 v{vXe}, {srd(sX)}, s{sT1} offen offset:2048 lds
        buffer_load_dwordx4 v{vXo}, {srd(sX)}, s{sT1} offen offset:3072 lds
        """)
        for p in (1, 2, 0):
            a(f"""
            s_add_u32 m0, s{sLw}, {slot + 16384 + p*8192}
            s_mov_b32 s{sT1}, {c*64*2688 + p*896}
            buffer_load_dwordx4 v{vW0}, {srd(sW)}, s{sT1} offen lds
            buffer_load_dwordx4 v{vW1}, {srd(sW)}, s{sT1} offen offset:1024 lds
            """)
        order.extend([c] * 10)
    def Wt(c):
        last = max(i for i, o in enumerate(order) if o == c)
        a(f"s_waitcnt vmcnt({len(order) - 1 - last})")
        if c == 0: stamp(1)
        a("s_barrier")
    wo_setup = rest_setup + f"""
    v_and_b32 v5, 6, v1
    v_xor_b32 v5, v2, v5
    v_mul_u32_u24 v4, 896, v1
    s_lshl_b32 s{sT1}, s{sCB}, 7
    v_add_u32 v4, s{sT1}, v4
    v_lshl_add_u32 v{vWo}, v5, 4, v4
    s_cmp_eq_u32 s{sCB}, 7
    s_cselect_b64 vcc, -1, 0
    v_mov_b32 v7, {BIG}
    v_cndmask_b32 v{vWo}, v{vWo}, v7, vcc
    v_mov_b32 v1, 0
    s_mul_i32 s3, s14, 98
    s_and_b32 s{sT1}, s{sLW}, 1
    s_mul_i32 s{sT1}, s{sT1}, 49
    s_add_u32 s3, s3, s{sT1}
    v_min_u32 v4, 48, v{vL}
    v_add_u32 v4, s3, v4
    v_lshlrev_b32 v{vPw}, 7, v4
    s_mul_i32 s{sLwo}, s{sLW}, 7168
    s_lshl_b32 s{sL1k}, s{sLW}, 10
    global_load_dword v{vTAG}, v1, s[30:31] sc1
    """
    def issue_wo(i0, i1):
        for i in range(i0, i1):
            br = i >= 14
            a(f"""
            s_add_u32 m0, s{sL1k}, {4096*i}
            s_add_u32 s{sT1}, s{sLwo}, {(4*i - 56*br)*7168}
            buffer_load_dwordx4 v{vWo}, {srd(sWoA if br else sWoB)}, s{sT1} offen lds
            """)
            order.append("wo")
    vPf = 16
    sPS, sPO = 60, 61
    PFN = " nt" if opt.get("pnt", 0) else ""
    def pf_setup(wmul):
        a(f"""
        s_and_b32 s{sT0}, s13, 2
        s_lshl_b32 s{sT0}, s{sT0}, 9
        s_lshl_b32 s{sT1}, s14, 5
        s_add_u32 s{sT0}, s{sT0}, s{sT1}
        v_min_u32 v4, 31, v{vL}
        v_add_u32 v4, s{sT0}, v4
        v_mul_u32_u24 v{vPf}, 896, v4
        v_min_u32 v4, 23, v{vL}
        v_cmp_le_u32 vcc, 12, v4
        v_cndmask_b32 v5, 0, 1, vcc
        v_mul_u32_u24 v6, 12, v5
        v_sub_u32 v6, v4, v6
        s_lshl_b32 s{sT0}, s14, 1
        v_add_u32 v5, s{sT0}, v5
        v_mul_u32_u24 v5, 2688, v5
        v_lshrrev_b32 v4, 2, v6
        v_mul_u32_u24 v4, 896, v4
        v_add_u32 v5, v5, v4
        v_and_b32 v6, 3, v6
        v_lshl_add_u32 v5, v6, 7, v5
        s_and_b32 s{sT0}, s13, 1
        s_mul_i32 s{sT0}, s{sT0}, {wmul}
        v_add_u32 v5, s{sT0}, v5
        s_bitcmp1_b32 s{sLW}, 0
        s_cselect_b64 vcc, -1, 0
        s_mov_b32 s{sPS}, 128
        s_cselect_b32 s{sPS}, 172032, s{sPS}
        s_cselect_b32 s44, s{sW}, s{sX}
        s_cselect_b32 s45, s{sW+1}, s{sX+1}
        s_cselect_b32 s46, s{sW+2}, s{sX+2}
        s_mov_b32 s47, 0x20000
        v_cndmask_b32 v{vPf}, v{vPf}, v5, vcc
        s_lshr_b32 s{sPO}, s{sLW}, 1
        s_add_u32 s{sPO}, s{sPO}, 1
        s_mul_i32 s{sPO}, s{sPO}, s{sPS}
        s_lshl_b32 s{sPS}, s{sPS}, 1
        """)
    def pf():
        a(f"""
        buffer_load_dword v20, v{vPf}, s[44:47], s{sPO} offen{PFN}
        s_add_u32 s{sPO}, s{sPO}, s{sPS}
        """)
        order.append("pf")
    PMA, PMB = opt.get("pma", 1), opt.get("pmb", 2)
    def head(Dx, wmul):
        PM = PMA if wmul == 512 else PMB
        if PM == 0: Dx(0); Dx(1); Wt(0); Dx(2); Wt(1); Dx(3)
        elif PM == 1: Dx(0); pf_setup(wmul); pf(); Dx(1); Wt(0); Dx(2); pf(); pf(); Wt(1); Dx(3)
        elif PM == 2: Dx(0); pf_setup(wmul); pf(); Dx(1); Wt(0); pf(); Dx(2); Wt(1); pf(); Dx(3)
        elif PM == 4: Dx(0); pf_setup(wmul); pf(); Wt(0); Dx(1); pf(); Dx(2); Wt(1); pf(); Dx(3)
        elif PM == 5: Dx(0); pf_setup(wmul); pf(); pf(); Wt(0); Dx(1); Dx(2); pf(); Wt(1); Dx(3)
        elif PM == 3: Dx(0); pf_setup(wmul); pf(); pf(); pf(); Dx(1); Wt(0); Dx(2); Wt(1); Dx(3)
    def pf_wo(l):
        if opt.get("nopw"): return
        a(f"""
        s_cmp_lt_u32 s{sLW}, 2
        s_cbranch_scc1 L_pwB{l}
        buffer_load_dword v20, v{vPw}, {srd(sWoA)}, 0 offen
        s_branch L_pwD{l}
        L_pwB{l}:
        buffer_load_dword v20, v{vPw}, {srd(sWoB)}, 0 offen
        L_pwD{l}:
        """)
        order.append("pfw")
    head(D, 512)
    a(wo_setup); order.append("tag")
    if opt.get("seq", 0) == 1:
        Wt(2); D(4); Wt(3); D(5); pf_wo(0); Wt(4); D(6); issue_wo(0, 10); Wt(5); issue_wo(10, 20); Wt(6)
    elif opt.get("seq", 0) == 0:
        Wt(2); D(4); Wt(3); D(5); Wt(4); D(6); pf_wo(0); Wt(5)
        DEF = opt.get("defer", 2)
        if DEF < 4: issue_wo(0, 10)
        Wt(6)
        if DEF >= 2: a("s_barrier")
        if DEF == 4: issue_wo(0, 10)
        issue_wo(10, 20)
        if DEF == 1: a("s_barrier")
    else:
        Wt(2); D(4); Wt(3); D(5); Wt(4); D(6); pf_wo(0); Wt(5); issue_wo(0, 14); Wt(6); a("s_sleep 16"); issue_wo(14, 20)
    a("s_branch L_ld2")
    a.raw("L_ld_idle:")
    if PMA: pf_setup(512); pf(); pf(); pf()
    a(wo_setup)
    pf_wo(1)
    issue_wo(0, 20)
    a.raw("L_ld2:")
    issue_wo(20, 28)
    a(p2common)
    a("s_waitcnt vmcnt(28)" if opt.get("nowait", 0) else "s_waitcnt vmcnt(0)")
    get_tag("l")
    if not opt.get("lp", 1):
        a(f"""
        s_cmp_lg_u32 s{sWAVE}, 7
        s_cbranch_scc1 L_pollok1
        """)
        poll("1", vPA, 9)
    stamp(2)
    a("s_branch L_phase2")

    a.raw("L_compute:")
    sCH, sRH = 96, 97
    sSQ, sSK, sSV, sSQh, sSKh, sFl = 36, 37, 38, 39, 40, 41
    def Acc(p, rt): return p*32 + rt*16
    def Fx(s, rt): return 96 + 20*s + 4*rt
    def Fw(s, p): return 96 + 20*s + 8 + 4*p
    vxa = [200, 201, 202, 203]; vwa = 204
    vQo, vVo = 205, 206
    slot0 = SLOT
    a(f"""
    s_waitcnt lgkmcnt(0)
    v_mov_b32 v1, 0
    {'' if opt.get('swap', 1) else TAGC}
    """)
    stamp(0)
    a(rest_setup)
    prefetch('a')
    a(f"""
    s_and_b32 s{sCH}, s{sWAVE}, 1
    s_lshr_b32 s{sRH}, s{sWAVE}, 1
    s_cmp_eq_u32 s{sLAM}, 7
    s_cbranch_scc1 L_cmp_idle
    v_and_b32 v2, 31, v{vL}
    v_lshrrev_b32 v3, 5, v{vL}
    v_bfe_u32 v4, v{vL}, 2, 2
    s_lshl_b32 s3, s{sLAM}, 1
    s_add_u32 s3, s3, s{sCH}
    s_lshl_b32 s34, s3, 11
    v_add_u32 v{vQo}, s34, v{vL16}
    v_bfe_u32 v6, v{vL}, 4, 1
    v_lshlrev_b32 v6, 2, v6
    v_and_b32 v7, 1, v4
    v_lshl_add_u32 v6, v7, 1, v6
    v_lshrrev_b32 v7, 1, v4
    v_add_u32 v6, v6, v7
    v_lshl_add_u32 v7, v6, 8, s34
    v_lshl_add_u32 v7, v3, 6, v7
    v_and_b32 v8, 3, v{vL}
    v_lshl_add_u32 v{vVo}, v8, 4, v7
    s_lshl_b32 s34, s{sRB}, 1
    s_add_u32 s34, s34, s{sRH}
    s_mul_i32 s{sSQ}, s34, 57344
    s_add_u32 s{sSQh}, s{sSQ}, 28672
    s_add_u32 s{sSK}, s{sSQ}, {KO}
    s_add_u32 s{sSKh}, s{sSQh}, {KO}
    s_add_u32 s{sSV}, s{sSQ}, {VO}
    s_add_u32 s15, s{sSQh}, {VO}
    s_lshl_b32 s34, s34, 4
    s_add_u32 s34, s34, s3
    s_lshl_b32 s34, s34, 7
    s_add_u32 s{sFl}, s34, {FL1}
    """)
    def qkv_stores(data):
        for p, lo, hi in ((1, sSK, sSKh), (2, None, None), (0, sSQ, sSQh)):
            for rt in range(2):
                for half in range(2):
                    d = data(p, rt, half)
                    if p == 2: a(f"buffer_store_dwordx4 {q4(d)}, v{vVo}, {srd(sWS)}, s{sSV} offen offset:{rt*2048 + half*128} sc1")
                    else: a(f"buffer_store_dwordx4 {q4(d)}, v{vQo}, {srd(sWS)}, s{hi if half else lo} offen offset:{rt*512} sc1")
    a(f"""
    global_load_dword v{vTAG}, v1, s[30:31] sc1
    s_lshl_b32 s3, s{sRH}, 6
    v_add_u32 v5, s3, v2
    v_lshlrev_b32 v5, 7, v5
    v_bfe_u32 v6, v2, 1, 3
    v_xor_b32 v6, v6, v3
    v_lshl_add_u32 v{vxa[0]}, v6, 4, v5
    v_add_u32 v{vxa[0]}, {slot0}, v{vxa[0]}
    v_xor_b32 v{vxa[1]}, 32, v{vxa[0]}
    v_xor_b32 v{vxa[2]}, 64, v{vxa[0]}
    v_xor_b32 v{vxa[3]}, 96, v{vxa[0]}
    v_lshl_add_u32 v6, v3, 3, v4
    v_lshlrev_b32 v6, 7, v6
    v_add_u32 v6, {slot0 + 16384}, v6
    v_bfe_u32 v7, v{vL}, 4, 1
    v_lshlrev_b32 v7, 5, v7
    v_and_b32 v8, 1, v{vL}
    v_lshl_or_b32 v7, v8, 4, v7
    v_bfe_u32 v8, v{vL}, 1, 1
    v_lshl_or_b32 v7, v8, 3, v7
    s_lshl_b32 s3, s{sCH}, 6
    v_or_b32 v7, s3, v7
    v_and_b32 v8, 2, v4
    v_lshlrev_b32 v8, 5, v8
    v_xor_b32 v7, v7, v8
    v_add_u32 v{vwa}, v6, v7
    """)
    def reads(s, ks):
        L = [f"ds_read_b128 {q4(Fx(s,rt))}, v{vxa[ks]} offset:{rt*4096}" for rt in range(2)]
        for p in (1, 2, 0):
            for u in range(2):
                L.append(f"ds_read_b64_tr_b16 {q2(Fw(s, p) + 2*u)}, v{vwa} offset:{p*8192 + ks*2048 + u*512}")
        return L
    def kstep(s, rd, extra=(), zero=False):
        M = []
        for p in (1, 2, 0):
            for rt in range(2):
                A, B = (Fx(s,rt), Fw(s,p)) if p == 2 else (Fw(s,p), Fx(s,rt))
                M.append(f"v_mfma_f32_32x32x16_bf16 {q16(Acc(p,rt))}, {q4(A)}, {q4(B)}, {'0' if zero else q16(Acc(p,rt))}")
        per = [3, 3, 2, 0, 0, 0]
        k = 0
        extra = list(extra)
        for i, m in enumerate(M):
            a(m)
            for _ in range(per[i]):
                if k < len(rd): a(rd[k]); k += 1
            if i >= 3:
                for _ in range(4):
                    if extra: a(extra.pop(0))
        for e in extra: a(e)
    sC, sD = 42, 43
    a("s_barrier")
    stamp(1)
    for r in reads(0, 0): a(r)
    a(f"s_mov_b32 s{sC}, 0")
    ex0 = [f"s_and_b32 s3, s{sC}, 3", f"s_cmp_eq_u32 s3, 2", f"s_mov_b32 s{sD}, {SLOT}",
           f"s_cselect_b32 s{sD}, {(-3*SLOT) & 0xffffffff}, s{sD}",
           f"v_add_u32 v{vxa[0]}, s{sD}, v{vxa[0]}", f"v_add_u32 v{vxa[1]}, s{sD}, v{vxa[1]}"]
    a("s_waitcnt lgkmcnt(0)")
    kstep(0, reads(1, 1), ex0, zero=True)
    a("s_branch L_gemm1")
    a.raw("L_gemm:")
    a("s_waitcnt lgkmcnt(0)")
    kstep(0, reads(1, 1), ex0)
    a.raw("L_gemm1:")
    a("s_waitcnt lgkmcnt(0)")
    kstep(1, reads(0, 2), [f"v_add_u32 v{vxa[2]}, s{sD}, v{vxa[2]}"])
    a("s_waitcnt lgkmcnt(0)")
    kstep(0, reads(1, 3), [f"v_add_u32 v{vxa[3]}, s{sD}, v{vxa[3]}", f"v_add_u32 v{vwa}, s{sD}, v{vwa}",
                           f"s_add_u32 s{sC}, s{sC}, 1", f"s_cmp_lt_u32 s{sC}, 6"])
    a("s_waitcnt lgkmcnt(0)")
    a("s_barrier")
    kstep(1, reads(0, 0))
    a("s_cbranch_scc1 L_gemm")
    def cvt(d, s0): a(f"v_cvt_pk_bf16_f32 v{d}, v{s0}, v{s0+1}")
    def mf(p, rt, ks):
        A, B = (Fx(ks,rt), Fw(ks,p)) if p == 2 else (Fw(ks,p), Fx(ks,rt))
        return f"v_mfma_f32_32x32x16_bf16 {q16(Acc(p,rt))}, {q4(A)}, {q4(B)}, {q16(Acc(p,rt))}"
    rd = []
    for ks in (1, 2, 3):
        r = reads(ks, ks); rd += r[0:4]
    for ks in (1, 2, 3): rd += reads(ks, ks)[6:8]
    for ks in (1, 2, 3): rd += reads(ks, ks)[4:6]
    a("s_waitcnt vmcnt(0) lgkmcnt(0)")
    k = 0
    for p in (1, 0, 2):
        for rt in range(2):
            a(mf(p, rt, 0))
            for _ in range(3): a(rd[k]); k += 1
    def epi(p):
        L = []
        for rt in range(2):
            for half in range(2):
                if p == 2:
                    d = 176 + (rt*2+half)*4; s0 = Acc(2, rt) + 4*half
                    L += [f"v_cvt_pk_bf16_f32 v{d}, v{s0}, v{s0+1}", f"v_cvt_pk_bf16_f32 v{d+1}, v{s0+2}, v{s0+3}",
                          f"v_cvt_pk_bf16_f32 v{d+2}, v{s0+8}, v{s0+9}", f"v_cvt_pk_bf16_f32 v{d+3}, v{s0+10}, v{s0+11}",
                          f"buffer_store_dwordx4 {q4(d)}, v{vVo}, {srd(sWS)}, s{15 if rt else sSV} offen offset:{half*128} sc1"]
                else:
                    d = Acc(p, rt) + 8*half
                    lo, hi = (sSK, sSKh) if p == 1 else (sSQ, sSQh)
                    L += [f"v_cvt_pk_bf16_f32 v{d+i}, v{d+2*i}, v{d+2*i+1}" for i in range(4)]
                    L += [f"buffer_store_dwordx4 {q4(d)}, v{vQo}, {srd(sWS)}, s{hi if rt else lo} offen offset:{half*1024} sc1"]
        return L
    for n, ks in enumerate((1, 2, 3)):
        a(f"s_waitcnt lgkmcnt({min(15, k - 4*(n+1))})")
        for rt in range(2):
            a(mf(1, rt, ks))
            if k < 24: a(rd[k]); k += 1
    pend = epi(1)
    for p, nxt, base in ((0, 0, 12), (2, None, 18)):
        for n, ks in enumerate((1, 2, 3)):
            a(f"s_waitcnt lgkmcnt({24 - base - 2*(n+1)})")
            for rt in range(2):
                a(mf(p, rt, ks))
                if n or rt:
                    for _ in range(4):
                        if pend: a(pend.pop(0))
        for x in pend: a(x)
        pend = epi(p)
    stamp(3)
    for x in pend: a(x)
    if opt.get("defer", 2) in (1, 2): a("s_barrier")
    stamp(2)
    a("v_mov_b32 v227, 0")
    a("s_waitcnt vmcnt(0)")
    get_tag("c")
    a(f"""
    s_mov_b64 exec, 1
    buffer_store_dword v{vTAG}, v227, {srd(sWS)}, s{sFl} offen sc1
    s_mov_b64 exec, -1
    """)
    stamp(4)
    if opt.get("defer", 2) >= 3: a("s_barrier")
    a("s_branch L_cmp2")
    a.raw("L_cmp_idle:")
    a(f"global_load_dword v{vTAG}, v1, s[30:31] sc1")
    a("s_waitcnt vmcnt(0)")
    get_tag("i")
    a.raw("L_cmp2:")
    a(p2common)
    a("s_branch L_phase2")
    a.raw("L_brB:")
    SLB = 43008
    SB0 = 34816
    a(MAPB)
    a(f"""
    s_cmp_lt_u32 s{sWAVE}, 4
    s_cbranch_scc1 L_cmpB
    """)
    vXh = 12
    sLh = 63
    a(f"""
    s_sub_u32 s{sLW}, s{sWAVE}, 4
    s_lshl_b32 s{sT0}, s{sRB}, 7
    s_lshl_b32 s{sT1}, s{sLW}, 5
    s_add_u32 s{sT0}, s{sT0}, s{sT1}
    v_add_u32 v4, s{sT0}, v1
    v_mul_u32_u24 v4, 896, v4
    v_xor_b32 v5, v2, v3
    v_lshl_add_u32 v{vXe}, v5, 4, v4
    v_xor_b32 v5, 4, v5
    v_lshl_add_u32 v{vXo}, v5, 4, v4
    v_add_u32 v{vXo}, 6144, v{vXo}
    s_lshl_b32 s{sLx}, s{sLW}, 12
    s_lshl_b32 s{sLw}, s{sLW}, 11
    s_lshl_b32 s{sLh}, s{sLW}, 9
    s_lshl_b32 s{sT1}, s{sLW}, 4
    v_add_u32 v4, s{sT1}, v1
    v_mul_u32_u24 v4, 2688, v4
    s_mul_i32 s{sT1}, s{sLAM}, 112
    v_add_u32 v4, s{sT1}, v4
    v_and_b32 v5, 1, v3
    v_lshlrev_b32 v5, 1, v5
    v_xor_b32 v5, v2, v5
    v_mov_b32 v7, {BIG}
    v_lshl_add_u32 v{vW0}, v5, 4, v4
    v_cmp_eq_u32 vcc, 7, v5
    v_xor_b32 v6, 4, v5
    v_cndmask_b32 v{vW0}, v{vW0}, v7, vcc
    v_lshl_add_u32 v{vW1}, v6, 4, v4
    v_cmp_eq_u32 vcc, 7, v6
    v_add_u32 v{vW1}, {8*2688-1024}, v{vW1}
    v_cndmask_b32 v{vW1}, v{vW1}, v7, vcc
    s_lshl_b32 s{sT0}, s{sRB}, 7
    s_lshl_b32 s{sT1}, s{sLW}, 2
    s_add_u32 s{sT0}, s{sT0}, s{sT1}
    s_sub_u32 s{sT0}, s{sT0}, 16
    v_add_u32 v4, s{sT0}, v1
    v_mul_i32_i24 v4, 896, v4
    s_lshl_b32 s{sT1}, s{sLW}, 1
    v_add_u32 v5, s{sT1}, v3
    v_and_b32 v5, 7, v5
    v_xor_b32 v5, v2, v5
    v_lshl_add_u32 v{vXh}, v5, 4, v4
    s_cmp_eq_u32 s{sRB}, 0
    s_cselect_b64 vcc, -1, 0
    v_cndmask_b32 v{vXh}, v{vXh}, v7, vcc
    s_mov_b32 s{sX+2}, {XB}
    s_mov_b32 s{sX+3}, 0x20000
    s_mov_b32 s{sW+2}, {WB}
    s_mov_b32 s{sW+3}, 0x20000
    s_waitcnt lgkmcnt(0)
    s_mov_b32 s{sX}, s22
    s_mov_b32 s{sX+1}, s23
    s_mov_b32 s{sW}, s24
    s_mov_b32 s{sW+1}, s25
    """)
    stamp(0)
    del order[:]
    def DB(c):
        slot = SB0 + ((c + 2) % 3) * SLB
        a(f"""
        s_add_u32 m0, s{sLx}, {slot + 2048}
        s_mov_b32 s{sT0}, {c*128}
        s_mov_b32 s{sT1}, {c*128 + 12288}
        buffer_load_dwordx4 v{vXe}, {srd(sX)}, s{sT0} offen lds
        buffer_load_dwordx4 v{vXo}, {srd(sX)}, s{sT0} offen offset:1024 lds
        buffer_load_dwordx4 v{vXe}, {srd(sX)}, s{sT1} offen offset:2048 lds
        buffer_load_dwordx4 v{vXo}, {srd(sX)}, s{sT1} offen offset:3072 lds
        """)
        for p in range(3):
            a(f"""
            s_add_u32 m0, s{sLw}, {slot + 18432 + p*8192}
            s_mov_b32 s{sT1}, {c*64*2688 + p*896}
            buffer_load_dwordx4 v{vW0}, {srd(sW)}, s{sT1} offen lds
            buffer_load_dwordx4 v{vW1}, {srd(sW)}, s{sT1} offen offset:1024 lds
            """)
        a(f"""
        s_add_u32 m0, s{sLh}, {slot}
        s_mov_b64 exec, 0xffffffff
        buffer_load_dwordx4 v{vXh}, {srd(sX)}, s{sT0} offen lds
        s_mov_b64 exec, -1
        """)
        order.extend([c] * 11)
    head(DB, 384)
    a(wo_setup); order.append("tag")
    Wt(2); DB(4); Wt(3); DB(5); Wt(4); DB(6); pf_wo(2); Wt(5); issue_wo(0, 10); Wt(6); issue_wo(10, 20)
    a("s_branch L_ld2")
    a.raw("L_cmpB:")
    sHH = 96
    def Qa(rt, ft): return ((rt-1)*2+ft)*4
    def Ka(rt, ft): return 32 + (rt*2+ft)*4
    def Va(rt, ft): return 72 + (rt*2+ft)*4
    def Gx(s, rt): return 112 + 44*s + 4*rt
    def Gw(s, p, ft): return 112 + 44*s + 20 + (p*2+ft)*4
    bxa = [200, 201]; bwa = [202, 203]
    vBS, vBP, vBP1 = 204, 208, 212
    sl0 = SB0 + 2 * SLB
    a(f"""
    s_and_b32 s{sHH}, s{sWAVE}, 1
    s_lshr_b32 s{sRH}, s{sWAVE}, 1
    v_and_b32 v2, 15, v{vL}
    s_lshl_b32 s3, s{sRH}, 6
    v_add_u32 v4, s3, v2
    v_lshlrev_b32 v4, 7, v4
    v_lshrrev_b32 v5, 1, v2
    v_xor_b32 v5, v5, v3
    v_lshl_add_u32 v{bxa[0]}, v5, 4, v4
    v_add_u32 v{bxa[0]}, {sl0}, v{bxa[0]}
    v_xor_b32 v{bxa[1]}, 64, v{bxa[0]}
    v_lshrrev_b32 v4, 2, v2
    v_and_b32 v5, 3, v{vL}
    v_lshl_add_u32 v6, v3, 3, v4
    v_lshlrev_b32 v6, 7, v6
    v_add_u32 v6, {sl0 + 18432}, v6
    v_and_b32 v7, 2, v4
    v_and_b32 v8, 1, v3
    v_lshl_or_b32 v7, v8, 2, v7
    v_lshlrev_b32 v7, 4, v7
    s_mul_i32 s3, s{sHH}, 56
    v_lshl_add_u32 v8, v5, 3, s3
    v_xor_b32 v9, v8, v7
    v_add_u32 v{bwa[0]}, v6, v9
    v_add_u32 v8, 32, v8
    v_cmp_eq_u32 vcc, 56, v8
    v_mov_b32 v9, 120
    v_cndmask_b32 v8, v8, v9, vcc
    v_xor_b32 v9, v8, v7
    v_add_u32 v{bwa[1]}, v6, v9
    v_cmp_eq_u32 vcc, 12, v2
    v_cndmask_b32 v216, 0, 1.0, vcc
    v_mov_b32 v217, v216
    v_mov_b32 v218, v216
    v_mov_b32 v219, v216
    s_lshl_b32 s34, s{sRB}, 1
    s_add_u32 s34, s34, s{sRH}
    s_lshl_b32 s37, s34, 6
    s_lshl_b32 s3, s{sLAM}, 1
    s_add_u32 s3, s3, s{sHH}
    s_add_u32 s3, s3, s37
    s_lshl_b32 s3, s3, 10
    s_add_u32 s36, s3, {OB}
    s_mov_b32 s37, s34
    v_mov_b32 v1, 0
    s_waitcnt lgkmcnt(0)
    {TAGC if opt.get('swap', 1) else ''}
    """)
    stamp(0)
    pc = [l for l in p2common.split("\n") if l.strip()]
    cut = next(k for k in range(len(pc)) if pc[k].strip().startswith("s_mul_i32 s3, s%d, 3" % sWAVE))
    bias = f"""
    v_mov_b32 v224, {NEG}
    v_and_b32 v220, 15, v{vL}
    v_lshrrev_b32 v221, 4, v{vL}
    v_lshlrev_b32 v221, 2, v221
    v_sub_u32 v220, v220, v221
    """ + "".join(f"""
    v_subrev_u32 v221, {i}, v220
    v_and_b32 v222, 0x80000001, v221
    v_cmp_eq_u32 vcc, 0, v222
    v_cndmask_b32 v{vBS+i}, v224, 0, vcc
    v_cmp_eq_u32 vcc, 0x80000000, v222
    v_cndmask_b32 v{vBP+i}, v224, 0, vcc
    """ for i in range(4)) + """
    s_cmp_eq_u32 s37, 0
    s_cselect_b64 vcc, -1, 0
    """ + "".join(f"v_cndmask_b32 v{vBP1+i}, v{vBP+i}, v224, vcc\n" for i in range(4))
    pieces = [rest_setup + f"v_mov_b32 v227, 0\nglobal_load_dword v{vTAG}, v227, s[30:31] sc1\n" + bias, "\n".join(pc[:cut]), "\n".join(pc[cut:])]
    def breads(s, ks):
        L = [f"ds_read_b128 {q4(Gx(s,rt))}, v{bxa[ks]} offset:{rt*2048}" for rt in (1, 2, 3, 4, 0)]
        for p in range(3):
            for ft in range(2):
                for u in range(2):
                    L.append(f"ds_read_b64_tr_b16 {q2(Gw(s,p,ft) + 2*u)}, v{bwa[ft]} offset:{p*8192 + ks*4096 + u*512}")
        return L
    def bstep(s, rd, zero=False):
        M = []
        C = lambda r, z='0': z if zero else q4(r)
        for rt in (1, 2, 3, 4, 0):
            for ft in range(2):
                if rt: M.append(f"v_mfma_f32_16x16x32_bf16 {q4(Qa(rt,ft))}, {q4(Gw(s,0,ft))}, {q4(Gx(s,rt))}, {C(Qa(rt,ft))}")
                M.append(f"v_mfma_f32_16x16x32_bf16 {q4(Ka(rt,ft))}, {q4(Gw(s,1,ft))}, {q4(Gx(s,rt))}, {C(Ka(rt,ft))}")
                M.append(f"v_mfma_f32_16x16x32_bf16 {q4(Va(rt,ft))}, {q4(Gx(s,rt))}, {q4(Gw(s,2,ft))}, {C(Va(rt,ft), q4(216) if ft else '0')}")
        for i, m in enumerate(M):
            a(m)
            if i < len(rd): a(rd[i])
    a("s_barrier")
    stamp(1)
    for r in breads(0, 0): a(r)
    a(f"s_mov_b32 s{sC}, 0")
    a("s_waitcnt lgkmcnt(0)")
    bstep(0, breads(1, 1), zero=True)
    a(pieces[0]); a(pieces[1])
    a(f"""
    s_mul_i32 s3, s{sC}, 86
    s_lshr_b32 s3, s3, 8
    s_mul_i32 s3, s3, 3
    s_cmp_eq_u32 s3, s{sC}
    s_mov_b32 s{sD}, {SLB}
    s_cselect_b32 s{sD}, {(-2*SLB) & 0xffffffff}, s{sD}
    v_add_u32 v{bxa[0]}, s{sD}, v{bxa[0]}
    v_add_u32 v{bxa[1]}, s{sD}, v{bxa[1]}
    v_add_u32 v{bwa[0]}, s{sD}, v{bwa[0]}
    v_add_u32 v{bwa[1]}, s{sD}, v{bwa[1]}
    s_cmp_eq_u32 s{sC}, 6
    s_waitcnt lgkmcnt(0)
    s_cbranch_scc1 L_nobarB0
    s_barrier
    L_nobarB0:
    """)
    bstep(1, breads(0, 0))
    a(pieces[2])
    a(f"s_mov_b32 s{sC}, 1")
    a.raw("L_gemmB:")
    a("s_waitcnt lgkmcnt(0)")
    bstep(0, breads(1, 1))
    a(f"""
    s_mul_i32 s3, s{sC}, 86
    s_lshr_b32 s3, s3, 8
    s_mul_i32 s3, s3, 3
    s_cmp_eq_u32 s3, s{sC}
    s_mov_b32 s{sD}, {SLB}
    s_cselect_b32 s{sD}, {(-2*SLB) & 0xffffffff}, s{sD}
    v_add_u32 v{bxa[0]}, s{sD}, v{bxa[0]}
    v_add_u32 v{bxa[1]}, s{sD}, v{bxa[1]}
    v_add_u32 v{bwa[0]}, s{sD}, v{bwa[0]}
    v_add_u32 v{bwa[1]}, s{sD}, v{bwa[1]}
    s_cmp_eq_u32 s{sC}, 6
    s_waitcnt lgkmcnt(0)
    s_cbranch_scc1 L_nobarB
    s_barrier
    L_nobarB:
    """)
    bstep(1, breads(0, 0))
    a(f"""
    s_add_u32 s{sC}, s{sC}, 1
    s_cmp_lt_u32 s{sC}, 7
    s_cbranch_scc1 L_gemmB
    """)
    stamp(3)
    def Qf(j): return 168 + 4*(j-1)
    def Kf(rt): return 128 + 4*rt
    def Vf(dt, rt): return 148 + 10*dt + 2*rt
    a("s_waitcnt vmcnt(0) lgkmcnt(0)")
    get_tag("b")
    for rt in (1, 2, 3, 4, 0):
        for ft in range(2):
            if rt:
                cvt(Qf(rt)+2*ft, Qa(rt,ft)); cvt(Qf(rt)+2*ft+1, Qa(rt,ft)+2)
            cvt(Kf(rt)+2*ft, Ka(rt,ft)); cvt(Kf(rt)+2*ft+1, Ka(rt,ft)+2)
            cvt(Vf(ft,rt), Va(rt,ft)); cvt(Vf(ft,rt)+1, Va(rt,ft)+2)
    stamp(4)
    if opt.get('be', 0):
        def SB(j, t): return 8*(j-1) + 4*t
        for j in range(1, 5):
            bp = vBP1 if j == 1 else vBP
            a(f"v_mfma_f32_16x16x32_bf16 {q4(SB(j,0))}, {q4(Kf(j-1))}, {q4(Qf(j))}, {q4(bp)}")
            a(f"v_mfma_f32_16x16x32_bf16 {q4(SB(j,1))}, {q4(Kf(j))}, {q4(Qf(j))}, {q4(vBS)}")
        M = lambda j: 32 + (j-1)
        T = lambda j: 36 + (j-1)
        for j in range(1, 5):
            s = SB(j, 0)
            a(f"v_max3_f32 v{M(j)}, v{s}, v{s+1}, v{s+2}")
            a(f"v_max3_f32 v{T(j)}, v{s+3}, v{s+4}, v{s+5}")
            a(f"v_max3_f32 v{M(j)}, v{M(j)}, v{s+6}, v{s+7}")
            a(f"v_max_f32 v{M(j)}, v{M(j)}, v{T(j)}")
        for sw in ("v_permlane32_swap_b32", "v_permlane16_swap_b32"):
            for j in range(1, 5): a(f"v_mov_b32 v{T(j)}, v{M(j)}")
            for j in range(1, 5): a(f"{sw} v{M(j)}, v{T(j)}")
            for j in range(1, 5): a(f"v_max_f32 v{M(j)}, v{M(j)}, v{T(j)}")
        for j in range(1, 5): a(f"v_mul_f32 v{M(j)}, v{vC}, v{M(j)}")
        for j in range(1, 5):
            for i in range(8): a(f"v_fma_f32 v{SB(j,0)+i}, v{SB(j,0)+i}, v{vC}, -v{M(j)}")
        for j in range(1, 5):
            for i in range(8): a(f"v_exp_f32 v{SB(j,0)+i}, v{SB(j,0)+i}")
        P = lambda j: 40 + 4*(j-1)
        for j in range(1, 5):
            for i in range(4): cvt(P(j)+i, SB(j,0)+2*i)
        O = lambda j, dt: 8*(j-1) + 4*dt
        for j in range(1, 5):
            for dt in (1, 0):
                a(f"v_mfma_f32_16x16x32_bf16 {q4(O(j,dt))}, {q4(Vf(dt,j-1))}, {q4(P(j))}, 0")
        st = [normalize(O(j,0), O(j,1), 56+2*(j-1), 57+2*(j-1), 100+4*(j-1)) for j in range(1, 5)]
        for k in range(len(st[0])):
            for j in range(4):
                for x in st[j][k]: a(x)
        for j in range(1, 5):
            a(f"buffer_store_dwordx4 {q4(100+4*(j-1))}, v{vOo}, {srd(sWS)}, s36 offen sc1")
            if j < 4: a("s_add_u32 s36, s36, 16384")
    a.raw("L_phase2:")
    def wo_reads(base):
        L = []
        for hq in range(4):
            for cidx in range(4):
                for u in range(2):
                    d = base + (hq*4 + cidx)*4 + 2*u
                    L.append(f"ds_read_b64_tr_b16 {q2(d)}, v{vWA + 4*u + ((cidx + 2*(hq&1)) & 3)} offset:{hq*3584}")
        return L
    def wo_mask(base):
        return [f"v_and_b32 v{base + f*4 + 2 + r}, v{vMG}, v{base + f*4 + 2 + r}" for f in range(16) for r in range(2)]
    WB_, OF_ = 128, 192
    QF = 124
    KS, VS = 72, 84
    QB_, KB_, VB_ = 8, 16, 28
    sBud = 14
    def qmask(r):
        for i in range(4): a(f"v_and_b32 v{r+i}, v{vQm + (i>>1)}, v{r+i}")
    if opt.get("lp", 1):
        a("s_barrier")
        a(f"""
        s_cmp_lg_u32 s{sWAVE}, 7
        s_cbranch_scc1 L_pollok1
        """)
        poll("1", vPA, 9)
    a("s_barrier")
    stamp(11)
    for i in range(3):
        a(f"buffer_load_dwordx4 {q4(KS+4*i)}, v{vKq}, {srd(sWS)}, s{sK[i]} offen sc1")
    a(f"buffer_load_dwordx4 {q4(QF)}, v{vKq}, {srd(sWS)}, s{sQA} offen sc1")
    for i in range(3):
        a(f"buffer_load_dwordx4 {q4(VS+4*i)}, v{vV1 if i == 1 else vV0}, {srd(sWS)}, s{sV[i]} offen sc1")
    if not opt.get('be', 0):
        a(f"""
        s_lshr_b32 s3, s{sWAVE}, 2
        s_cmp_gt_u32 s{sBR}, s3
        s_cbranch_scc0 L_noB1
        """)
        def SB(j, t): return 8*(j-1) + 4*t
        for j in range(1, 5):
            bp = vBP1 if j == 1 else vBP
            a(f"v_mfma_f32_16x16x32_bf16 {q4(SB(j,0))}, {q4(Kf(j-1))}, {q4(Qf(j))}, {q4(bp)}")
            a(f"v_mfma_f32_16x16x32_bf16 {q4(SB(j,1))}, {q4(Kf(j))}, {q4(Qf(j))}, {q4(vBS)}")
        M = lambda j: 32 + (j-1)
        T = lambda j: 36 + (j-1)
        for j in range(1, 5):
            s = SB(j, 0)
            a(f"v_max3_f32 v{M(j)}, v{s}, v{s+1}, v{s+2}")
            a(f"v_max3_f32 v{T(j)}, v{s+3}, v{s+4}, v{s+5}")
            a(f"v_max3_f32 v{M(j)}, v{M(j)}, v{s+6}, v{s+7}")
            a(f"v_max_f32 v{M(j)}, v{M(j)}, v{T(j)}")
        for sw in ("v_permlane32_swap_b32", "v_permlane16_swap_b32"):
            for j in range(1, 5): a(f"v_mov_b32 v{T(j)}, v{M(j)}")
            for j in range(1, 5): a(f"{sw} v{M(j)}, v{T(j)}")
            for j in range(1, 5): a(f"v_max_f32 v{M(j)}, v{M(j)}, v{T(j)}")
        for j in range(1, 5): a(f"v_mul_f32 v{M(j)}, v{vC}, v{M(j)}")
        for j in range(1, 5):
            for i in range(8): a(f"v_fma_f32 v{SB(j,0)+i}, v{SB(j,0)+i}, v{vC}, -v{M(j)}")
        for j in range(1, 5):
            for i in range(8): a(f"v_exp_f32 v{SB(j,0)+i}, v{SB(j,0)+i}")
        P = lambda j: 40 + 4*(j-1)
        for j in range(1, 5):
            for i in range(4): cvt(P(j)+i, SB(j,0)+2*i)
        O = lambda j, dt: 8*(j-1) + 4*dt
        for j in range(1, 5):
            for dt in (1, 0):
                a(f"v_mfma_f32_16x16x32_bf16 {q4(O(j,dt))}, {q4(Vf(dt,j-1))}, {q4(P(j))}, 0")
        st = [normalize(O(j,0), O(j,1), 56+2*(j-1), 57+2*(j-1), 100+4*(j-1)) for j in range(1, 5)]
        for k in range(len(st[0])):
            for j in range(4):
                for x in st[j][k]: a(x)
    a.raw("L_noB1:")
    for r in wo_reads(WB_): a(r)
    a(f"""
    s_mov_b32 s{sBud}, {POLL_MAX}
    v_lshlrev_b32 v8, 2, v{vG}
    v_sub_u32 v8, v8, v{vR15}
    s_bitcmp1_b32 s{sWAVE}, 0
    s_cselect_b64 s[34:35], -1, 0
    """)
    for i in range(4):
        a(f"""
        v_add_u32 v9, {i}, v8
        v_cmp_lt_i32 vcc, 0, v9
        v_cndmask_b32 v10, v{vNEG}, 0, vcc
        v_cndmask_b32 v11, 0, v{vNEG}, vcc
        v_cndmask_b32 v{0+i}, v10, v{vNEG}, s[34:35]
        v_cndmask_b32 v{4+i}, 0, v10, s[34:35]
        v_cndmask_b32 v{64+i}, v11, 0, s[34:35]
        v_cndmask_b32 v{68+i}, v{vNEG}, v11, s[34:35]
        """)
    for i in range(8): a(f"v_add_u32 v{vWA+i}, {L_WOA}, v{vWA+i}")
    a("s_waitcnt lgkmcnt(0)")
    for x in wo_mask(WB_): a(x)
    a(f"""
    s_cmp_ge_u32 s{sARB}, 2
    s_cbranch_scc1 L_nofix
    s_waitcnt vmcnt(4)
    v_not_b32 v9, v{vQm}
    v_not_b32 v10, v{vQm+1}
    v_and_b32 v9, 0xff7f, v9
    v_and_b32 v10, 0xff7f, v10
    """)
    for i in range(3):
        qmask(KS+4*i)
        a(f"""
        s_cmp_eq_u32 s{sK[i]}, {BIG}
        s_cbranch_scc0 L_fx{i}
        v_or_b32 v{KS+4*i}, v9, v{KS+4*i}
        v_or_b32 v{KS+4*i+2}, v10, v{KS+4*i+2}
        L_fx{i}:
        """)
    a.raw("L_nofix:")
    for i in range(3):
        a(f"s_waitcnt vmcnt({6-i})")
        if i == 0: stamp(5)
        a(f"ds_write_b128 v{vKw}, {q4(KS+4*i)} offset:{1024*i}")
    for i in range(3):
        a(f"s_waitcnt vmcnt({2-i})")
        for r in range(4): a(f"v_or_b32 v{VS+4*i+r}, v{vOn1 if i == 1 else vOn0}, v{VS+4*i+r}")
        a(f"ds_write_b128 v{vKw}, {q4(VS+4*i)} offset:{24576+1024*i}")
    if not opt.get('be', 0):
        a(f"""
        s_lshr_b32 s3, s{sWAVE}, 2
        s_cmp_gt_u32 s{sBR}, s3
        s_cbranch_scc0 L_noB2
        """)
        for j in range(1, 5):
            a(f"buffer_store_dwordx4 {q4(100+4*(j-1))}, v{vOo}, {srd(sWS)}, s36 offen sc1")
            if j < 4: a("s_add_u32 s36, s36, 16384")
    a.raw("L_noB2:")
    stamp(6)
    qmask(QF)
    a(f"""
    s_cmp_ge_u32 s{sARB}, 2
    s_cbranch_scc1 L_nofixq
    v_not_b32 v9, v{vQm}
    v_not_b32 v10, v{vQm+1}
    v_and_b32 v9, 0x3f80, v9
    v_or_b32 v{QF}, v9, v{QF}
    v_and_b32 v10, 0x3f80, v10
    v_or_b32 v{QF+2}, v10, v{QF+2}
    L_nofixq:
    s_waitcnt lgkmcnt(0)
    s_barrier
    """)
    stamp(12)
    KBUF = 72; NKB = 6
    def kread(t): return f"ds_read_b128 {q4(KBUF + 4*(t % NKB))}, v{vKa} offset:{t*1024}"
    for t in range(NKB - 1): a(kread(t))
    vM, vT = 120, 121
    def mx(t):
        r = 4*t
        if t == 0:
            a(f"v_max_f32 v{vM}, v0, v1"); a(f"v_max_f32 v{vT}, v2, v3")
        else:
            a(f"v_max3_f32 v{vM}, v{vM}, v{r}, v{r+1}"); a(f"v_max3_f32 v{vT}, v{vT}, v{r+2}, v{r+3}")
    LAG = 4
    for t in range(18):
        if t + NKB - 1 < 18: a(kread(t + NKB - 1))
        outstanding = min(18, t + NKB) - (t + 1)
        a(f"s_waitcnt lgkmcnt({outstanding})")
        c = q4(4*t) if t in (0, 1, 16, 17) else "0"
        a(f"v_mfma_f32_16x16x32_bf16 {q4(4*t)}, {q4(KBUF + 4*(t % NKB))}, {q4(QF)}, {c}")
        if t >= LAG: mx(t - LAG)
    VBUF = [96 + 4*i for i in range(6)]
    NVB = len(VBUF)
    WA_ = 0
    ACCB = [64, 68, 72, 76, 80, 84, 88, 92]
    ACCA = [96, 100, 104, 108, 112, 116, 120, 124]
    sNext = 27
    lq = []
    def lds(ins, tag): a(ins); lq.append(tag)
    def lwait(tag):
        last = max(i for i, t in enumerate(lq) if t == tag)
        a(f"s_waitcnt lgkmcnt({min(15, len(lq) - 1 - last)})")
    def vread(n):
        lds(f"ds_read_b128 {q4(VBUF[n % NVB])}, v{vKa} offset:{24576 + (n>>1)*2048 + (n&1)*1024}", ("v", n))
    for n in range(NVB): vread(n)
    for t in range(18 - LAG, 18): mx(t)
    a(f"v_max_f32 v{vM}, v{vM}, v{vT}")
    for sw in ("v_permlane32_swap_b32", "v_permlane16_swap_b32"):
        a(f"v_mov_b32 v{vT}, v{vM}")
        a(f"{sw} v{vM}, v{vT}")
        a(f"v_max_f32 v{vM}, v{vM}, v{vT}")
    a(f"v_mul_f32 v{vM}, v{vC}, v{vM}")
    stamp(7)
    def o_load(f, s0):
        hq, tt = f >> 1, f & 1
        return f"buffer_load_dwordx4 {q4(OF_ + f*4)}, v{vOo}, {srd(sWS)}, s{s0 + tt} offen offset:{hq*1024} sc1"
    def frag(lbl, f, wbase, acc, wait, after):
        hq, tt = f >> 1, f & 1
        r = OF_ + f*4
        a(f"""
        s_cmp_lg_u32 s{sNext}, {f}
        s_cbranch_scc1 L_sk{lbl}{f}
        {wait}
        v_cmp_ne_u32 vcc, v{r+3}, v{vTAG}
        s_lshr_b32 s3, vcc_hi, 16
        s_cbranch_scc1 L_sk{lbl}{f}
        """)
        for cidx in range(4):
            d = acc[tt*4+cidx]
            a(f"v_mfma_f32_16x16x32_bf16 {q4(d)}, {q4(wbase + (hq*4+cidx)*4)}, {q4(r)}, {'0' if f < 2 else q4(d)}")
        a(f"s_add_u32 s{sNext}, s{sNext}, 1")
        if after is not None: a(o_load(f, after))
        a.raw(f"L_sk{lbl}{f}:")
    OACC = 224
    war = wo_reads(WA_); wam = wo_mask(WA_)
    LU, FU = opt.get("lu", 4), opt.get("fu", 5)
    a(f"s_mov_b32 s{sNext}, 0")
    for u in range(9):
        b = 8*u
        for i in range(8): a(f"v_fma_f32 v{b+i}, v{b+i}, v{vC}, -v{vM}")
        if LU <= u < LU + 4:
            for f in (2*(u-LU), 2*(u-LU)+1): a(o_load(f, sOB))
        for i in range(8): a(f"v_exp_f32 v{b+i}, v{b+i}")
        if opt.get('inpv', 0) and FU <= u < FU + 4:
            for f in range(2*(u-FU), 2*(u-FU)+2): frag("P", f, WB_, ACCB, f"s_waitcnt vmcnt({7-f})", None)
        for i in range(4): a(f"v_cvt_pk_bf16_f32 v{b+i}, v{b+2*i}, v{b+2*i+1}")
        lwait(("v", 2*u+1))
        for dt in range(2):
            c = "0" if u == 0 else q4(OACC + 4*dt)
            a(f"v_mfma_f32_16x16x32_bf16 {q4(OACC+4*dt)}, {q4(VBUF[(2*u+dt) % NVB])}, {q4(b)}, {c}")
        for n in (NVB + 2*u, NVB + 1 + 2*u):
            if n < 18: vread(n)
    for x in war: a(x)
    for grp in normalize(OACC, OACC+4, 232, 234, 236):
        for x in grp: a(x)
    a(f"buffer_store_dwordx4 {q4(236)}, v{vOo}, {srd(sWS)}, s33 offen sc1")
    stamp(13)
    a(f"""
    s_cmp_eq_u32 s{sCB}, 7
    s_cbranch_scc1 L_fin
    """)
    vXW, vXR, vOut = 224, 228, 230
    a(f"""
    s_lshl_b32 s3, s{sKQ}, 14
    s_lshl_b32 s35, s{sRP}, 13
    s_add_u32 s35, s35, s3
    v_lshlrev_b32 v231, 8, v{vR15}
    v_add_u32 v231, s35, v231
    v_xor_b32 v232, v{vG}, v{vR15}
    """)
    for cidx in range(4):
        a(f"""
        s_add_u32 s3, s{sKQ}, {cidx}
        s_and_b32 s3, s3, 3
        s_lshl_b32 s3, s3, 2
        v_xor_b32 v234, s3, v232
        v_lshl_add_u32 v{vXW+cidx}, v234, 4, v231
        """)
    a(f"""
    v_lshrrev_b32 v231, 3, v{vL}
    s_lshl_b32 s3, s{sWAVE}, 3
    v_add_u32 v231, s3, v231
    v_and_b32 v232, 7, v{vL}
    v_lshlrev_b32 v234, 1, v232
    v_and_b32 v235, 15, v231
    v_xor_b32 v234, v234, v235
    v_lshlrev_b32 v234, 4, v234
    v_lshl_add_u32 v{vXR}, v231, 8, v234
    v_xor_b32 v{vXR+1}, 16, v{vXR}
    s_lshl_b32 s3, s{sRB64}, 6
    v_add_u32 v231, s3, v231
    v_mul_u32_u24 v231, 1792, v231
    v_lshl_add_u32 v231, v232, 4, v231
    s_lshl_b32 s3, s{sCB}, 7
    v_add_u32 v{vOut}, s3, v231
    """)
    def finish(lbl, wbase, acc, s0, after):
        a(f"""
        s_cmp_eq_u32 s{sNext}, 8
        s_cbranch_scc1 L_done{lbl}
        L_again{lbl}:
        {f"s_sleep {opt['as']}" if opt.get("as") else ""}
        """)
        for f in range(8):
            a(f"s_cmp_gt_u32 s{sNext}, {f}")
            a(f"s_cbranch_scc1 L_rl{lbl}{f}")
            a(o_load(f, s0))
            a.raw(f"L_rl{lbl}{f}:")
        a("s_waitcnt vmcnt(0)")
        a.raw(f"L_first{lbl}:")
        for f in range(8): frag(lbl, f, wbase, acc, "", after)
        a(f"""
        s_cmp_eq_u32 s{sBud}, 0
        s_cbranch_scc1 L_done{lbl}
        s_sub_u32 s{sBud}, s{sBud}, 1
        s_cmp_lg_u32 s{sNext}, 8
        s_cbranch_scc1 L_again{lbl}
        {"s_waitcnt vmcnt(0)" if after is not None else ""}
        L_done{lbl}:
        """)
    def exch_write(acc):
        for tt in range(2):
            for cidx in range(4):
                a(f"ds_write_b128 v{vXW+cidx}, {q4(acc[tt*4+cidx])} offset:{tt*4096}")
        a("s_waitcnt lgkmcnt(0)")
        a("s_barrier")
    def exch_final(RB_, outoff):
        for k in range(4):
            for h in range(2):
                a(f"ds_read_b128 {q4(RB_ + (k*2+h)*4)}, v{vXR+h} offset:{k*16384}")
        a("s_waitcnt lgkmcnt(4)")
        for i in range(8): a(f"v_add_f32 v{RB_+i}, v{RB_+i}, v{RB_+8+i}")
        a("s_waitcnt lgkmcnt(0)")
        for i in range(8): a(f"v_add_f32 v{RB_+16+i}, v{RB_+16+i}, v{RB_+24+i}")
        for i in range(8): a(f"v_add_f32 v{RB_+i}, v{RB_+i}, v{RB_+16+i}")
        for i in range(4): a(f"v_cvt_pk_bf16_f32 v{RB_+8+i}, v{RB_+2*i}, v{RB_+2*i+1}")
        a(f"s_mov_b32 s3, {outoff}")
        a(f"buffer_store_dwordx4 {q4(RB_+8)}, v{vOut}, {srd(sOut)}, s3 offen")
    if not opt.get('inpv', 0):
        for f in range(8): frag("R", f, WB_, ACCB, f"s_waitcnt vmcnt({8-f})", None)
    finish("B", WB_, ACCB, sOB, None)
    stamp(8)
    AL = opt.get("al", 1)
    def aloads(k):
        if AL == k:
            for f in range(8): a(o_load(f, sOA))
    aloads(0)
    a(f"s_mov_b32 s{sNext}, 0")
    a("s_waitcnt lgkmcnt(0)")
    for x in wam: a(x)
    a("s_barrier")
    aloads(1)
    exch_write(ACCB)
    aloads(2)
    if opt.get("rechk", 1) and AL == 0:
        a("s_waitcnt vmcnt(0)")
        for f in range(8):
            a(f"""
            v_cmp_ne_u32 vcc, v{OF_+f*4+3}, v{vTAG}
            s_lshr_b32 s3, vcc_hi, 16
            s_cbranch_scc0 L_ok{f}
            {o_load(f, sOA)}
            L_ok{f}:
            """)
    exch_final(128, 896)
    aloads(3)
    for i in range(4): a(f"v_add_u32 v{vXW+i}, 65536, v{vXW+i}")
    for i in range(2): a(f"v_add_u32 v{vXR+i}, 65536, v{vXR+i}")
    stamp(14)
    for f in range(8): frag("Q", f, WA_, ACCA, "s_waitcnt vmcnt(1)" if (opt.get("rechk", 1) and AL == 0) else f"s_waitcnt vmcnt({(7 if AL == 3 else 8)-f})", None)
    finish("A", WA_, ACCA, sOA, None)
    stamp(9)
    exch_write(ACCA)
    exch_final(160, 0)
    a.raw("L_fin:")
    if stamps:
        stamp(15)
        if "probe" in opt:
            X = opt["probe"]
            a(f"""
            v_readfirstlane_b32 s12, v{vTAG}
            s_bfe_u32 s3, s12, 0xd0001
            s_bfe_u32 s34, s12, 0xf000f
            s_lshl_b32 s34, s34, 13
            s_or_b32 s3, s3, s34
            s_lshr_b32 s34, s12, 31
            s_lshl_b32 s34, s34, 28
            s_or_b32 s3, s3, s34
            s_sub_u32 s34, s{64+2*X}, s3
            s_add_u32 s34, s34, 200
            s_and_b32 s34, s34, 0x1fffffff
            s_cmp_lt_u32 s34, 5000
            s_cselect_b32 s34, s34, 0
            s_cmp_eq_u32 s{sBR}, {1 - opt.get("pbr", 5) if "pbr" in opt else 7}
            s_cselect_b32 s34, 0, s34
            s_add_u32 s34, s34, 3000
            s_mov_b32 s35, 100000
            L_pw:
            s_memrealtime s[16:17]
            s_waitcnt lgkmcnt(0)
            s_sub_u32 s16, s16, s3
            s_and_b32 s16, s16, 0x1fffffff
            s_sub_u32 s35, s35, 1
            s_cmp_eq_u32 s35, 0
            s_cbranch_scc1 L_end
            s_cmp_lt_u32 s16, s34
            s_cbranch_scc1 L_pw
            s_endpgm
            """)
        a(f"""
        s_sub_u32 s84, {POLL_MAX}, s{sBud}
        s_mul_i32 s84, s84, 100
        s_add_u32 s84, s84, s64
        s_lshl_b32 s3, s2, 3
        s_add_u32 s3, s3, s{sWAVE}
        s_lshl_b32 s3, s3, 6
        s_add_u32 s3, s3, {STAMP}
        v_mov_b32 v1, 0
        s_mov_b64 exec, 1
        """)
        if opt.get("dbgst"):
            ids = [1, 2, 3, 4, 5, 6, 7, 8, 9, 11, 12, 13, 14, 15]
            a("s_not_b32 s3, s64")
            a("v_mov_b32 v2, s3")
            a("global_atomic_umax v1, v2, s[30:31] offset:4")
            for k, i in enumerate(ids):
                a(f"s_sub_u32 s3, s{64+2*i}, s64")
                a("s_cmp_lt_u32 s3, 100000")
                a(f"s_cselect_b32 s3, s{64+2*i}, 0")
                a("v_mov_b32 v2, s3")
                a(f"global_atomic_umax v1, v2, s[30:31] offset:{8+4*k}")
            a("s_endpgm")
        for i in range(16):
            a(f"v_mov_b32 v2, s{64+2*i}")
            a(f"buffer_store_dword v2, v1, {srd(sWS)}, s3 offen offset:{4*i}")
    a.raw("L_end:")
    a("s_endpgm")
    bad = a.check_branches()
    for b in bad: print("BRANCH HAZARD", b, file=sys.stderr)
    assert not bad
    out = HEADER + f"""; @launch grid=(256,1,1) block=(512,1,1) lds=163840
""" + DOC + f""".amdgcn_target "amdgcn-amd-amdhsa--gfx950"
.text
.globl {NAME}_kernel
.p2align 8
.type {NAME}_kernel,@function
""" + a.text() + f""".section .rodata,"a"
.p2align 6
.amdhsa_kernel {NAME}_kernel
  .amdhsa_next_free_vgpr 256
  .amdhsa_next_free_sgpr 102
  .amdhsa_accum_offset 256
  .amdhsa_group_segment_fixed_size 0
  .amdhsa_kernarg_size 72
  .amdhsa_user_sgpr_count 2
  .amdhsa_user_sgpr_kernarg_segment_ptr 1
  .amdhsa_system_sgpr_workgroup_id_x 1
.end_amdhsa_kernel
"""
    return out

if __name__ == "__main__":
    stamps = int(sys.argv[1]); path = sys.argv[2]
    opt = dict((kv.split("=")[0], int(kv.split("=")[1])) for kv in sys.argv[3:])
    open(path, "w").write(gen(stamps, opt))
```

```python
import sys, struct, math
from asmlib import Asm

NAME = "concat_heads__sliding_block__sliding_local_dilated__prompt"
HEADER = open("cdna_kernels/%s.s.ref" % NAME).read().split("; Override launch")[0]
def f2u(x): return struct.unpack("<I", struct.pack("<f", x))[0]

XB, WB, WOB_BYTES, OUTB = 1835008, 1204224, 401408, 3670016
MB2 = 0x200000
QO, KO, VO = 0, MB2, 2*MB2
BRS = 3*MB2
OA, OB = 6*MB2, 7*MB2
FL1 = 8*MB2
STAMP = 8*MB2 + 0x100000
WSB = 9*MB2
BIG = 0x40000000
NEG = f2u(-1e30)
CSC = f2u((28 ** -0.5) * math.log2(math.e))
SLOT = 40960
L_WOB, L_WOA, L_KV = 0, 57344, 114688
POLL_MAX = 40000

sWAVE, sBR, sLAM, sRB, sAH, sARB, sRB64, sCB, sTAG = 4, 5, 6, 7, 8, 9, 10, 11, 12
sX, sW, sWoA, sWoB, sWS, sOut = 36, 40, 44, 48, 52, 56
def srd(b): return f"s[{b}:{b+3}]"
def q4(r): return f"v[{r}:{r+3}]"
def q2(r): return f"v[{r}:{r+1}]"
def q16(r): return f"v[{r}:{r+15}]"
vL, vL16, vTAG = 255, 254, 253

DOC = '; Single persistent launch, one 8-wave workgroup per CU (generated by gen/gen_final.py).\n'

def gen(stamps=False, opt=None):
    opt = opt or {}
    a = Asm()
    def stamp(i):
        if stamps:
            a(f"s_memrealtime s[{64+2*i}:{65+2*i}]")
            a("s_waitcnt lgkmcnt(0)")
    def mk_srd(d, p, n):
        return f"s_mov_b32 s{d}, s{p}\ns_mov_b32 s{d+1}, s{p+1}\ns_mov_b32 s{d+2}, {n}\ns_mov_b32 s{d+3}, 0x20000\n"
    MAP = f"""
    s_lshr_b32 s{sLAM}, s14, 2
    s_and_b32 s15, s13, 3
    s_lshl_b32 s15, s15, 2
    s_and_b32 s3, s14, 3
    s_add_u32 s{sRB}, s15, s3
    """ if opt.get("map", 0) else f"""
    s_and_b32 s15, s13, 1
    s_lshl_b32 s15, s15, 2
    s_lshr_b32 s3, s14, 3
    s_add_u32 s{sLAM}, s15, s3
    s_and_b32 s15, s13, 2
    s_lshl_b32 s15, s15, 2
    s_and_b32 s3, s14, 7
    s_add_u32 s{sRB}, s15, s3
    """
    TAGC = f"""
    s_or_b32 s3, s2, s{sWAVE}
    s_cmp_lg_u32 s3, 0
    s_cbranch_scc1 L_notag
    s_memrealtime s[34:35]
    s_waitcnt lgkmcnt(0)
    s_and_b32 s35, s34, 0x1fff
    s_lshl_b32 s35, s35, 1
    s_or_b32 s35, s35, 1
    s_bfe_u32 s3, s34, 0xf000d
    s_lshl_b32 s3, s3, 15
    s_or_b32 s35, s35, s3
    s_lshl_b32 s34, s34, 3
    s_and_b32 s34, s34, 0x80000000
    s_or_b32 s34, s34, s35
    v_mov_b32 v4, s34
    v_mov_b32 v5, 0
    s_mov_b64 exec, 1
    global_atomic_cmpswap v1, v[4:5], s[30:31] sc1
    s_mov_b64 exec, -1
    L_notag:
    """
    MAPB = f"""
    s_and_b32 s15, s13, 1
    s_lshl_b32 s15, s15, 2
    s_and_b32 s3, s14, 3
    s_add_u32 s{sLAM}, s15, s3
    s_and_b32 s15, s13, 2
    s_lshl_b32 s15, s15, 2
    s_lshr_b32 s3, s14, 2
    s_add_u32 s{sRB}, s15, s3
    """
    SPF = ""
    if opt.get("spf", 0):
        SPF = "s_getpc_b64 s[34:35]\nL_pc0:\n"
        n = 0
        for r, (l, cnt) in enumerate((("L_brB", 7), ("L_cmpB", 2), ("L_compute", 2))):
            SPF += f"s_add_u32 s{36+2*r}, s34, {l}-L_pc0\ns_addc_u32 s{37+2*r}, s35, 0\n"
            for k in range(cnt):
                SPF += f"s_load_dword s{64+n}, s[{36+2*r}:{37+2*r}], {128*k}\n"; n += 1
    a.raw(f"{NAME}_kernel:")
    a(f"""
    s_cmp_ge_u32 s2, 256
    s_cbranch_scc1 L_end
    s_load_dwordx16 s[16:31], s[0:1], 0
    s_load_dwordx2 s[32:33], s[0:1], 64
    {SPF}
    v_lshrrev_b32 v1, 6, v0
    v_and_b32 v{vL}, 63, v0
    v_readfirstlane_b32 s{sWAVE}, v1
    s_and_b32 s13, s2, 7
    s_lshr_b32 s14, s2, 3
    s_lshr_b32 s{sBR}, s13, 2
    s_xor_b32 s{sBR}, s{sBR}, {opt.get('swap', 1)}
    {MAP}
    v_lshlrev_b32 v{vL16}, 4, v{vL}
    v_lshrrev_b32 v1, 3, v{vL}
    v_and_b32 v2, 7, v{vL}
    v_lshrrev_b32 v3, 4, v{vL}
    s_cmp_lg_u32 s{sBR}, 0
    s_cbranch_scc1 L_brB
    s_cmp_lt_u32 s{sWAVE}, 4
    s_cbranch_scc1 L_compute
    """)
    rest_setup = f"""
    s_lshl_b32 s{sAH}, s13, 1
    s_and_b32 s3, s14, 1
    s_add_u32 s{sAH}, s{sAH}, s3
    s_lshr_b32 s{sARB}, s14, 1
    s_lshl_b32 s{sRB64}, s13, 2
    s_lshr_b32 s3, s14, 3
    s_add_u32 s{sRB64}, s{sRB64}, s3
    s_and_b32 s{sCB}, s14, 7
    """ + mk_srd(sWoA, 20, WOB_BYTES) + mk_srd(sWoB, 26, WOB_BYTES) + mk_srd(sWS, 32, WSB) + (f"s_add_u32 s{sWS}, s{sWS}, {opt['wso'] << 20}\ns_addc_u32 s{sWS+1}, s{sWS+1}, 0\n" if opt.get("wso") else "") + mk_srd(sOut, 28, OUTB)
    def prefetch(l):
        if not opt.get("pf", 0): return
        a(f"""
        s_cmp_lg_u32 s{sWAVE}, 1
        s_cbranch_scc1 L_notouch{l}
        v_min_u32 v4, 8, v{vL}
        v_lshlrev_b32 v4, 21, v4
        v_add_u32 v4, 0x1ff780, v4
        buffer_load_dword v217, v4, {srd(sWS)}, 0 offen sc1
        v_and_b32 v4, 1, v{vL}
        v_lshlrev_b32 v4, 21, v4
        buffer_load_dword v218, v4, {srd(sOut)}, 0 offen
        L_notouch{l}:
        s_and_b32 s3, s14, 15
        s_lshl_b32 s34, s{sWAVE}, 4
        s_or_b32 s3, s3, s34
        s_cmp_lg_u32 s3, 0x2f
        s_cbranch_scc1 L_nocode{l}
        s_getpc_b64 s[34:35]
        L_pc{l}:
        s_sub_u32 s34, s34, L_pc{l}-{NAME}_kernel
        s_subb_u32 s35, s35, 0
        v_lshlrev_b32 v4, 7, v{vL}
        global_load_dword v217, v4, s[34:35]
        v_add_u32 v4, 8192, v4
        global_load_dword v218, v4, s[34:35]
        v_add_u32 v4, 8192, v4
        global_load_dword v219, v4, s[34:35]
        L_nocode{l}:
        """)
    def get_tag(lbl):
        a(f"""
        s_mov_b32 s35, {POLL_MAX}
        L_tag{lbl}:
        v_readfirstlane_b32 s{sTAG}, v{vTAG}
        s_cmp_lg_u32 s{sTAG}, 0
        s_cbranch_scc1 L_tagok{lbl}
        v_mov_b32 v227, 0
        global_load_dword v{vTAG}, v227, s[30:31] sc1
        s_sub_u32 s35, s35, 1
        s_waitcnt vmcnt(0)
        s_cmp_lg_u32 s35, 0
        s_cbranch_scc1 L_tag{lbl}
        L_tagok{lbl}:
        """)
    def poll(lbl, vaddr, vd):
        a(f"""
        s_mov_b32 s35, {POLL_MAX}
        {"s_mov_b64 exec, 0xfff" if opt.get("apoll") else ""}
        L_poll{lbl}:
        {f"v_mov_b32 v{vd}, 0" if opt.get("apoll") else ""}
        {f"buffer_atomic_or v{vd}, v{vaddr}, {srd(sWS)}, s15 offen sc0 sc1" if opt.get("apoll") else f"buffer_load_dword v{vd}, v{vaddr}, {srd(sWS)}, s15 offen sc1"}
        s_sub_u32 s35, s35, 1
        s_waitcnt vmcnt(0)
        v_cmp_ne_u32 vcc, v{vd}, v{vTAG}
        s_cmp_eq_u32 s35, 0
        s_cbranch_scc1 L_pollok{lbl}
        s_cbranch_vccz L_pollok{lbl}
        s_sleep {opt.get("ps", 4)}
        s_branch L_poll{lbl}
        L_pollok{lbl}:
        {"s_mov_b64 exec, -1" if opt.get("apoll") else ""}
        """)
    sRP, sKQ, sT, sU = 60, 61, 62, 63
    vR15, vG, vWA, vMG, vV0, vC = 240, 241, 242, 250, 251, 252
    vNEG, vKa, vKw = 237, 239, 238
    vKq, vOo, vVa, vVb, vOne = 232, 233, 234, 235, 236
    vQm, vOn0, vOn1, vV1 = 228, 230, 231, 226
    sHB, sHQ, sP = 98, 100, 99
    sK = [16, 17, 18, 19, 20, 21]; sV = [22, 23, 24, 25, 26, 27]; sQA = 32
    sOB, sOA = 96, 28
    t0, t1, t2, t3, t4 = 220, 221, 222, 223, 224
    vPA = 225
    FLV = 64*16*128
    p2common = f"""
    s_and_b32 s{sRP}, s{sWAVE}, 1
    s_lshr_b32 s{sKQ}, s{sWAVE}, 1
    v_and_b32 v{vR15}, 15, v{vL}
    v_lshrrev_b32 v{vG}, 4, v{vL}
    v_cmp_gt_u32 vcc, 48, v{vL}
    v_cndmask_b32 v{vMG}, 0, -1, vcc
    v_lshrrev_b32 v{t0}, 2, v{vR15}
    v_lshl_add_u32 v{t1}, v{vG}, 2, v{t0}
    v_lshlrev_b32 v{t1}, 7, v{t1}
    s_mul_i32 s3, s{sKQ}, 14336
    v_add_u32 v{t1}, s3, v{t1}
    v_and_b32 v{t2}, 2, v{t0}
    v_and_b32 v{t3}, 1, v{vG}
    v_lshl_or_b32 v{t2}, v{t3}, 2, v{t2}
    v_lshlrev_b32 v{t2}, 4, v{t2}
    v_and_b32 v{t3}, 3, v{vL}
    v_lshlrev_b32 v{t4}, 3, v{t3}
    v_xor_b32 v{t2}, v{t2}, v{t4}
    v_add_u32 v{t1}, v{t1}, v{t2}
    v_and_b32 v{t2}, 2048, v{vMG}
    """ + "".join(f"""
    s_add_u32 s3, s{sKQ}, {c}
    s_and_b32 s3, s3, 3
    s_lshl_b32 s3, s3, 5
    v_xor_b32 v{vWA+c}, s3, v{t1}
    v_add_u32 v{vWA+4+c}, v{vWA+c}, v{t2}
    """ for c in range(4)) + f"""
    v_mov_b32 v{t4}, {BIG}
    v_lshlrev_b32 v{vKq}, 9, v{vG}
    v_lshl_add_u32 v{vKq}, v{vR15}, 4, v{vKq}
    v_lshlrev_b32 v{vOo}, 6, v{vR15}
    v_lshl_add_u32 v{vOo}, v{vG}, 4, v{vOo}
    v_lshlrev_b32 v{vVa}, 8, v{t0}
    v_lshl_add_u32 v{vVa}, v{vG}, 6, v{vVa}
    v_lshl_add_u32 v{vVa}, v{t3}, 4, v{vVa}
    v_add_u32 v{vVb}, 1024, v{vVa}
    v_cmp_gt_u32 vcc, 12, v{vR15}
    v_cndmask_b32 v{vVb}, v{t4}, v{vVb}, vcc
    v_cmp_eq_u32 vcc, 12, v{vR15}
    v_mov_b32 v{t4}, 0x3f803f80
    v_cndmask_b32 v{vOne}, 0, v{t4}, vcc
    v_mov_b32 v{vC}, {CSC}
    v_mov_b32 v{vNEG}, {NEG}
    s_and_b32 s3, s{sWAVE}, 6
    s_lshl_b32 s3, s3, 10
    s_add_u32 s3, s3, {L_KV}
    v_add_u32 v{vKa}, s3, v{vL16}
    s_mul_i32 s3, s{sAH}, 7
    s_lshr_b32 s{sHQ}, s3, 1
    s_lshl_b32 s{sHQ}, s{sHQ}, 9
    s_lshl_b32 s{sHB}, s3, 8
    v_cmp_lt_u32 vcc, 15, v{vL}
    v_cndmask_b32 v{t0}, 0, -1, vcc
    s_bitcmp1_b32 s{sAH}, 0
    s_cselect_b64 vcc, -1, 0
    v_cndmask_b32 v{vQm}, -1, v{t0}, vcc
    v_cndmask_b32 v{vQm+1}, v{vMG}, -1, vcc
    s_mul_i32 s3, s{sWAVE}, 3
    s_lshl_b32 s{sT}, s{sARB}, 3
    s_sub_u32 s{sT}, s{sT}, 16
    s_add_u32 s{sT}, s{sT}, s3
    s_lshl_b32 s3, s3, 10
    s_add_u32 s3, s3, {L_KV}
    v_add_u32 v{vKw}, s3, v{vL16}
    v_subrev_u32 v{t0}, 1024, v{vVb}
    s_bitcmp1_b32 s{sWAVE}, 0
    s_cselect_b64 vcc, -1, 0
    v_cndmask_b32 v{vV0}, v{vVa}, v{t0}, vcc
    v_cndmask_b32 v{vV1}, v{t0}, v{vVa}, vcc
    v_cndmask_b32 v{vOn0}, 0, v{vOne}, vcc
    v_cndmask_b32 v{vOn1}, v{vOne}, 0, vcc
    """ + "".join(f"""
    s_ashr_i32 s34, s{sT}, 1
    s_mul_i32 s34, s34, 28672
    s_and_b32 s35, s{sT}, 1
    s_lshl_b32 s3, s35, 10
    s_add_u32 s3, s3, s34
    s_add_u32 s3, s3, s{sHB}
    s_add_u32 s3, s3, {VO}
    s_lshl_b32 s35, s35, 8
    s_add_u32 s35, s35, s34
    s_add_u32 s35, s35, s{sHQ}
    s_add_u32 s35, s35, {KO}
    s_cmp_lt_i32 s{sT}, 0
    s_cselect_b32 s{sV[i]}, {BIG}, s3
    s_cselect_b32 s{sK[i]}, {BIG}, s35
    s_add_u32 s{sT}, s{sT}, 1
    """ for i in range(3)) + f"""
    s_lshl_b32 s3, s{sARB}, 3
    s_add_u32 s3, s3, s{sWAVE}
    s_lshr_b32 s34, s3, 1
    s_mul_i32 s34, s34, 28672
    s_and_b32 s35, s3, 1
    s_lshl_b32 s35, s35, 8
    s_add_u32 s35, s35, s34
    s_add_u32 s{sQA}, s35, s{sHQ}
    s_lshl_b32 s3, s3, 4
    s_add_u32 s3, s3, s{sAH}
    s_lshl_b32 s3, s3, 10
    s_add_u32 s33, s3, {OA}
    s_mul_i32 s3, s{sAH}, 7
    s_lshr_b32 s34, s3, 3
    s_add_u32 s3, s3, 6
    s_lshr_b32 s35, s3, 3
    s_sub_u32 s35, s35, s34
    v_and_b32 v{t0}, 1, v{vL}
    v_mul_u32_u24 v{t0}, s35, v{t0}
    v_add_u32 v{t0}, s34, v{t0}
    v_min_u32 v{t1}, 11, v{vL}
    v_lshrrev_b32 v{t1}, 1, v{t1}
    s_lshl_b32 s3, s{sARB}, 1
    s_sub_u32 s3, s3, 4
    v_add_u32 v{t1}, s3, v{t1}
    v_max_i32 v{t1}, 0, v{t1}
    v_lshl_add_u32 v{t1}, v{t1}, 4, v{t0}
    v_lshlrev_b32 v{vPA}, 7, v{t1}
    s_lshl_b32 s3, s{sRB64}, 2
    s_lshl_b32 s35, s{sRP}, 1
    s_add_u32 s3, s3, s35
    s_lshl_b32 s3, s3, 4
    s_lshl_b32 s35, s{sKQ}, 2
    s_add_u32 s3, s3, s35
    s_lshl_b32 s3, s3, 10
    s_add_u32 s{sOB}, s3, {OB}
    s_add_u32 s{sOB+1}, s{sOB}, 16384
    s_add_u32 s{sOA}, s3, {OA}
    s_add_u32 s{sOA+1}, s{sOA}, 16384
    s_mov_b32 s15, {FL1}
    """
    def normalize(O0, O1, ta, tb, dst):
        return [
            [f"v_mov_b32 v{ta}, v{O1}", f"v_mov_b32 v{tb}, v{O1}"],
            [f"v_permlane32_swap_b32 v{ta}, v{tb}"],
            [f"v_mov_b32 v{ta}, v{tb}"],
            [f"v_permlane16_swap_b32 v{ta}, v{tb}"],
            [f"v_rcp_f32 v{tb}, v{tb}"],
            [f"v_mul_f32 v{O0+i}, v{O0+i}, v{tb}" for i in range(4)] + [f"v_mul_f32 v{O1+i}, v{O1+i}, v{tb}" for i in range(4)],
            [f"v_cvt_pk_bf16_f32 v{dst}, v{O0}, v{O0+1}", f"v_cvt_pk_bf16_f32 v{dst+1}, v{O0+2}, v{O0+3}",
             f"v_cvt_pk_bf16_f32 v{dst+2}, v{O1}, v{O1+1}", f"v_cvt_pk_bf16_f32 v{dst+3}, v{O1+2}, v{O1+3}"],
            [f"v_bfi_b32 v{dst+3}, v{vMG}, v{dst+3}, v{vTAG}"],
        ]
    vXe, vXo, vW0, vW1, vWo, vPw = 10, 11, 13, 14, 15, 17
    sLW, sLx, sLw, sT0, sT1 = 96, 97, 101, 34, 35
    sLwo, sL1k = 14, 15
    a(f"""
    s_sub_u32 s{sLW}, s{sWAVE}, 4
    s_lshl_b32 s{sT0}, s{sRB}, 7
    s_lshl_b32 s{sT1}, s{sLW}, 5
    s_add_u32 s{sT0}, s{sT0}, s{sT1}
    v_add_u32 v4, s{sT0}, v1
    v_mul_u32_u24 v4, 896, v4
    v_xor_b32 v5, v2, v3
    v_lshl_add_u32 v{vXe}, v5, 4, v4
    v_xor_b32 v5, 4, v5
    v_lshl_add_u32 v{vXo}, v5, 4, v4
    v_add_u32 v{vXo}, 6144, v{vXo}
    s_lshl_b32 s{sLx}, s{sLW}, 12
    s_lshl_b32 s{sLw}, s{sLW}, 11
    s_lshl_b32 s{sT1}, s{sLW}, 4
    v_add_u32 v4, s{sT1}, v1
    v_mul_u32_u24 v4, 2688, v4
    s_lshl_b32 s{sT1}, s{sLAM}, 7
    v_add_u32 v4, s{sT1}, v4
    v_and_b32 v5, 1, v3
    v_lshlrev_b32 v5, 2, v5
    v_xor_b32 v5, v2, v5
    v_lshl_add_u32 v{vW0}, v5, 4, v4
    v_add_u32 v{vW1}, {8*2688-1024}, v{vW0}
    s_mov_b32 s{sX+2}, {XB}
    s_mov_b32 s{sX+3}, 0x20000
    s_mov_b32 s{sW+2}, {WB}
    s_mov_b32 s{sW+3}, 0x20000
    s_waitcnt lgkmcnt(0)
    s_mov_b32 s{sX}, s16
    s_mov_b32 s{sX+1}, s17
    s_mov_b32 s{sW}, s18
    s_mov_b32 s{sW+1}, s19
    """)
    stamp(0)
    a(f"""
    s_cmp_eq_u32 s{sLAM}, 7
    s_cbranch_scc1 L_ld_idle
    """)
    order = []
    def D(c):
        slot = ((c + 1) % 4) * SLOT
        a(f"""
        s_add_u32 m0, s{sLx}, {slot}
        s_mov_b32 s{sT0}, {c*128}
        s_mov_b32 s{sT1}, {c*128 + 12288}
        buffer_load_dwordx4 v{vXe}, {srd(sX)}, s{sT0} offen lds
        buffer_load_dwordx4 v{vXo}, {srd(sX)}, s{sT0} offen offset:1024 lds
        buffer_load_dwordx4 v{vXe}, {srd(sX)}, s{sT1} offen offset:2048 lds
        buffer_load_dwordx4 v{vXo}, {srd(sX)}, s{sT1} offen offset:3072 lds
        """)
        for p in (1, 2, 0):
            a(f"""
            s_add_u32 m0, s{sLw}, {slot + 16384 + p*8192}
            s_mov_b32 s{sT1}, {c*64*2688 + p*896}
            buffer_load_dwordx4 v{vW0}, {srd(sW)}, s{sT1} offen lds
            buffer_load_dwordx4 v{vW1}, {srd(sW)}, s{sT1} offen offset:1024 lds
            """)
        order.extend([c] * 10)
    def Wt(c):
        last = max(i for i, o in enumerate(order) if o == c)
        a(f"s_waitcnt vmcnt({len(order) - 1 - last})")
        if c == 0: stamp(1)
        a("s_barrier")
    wo_setup = rest_setup + f"""
    v_and_b32 v5, 6, v1
    v_xor_b32 v5, v2, v5
    v_mul_u32_u24 v4, 896, v1
    s_lshl_b32 s{sT1}, s{sCB}, 7
    v_add_u32 v4, s{sT1}, v4
    v_lshl_add_u32 v{vWo}, v5, 4, v4
    s_cmp_eq_u32 s{sCB}, 7
    s_cselect_b64 vcc, -1, 0
    v_mov_b32 v7, {BIG}
    v_cndmask_b32 v{vWo}, v{vWo}, v7, vcc
    v_mov_b32 v1, 0
    s_mul_i32 s3, s14, 98
    s_and_b32 s{sT1}, s{sLW}, 1
    s_mul_i32 s{sT1}, s{sT1}, 49
    s_add_u32 s3, s3, s{sT1}
    v_min_u32 v4, 48, v{vL}
    v_add_u32 v4, s3, v4
    v_lshlrev_b32 v{vPw}, 7, v4
    s_mul_i32 s{sLwo}, s{sLW}, 7168
    s_lshl_b32 s{sL1k}, s{sLW}, 10
    global_load_dword v{vTAG}, v1, s[30:31] sc1
    """
    def issue_wo(i0, i1):
        for i in range(i0, i1):
            br = i >= 14
            a(f"""
            s_add_u32 m0, s{sL1k}, {4096*i}
            s_add_u32 s{sT1}, s{sLwo}, {(4*i - 56*br)*7168}
            buffer_load_dwordx4 v{vWo}, {srd(sWoA if br else sWoB)}, s{sT1} offen lds
            """)
            order.append("wo")
    vPf = 16
    sPS, sPO = 60, 61
    PFN = " nt" if opt.get("pnt", 0) else ""
    def pf_setup(wmul):
        a(f"""
        s_and_b32 s{sT0}, s13, 2
        s_lshl_b32 s{sT0}, s{sT0}, 9
        s_lshl_b32 s{sT1}, s14, 5
        s_add_u32 s{sT0}, s{sT0}, s{sT1}
        v_min_u32 v4, 31, v{vL}
        v_add_u32 v4, s{sT0}, v4
        v_mul_u32_u24 v{vPf}, 896, v4
        v_min_u32 v4, 23, v{vL}
        v_cmp_le_u32 vcc, 12, v4
        v_cndmask_b32 v5, 0, 1, vcc
        v_mul_u32_u24 v6, 12, v5
        v_sub_u32 v6, v4, v6
        s_lshl_b32 s{sT0}, s14, 1
        v_add_u32 v5, s{sT0}, v5
        v_mul_u32_u24 v5, 2688, v5
        v_lshrrev_b32 v4, 2, v6
        v_mul_u32_u24 v4, 896, v4
        v_add_u32 v5, v5, v4
        v_and_b32 v6, 3, v6
        v_lshl_add_u32 v5, v6, 7, v5
        s_and_b32 s{sT0}, s13, 1
        s_mul_i32 s{sT0}, s{sT0}, {wmul}
        v_add_u32 v5, s{sT0}, v5
        s_bitcmp1_b32 s{sLW}, 0
        s_cselect_b64 vcc, -1, 0
        s_mov_b32 s{sPS}, 128
        s_cselect_b32 s{sPS}, 172032, s{sPS}
        s_cselect_b32 s44, s{sW}, s{sX}
        s_cselect_b32 s45, s{sW+1}, s{sX+1}
        s_cselect_b32 s46, s{sW+2}, s{sX+2}
        s_mov_b32 s47, 0x20000
        v_cndmask_b32 v{vPf}, v{vPf}, v5, vcc
        s_lshr_b32 s{sPO}, s{sLW}, 1
        s_add_u32 s{sPO}, s{sPO}, 1
        s_mul_i32 s{sPO}, s{sPO}, s{sPS}
        s_lshl_b32 s{sPS}, s{sPS}, 1
        """)
    def pf():
        a(f"""
        buffer_load_dword v20, v{vPf}, s[44:47], s{sPO} offen{PFN}
        s_add_u32 s{sPO}, s{sPO}, s{sPS}
        """)
        order.append("pf")
    PMA, PMB = opt.get("pma", 1), opt.get("pmb", 2)
    def head(Dx, wmul):
        PM = PMA if wmul == 512 else PMB
        if PM == 0: Dx(0); Dx(1); Wt(0); Dx(2); Wt(1); Dx(3)
        elif PM == 1: Dx(0); pf_setup(wmul); pf(); Dx(1); Wt(0); Dx(2); pf(); pf(); Wt(1); Dx(3)
        elif PM == 2: Dx(0); pf_setup(wmul); pf(); Dx(1); Wt(0); pf(); Dx(2); Wt(1); pf(); Dx(3)
        elif PM == 4: Dx(0); pf_setup(wmul); pf(); Wt(0); Dx(1); pf(); Dx(2); Wt(1); pf(); Dx(3)
        elif PM == 5: Dx(0); pf_setup(wmul); pf(); pf(); Wt(0); Dx(1); Dx(2); pf(); Wt(1); Dx(3)
        elif PM == 3: Dx(0); pf_setup(wmul); pf(); pf(); pf(); Dx(1); Wt(0); Dx(2); Wt(1); Dx(3)
    def pf_wo(l):
        if opt.get("nopw"): return
        a(f"""
        s_cmp_lt_u32 s{sLW}, 2
        s_cbranch_scc1 L_pwB{l}
        buffer_load_dword v20, v{vPw}, {srd(sWoA)}, 0 offen
        s_branch L_pwD{l}
        L_pwB{l}:
        buffer_load_dword v20, v{vPw}, {srd(sWoB)}, 0 offen
        L_pwD{l}:
        """)
        order.append("pfw")
    head(D, 512)
    a(wo_setup); order.append("tag")
    if opt.get("seq", 0) == 1:
        Wt(2); D(4); Wt(3); D(5); pf_wo(0); Wt(4); D(6); issue_wo(0, 10); Wt(5); issue_wo(10, 20); Wt(6)
    elif opt.get("seq", 0) == 0:
        Wt(2); D(4); Wt(3); D(5); Wt(4); D(6); pf_wo(0); Wt(5)
        DEF = opt.get("defer", 2)
        if DEF < 4: issue_wo(0, 10)
        Wt(6)
        if DEF >= 2: a("s_barrier")
        if DEF == 4: issue_wo(0, 10)
        issue_wo(10, 20)
        if DEF == 1: a("s_barrier")
    else:
        Wt(2); D(4); Wt(3); D(5); Wt(4); D(6); pf_wo(0); Wt(5); issue_wo(0, 14); Wt(6); a("s_sleep 16"); issue_wo(14, 20)
    a("s_branch L_ld2")
    a.raw("L_ld_idle:")
    if PMA: pf_setup(512); pf(); pf(); pf()
    a(wo_setup)
    pf_wo(1)
    issue_wo(0, 20)
    a.raw("L_ld2:")
    issue_wo(20, 28)
    a(p2common)
    a("s_waitcnt vmcnt(28)" if opt.get("nowait", 0) else "s_waitcnt vmcnt(0)")
    get_tag("l")
    if not opt.get("lp", 1):
        a(f"""
        s_cmp_lg_u32 s{sWAVE}, 7
        s_cbranch_scc1 L_pollok1
        """)
        poll("1", vPA, 9)
    stamp(2)
    a("s_branch L_phase2")

    a.raw("L_compute:")
    sCH, sRH = 96, 97
    sSQ, sSK, sSV, sSQh, sSKh, sFl = 36, 37, 38, 39, 40, 41
    def Acc(p, rt): return p*32 + rt*16
    def Fx(s, rt): return 96 + 20*s + 4*rt
    def Fw(s, p): return 96 + 20*s + 8 + 4*p
    vxa = [200, 201, 202, 203]; vwa = 204
    vQo, vVo = 205, 206
    slot0 = SLOT
    a(f"""
    s_waitcnt lgkmcnt(0)
    v_mov_b32 v1, 0
    {'' if opt.get('swap', 1) else TAGC}
    """)
    stamp(0)
    a(rest_setup)
    prefetch('a')
    a(f"""
    s_and_b32 s{sCH}, s{sWAVE}, 1
    s_lshr_b32 s{sRH}, s{sWAVE}, 1
    s_cmp_eq_u32 s{sLAM}, 7
    s_cbranch_scc1 L_cmp_idle
    v_and_b32 v2, 31, v{vL}
    v_lshrrev_b32 v3, 5, v{vL}
    v_bfe_u32 v4, v{vL}, 2, 2
    s_lshl_b32 s3, s{sLAM}, 1
    s_add_u32 s3, s3, s{sCH}
    s_lshl_b32 s34, s3, 11
    v_add_u32 v{vQo}, s34, v{vL16}
    v_bfe_u32 v6, v{vL}, 4, 1
    v_lshlrev_b32 v6, 2, v6
    v_and_b32 v7, 1, v4
    v_lshl_add_u32 v6, v7, 1, v6
    v_lshrrev_b32 v7, 1, v4
    v_add_u32 v6, v6, v7
    v_lshl_add_u32 v7, v6, 8, s34
    v_lshl_add_u32 v7, v3, 6, v7
    v_and_b32 v8, 3, v{vL}
    v_lshl_add_u32 v{vVo}, v8, 4, v7
    s_lshl_b32 s34, s{sRB}, 1
    s_add_u32 s34, s34, s{sRH}
    s_mul_i32 s{sSQ}, s34, 57344
    s_add_u32 s{sSQh}, s{sSQ}, 28672
    s_add_u32 s{sSK}, s{sSQ}, {KO}
    s_add_u32 s{sSKh}, s{sSQh}, {KO}
    s_add_u32 s{sSV}, s{sSQ}, {VO}
    s_add_u32 s15, s{sSQh}, {VO}
    s_lshl_b32 s34, s34, 4
    s_add_u32 s34, s34, s3
    s_lshl_b32 s34, s34, 7
    s_add_u32 s{sFl}, s34, {FL1}
    """)
    def qkv_stores(data):
        for p, lo, hi in ((1, sSK, sSKh), (2, None, None), (0, sSQ, sSQh)):
            for rt in range(2):
                for half in range(2):
                    d = data(p, rt, half)
                    if p == 2: a(f"buffer_store_dwordx4 {q4(d)}, v{vVo}, {srd(sWS)}, s{sSV} offen offset:{rt*2048 + half*128} sc1")
                    else: a(f"buffer_store_dwordx4 {q4(d)}, v{vQo}, {srd(sWS)}, s{hi if half else lo} offen offset:{rt*512} sc1")
    a(f"""
    global_load_dword v{vTAG}, v1, s[30:31] sc1
    s_lshl_b32 s3, s{sRH}, 6
    v_add_u32 v5, s3, v2
    v_lshlrev_b32 v5, 7, v5
    v_bfe_u32 v6, v2, 1, 3
    v_xor_b32 v6, v6, v3
    v_lshl_add_u32 v{vxa[0]}, v6, 4, v5
    v_add_u32 v{vxa[0]}, {slot0}, v{vxa[0]}
    v_xor_b32 v{vxa[1]}, 32, v{vxa[0]}
    v_xor_b32 v{vxa[2]}, 64, v{vxa[0]}
    v_xor_b32 v{vxa[3]}, 96, v{vxa[0]}
    v_lshl_add_u32 v6, v3, 3, v4
    v_lshlrev_b32 v6, 7, v6
    v_add_u32 v6, {slot0 + 16384}, v6
    v_bfe_u32 v7, v{vL}, 4, 1
    v_lshlrev_b32 v7, 5, v7
    v_and_b32 v8, 1, v{vL}
    v_lshl_or_b32 v7, v8, 4, v7
    v_bfe_u32 v8, v{vL}, 1, 1
    v_lshl_or_b32 v7, v8, 3, v7
    s_lshl_b32 s3, s{sCH}, 6
    v_or_b32 v7, s3, v7
    v_and_b32 v8, 2, v4
    v_lshlrev_b32 v8, 5, v8
    v_xor_b32 v7, v7, v8
    v_add_u32 v{vwa}, v6, v7
    """)
    def reads(s, ks):
        L = [f"ds_read_b128 {q4(Fx(s,rt))}, v{vxa[ks]} offset:{rt*4096}" for rt in range(2)]
        for p in (1, 2, 0):
            for u in range(2):
                L.append(f"ds_read_b64_tr_b16 {q2(Fw(s, p) + 2*u)}, v{vwa} offset:{p*8192 + ks*2048 + u*512}")
        return L
    def kstep(s, rd, extra=(), zero=False):
        M = []
        for p in (1, 2, 0):
            for rt in range(2):
                A, B = (Fx(s,rt), Fw(s,p)) if p == 2 else (Fw(s,p), Fx(s,rt))
                M.append(f"v_mfma_f32_32x32x16_bf16 {q16(Acc(p,rt))}, {q4(A)}, {q4(B)}, {'0' if zero else q16(Acc(p,rt))}")
        per = [3, 3, 2, 0, 0, 0]
        k = 0
        extra = list(extra)
        for i, m in enumerate(M):
            a(m)
            for _ in range(per[i]):
                if k < len(rd): a(rd[k]); k += 1
            if i >= 3:
                for _ in range(4):
                    if extra: a(extra.pop(0))
        for e in extra: a(e)
    sC, sD = 42, 43
    a("s_barrier")
    stamp(1)
    for r in reads(0, 0): a(r)
    a(f"s_mov_b32 s{sC}, 0")
    ex0 = [f"s_and_b32 s3, s{sC}, 3", f"s_cmp_eq_u32 s3, 2", f"s_mov_b32 s{sD}, {SLOT}",
           f"s_cselect_b32 s{sD}, {(-3*SLOT) & 0xffffffff}, s{sD}",
           f"v_add_u32 v{vxa[0]}, s{sD}, v{vxa[0]}", f"v_add_u32 v{vxa[1]}, s{sD}, v{vxa[1]}"]
    a("s_waitcnt lgkmcnt(0)")
    kstep(0, reads(1, 1), ex0, zero=True)
    a("s_branch L_gemm1")
    a.raw("L_gemm:")
    a("s_waitcnt lgkmcnt(0)")
    kstep(0, reads(1, 1), ex0)
    a.raw("L_gemm1:")
    a("s_waitcnt lgkmcnt(0)")
    kstep(1, reads(0, 2), [f"v_add_u32 v{vxa[2]}, s{sD}, v{vxa[2]}"])
    a("s_waitcnt lgkmcnt(0)")
    kstep(0, reads(1, 3), [f"v_add_u32 v{vxa[3]}, s{sD}, v{vxa[3]}", f"v_add_u32 v{vwa}, s{sD}, v{vwa}",
                           f"s_add_u32 s{sC}, s{sC}, 1", f"s_cmp_lt_u32 s{sC}, 6"])
    a("s_waitcnt lgkmcnt(0)")
    a("s_barrier")
    kstep(1, reads(0, 0))
    a("s_cbranch_scc1 L_gemm")
    def cvt(d, s0): a(f"v_cvt_pk_bf16_f32 v{d}, v{s0}, v{s0+1}")
    def mf(p, rt, ks):
        A, B = (Fx(ks,rt), Fw(ks,p)) if p == 2 else (Fw(ks,p), Fx(ks,rt))
        return f"v_mfma_f32_32x32x16_bf16 {q16(Acc(p,rt))}, {q4(A)}, {q4(B)}, {q16(Acc(p,rt))}"
    rd = []
    for ks in (1, 2, 3):
        r = reads(ks, ks); rd += r[0:4]
    for ks in (1, 2, 3): rd += reads(ks, ks)[6:8]
    for ks in (1, 2, 3): rd += reads(ks, ks)[4:6]
    a("s_waitcnt vmcnt(0) lgkmcnt(0)")
    k = 0
    for p in (1, 0, 2):
        for rt in range(2):
            a(mf(p, rt, 0))
            for _ in range(3): a(rd[k]); k += 1
    def epi(p):
        L = []
        for rt in range(2):
            for half in range(2):
                if p == 2:
                    d = 176 + (rt*2+half)*4; s0 = Acc(2, rt) + 4*half
                    L += [f"v_cvt_pk_bf16_f32 v{d}, v{s0}, v{s0+1}", f"v_cvt_pk_bf16_f32 v{d+1}, v{s0+2}, v{s0+3}",
                          f"v_cvt_pk_bf16_f32 v{d+2}, v{s0+8}, v{s0+9}", f"v_cvt_pk_bf16_f32 v{d+3}, v{s0+10}, v{s0+11}",
                          f"buffer_store_dwordx4 {q4(d)}, v{vVo}, {srd(sWS)}, s{15 if rt else sSV} offen offset:{half*128} sc1"]
                else:
                    d = Acc(p, rt) + 8*half
                    lo, hi = (sSK, sSKh) if p == 1 else (sSQ, sSQh)
                    L += [f"v_cvt_pk_bf16_f32 v{d+i}, v{d+2*i}, v{d+2*i+1}" for i in range(4)]
                    L += [f"buffer_store_dwordx4 {q4(d)}, v{vQo}, {srd(sWS)}, s{hi if rt else lo} offen offset:{half*1024} sc1"]
        return L
    for n, ks in enumerate((1, 2, 3)):
        a(f"s_waitcnt lgkmcnt({min(15, k - 4*(n+1))})")
        for rt in range(2):
            a(mf(1, rt, ks))
            if k < 24: a(rd[k]); k += 1
    pend = epi(1)
    for p, nxt, base in ((0, 0, 12), (2, None, 18)):
        for n, ks in enumerate((1, 2, 3)):
            a(f"s_waitcnt lgkmcnt({24 - base - 2*(n+1)})")
            for rt in range(2):
                a(mf(p, rt, ks))
                if n or rt:
                    for _ in range(4):
                        if pend: a(pend.pop(0))
        for x in pend: a(x)
        pend = epi(p)
    stamp(3)
    for x in pend: a(x)
    if opt.get("defer", 2) in (1, 2): a("s_barrier")
    stamp(2)
    a("v_mov_b32 v227, 0")
    a("s_waitcnt vmcnt(0)")
    get_tag("c")
    a(f"""
    s_mov_b64 exec, 1
    buffer_store_dword v{vTAG}, v227, {srd(sWS)}, s{sFl} offen sc1
    s_mov_b64 exec, -1
    """)
    stamp(4)
    if opt.get("defer", 2) >= 3: a("s_barrier")
    a("s_branch L_cmp2")
    a.raw("L_cmp_idle:")
    a(f"global_load_dword v{vTAG}, v1, s[30:31] sc1")
    a("s_waitcnt vmcnt(0)")
    get_tag("i")
    a.raw("L_cmp2:")
    a(p2common)
    a("s_branch L_phase2")
    a.raw("L_brB:")
    SLB = 43008
    SB0 = 34816
    a(MAPB)
    a(f"""
    s_cmp_lt_u32 s{sWAVE}, 4
    s_cbranch_scc1 L_cmpB
    """)
    vXh = 12
    sLh = 63
    a(f"""
    s_sub_u32 s{sLW}, s{sWAVE}, 4
    s_lshl_b32 s{sT0}, s{sRB}, 7
    s_lshl_b32 s{sT1}, s{sLW}, 5
    s_add_u32 s{sT0}, s{sT0}, s{sT1}
    v_add_u32 v4, s{sT0}, v1
    v_mul_u32_u24 v4, 896, v4
    v_xor_b32 v5, v2, v3
    v_lshl_add_u32 v{vXe}, v5, 4, v4
    v_xor_b32 v5, 4, v5
    v_lshl_add_u32 v{vXo}, v5, 4, v4
    v_add_u32 v{vXo}, 6144, v{vXo}
    s_lshl_b32 s{sLx}, s{sLW}, 12
    s_lshl_b32 s{sLw}, s{sLW}, 11
    s_lshl_b32 s{sLh}, s{sLW}, 9
    s_lshl_b32 s{sT1}, s{sLW}, 4
    v_add_u32 v4, s{sT1}, v1
    v_mul_u32_u24 v4, 2688, v4
    s_mul_i32 s{sT1}, s{sLAM}, 112
    v_add_u32 v4, s{sT1}, v4
    v_and_b32 v5, 1, v3
    v_lshlrev_b32 v5, 1, v5
    v_xor_b32 v5, v2, v5
    v_mov_b32 v7, {BIG}
    v_lshl_add_u32 v{vW0}, v5, 4, v4
    v_cmp_eq_u32 vcc, 7, v5
    v_xor_b32 v6, 4, v5
    v_cndmask_b32 v{vW0}, v{vW0}, v7, vcc
    v_lshl_add_u32 v{vW1}, v6, 4, v4
    v_cmp_eq_u32 vcc, 7, v6
    v_add_u32 v{vW1}, {8*2688-1024}, v{vW1}
    v_cndmask_b32 v{vW1}, v{vW1}, v7, vcc
    s_lshl_b32 s{sT0}, s{sRB}, 7
    s_lshl_b32 s{sT1}, s{sLW}, 2
    s_add_u32 s{sT0}, s{sT0}, s{sT1}
    s_sub_u32 s{sT0}, s{sT0}, 16
    v_add_u32 v4, s{sT0}, v1
    v_mul_i32_i24 v4, 896, v4
    s_lshl_b32 s{sT1}, s{sLW}, 1
    v_add_u32 v5, s{sT1}, v3
    v_and_b32 v5, 7, v5
    v_xor_b32 v5, v2, v5
    v_lshl_add_u32 v{vXh}, v5, 4, v4
    s_cmp_eq_u32 s{sRB}, 0
    s_cselect_b64 vcc, -1, 0
    v_cndmask_b32 v{vXh}, v{vXh}, v7, vcc
    s_mov_b32 s{sX+2}, {XB}
    s_mov_b32 s{sX+3}, 0x20000
    s_mov_b32 s{sW+2}, {WB}
    s_mov_b32 s{sW+3}, 0x20000
    s_waitcnt lgkmcnt(0)
    s_mov_b32 s{sX}, s22
    s_mov_b32 s{sX+1}, s23
    s_mov_b32 s{sW}, s24
    s_mov_b32 s{sW+1}, s25
    """)
    stamp(0)
    del order[:]
    def DB(c):
        slot = SB0 + ((c + 2) % 3) * SLB
        a(f"""
        s_add_u32 m0, s{sLx}, {slot + 2048}
        s_mov_b32 s{sT0}, {c*128}
        s_mov_b32 s{sT1}, {c*128 + 12288}
        buffer_load_dwordx4 v{vXe}, {srd(sX)}, s{sT0} offen lds
        buffer_load_dwordx4 v{vXo}, {srd(sX)}, s{sT0} offen offset:1024 lds
        buffer_load_dwordx4 v{vXe}, {srd(sX)}, s{sT1} offen offset:2048 lds
        buffer_load_dwordx4 v{vXo}, {srd(sX)}, s{sT1} offen offset:3072 lds
        """)
        for p in range(3):
            a(f"""
            s_add_u32 m0, s{sLw}, {slot + 18432 + p*8192}
            s_mov_b32 s{sT1}, {c*64*2688 + p*896}
            buffer_load_dwordx4 v{vW0}, {srd(sW)}, s{sT1} offen lds
            buffer_load_dwordx4 v{vW1}, {srd(sW)}, s{sT1} offen offset:1024 lds
            """)
        a(f"""
        s_add_u32 m0, s{sLh}, {slot}
        s_mov_b64 exec, 0xffffffff
        buffer_load_dwordx4 v{vXh}, {srd(sX)}, s{sT0} offen lds
        s_mov_b64 exec, -1
        """)
        order.extend([c] * 11)
    head(DB, 384)
    a(wo_setup); order.append("tag")
    Wt(2); DB(4); Wt(3); DB(5); Wt(4); DB(6); pf_wo(2); Wt(5); issue_wo(0, 10); Wt(6); issue_wo(10, 20)
    a("s_branch L_ld2")
    a.raw("L_cmpB:")
    sHH = 96
    def Qa(rt, ft): return ((rt-1)*2+ft)*4
    def Ka(rt, ft): return 32 + (rt*2+ft)*4
    def Va(rt, ft): return 72 + (rt*2+ft)*4
    def Gx(s, rt): return 112 + 44*s + 4*rt
    def Gw(s, p, ft): return 112 + 44*s + 20 + (p*2+ft)*4
    bxa = [200, 201]; bwa = [202, 203]
    vBS, vBP, vBP1 = 204, 208, 212
    sl0 = SB0 + 2 * SLB
    a(f"""
    s_and_b32 s{sHH}, s{sWAVE}, 1
    s_lshr_b32 s{sRH}, s{sWAVE}, 1
    v_and_b32 v2, 15, v{vL}
    s_lshl_b32 s3, s{sRH}, 6
    v_add_u32 v4, s3, v2
    v_lshlrev_b32 v4, 7, v4
    v_lshrrev_b32 v5, 1, v2
    v_xor_b32 v5, v5, v3
    v_lshl_add_u32 v{bxa[0]}, v5, 4, v4
    v_add_u32 v{bxa[0]}, {sl0}, v{bxa[0]}
    v_xor_b32 v{bxa[1]}, 64, v{bxa[0]}
    v_lshrrev_b32 v4, 2, v2
    v_and_b32 v5, 3, v{vL}
    v_lshl_add_u32 v6, v3, 3, v4
    v_lshlrev_b32 v6, 7, v6
    v_add_u32 v6, {sl0 + 18432}, v6
    v_and_b32 v7, 2, v4
    v_and_b32 v8, 1, v3
    v_lshl_or_b32 v7, v8, 2, v7
    v_lshlrev_b32 v7, 4, v7
    s_mul_i32 s3, s{sHH}, 56
    v_lshl_add_u32 v8, v5, 3, s3
    v_xor_b32 v9, v8, v7
    v_add_u32 v{bwa[0]}, v6, v9
    v_add_u32 v8, 32, v8
    v_cmp_eq_u32 vcc, 56, v8
    v_mov_b32 v9, 120
    v_cndmask_b32 v8, v8, v9, vcc
    v_xor_b32 v9, v8, v7
    v_add_u32 v{bwa[1]}, v6, v9
    v_cmp_eq_u32 vcc, 12, v2
    v_cndmask_b32 v216, 0, 1.0, vcc
    v_mov_b32 v217, v216
    v_mov_b32 v218, v216
    v_mov_b32 v219, v216
    s_lshl_b32 s34, s{sRB}, 1
    s_add_u32 s34, s34, s{sRH}
    s_lshl_b32 s37, s34, 6
    s_lshl_b32 s3, s{sLAM}, 1
    s_add_u32 s3, s3, s{sHH}
    s_add_u32 s3, s3, s37
    s_lshl_b32 s3, s3, 10
    s_add_u32 s36, s3, {OB}
    s_mov_b32 s37, s34
    v_mov_b32 v1, 0
    s_waitcnt lgkmcnt(0)
    {TAGC if opt.get('swap', 1) else ''}
    """)
    stamp(0)
    pc = [l for l in p2common.split("\n") if l.strip()]
    cut = next(k for k in range(len(pc)) if pc[k].strip().startswith("s_mul_i32 s3, s%d, 3" % sWAVE))
    bias = f"""
    v_mov_b32 v224, {NEG}
    v_and_b32 v220, 15, v{vL}
    v_lshrrev_b32 v221, 4, v{vL}
    v_lshlrev_b32 v221, 2, v221
    v_sub_u32 v220, v220, v221
    """ + "".join(f"""
    v_subrev_u32 v221, {i}, v220
    v_and_b32 v222, 0x80000001, v221
    v_cmp_eq_u32 vcc, 0, v222
    v_cndmask_b32 v{vBS+i}, v224, 0, vcc
    v_cmp_eq_u32 vcc, 0x80000000, v222
    v_cndmask_b32 v{vBP+i}, v224, 0, vcc
    """ for i in range(4)) + """
    s_cmp_eq_u32 s37, 0
    s_cselect_b64 vcc, -1, 0
    """ + "".join(f"v_cndmask_b32 v{vBP1+i}, v{vBP+i}, v224, vcc\n" for i in range(4))
    pieces = [rest_setup + f"v_mov_b32 v227, 0\nglobal_load_dword v{vTAG}, v227, s[30:31] sc1\n" + bias, "\n".join(pc[:cut]), "\n".join(pc[cut:])]
    def breads(s, ks):
        L = [f"ds_read_b128 {q4(Gx(s,rt))}, v{bxa[ks]} offset:{rt*2048}" for rt in (1, 2, 3, 4, 0)]
        for p in range(3):
            for ft in range(2):
                for u in range(2):
                    L.append(f"ds_read_b64_tr_b16 {q2(Gw(s,p,ft) + 2*u)}, v{bwa[ft]} offset:{p*8192 + ks*4096 + u*512}")
        return L
    def bstep(s, rd, zero=False):
        M = []
        C = lambda r, z='0': z if zero else q4(r)
        for rt in (1, 2, 3, 4, 0):
            for ft in range(2):
                if rt: M.append(f"v_mfma_f32_16x16x32_bf16 {q4(Qa(rt,ft))}, {q4(Gw(s,0,ft))}, {q4(Gx(s,rt))}, {C(Qa(rt,ft))}")
                M.append(f"v_mfma_f32_16x16x32_bf16 {q4(Ka(rt,ft))}, {q4(Gw(s,1,ft))}, {q4(Gx(s,rt))}, {C(Ka(rt,ft))}")
                M.append(f"v_mfma_f32_16x16x32_bf16 {q4(Va(rt,ft))}, {q4(Gx(s,rt))}, {q4(Gw(s,2,ft))}, {C(Va(rt,ft), q4(216) if ft else '0')}")
        for i, m in enumerate(M):
            a(m)
            if i < len(rd): a(rd[i])
    a("s_barrier")
    stamp(1)
    for r in breads(0, 0): a(r)
    a(f"s_mov_b32 s{sC}, 0")
    a("s_waitcnt lgkmcnt(0)")
    bstep(0, breads(1, 1), zero=True)
    a(pieces[0]); a(pieces[1])
    a(f"""
    s_mul_i32 s3, s{sC}, 86
    s_lshr_b32 s3, s3, 8
    s_mul_i32 s3, s3, 3
    s_cmp_eq_u32 s3, s{sC}
    s_mov_b32 s{sD}, {SLB}
    s_cselect_b32 s{sD}, {(-2*SLB) & 0xffffffff}, s{sD}
    v_add_u32 v{bxa[0]}, s{sD}, v{bxa[0]}
    v_add_u32 v{bxa[1]}, s{sD}, v{bxa[1]}
    v_add_u32 v{bwa[0]}, s{sD}, v{bwa[0]}
    v_add_u32 v{bwa[1]}, s{sD}, v{bwa[1]}
    s_cmp_eq_u32 s{sC}, 6
    s_waitcnt lgkmcnt(0)
    s_cbranch_scc1 L_nobarB0
    s_barrier
    L_nobarB0:
    """)
    bstep(1, breads(0, 0))
    a(pieces[2])
    a(f"s_mov_b32 s{sC}, 1")
    a.raw("L_gemmB:")
    a("s_waitcnt lgkmcnt(0)")
    bstep(0, breads(1, 1))
    a(f"""
    s_mul_i32 s3, s{sC}, 86
    s_lshr_b32 s3, s3, 8
    s_mul_i32 s3, s3, 3
    s_cmp_eq_u32 s3, s{sC}
    s_mov_b32 s{sD}, {SLB}
    s_cselect_b32 s{sD}, {(-2*SLB) & 0xffffffff}, s{sD}
    v_add_u32 v{bxa[0]}, s{sD}, v{bxa[0]}
    v_add_u32 v{bxa[1]}, s{sD}, v{bxa[1]}
    v_add_u32 v{bwa[0]}, s{sD}, v{bwa[0]}
    v_add_u32 v{bwa[1]}, s{sD}, v{bwa[1]}
    s_cmp_eq_u32 s{sC}, 6
    s_waitcnt lgkmcnt(0)
    s_cbranch_scc1 L_nobarB
    s_barrier
    L_nobarB:
    """)
    bstep(1, breads(0, 0))
    a(f"""
    s_add_u32 s{sC}, s{sC}, 1
    s_cmp_lt_u32 s{sC}, 7
    s_cbranch_scc1 L_gemmB
    """)
    stamp(3)
    def Qf(j): return 168 + 4*(j-1)
    def Kf(rt): return 128 + 4*rt
    def Vf(dt, rt): return 148 + 10*dt + 2*rt
    a("s_waitcnt vmcnt(0) lgkmcnt(0)")
    get_tag("b")
    for rt in (1, 2, 3, 4, 0):
        for ft in range(2):
            if rt:
                cvt(Qf(rt)+2*ft, Qa(rt,ft)); cvt(Qf(rt)+2*ft+1, Qa(rt,ft)+2)
            cvt(Kf(rt)+2*ft, Ka(rt,ft)); cvt(Kf(rt)+2*ft+1, Ka(rt,ft)+2)
            cvt(Vf(ft,rt), Va(rt,ft)); cvt(Vf(ft,rt)+1, Va(rt,ft)+2)
    stamp(4)
    if opt.get('be', 0):
        def SB(j, t): return 8*(j-1) + 4*t
        for j in range(1, 5):
            bp = vBP1 if j == 1 else vBP
            a(f"v_mfma_f32_16x16x32_bf16 {q4(SB(j,0))}, {q4(Kf(j-1))}, {q4(Qf(j))}, {q4(bp)}")
            a(f"v_mfma_f32_16x16x32_bf16 {q4(SB(j,1))}, {q4(Kf(j))}, {q4(Qf(j))}, {q4(vBS)}")
        M = lambda j: 32 + (j-1)
        T = lambda j: 36 + (j-1)
        for j in range(1, 5):
            s = SB(j, 0)
            a(f"v_max3_f32 v{M(j)}, v{s}, v{s+1}, v{s+2}")
            a(f"v_max3_f32 v{T(j)}, v{s+3}, v{s+4}, v{s+5}")
            a(f"v_max3_f32 v{M(j)}, v{M(j)}, v{s+6}, v{s+7}")
            a(f"v_max_f32 v{M(j)}, v{M(j)}, v{T(j)}")
        for sw in ("v_permlane32_swap_b32", "v_permlane16_swap_b32"):
            for j in range(1, 5): a(f"v_mov_b32 v{T(j)}, v{M(j)}")
            for j in range(1, 5): a(f"{sw} v{M(j)}, v{T(j)}")
            for j in range(1, 5): a(f"v_max_f32 v{M(j)}, v{M(j)}, v{T(j)}")
        for j in range(1, 5): a(f"v_mul_f32 v{M(j)}, v{vC}, v{M(j)}")
        for j in range(1, 5):
            for i in range(8): a(f"v_fma_f32 v{SB(j,0)+i}, v{SB(j,0)+i}, v{vC}, -v{M(j)}")
        for j in range(1, 5):
            for i in range(8): a(f"v_exp_f32 v{SB(j,0)+i}, v{SB(j,0)+i}")
        P = lambda j: 40 + 4*(j-1)
        for j in range(1, 5):
            for i in range(4): cvt(P(j)+i, SB(j,0)+2*i)
        O = lambda j, dt: 8*(j-1) + 4*dt
        for j in range(1, 5):
            for dt in (1, 0):
                a(f"v_mfma_f32_16x16x32_bf16 {q4(O(j,dt))}, {q4(Vf(dt,j-1))}, {q4(P(j))}, 0")
        st = [normalize(O(j,0), O(j,1), 56+2*(j-1), 57+2*(j-1), 100+4*(j-1)) for j in range(1, 5)]
        for k in range(len(st[0])):
            for j in range(4):
                for x in st[j][k]: a(x)
        for j in range(1, 5):
            a(f"buffer_store_dwordx4 {q4(100+4*(j-1))}, v{vOo}, {srd(sWS)}, s36 offen sc1")
            if j < 4: a("s_add_u32 s36, s36, 16384")
    a.raw("L_phase2:")
    def wo_reads(base):
        L = []
        for hq in range(4):
            for cidx in range(4):
                for u in range(2):
                    d = base + (hq*4 + cidx)*4 + 2*u
                    L.append(f"ds_read_b64_tr_b16 {q2(d)}, v{vWA + 4*u + ((cidx + 2*(hq&1)) & 3)} offset:{hq*3584}")
        return L
    def wo_mask(base):
        return [f"v_and_b32 v{base + f*4 + 2 + r}, v{vMG}, v{base + f*4 + 2 + r}" for f in range(16) for r in range(2)]
    WB_, OF_ = 128, 192
    QF = 124
    KS, VS = 72, 84
    QB_, KB_, VB_ = 8, 16, 28
    sBud = 14
    def qmask(r):
        for i in range(4): a(f"v_and_b32 v{r+i}, v{vQm + (i>>1)}, v{r+i}")
    if opt.get("lp", 1):
        a("s_barrier")
        a(f"""
        s_cmp_lg_u32 s{sWAVE}, 7
        s_cbranch_scc1 L_pollok1
        """)
        poll("1", vPA, 9)
    a("s_barrier")
    stamp(11)
    for i in range(3):
        a(f"buffer_load_dwordx4 {q4(KS+4*i)}, v{vKq}, {srd(sWS)}, s{sK[i]} offen sc1")
    a(f"buffer_load_dwordx4 {q4(QF)}, v{vKq}, {srd(sWS)}, s{sQA} offen sc1")
    for i in range(3):
        a(f"buffer_load_dwordx4 {q4(VS+4*i)}, v{vV1 if i == 1 else vV0}, {srd(sWS)}, s{sV[i]} offen sc1")
    if not opt.get('be', 0):
        a(f"""
        s_lshr_b32 s3, s{sWAVE}, 2
        s_cmp_gt_u32 s{sBR}, s3
        s_cbranch_scc0 L_noB1
        """)
        def SB(j, t): return 8*(j-1) + 4*t
        for j in range(1, 5):
            bp = vBP1 if j == 1 else vBP
            a(f"v_mfma_f32_16x16x32_bf16 {q4(SB(j,0))}, {q4(Kf(j-1))}, {q4(Qf(j))}, {q4(bp)}")
            a(f"v_mfma_f32_16x16x32_bf16 {q4(SB(j,1))}, {q4(Kf(j))}, {q4(Qf(j))}, {q4(vBS)}")
        M = lambda j: 32 + (j-1)
        T = lambda j: 36 + (j-1)
        for j in range(1, 5):
            s = SB(j, 0)
            a(f"v_max3_f32 v{M(j)}, v{s}, v{s+1}, v{s+2}")
            a(f"v_max3_f32 v{T(j)}, v{s+3}, v{s+4}, v{s+5}")
            a(f"v_max3_f32 v{M(j)}, v{M(j)}, v{s+6}, v{s+7}")
            a(f"v_max_f32 v{M(j)}, v{M(j)}, v{T(j)}")
        for sw in ("v_permlane32_swap_b32", "v_permlane16_swap_b32"):
            for j in range(1, 5): a(f"v_mov_b32 v{T(j)}, v{M(j)}")
            for j in range(1, 5): a(f"{sw} v{M(j)}, v{T(j)}")
            for j in range(1, 5): a(f"v_max_f32 v{M(j)}, v{M(j)}, v{T(j)}")
        for j in range(1, 5): a(f"v_mul_f32 v{M(j)}, v{vC}, v{M(j)}")
        for j in range(1, 5):
            for i in range(8): a(f"v_fma_f32 v{SB(j,0)+i}, v{SB(j,0)+i}, v{vC}, -v{M(j)}")
        for j in range(1, 5):
            for i in range(8): a(f"v_exp_f32 v{SB(j,0)+i}, v{SB(j,0)+i}")
        P = lambda j: 40 + 4*(j-1)
        for j in range(1, 5):
            for i in range(4): cvt(P(j)+i, SB(j,0)+2*i)
        O = lambda j, dt: 8*(j-1) + 4*dt
        for j in range(1, 5):
            for dt in (1, 0):
                a(f"v_mfma_f32_16x16x32_bf16 {q4(O(j,dt))}, {q4(Vf(dt,j-1))}, {q4(P(j))}, 0")
        st = [normalize(O(j,0), O(j,1), 56+2*(j-1), 57+2*(j-1), 100+4*(j-1)) for j in range(1, 5)]
        for k in range(len(st[0])):
            for j in range(4):
                for x in st[j][k]: a(x)
    a.raw("L_noB1:")
    for r in wo_reads(WB_): a(r)
    a(f"""
    s_mov_b32 s{sBud}, {POLL_MAX}
    v_lshlrev_b32 v8, 2, v{vG}
    v_sub_u32 v8, v8, v{vR15}
    s_bitcmp1_b32 s{sWAVE}, 0
    s_cselect_b64 s[34:35], -1, 0
    """)
    for i in range(4):
        a(f"""
        v_add_u32 v9, {i}, v8
        v_cmp_lt_i32 vcc, 0, v9
        v_cndmask_b32 v10, v{vNEG}, 0, vcc
        v_cndmask_b32 v11, 0, v{vNEG}, vcc
        v_cndmask_b32 v{0+i}, v10, v{vNEG}, s[34:35]
        v_cndmask_b32 v{4+i}, 0, v10, s[34:35]
        v_cndmask_b32 v{64+i}, v11, 0, s[34:35]
        v_cndmask_b32 v{68+i}, v{vNEG}, v11, s[34:35]
        """)
    for i in range(8): a(f"v_add_u32 v{vWA+i}, {L_WOA}, v{vWA+i}")
    a("s_waitcnt lgkmcnt(0)")
    for x in wo_mask(WB_): a(x)
    a(f"""
    s_cmp_ge_u32 s{sARB}, 2
    s_cbranch_scc1 L_nofix
    s_waitcnt vmcnt(4)
    v_not_b32 v9, v{vQm}
    v_not_b32 v10, v{vQm+1}
    v_and_b32 v9, 0xff7f, v9
    v_and_b32 v10, 0xff7f, v10
    """)
    for i in range(3):
        qmask(KS+4*i)
        a(f"""
        s_cmp_eq_u32 s{sK[i]}, {BIG}
        s_cbranch_scc0 L_fx{i}
        v_or_b32 v{KS+4*i}, v9, v{KS+4*i}
        v_or_b32 v{KS+4*i+2}, v10, v{KS+4*i+2}
        L_fx{i}:
        """)
    a.raw("L_nofix:")
    for i in range(3):
        a(f"s_waitcnt vmcnt({6-i})")
        if i == 0: stamp(5)
        a(f"ds_write_b128 v{vKw}, {q4(KS+4*i)} offset:{1024*i}")
    for i in range(3):
        a(f"s_waitcnt vmcnt({2-i})")
        for r in range(4): a(f"v_or_b32 v{VS+4*i+r}, v{vOn1 if i == 1 else vOn0}, v{VS+4*i+r}")
        a(f"ds_write_b128 v{vKw}, {q4(VS+4*i)} offset:{24576+1024*i}")
    if not opt.get('be', 0):
        a(f"""
        s_lshr_b32 s3, s{sWAVE}, 2
        s_cmp_gt_u32 s{sBR}, s3
        s_cbranch_scc0 L_noB2
        """)
        for j in range(1, 5):
            a(f"buffer_store_dwordx4 {q4(100+4*(j-1))}, v{vOo}, {srd(sWS)}, s36 offen sc1")
            if j < 4: a("s_add_u32 s36, s36, 16384")
    a.raw("L_noB2:")
    stamp(6)
    qmask(QF)
    a(f"""
    s_cmp_ge_u32 s{sARB}, 2
    s_cbranch_scc1 L_nofixq
    v_not_b32 v9, v{vQm}
    v_not_b32 v10, v{vQm+1}
    v_and_b32 v9, 0x3f80, v9
    v_or_b32 v{QF}, v9, v{QF}
    v_and_b32 v10, 0x3f80, v10
    v_or_b32 v{QF+2}, v10, v{QF+2}
    L_nofixq:
    s_waitcnt lgkmcnt(0)
    s_barrier
    """)
    stamp(12)
    if opt.get("pr", 0): a("s_setprio 1")
    if opt.get("cyc2"):
        a("s_memtime s[66:67]")
        a("s_waitcnt lgkmcnt(0)")
    KBUF = 72; NKB = 6
    def kread(t): return f"ds_read_b128 {q4(KBUF + 4*(t % NKB))}, v{vKa} offset:{t*1024}"
    for t in range(NKB - 1): a(kread(t))
    vM, vT = 120, 121
    def mx(t):
        r = 4*t
        if t == 0:
            a(f"v_max_f32 v{vM}, v0, v1"); a(f"v_max_f32 v{vT}, v2, v3")
        else:
            a(f"v_max3_f32 v{vM}, v{vM}, v{r}, v{r+1}"); a(f"v_max3_f32 v{vT}, v{vT}, v{r+2}, v{r+3}")
    LAG = 4
    for t in range(18):
        if t + NKB - 1 < 18: a(kread(t + NKB - 1))
        outstanding = min(18, t + NKB) - (t + 1)
        a(f"s_waitcnt lgkmcnt({outstanding})")
        c = q4(4*t) if t in (0, 1, 16, 17) else "0"
        a(f"v_mfma_f32_16x16x32_bf16 {q4(4*t)}, {q4(KBUF + 4*(t % NKB))}, {q4(QF)}, {c}")
        if t >= LAG: mx(t - LAG)
    VBUF = [96 + 4*i for i in range(6)]
    NVB = len(VBUF)
    WA_ = 0
    ACCB = [64, 68, 72, 76, 80, 84, 88, 92]
    ACCA = [96, 100, 104, 108, 112, 116, 120, 124]
    sNext = 27
    lq = []
    def lds(ins, tag): a(ins); lq.append(tag)
    def lwait(tag):
        last = max(i for i, t in enumerate(lq) if t == tag)
        a(f"s_waitcnt lgkmcnt({min(15, len(lq) - 1 - last)})")
    def vread(n):
        lds(f"ds_read_b128 {q4(VBUF[n % NVB])}, v{vKa} offset:{24576 + (n>>1)*2048 + (n&1)*1024}", ("v", n))
    for n in range(NVB): vread(n)
    for t in range(18 - LAG, 18): mx(t)
    a(f"v_max_f32 v{vM}, v{vM}, v{vT}")
    for sw in ("v_permlane32_swap_b32", "v_permlane16_swap_b32"):
        a(f"v_mov_b32 v{vT}, v{vM}")
        a(f"{sw} v{vM}, v{vT}")
        a(f"v_max_f32 v{vM}, v{vM}, v{vT}")
    a(f"v_mul_f32 v{vM}, v{vC}, v{vM}")
    stamp(7)
    def o_load(f, s0):
        hq, tt = f >> 1, f & 1
        return f"buffer_load_dwordx4 {q4(OF_ + f*4)}, v{vOo}, {srd(sWS)}, s{s0 + tt} offen offset:{hq*1024} sc1"
    def frag(lbl, f, wbase, acc, wait, after):
        hq, tt = f >> 1, f & 1
        r = OF_ + f*4
        a(f"""
        s_cmp_lg_u32 s{sNext}, {f}
        s_cbranch_scc1 L_sk{lbl}{f}
        {wait}
        v_cmp_ne_u32 vcc, v{r+3}, v{vTAG}
        s_lshr_b32 s3, vcc_hi, 16
        s_cbranch_scc1 L_sk{lbl}{f}
        """)
        for cidx in range(4):
            d = acc[tt*4+cidx]
            a(f"v_mfma_f32_16x16x32_bf16 {q4(d)}, {q4(wbase + (hq*4+cidx)*4)}, {q4(r)}, {'0' if f < 2 else q4(d)}")
        a(f"s_add_u32 s{sNext}, s{sNext}, 1")
        if after is not None: a(o_load(f, after))
        a.raw(f"L_sk{lbl}{f}:")
    OACC = 224
    war = wo_reads(WA_); wam = wo_mask(WA_)
    LU, FU = opt.get("lu", 4), opt.get("fu", 5)
    a(f"s_mov_b32 s{sNext}, 0")
    for u in range(9):
        b = 8*u
        for i in range(8): a(f"v_fma_f32 v{b+i}, v{b+i}, v{vC}, -v{vM}")
        if LU <= u < LU + 4:
            for f in (2*(u-LU), 2*(u-LU)+1): a(o_load(f, sOB))
        for i in range(8): a(f"v_exp_f32 v{b+i}, v{b+i}")
        if opt.get('inpv', 0) and FU <= u < FU + 4:
            for f in range(2*(u-FU), 2*(u-FU)+2): frag("P", f, WB_, ACCB, f"s_waitcnt vmcnt({7-f})", None)
        for i in range(4): a(f"v_cvt_pk_bf16_f32 v{b+i}, v{b+2*i}, v{b+2*i+1}")
        lwait(("v", 2*u+1))
        for dt in range(2):
            c = "0" if u == 0 else q4(OACC + 4*dt)
            a(f"v_mfma_f32_16x16x32_bf16 {q4(OACC+4*dt)}, {q4(VBUF[(2*u+dt) % NVB])}, {q4(b)}, {c}")
        for n in (NVB + 2*u, NVB + 1 + 2*u):
            if n < 18: vread(n)
    for x in war: a(x)
    for grp in normalize(OACC, OACC+4, 232, 234, 236):
        for x in grp: a(x)
    a(f"buffer_store_dwordx4 {q4(236)}, v{vOo}, {srd(sWS)}, s33 offen sc1")
    if opt.get("pr", 0): a("s_setprio 0")
    stamp(13)
    if opt.get("cyc2"):
        a("s_memtime s[68:69]")
        a("s_waitcnt lgkmcnt(0)")
        a("s_sub_u32 s68, s68, s66")
        a("s_add_u32 s68, s68, s64")
    a(f"""
    s_cmp_eq_u32 s{sCB}, 7
    s_cbranch_scc1 L_fin
    """)
    vXW, vXR, vOut = 224, 228, 230
    a(f"""
    s_lshl_b32 s3, s{sKQ}, 14
    s_lshl_b32 s35, s{sRP}, 13
    s_add_u32 s35, s35, s3
    v_lshlrev_b32 v231, 8, v{vR15}
    v_add_u32 v231, s35, v231
    v_xor_b32 v232, v{vG}, v{vR15}
    """)
    for cidx in range(4):
        a(f"""
        s_add_u32 s3, s{sKQ}, {cidx}
        s_and_b32 s3, s3, 3
        s_lshl_b32 s3, s3, 2
        v_xor_b32 v234, s3, v232
        v_lshl_add_u32 v{vXW+cidx}, v234, 4, v231
        """)
    a(f"""
    v_lshrrev_b32 v231, 3, v{vL}
    s_lshl_b32 s3, s{sWAVE}, 3
    v_add_u32 v231, s3, v231
    v_and_b32 v232, 7, v{vL}
    v_lshlrev_b32 v234, 1, v232
    v_and_b32 v235, 15, v231
    v_xor_b32 v234, v234, v235
    v_lshlrev_b32 v234, 4, v234
    v_lshl_add_u32 v{vXR}, v231, 8, v234
    v_xor_b32 v{vXR+1}, 16, v{vXR}
    s_lshl_b32 s3, s{sRB64}, 6
    v_add_u32 v231, s3, v231
    v_mul_u32_u24 v231, 1792, v231
    v_lshl_add_u32 v231, v232, 4, v231
    s_lshl_b32 s3, s{sCB}, 7
    v_add_u32 v{vOut}, s3, v231
    """)
    def finish(lbl, wbase, acc, s0, after):
        a(f"""
        s_cmp_eq_u32 s{sNext}, 8
        s_cbranch_scc1 L_done{lbl}
        L_again{lbl}:
        {f"s_sleep {opt['as']}" if opt.get("as") else ""}
        """)
        for f in range(8):
            a(f"s_cmp_gt_u32 s{sNext}, {f}")
            a(f"s_cbranch_scc1 L_rl{lbl}{f}")
            a(o_load(f, s0))
            a.raw(f"L_rl{lbl}{f}:")
        a("s_waitcnt vmcnt(0)")
        a.raw(f"L_first{lbl}:")
        for f in range(8): frag(lbl, f, wbase, acc, "", after)
        a(f"""
        s_cmp_eq_u32 s{sBud}, 0
        s_cbranch_scc1 L_done{lbl}
        s_sub_u32 s{sBud}, s{sBud}, 1
        s_cmp_lg_u32 s{sNext}, 8
        s_cbranch_scc1 L_again{lbl}
        {"s_waitcnt vmcnt(0)" if after is not None else ""}
        L_done{lbl}:
        """)
    def exch_write(acc):
        for tt in range(2):
            for cidx in range(4):
                a(f"ds_write_b128 v{vXW+cidx}, {q4(acc[tt*4+cidx])} offset:{tt*4096}")
        a("s_waitcnt lgkmcnt(0)")
        a("s_barrier")
    def exch_final(RB_, outoff):
        for k in range(4):
            for h in range(2):
                a(f"ds_read_b128 {q4(RB_ + (k*2+h)*4)}, v{vXR+h} offset:{k*16384}")
        a("s_waitcnt lgkmcnt(4)")
        for i in range(8): a(f"v_add_f32 v{RB_+i}, v{RB_+i}, v{RB_+8+i}")
        a("s_waitcnt lgkmcnt(0)")
        for i in range(8): a(f"v_add_f32 v{RB_+16+i}, v{RB_+16+i}, v{RB_+24+i}")
        for i in range(8): a(f"v_add_f32 v{RB_+i}, v{RB_+i}, v{RB_+16+i}")
        for i in range(4): a(f"v_cvt_pk_bf16_f32 v{RB_+8+i}, v{RB_+2*i}, v{RB_+2*i+1}")
        a(f"s_mov_b32 s3, {outoff}")
        a(f"buffer_store_dwordx4 {q4(RB_+8)}, v{vOut}, {srd(sOut)}, s3 offen")
    if not opt.get('inpv', 0):
        for f in range(8): frag("R", f, WB_, ACCB, f"s_waitcnt vmcnt({8-f})", None)
    finish("B", WB_, ACCB, sOB, None)
    stamp(8)
    AL = opt.get("al", 1)
    def aloads(k):
        if AL == k:
            for f in range(8): a(o_load(f, sOA))
    aloads(0)
    a(f"s_mov_b32 s{sNext}, 0")
    a("s_waitcnt lgkmcnt(0)")
    for x in wam: a(x)
    a("s_barrier")
    aloads(1)
    exch_write(ACCB)
    aloads(2)
    if opt.get("rechk", 1) and AL == 0:
        a("s_waitcnt vmcnt(0)")
        for f in range(8):
            a(f"""
            v_cmp_ne_u32 vcc, v{OF_+f*4+3}, v{vTAG}
            s_lshr_b32 s3, vcc_hi, 16
            s_cbranch_scc0 L_ok{f}
            {o_load(f, sOA)}
            L_ok{f}:
            """)
    exch_final(128, 896)
    aloads(3)
    for i in range(4): a(f"v_add_u32 v{vXW+i}, 65536, v{vXW+i}")
    for i in range(2): a(f"v_add_u32 v{vXR+i}, 65536, v{vXR+i}")
    stamp(14)
    for f in range(8): frag("Q", f, WA_, ACCA, "s_waitcnt vmcnt(1)" if (opt.get("rechk", 1) and AL == 0) else f"s_waitcnt vmcnt({(7 if AL == 3 else 8)-f})", None)
    finish("A", WA_, ACCA, sOA, None)
    stamp(9)
    exch_write(ACCA)
    exch_final(160, 0)
    a.raw("L_fin:")
    if stamps:
        stamp(15)
        if "probe" in opt:
            X = opt["probe"]
            a(f"""
            v_readfirstlane_b32 s12, v{vTAG}
            s_bfe_u32 s3, s12, 0xd0001
            s_bfe_u32 s34, s12, 0xf000f
            s_lshl_b32 s34, s34, 13
            s_or_b32 s3, s3, s34
            s_lshr_b32 s34, s12, 31
            s_lshl_b32 s34, s34, 28
            s_or_b32 s3, s3, s34
            s_sub_u32 s34, s{64+2*X}, s3
            s_add_u32 s34, s34, 200
            s_and_b32 s34, s34, 0x1fffffff
            s_cmp_lt_u32 s34, 5000
            s_cselect_b32 s34, s34, 0
            s_cmp_eq_u32 s{sBR}, {1 - opt.get("pbr", 5) if "pbr" in opt else 7}
            s_cselect_b32 s34, 0, s34
            s_add_u32 s34, s34, 3000
            s_mov_b32 s35, 100000
            L_pw:
            s_memrealtime s[16:17]
            s_waitcnt lgkmcnt(0)
            s_sub_u32 s16, s16, s3
            s_and_b32 s16, s16, 0x1fffffff
            s_sub_u32 s35, s35, 1
            s_cmp_eq_u32 s35, 0
            s_cbranch_scc1 L_end
            s_cmp_lt_u32 s16, s34
            s_cbranch_scc1 L_pw
            s_endpgm
            """)
        a(f"""
        s_sub_u32 s84, {POLL_MAX}, s{sBud}
        s_mul_i32 s84, s84, 100
        s_add_u32 s84, s84, s64
        s_lshl_b32 s3, s2, 3
        s_add_u32 s3, s3, s{sWAVE}
        s_lshl_b32 s3, s3, 6
        s_add_u32 s3, s3, {STAMP}
        v_mov_b32 v1, 0
        s_mov_b64 exec, 1
        """)
        if opt.get("dbgst"):
            ids = [1, 2, 3, 4, 5, 6, 7, 8, 9, 11, 12, 13, 14, 15]
            a("s_not_b32 s3, s64")
            a("v_mov_b32 v2, s3")
            a("global_atomic_umax v1, v2, s[30:31] offset:4")
            for k, i in enumerate(ids):
                a(f"s_sub_u32 s3, s{64+2*i}, s64")
                a("s_cmp_lt_u32 s3, 100000")
                a(f"s_cselect_b32 s3, s{64+2*i}, 0")
                a("v_mov_b32 v2, s3")
                a(f"global_atomic_umax v1, v2, s[30:31] offset:{8+4*k}")
            a("s_endpgm")
        for i in range(16):
            a(f"v_mov_b32 v2, s{64+2*i}")
            a(f"buffer_store_dword v2, v1, {srd(sWS)}, s3 offen offset:{4*i}")
    a.raw("L_end:")
    a("s_endpgm")
    bad = a.check_branches()
    for b in bad: print("BRANCH HAZARD", b, file=sys.stderr)
    assert not bad
    out = HEADER + f"""; @launch grid=(256,1,1) block=(512,1,1) lds=163840
""" + DOC + f""".amdgcn_target "amdgcn-amd-amdhsa--gfx950"
.text
.globl {NAME}_kernel
.p2align 8
.type {NAME}_kernel,@function
""" + a.text() + f""".section .rodata,"a"
.p2align 6
.amdhsa_kernel {NAME}_kernel
  .amdhsa_next_free_vgpr 256
  .amdhsa_next_free_sgpr 102
  .amdhsa_accum_offset 256
  .amdhsa_group_segment_fixed_size 0
  .amdhsa_kernarg_size 72
  .amdhsa_user_sgpr_count 2
  .amdhsa_user_sgpr_kernarg_segment_ptr 1
  .amdhsa_system_sgpr_workgroup_id_x 1
.end_amdhsa_kernel
"""
    return out

if __name__ == "__main__":
    stamps = int(sys.argv[1]); path = sys.argv[2]
    opt = dict((kv.split("=")[0], int(kv.split("=")[1])) for kv in sys.argv[3:])
    open(path, "w").write(gen(stamps, opt))
```
